```python
import torch

def _softmax(x, axis=-1):
    return torch.softmax(x, dim=axis)

def _gelu(x):
    return torch.nn.functional.gelu(x, approximate='tanh')

def _silu(x):
    return torch.nn.functional.silu(x)

def _sigmoid(x):
    return torch.sigmoid(x)

def _layernorm(x, axis=-1, eps=1e-05):
    m = x.mean(dim=axis, keepdim=True)
    v = x.var(dim=axis, keepdim=True, unbiased=False)
    return (x - m) / torch.sqrt(v + eps)

def _scatter_add(tgt, idx, src, axis=0):
    return tgt.clone().index_add_(axis, idx, src)

def _segment_sum(src, seg, n):
    out = torch.zeros((n,) + src.shape[1:], dtype=src.dtype)
    return out.index_add_(0, seg, src)

def _pad(x, pw):
    flat = tuple((v for pair in reversed(pw) for v in pair))
    return torch.nn.functional.pad(x, flat)
kernel_name = 'adaLN_cond__sliding_local_dilated__glu_gated_glu__prompt'

def setup_inputs():

    _w = lambda a: (lambda t: t.to(torch.bfloat16) if t.is_floating_point() else t)(torch.as_tensor(a))

    def _A_setup():
        B, S, D = (1, 2048, 512)
        return {'x': _w((lambda *s: torch.randn(*s, dtype=torch.bfloat16) * 0.05)(B, S, D)), 'wqkv': _w((lambda *s: torch.randn(*s, dtype=torch.bfloat16) * 0.05)(D, 3 * D)), 'wo': _w((lambda *s: torch.randn(*s, dtype=torch.bfloat16) * 0.05)(D, D))}
    _A_in = _A_setup()

    def _B_setup():
        B, S, D, F = (1, 2048, 512, 1376)
        return {'x': _w((lambda *s: torch.randn(*s, dtype=torch.bfloat16) * 0.05)(B, S, D)), 'w_gate': _w((lambda *s: torch.randn(*s, dtype=torch.bfloat16) * 0.05)(D, F)), 'w_up': _w((lambda *s: torch.randn(*s, dtype=torch.bfloat16) * 0.05)(D, F)), 'w_down': _w((lambda *s: torch.randn(*s, dtype=torch.bfloat16) * 0.05)(F, D))}
    _B_in = _B_setup()
    return {'A_x': _A_in['x'], 'A_wqkv': _A_in['wqkv'], 'A_wo': _A_in['wo'], 'B_x': _B_in['x'], 'B_w_gate': _B_in['w_gate'], 'B_w_up': _B_in['w_up'], 'B_w_down': _B_in['w_down'], 'c': _w((lambda *s: torch.randn(*s, dtype=torch.bfloat16) * 0.1)(1, 512) * 8.0), 'w_mod': _w((lambda *s: torch.randn(*s, dtype=torch.bfloat16) * 0.1)(512, 6 * 512) * 512 ** (-0.5) * 8.0)}

def reference(A_x, A_wqkv, A_wo, B_x, B_w_gate, B_w_up, B_w_down, c, w_mod):

    def _A_ref(x, wqkv, wo):
        B, S, D = x.shape
        H = 32
        Dh = D // H
        W, dil = (8, 2)
        qkv = (lambda x, *d: x.permute(*d))((x @ wqkv).reshape(B, S, 3, H, Dh), 2, 0, 3, 1, 4)
        q, k, v = (qkv[0], qkv[1], qkv[2])
        scale = Dh ** (-0.5)
        pos = torch.arange(S)
        off = torch.arange(W) * dil
        idx = pos[:, None] - off[None, :]
        mask = idx >= 0
        idx_c = torch.where(mask, idx, 0).reshape(-1)
        kg = k[:, :, idx_c, :].reshape(B, H, S, W, Dh)
        vg = v[:, :, idx_c, :].reshape(B, H, S, W, Dh)
        logits = torch.einsum('bhsd,bhswd->bhsw', q, kg) * scale
        logits = torch.where(mask[None, None, :, :], logits, -1000000000.0)
        attn = _softmax(logits, axis=-1)
        o = torch.einsum('bhsw,bhswd->bhsd', attn, vg)
        return (lambda x, *d: x.permute(*d))(o, 0, 2, 1, 3).reshape(B, S, D) @ wo

    def _B_ref(x, w_gate, w_up, w_down):
        g = torch.einsum('bsd,df->bsf', x, w_gate)
        u = torch.einsum('bsd,df->bsf', x, w_up)
        h = _sigmoid(g) * u
        return torch.einsum('bsf,fd->bsd', h, w_down)
    x = A_x
    mod = (_silu(c) @ w_mod).reshape(c.shape[0], 6, 1, -1)
    sa, ca, ga, sb, cb, gb = (mod[:, 0].clone(), mod[:, 1].clone(), mod[:, 2].clone(), mod[:, 3].clone(), mod[:, 4].clone(), mod[:, 5].clone())
    h = _layernorm(x, axis=-1) * (1 + ca) + sa
    x = x + ga * _A_ref(h, A_wqkv, A_wo)
    h = _layernorm(x, axis=-1) * (1 + cb) + sb
    x = x + gb * _B_ref(h, B_w_gate, B_w_up, B_w_down)
    return x
```

```python
import re

REG_RE = re.compile(r'\b([vas])(?:\[(\d+):(\d+)\]|(\d+))(?![\w])')


def regs_of(tok):
    out = set()
    t = tok.strip()
    if t in ('vcc',):
        return {('s', 'vcc')}
    if t in ('exec',):
        return {('s', 'exec')}
    if t == 'm0':
        return {('s', 'm0')}
    for m in REG_RE.finditer(t):
        k = m.group(1)
        if m.group(2) is not None:
            for i in range(int(m.group(2)), int(m.group(3)) + 1):
                out.add((k, i))
        else:
            out.add((k, int(m.group(4))))
    return out


TRANS = ('v_exp_f32', 'v_log_f32', 'v_rcp_f32', 'v_rsq_f32', 'v_sqrt_f32', 'v_sin_f32', 'v_cos_f32')


class Ins:
    def __init__(self, text):
        self.text = text
        t = text.split(';')[0].strip()
        self.is_label = t.endswith(':')
        self.is_dir = t.startswith('.')
        parts = t.split(None, 1)
        self.op = parts[0] if parts else ''
        rest = parts[1] if len(parts) > 1 else ''
        ops = [o.strip() for o in re.split(r',(?![^\[]*\])', rest)] if rest else []
        self.ops = ops
        op = self.op
        self.kind = 'other'
        self.wr = set()
        self.rd = set()
        self.mfma_c = set()
        self.mfma_ab = set()
        self.passes = 0
        if self.is_label or self.is_dir or not op:
            self.kind = 'label' if self.is_label else 'dir'
            return
        if op.startswith('v_mfma'):
            self.kind = 'mfma'
            self.wr = regs_of(ops[0])
            self.mfma_ab = regs_of(ops[1]) | regs_of(ops[2])
            self.mfma_c = regs_of(ops[3])
            self.rd = self.mfma_ab | self.mfma_c
            self.passes = 8 if '32x32' in op else 4
        elif op.startswith('v_'):
            self.kind = 'valu'
            base = op.replace('_e32', '').replace('_e64', '')
            if base.startswith('v_cmp'):
                self.wr = regs_of(ops[0])
                for o in ops[1:]:
                    self.rd |= regs_of(o)
            elif base in ('v_permlane16_swap_b32', 'v_permlane32_swap_b32', 'v_swap_b32'):
                self.wr = regs_of(ops[0]) | regs_of(ops[1])
                self.rd = set(self.wr)
            else:
                self.wr = regs_of(ops[0])
                start = 1
                if base in ('v_add_co_u32', 'v_addc_co_u32', 'v_sub_co_u32'):
                    self.wr |= regs_of(ops[1])
                    start = 2
                for o in ops[start:]:
                    self.rd |= regs_of(o)
                if base.startswith('v_fmac') or base.startswith('v_dot2c') or '_dpp' in base:
                    self.rd |= regs_of(ops[0])
            self.trans = base in TRANS
            self.dpp = '_dpp' in op
            self.perml = base.startswith('v_permlane')
            self.rdlane = base in ('v_readfirstlane_b32', 'v_readlane_b32')
            self.dot = base.startswith('v_dot2')
            self.base = base
        elif op.startswith('ds_'):
            self.kind = 'ds'
            if op.startswith('ds_read') or op.startswith('ds_bpermute') or op.startswith('ds_swizzle'):
                self.wr = regs_of(ops[0])
                for o in ops[1:]:
                    self.rd |= regs_of(o)
            else:
                for o in ops:
                    self.rd |= regs_of(o)
        elif op.startswith('buffer_') or op.startswith('global_'):
            self.kind = 'vmem'
            self.lds = bool(re.search(r'\blds\b', t)) or '_lds_' in op
            isload = '_load' in op
            if isload and not self.lds:
                self.wr = regs_of(ops[0])
                for o in ops[1:]:
                    self.rd |= regs_of(o)
            else:
                for o in ops:
                    self.rd |= regs_of(o)
            if self.lds:
                self.rd.add(('s', 'm0'))
            self.wide_store = ('_store_dwordx4' in op or '_store_dwordx3' in op)
            if self.wide_store:
                self.sdata = regs_of(ops[0]) if op.startswith('buffer_') else regs_of(ops[1])
        elif op.startswith('s_'):
            self.kind = 'salu'
            if op in ('s_nop', 's_waitcnt', 's_barrier', 's_branch', 's_endpgm', 's_sleep', 's_setprio') or op.startswith('s_cbranch'):
                pass
            elif op.startswith('s_cmp'):
                for o in ops:
                    self.rd |= regs_of(o)
            else:
                self.wr = regs_of(ops[0])
                for o in ops[1:]:
                    self.rd |= regs_of(o)
                if 'saveexec' in op:
                    self.wr.add(('s', 'exec'))

    def states(self):
        if self.kind in ('label', 'dir'):
            return 0
        if self.op == 's_nop':
            return int(self.ops[0], 0) + 1
        return 1


def need(p, c):
    n = 0
    isv = lambda s: {r for r in s if r[0] in 'va'}
    iss = lambda s: {r for r in s if r[0] == 's'}
    if p.kind == 'valu':
        wv = isv(p.wr)
        ws = iss(p.wr)
        if c.kind == 'mfma' and wv & c.rd:
            n = max(n, 3 if p.dot else 2)
        if c.kind == 'valu':
            if wv & c.rd:
                if p.trans and not c.trans:
                    n = max(n, 1)
                if c.dpp or c.perml:
                    n = max(n, 2)
                if c.rdlane:
                    n = max(n, 1)
                if p.dot and not (c.dot and c.base == p.base and not (wv & (regs_of(c.ops[1]) | regs_of(c.ops[2])))):
                    n = max(n, 3)
            if p.dot and (wv & c.wr) and not (c.dot and c.base == p.base):
                n = max(n, 3)
            if ws & c.rd:
                n = max(n, 4 if c.rdlane else 2)
            if ('s', 'exec') in ws:
                n = max(n, 5)
        if p.dot and c.kind in ('ds', 'vmem') and wv & c.rd:
            n = max(n, 3)
        if c.kind == 'vmem' and ws & c.rd:
            n = max(n, 5)
        if c.kind == 'salu' and ws & c.rd:
            n = max(n, 2)
        if c.kind == 'salu' and c.op in ('s_cbranch_vccz', 's_cbranch_vccnz') and ('s', 'vcc') in ws:
            n = max(n, 2)
    if p.kind == 'mfma':
        d = p.wr
        long_ = {4: 8, 8: 12}[p.passes]
        if c.kind == 'mfma':
            if d & c.mfma_ab:
                n = max(n, long_)
            if d & c.mfma_c and not (d == c.mfma_c and p.passes == c.passes):
                n = max(n, {4: 6, 8: 10}[p.passes])
            if d & c.wr and not (d == c.mfma_c and p.passes == c.passes):
                n = max(n, {4: 6, 8: 10}[p.passes])
        elif c.kind in ('valu', 'ds', 'vmem'):
            if d & (c.rd | c.wr):
                n = max(n, long_)
            if c.kind == 'valu' and (p.mfma_c & c.wr):
                n = max(n, {4: 3, 8: 7}[p.passes])
            if c.kind in ('ds', 'vmem') and (p.mfma_c & c.wr):
                n = max(n, {4: 3, 8: 7}[p.passes])
    if p.kind == 'salu':
        if ('s', 'm0') in p.wr and c.kind == 'vmem' and getattr(c, 'lds', False):
            n = max(n, 1)
    if p.kind == 'vmem' and getattr(p, 'wide_store', False):
        if c.kind in ('valu', 'mfma', 'ds', 'vmem') and (p.sdata & c.wr):
            n = max(n, 2)
    return n


class Asm:
    def __init__(self):
        self.ins = []
        self.vm = []
        self.lg = []
        self.smem = False
        self.nlabel = 0
        self.t = 0
        self.t_mf = 0
        self.t_vm = 0
        self.bg = []
        self.bg_on = False
        self.bg_gap = 72
        self.win = 11
        self.done = []
        self.tagdone = {}
        self.lat = {}
        self.mf_scale = 1.42
        self.log = []

    def _emit(self, line, tag, optional):
        i = Ins(line)
        if i.kind in ('vmem', 'ds') and self.ins and self.ins[-1].kind == 'valu':
            self.t += 8
        if i.kind == 'valu' and (i.dot or i.op.startswith('v_pk_')):
            self.t = max(self.t, self.t_mf + 8)
        self.ins.append(i)
        if i.kind == 'vmem' and i.op not in ('buffer_wbl2', 'buffer_inv'):
            self.vm.append((tag, optional))
            key = (tag or '').rstrip('0123456789_')
            lat, wt = self.lat.get(key, (1100, 1.0))
            self.t = max(self.t, self.free_at(wt, 12.0))
            self.t = max(self.t + 8, self.t_vm + 64)
            self.t_vm = self.t
            c = max(self.t + lat, (self.done[-1][0] if self.done else 0) + 70 * wt)
            self.done.append((c, wt))
            self.log.append((self.t, int(c), tag))
            self.tagdone[tag] = c
        elif i.kind == 'ds':
            self.lg.append(tag)
            self.t += 16 if i.op.startswith('ds_write_b128') else 4
        elif i.kind == 'mfma':
            self.t = max(self.t, self.t_mf)
            self.t_mf = self.t + 4 * i.passes * self.mf_scale
            self.t += 8
        elif i.kind == 'valu':
            self.t += 8 if i.trans else 4
        elif i.kind == 'salu':
            self.t += 4
            if i.op.startswith('s_load') or i.op in ('s_memtime', 's_memrealtime'):
                self.smem = True
        return i

    def e(self, text, tag=None, optional=False):
        for line in text.strip().split('\n'):
            line = line.strip()
            if not line or line.startswith(';'):
                continue
            i = self._emit(line, tag, optional)
            if (i.kind == 'mfma' or (i.kind in ('valu', 'ds') and self.t >= self.t_mf)) and self.bg and self.bg_on and self.t - self.t_vm >= self.bg_gap and self.room():
                self.bg_pop()

    def free_at(self, wt, cap):
        acc = wt
        for c, w in reversed(self.done):
            acc += w
            if acc > cap + 1e-6:
                return c
        return 0

    def next_wt(self):
        return self.lat.get((self.bg[0][1] or '').rstrip('0123456789_'), (1100, 1.0))[1]

    def room(self, t=None):
        t = self.t if t is None else t
        return self.free_at(self.next_wt(), self.win) <= t

    def advance(self, dt, fill=True):
        if fill:
            end = self.t + dt
            while self.bg and self.room() and self.t + 64 < end:
                self.bg_pop()
            self.t = max(self.t, end)
        else:
            self.t += dt

    def bg_add(self, lines, tag=None):
        self.bg.append((lines, tag))

    def bg_pop(self):
        lines, tag = self.bg.pop(0)
        for l in lines:
            self._emit(l, tag, False)

    def bg_flush(self, n=None, upto=None):
        if upto is not None:
            tags = upto if isinstance(upto, (list, tuple, set)) else [upto]
            idx = [k for k, (l, t) in enumerate(self.bg) if t in tags]
            n = idx[-1] + 1 if idx else 0
        while self.bg and (n is None or n > 0):
            self.bg_pop()
            if n is not None:
                n -= 1

    def label(self, name):
        self.e(name + ':')

    def newlabel(self, base='L'):
        self.nlabel += 1
        return f'{base}_{self.nlabel}'

    def wait_vm(self, tag=None):
        if tag is None:
            self.e('s_waitcnt vmcnt(0)')
            self.vm = []
            return
        tags = tag if isinstance(tag, (list, tuple, set)) else [tag]
        self.bg_flush(upto=tags)
        last = -1
        for i, (t, o) in enumerate(self.vm):
            if t in tags:
                last = i
        if last < 0:
            return
        tgt = max(self.tagdone.get(t, 0) for t in tags)
        if self.bg_on:
            while self.bg and len(self.vm) - last - 1 < 40 and max(self.t, self.t_vm + 64, self.free_at(self.next_wt(), 12.0)) < tgt:
                self.bg_pop()
        n = sum(1 for (t, o) in self.vm[last + 1:] if not o)
        self.e(f's_waitcnt vmcnt({min(n, 63)})')
        self.t = max(self.t, tgt)
        self.vm = self.vm[last + 1:]

    def wait_lg(self, tag=None):
        if tag is None or self.smem:
            self.e('s_waitcnt lgkmcnt(0)')
            self.lg = []
            self.smem = False
            return
        tags = tag if isinstance(tag, (list, tuple, set)) else [tag]
        last = -1
        for i, t in enumerate(self.lg):
            if t in tags:
                last = i
        if last < 0:
            return
        n = len(self.lg) - last - 1
        self.e(f's_waitcnt lgkmcnt({min(n, 15)})')
        self.lg = self.lg[last + 1:]

    def pad_hazards(self):
        out = []
        branch_hist = {}
        WIN = 16
        nn = 0
        for ins in self.ins:
            if ins.kind == 'label':
                out.append(ins)
                continue
            if ins.kind == 'dir':
                out.append(ins)
                continue
            req = 0
            dist = 0
            k = len(out) - 1
            while k >= 0 and dist < WIN:
                p = out[k]
                if p.kind == 'label':
                    name = p.text.split(':')[0].strip()
                    for hist in branch_hist.get(name, []):
                        d2 = dist
                        for q in reversed(hist):
                            if d2 >= WIN:
                                break
                            r = need(q, ins)
                            if r > d2:
                                req = max(req, r - d2)
                            d2 += q.states()
                elif p.kind != 'dir':
                    r = need(p, ins)
                    if r > dist:
                        req = max(req, r - dist)
                    dist += p.states()
                k -= 1
            while req > 0:
                n = min(req, 16)
                out.append(Ins(f's_nop {n - 1}'))
                nn += 1
                req -= n
            out.append(ins)
            if ins.op.startswith('s_cbranch') or ins.op == 's_branch':
                tgt = ins.ops[0]
                hist = [q for q in out[-40:] if q.kind not in ('label', 'dir')]
                branch_hist.setdefault(tgt, []).append(hist)
        self.ins = out
        return nn

    def text(self):
        lines = []
        for i in self.ins:
            lines.append(i.text if i.kind == 'label' else '    ' + i.text)
        return '\n'.join(lines) + '\n'


def align_pass(asm_obj, wrap, thr=5):
    import subprocess
    src = wrap(asm_obj.text())
    open('_al.s', 'w').write(src)
    subprocess.run(['clang', '-x', 'assembler', '-target', 'amdgcn-amd-amdhsa', '-mcpu=gfx950', '-c', '_al.s', '-o', '_al.o'], check=True)
    dis = subprocess.run(['llvm-objdump', '-d', '--mcpu=gfx950', '_al.o'], capture_output=True, text=True).stdout
    sizes = []
    for l in dis.split('\n'):
        m = re.search(r'//\s*[0-9A-F]+:\s*((?:[0-9A-F]{8}\s*)+)', l)
        if m:
            sizes.append(4 * len(m.group(1).split()))
    real = [i for i in asm_obj.ins if i.kind not in ('label', 'dir')]
    for i, sz in zip(real, sizes):
        i.size = sz
    NOPROMO = ('v_readfirstlane', 'v_permlane', 'v_accvgpr', 'v_swap', 'v_nop', 'v_fmac', 'v_cndmask')
    off = 0
    cand = None
    n = bad = nn = 0
    ins_before = {}
    for k, i in enumerate(real):
        if i.size == 8 and off % 8 == 4:
            if cand is not None:
                parts = cand.text.split(None, 1)
                cand.text = parts[0] + '_e64 ' + parts[1]
                cand.size = 8
                off += 4
                n += 1
            else:
                run = 0
                while k + run < len(real) and real[k + run].size == 8:
                    run += 1
                if run >= thr:
                    ins_before[id(i)] = True
                    off += 4
                    nn += 1
                else:
                    bad += 1
        if i.size == 8:
            cand = None
        elif i.kind == 'valu' and not i.op.startswith(NOPROMO) and not i.op.endswith(('_e64', '_e32', '_dpp')):
            cand = i
        off += i.size
    out = []
    for i in asm_obj.ins:
        if id(i) in ins_before:
            out.append(Ins('s_nop 0'))
        out.append(i)
    asm_obj.ins = out
    return n, nn, bad
```

```python
import sys, argparse
from contextlib import contextmanager
from asmlib import Asm, align_pass

NAME = "adaLN_cond__sliding_local_dilated__glu_gated_glu__prompt"
ap = argparse.ArgumentParser()
ap.add_argument('-o', default=f'cdna_kernels/{NAME}.s')
ap.add_argument('--stamps', action='store_true')
ap.add_argument('--cyc', action='store_true')
ap.add_argument('--fine', action='store_true')
ap.add_argument('--slow', action='store_true')
ap.add_argument('--x', default='')
ap.add_argument('--vlog', action='store_true')
ap.add_argument('--align', type=int, default=5)
ap.add_argument('--stop1', action='store_true')
ap.add_argument('--outm', default='')
ap.add_argument('--touch', action='store_true')
ap.add_argument('--s1', action='store_true')
for k, d in dict(gapa=64, gapaware=1, c3=1, x0=2, bpos=8, h2o=1, ot=0, ht=0, gpl=1800, acut=70, gap0=64, gap1=64, gap4=64, gap5=64, s0=4, pfe2=3, pf0=4, b1=7, b1d=0, b2a=0, b2c=3, b2d=3, y0=4, slack=0, b1c=8, b2=5, b2b=2, b3=12, b4=6, win=11, gcut=2, tailq=2, gper=6, b5=6, hfirst=0, kbar=8, lat0=2900).items():
    ap.add_argument('--' + k, type=int, default=d)
args = ap.parse_args()
args.wt = not args.touch

A = Asm()
e = A.e
A.win = args.win
A.lat = {'xpf': (args.lat0, 2.5), 'x': (650, 1), 'gp': (args.gpl, .4), 'gq': (1800, 1.5), 'mtb': (1500, .8), 'mt': (1800, .8), 'ost': (400 if args.ot else 800, .1), 'xst': (400 if args.h2o else 800, .1),
         'hst': (400 if args.ht else 800, .1), 'poll': (650, .1), 'xr': (800, 2), '': (400, .1), 'p4w': (1100, 1.35), 'stt': (1400, .25), 'st': (650, 1), 'sst': (400, .1), 'mg': (1100, .25),
         'm': (1100, 1), 'o': (650 if args.ot else 1100, 1), 'y': (650 if args.h2o else 1100, 1), 'h': (650 if args.ht else 1100, 1), 'tch': (1600, 1)}
model = []

WS_O = 0x30000
WS_X1 = 0x50000
WS_STATS = 0x70000
WS_HH = 0x80000
HH_PITCH = 0x2C000
WS_GRP = 0xF0000
WS_MODP = 0xE0000
WS_EPOCH = 0xEF000
WS_STAMP = 0x1000000
WS_SIZE = 0x1100000 if args.stamps else 0x1000000

L_STATS, L_RED, L_MODV, L_GAGB = 0x0, 0xA00, 0x1000, 0x2000
L_HRING = 0x3000
L_B = [0x3000, 0xF000, 0x1B000, 0xF000]
L_WO = 0x17000
L_H2 = 0x17000
BLK, MAT1 = 12416, 6176
L_S = 0x3000
L_WD = 0x3000
LDS_TOTAL = 163840

S_W, S_RB, S_M, S_J, S_TAG, S_FAST, S_XCC = 's4', 's5', 's6', 's7', 's8', 's9', 's11'
SRD_X, SRD_WQKV, SRD_WO, SRD_WG, SRD_WU, SRD_WD, SRD_WMOD, SRD_OUT, SRD_WS, SRD_C = [
    f's[{b}:{b + 3}]' for b in range(40, 80, 4)]
S_GRP, S_ONES, S_HI, S_SPIN = 's84', 's85', 's86', 's87'
S_XOFF, S_NU, S_U0, S_COL = 's88', 's89', 's90', 's91'
SRD_GU = 's[92:95]'
S_MM4, S_GUM, S_H2M = 's80', 's81', 's39'
S_OST, S_X1ST, S_HST, S_STST = 's96', 's97', 's98', 's99'
S_HST2 = 's83'
S_W3K, S_M128, S_BT, S_W1K = 's20', 's21', 's22', 's23'
S_OLD, S_X1LD, S_STLD, S_HLD = 's35', 's36', 's37', 's38'
V_LANE, V_L16, V_G, V_C = 'v0', 'v1', 'v2', 'v3'
V_DUM, V_STAMP = 'v10', 'v15'
V_WOD, V_P4D, V_OST, V_XO, V_WDD, V_GB = 56, 57, 60, 61, 62, 63
PD = 'v[116:119]'


def vr(b, n=4):
    return f'v[{b}:{b + n - 1}]'


def ar(b, n=4):
    return f'a[{b}:{b + n - 1}]'


@contextmanager
def nobg():
    old = A.bg_on
    A.bg_on = False
    yield
    A.bg_on = old


nstamp = [0]
stamp_names = []


def stamp(name=''):
    model.append((name, A.t))
    if not args.stamps:
        return
    with nobg():
        e('s_memtime s[100:101]' if args.cyc else 's_memrealtime s[100:101]')
        stamp_names.append(name)
        A.wait_lg()
        e(f'v_writelane_b32 {V_STAMP}, s100, {nstamp[0]}')
    nstamp[0] += 1


def fine(name):
    if args.fine:
        stamp(name)


def lines(t):
    return [('i', l.split(';')[0].strip()) for l in t.split('\n') if l.split(';')[0].strip()]


def run(items):
    for it in items:
        if it[0] == 'i':
            e(it[1], tag=it[2] if len(it) > 2 else None)
        elif it[0] == 'wl':
            A.wait_lg(it[1])
        elif it[0] == 'wv':
            A.wait_vm(it[1])
        elif it[0] == 'f':
            it[1]()
        else:
            raise ValueError(it)


def is_mem(it):
    return it[0] == 'f' or (it[0] == 'i' and it[1].startswith(('ds_', 'buffer_')))


def is_valu(it):
    return it[0] == 'i' and it[1].startswith('v_') and not it[1].startswith('v_mfma')


def interleave(main, fill, start=0, end=None, pred=lambda t: t.startswith('v_mfma')):
    slots = [i for i, it in enumerate(main) if it[0] == 'i' and pred(it[1])]
    slots = slots[start:end]
    sset = {i: k for k, i in enumerate(slots)}
    out = []
    n = len(slots)
    done = 0
    i = 0
    while i < len(main):
        out.append(main[i])
        if i in sset:
            k = sset[i] + 1
            while i + 1 < len(main) and is_mem(main[i + 1]) and (i + 1) not in sset:
                i += 1
                out.append(main[i])
            upto = (len(fill) * k + n - 1) // n
            valu = False
            while done < upto:
                it = fill[done]
                if is_mem(it) and valu and k < n and args.gapaware:
                    break
                valu = valu or is_valu(it)
                out.append(it)
                done += 1
        i += 1
    out.extend(fill[done:])
    return out


def cost(it):
    if it[0] != 'i':
        return 1
    if it[1].startswith('ds_write_b128'):
        return 3
    if it[1].startswith(('v_exp', 'v_rcp', 'v_rsq')):
        return 2
    return 1


def pack(main, fill, start=0, end=None):
    gaps = []
    idx = [i for i, it in enumerate(main) if it[0] == 'i' and it[1].startswith('v_mfma')]
    for a, i in enumerate(idx):
        nxt = idx[a + 1] if a + 1 < len(idx) else len(main)
        j = i
        while j + 1 < nxt and is_mem(main[j + 1]):
            j += 1
        gaps.append((j, sum(cost(x) for x in main[i + 1:nxt])))
    gaps = gaps[start:end]
    total = sum(cost(x) for x in fill) + sum(c for _, c in gaps)
    at = {}
    done = 0
    acc = 0.0
    per = total / len(gaps)
    for k, (j, c) in enumerate(gaps):
        acc += per - c
        lst = []
        valu = False
        while done < len(fill) and (acc >= cost(fill[done]) - 0.5 or k == len(gaps) - 1):
            it = fill[done]
            if is_mem(it) and valu and k < len(gaps) - 1:
                break
            valu = valu or is_valu(it)
            lst.append(it)
            acc -= cost(it)
            done += 1
        at[j] = lst
    out = []
    for i, it in enumerate(main):
        out.append(it)
        out.extend(at.get(i, []))
    return out


def spin_fail(lbl_loop):
    e(f'''s_sub_u32 {S_SPIN}, {S_SPIN}, 1
          s_cmp_eq_u32 {S_SPIN}, 0
          s_cbranch_scc1 L_giveup
          s_branch {lbl_loop}''')


def checked(tag, loads, check):
    A.wait_vm(tag)
    with nobg():
        lc, lp, ld = A.newlabel('L_c'), A.newlabel('L_p'), A.newlabel('L_d')
        save = (list(A.vm), list(A.done), A.t, A.t_vm, list(A.log))
        e(f's_branch {lc}')
        A.label(lp)
        for l in loads:
            e(l)
        A.wait_vm()
        A.vm, A.done, A.t, A.t_vm, A.log = save
        A.label(lc)
        check()
        e(f's_cbranch_vccz {ld}')
        spin_fail(lp)
        A.label(ld)


def stores(lst, tag, optional=False, plain=False):
    with nobg():
        if not plain:
            for t in lst:
                e(t + ' sc1', tag=tag, optional=optional)
            return
        l1, l2 = A.newlabel('L_st'), A.newlabel('L_st')
        e(f"""s_cmp_lg_u32 {S_FAST}, 0
              s_cbranch_scc1 {l1}""")
        save = (list(A.vm), list(A.done), A.t, A.t_vm, list(A.log))
        for t in lst:
            e(t + ' sc1')
        e(f's_branch {l2}')
        A.vm, A.done, A.t, A.t_vm, A.log = save
        A.label(l1)
        for t in lst:
            e(t, tag=tag, optional=optional)
        A.label(l2)


def touch(pre, va, so, off=0, dst=None):
    dst = dst or PD
    if True:
        A.bg_add(pre + [f'buffer_load_dwordx4 {dst}, {va}, {SRD_WS}, {so} offen offset:{off} sc1'], 'tch')


def publish_flag(off, tag):
    with nobg():
        e(f'''s_add_u32 s12, {S_MM4}, {S_GRP}
              v_mov_b32 v5, {S_TAG}''')
        if off == 64:
            e(f'''s_and_b32 s13, {S_MM4}, 32
                  v_and_b32 v9, 7, {V_LANE}
                  v_lshl_add_u32 v9, v9, 2, s13''')
        else:
            e(f'v_lshlrev_b32 v9, 2, {V_C}')
        A.wait_vm(tag)
        e('s_barrier')
        l1, l2 = A.newlabel('L_pf'), A.newlabel('L_pf')
        e(f'''s_cmp_lg_u32 {S_W}, 0
              s_cbranch_scc1 {l2}
              s_mov_b64 exec, 1
              s_cmp_lg_u32 {S_FAST}, 0
              s_cbranch_scc1 {l1}''')
        e(f'buffer_store_dword v5, off, {SRD_WS}, s12 offset:{off} sc1', optional=True)
        e(f'''s_mov_b64 exec, -1
              s_branch {l2}''')
        A.label(l1)
        e(f'buffer_store_dword v5, off, {SRD_WS}, s12 offset:{off}', optional=True)
        e('s_mov_b64 exec, -1')
        A.label(l2)


def poll_ld(off):
    return f'buffer_load_dword v8, v9, {SRD_WS}, {S_GRP} offen offset:{off} sc1'


def poll_check(off):
    with nobg():
        checked('poll', [poll_ld(off)], lambda: e(f'v_cmp_ne_u32 vcc, {S_TAG}, v8'))


def st_loads(t0):
    return [f'buffer_load_dwordx4 {vr(t0 + 4 * p)}, {V_L16}, {SRD_WS}, {S_STLD} offen offset:{p * 1024} sc1' for p in range(2)]


def mod_loads(va, t0):
    return [f'buffer_load_dwordx4 {vr(t0 + 4 * p)}, {va}, {SRD_WS}, s{24 + p} offen sc1' for p in range(4)]


def mod_check(va, t0, tag, lds_v, addone_v):
    def chk():
        e(f's_and_b32 s13, {S_TAG}, 0xff')
        for i in range(16):
            e(f'v_xor_b32 v{t0 + i}, s13, v{t0 + i}')
        e(f'v_or3_b32 v5, v{t0}, v{t0 + 1}, v{t0 + 2}')
        e(f'v_or3_b32 v6, v{t0 + 3}, v{t0 + 4}, v{t0 + 5}')
        for i in range(6, 14, 4):
            e(f'v_or3_b32 v5, v5, v{t0 + i}, v{t0 + i + 1}')
            e(f'v_or3_b32 v6, v6, v{t0 + i + 2}, v{t0 + i + 3}')
        e(f'v_or3_b32 v5, v5, v{t0 + 14}, v{t0 + 15}')
        e(f'''v_or_b32 v5, v5, v6
              v_and_b32 v5, 0xff, v5
              v_cmp_ne_u32 vcc, 0, v5''')
    checked(tag, mod_loads(va, t0), chk)
    for i in range(0, 4, 2):
        e(f'v_pk_add_f32 {vr(t0 + i, 2)}, {vr(t0 + i, 2)}, {vr(t0 + 4 + i, 2)}')
        e(f'v_pk_add_f32 {vr(t0 + 8 + i, 2)}, {vr(t0 + 8 + i, 2)}, {vr(t0 + 12 + i, 2)}')
    for i in range(0, 4, 2):
        e(f'v_pk_add_f32 {vr(t0 + i, 2)}, {vr(t0 + i, 2)}, {vr(t0 + 8 + i, 2)}')
    for rnd in range(2):
        e(f'v_cvt_pk_bf16_f32 v5, v{t0}, v{t0 + 1}')
        e(f'v_cvt_pk_bf16_f32 v6, v{t0 + 2}, v{t0 + 3}')
        e(f'v_lshlrev_b32 v{t0}, 16, v5')
        e(f'v_and_b32 v{t0 + 1}, {S_HI}, v5')
        e(f'v_lshlrev_b32 v{t0 + 2}, 16, v6')
        e(f'v_and_b32 v{t0 + 3}, {S_HI}, v6')
        if rnd == 0:
            if addone_v is None:
                break
            for i in range(4):
                e(f'v_add_f32 v{t0 + i}, v{t0 + i}, {addone_v}')
    e(f'ds_write_b128 {lds_v}, {vr(t0)}', tag='modw')


def mod_task_loads(base, cond, tag, rr=vr, va='v74', vc='v75'):
    l = A.newlabel('L_ml')
    with nobg():
        e(cond + f'\n s_cbranch_scc0 {l}')
        e(f'buffer_load_dwordx2 {rr(base + 16, 2)}, {vc}, {SRD_C}, s33 offen', tag=tag, optional=True)
        for i in range(4):
            e(f'buffer_load_dwordx4 {rr(base + 4 * i)}, {va}, {SRD_WMOD}, s{29 + i} offen', tag=tag, optional=True)
        A.label(l)


def mod_part1(base, t, ad, from_a=None, c0=None, fma=False):
    x = ''
    c0 = c0 or base + 16
    if from_a is not None:
        for i in range(18):
            x += f'v_accvgpr_read_b32 v{base + i if i < 16 else c0 + i - 16}, a{from_a + i}\n'
    x += f"""v_lshlrev_b32 v{t + 8}, 16, v{c0}
          v_and_b32 v{t + 9}, {S_HI}, v{c0}
          v_lshlrev_b32 v{t + 10}, 16, v{c0 + 1}
          v_and_b32 v{t + 11}, {S_HI}, v{c0 + 1}
          """
    for op in ('v_mul_f32 v{a}, 0xbfb8aa3b, v{b}', 'v_exp_f32 v{a}, v{a}', 'v_add_f32 v{a}, 1.0, v{a}', 'v_rcp_f32 v{a}, v{a}', 'v_mul_f32 v{b}, v{b}, v{a}'):
        for i in range(4):
            x += op.format(a=t + 12 + i, b=t + 8 + i) + '\n'
    MA = t + 8
    if fma:
        for i in range(4):
            x += f'v_cvt_pk_bf16_f32 v{t + i}, 0, v{t + 8 + i}\n'
        for i in range(4):
            for d in range(4):
                x += f'v_lshlrev_b32 v{t + 4}, 16, v{base + 4 * i + d}\n v_and_b32 v{t + 5}, {S_HI}, v{base + 4 * i + d}\n'
                for h in range(2):
                    if i == 0:
                        x += f'v_mul_f32 v{MA + 2 * d + h}, v{t + 4 + h}, v{t + i}\n'
                    else:
                        x += f'v_fma_f32 v{MA + 2 * d + h}, v{t + 4 + h}, v{t + i}, v{MA + 2 * d + h}\n'
    else:
        for i in range(4):
            x += f'v_cvt_pk_bf16_f32 v{t + i}, v{t + 8 + i}, 0\n'
            x += f'v_cvt_pk_bf16_f32 v{t + 4 + i}, 0, v{t + 8 + i}\n'
        for i in range(4):
            for d in range(4):
                for h in range(2):
                    src2 = '0' if i == 0 else f'v{MA + 2 * d + h}'
                    x += f'v_dot2_f32_bf16 v{MA + 2 * d + h}, v{base + 4 * i + d}, v{t + 4 * h + i}, {src2}\n'
    x += f"""v_and_b32 v{ad}, 7, {V_LANE}
          v_lshlrev_b32 v{ad}, 5, v{ad}
          v_and_b32 v{ad + 1}, 1, {V_G}
          v_lshl_add_u32 v{ad}, v{ad + 1}, 3, v{ad}
          """
    for p in range(4):
        x += f'v_permlane32_swap_b32 v{MA + 2 * p}, v{MA + 2 * p + 1}\n'
    for p in range(4):
        x += f'v_add_f32 v{MA + 2 * p}, v{MA + 2 * p}, v{MA + 2 * p + 1}\n'
    x += f"""v_lshrrev_b32 v{ad + 1}, 1, {V_G}
          v_lshl_add_u32 v{ad}, v{ad + 1}, 2, v{ad}
          """
    for p in range(2):
        x += f'v_permlane16_swap_b32 v{MA + 4 * p}, v{MA + 4 * p + 2}\n'
    for p in range(2):
        x += f'v_add_f32 v{MA + 4 * p}, v{MA + 4 * p}, v{MA + 4 * p + 2}\n'
    x += f"""s_lshl_b32 s28, {S_W}, 8
          v_add_u32 v{ad}, s28, v{ad}
          """
    for p in range(2):
        x += f'v_add_f32_dpp v{MA + 4 * p + 1}, v{MA + 4 * p}, v{MA + 4 * p} row_ror:8 row_mask:0xf bank_mask:0xf\n'
    x += f'ds_write_b32 v{ad}, v{MA + 1} offset:{L_RED}\n'
    x += f'ds_write_b32 v{ad}, v{MA + 5} offset:{L_RED + 16}\n'
    return lines(x)


def mod_part2(base, lm, wave):
    e(f"""s_cmp_lg_u32 {S_W}, {wave}
          s_cbranch_scc1 {lm}
          v_lshlrev_b32 v4, 4, {V_C}""")
    for w in range(4):
        e(f'ds_read_b128 {vr(base + 4 * w)}, v4 offset:{L_RED + w * 256}')
    e(f"""s_and_b32 s13, {S_TAG}, 0xff
          s_mov_b32 s14, 0xffffff00
          v_mov_b32 v5, s13
          s_and_b32 s12, s3, 3
          s_mul_i32 s12, s12, 12288
          s_lshr_b32 s13, s3, 2
          s_lshl_b32 s13, s13, 8
          s_add_u32 s12, s12, s13
          s_add_u32 s12, s12, {WS_MODP}""")
    e('s_waitcnt lgkmcnt(0)')
    for i in range(0, 4, 2):
        e(f'v_pk_add_f32 {vr(base + i, 2)}, {vr(base + i, 2)}, {vr(base + 4 + i, 2)}')
        e(f'v_pk_add_f32 {vr(base + 8 + i, 2)}, {vr(base + 8 + i, 2)}, {vr(base + 12 + i, 2)}')
    for i in range(0, 4, 2):
        e(f'v_pk_add_f32 {vr(base + i, 2)}, {vr(base + i, 2)}, {vr(base + 8 + i, 2)}')
    for i in range(4):
        e(f'v_and_or_b32 v{base + i}, v{base + i}, s14, v5')
    e('s_mov_b64 exec, 0xffff')
    e(f'buffer_store_dwordx4 {vr(base)}, v4, {SRD_WS}, s12 offen sc1', optional=True)
    e('s_mov_b64 exec, -1')
    e('s_nop 0')


def dma_wqkv(j):
    for pos in range(4):
        ks = 4 * pos + j
        for mat in range(3):
            pre = [f's_add_u32 m0, {S_W3K}, {L_B[j] + pos * 12288}', f's_add_u32 {S_BT}, {S_M128}, {ks * 32 * 3072}'] if mat == 0 else []
            A.bg_add(pre + [f'buffer_load_dwordx4 v8, {SRD_WQKV}, {S_BT} offen offset:{mat * 1024} lds'], f'wq{j}')


def tr_wqkv(j):
    it = [('i', f'v_add_u32 v9, {(L_B[j] - L_B[j - 1]) & 0xffffffff}, v9')] if j else []
    return it + [('i', f'ds_read_b64_tr_b16 {ar(((j * 4 + pos) * 3 + mat) * 4 + hf * 2, 2)}, v9 offset:{pos * 12288 + mat * 1024 + hf * 512}', f'trq{pos}')
                 for pos in range(4) for mat in range(3) for hf in range(2)]


def dma_1k(srd, vreg, ks, ldsaddr, tag):
    A.bg_add([f's_add_u32 m0, {S_W1K}, {ldsaddr}', f's_add_u32 {S_BT}, {S_M128}, {ks * 32768}',
              f'buffer_load_dwordx4 v{vreg}, {srd}, {S_BT} offen lds'], tag)


def dma_p4(n):
    for i in range(3):
        A.bg_add([f's_add_u32 m0, {S_GUM}, {(n % 6) * BLK + i * 1024}', f's_add_u32 {S_BT}, {S_COL}, {n * 32 * 2752}',
                  f'buffer_load_dwordx4 v{V_P4D + i}, {SRD_GU}, {S_BT} offen lds'], f'p4w{n}')


class GU:
    queued = 0
    landed = 0
    moved = 0
    freed = 0


def gu_queue():
    while GU.queued < 16 and GU.queued < GU.freed + 6:
        dma_p4(GU.queued)
        GU.queued += 1


def gu_pre(upto):
    upto = max(upto, GU.landed)
    assert upto <= GU.queued
    if upto > GU.landed:
        A.wait_vm(f'p4w{upto - 1}')
    GU.pend = upto


def gu_post(lg_waited=True):
    GU.landed = GU.pend
    if lg_waited:
        GU.freed = GU.moved
    gu_queue()


def gu_done():
    live = {t for t, o in A.vm} | {t for l, t in A.bg}
    n = 0
    while n < GU.queued and f'p4w{n}' not in live:
        n += 1
    return n


def mover(n):
    return [('i', f'ds_read_b64_tr_b16 {ar(16 * n + 8 * par + 4 * i + 2 * hf, 2)}, v{20 + i + 2 * ((n % 6) // 3)} offset:{(n % 3) * BLK + (16 * hf + 8 * par) * 192}', f'mv{n}')
            for par in range(2) for i in range(2) for hf in range(2)]


def movers(limit=16):
    it = []
    while GU.moved < min(GU.landed, limit):
        it += mover(GU.moved)
        GU.moved += 1
    return it


def front(f):
    rest = list(A.bg)
    A.bg = []
    f()
    A.bg += rest


def c3(srd, piece):
    if args.c3:
        lo = srd[2:srd.index(':')]
        A.bg_add([f's_sub_u32 {S_BT}, 0x180, s{lo}', f's_and_b32 {S_BT}, {S_BT}, 0x380', f's_add_u32 {S_BT}, {S_BT}, {piece * 524288}',
                  f'buffer_load_dword {V_DUM}, {C3[0]}, {srd}, {S_BT} offen'], 'gp')


C3 = ['v55']


def gpf(srd, base):
    A.bg_add([f's_mov_b32 {S_BT}, {base}', f'buffer_load_dword {V_DUM}, v11, {srd}, {S_BT} offen'], 'gp')


Q = 128 * 2752
PIECES = [[(SRD_WO, 0), (SRD_WO, 393216)]] + [[(SRD_WG, q * Q), (SRD_WU, q * Q)] for q in range(4)] + \
         [[(SRD_WD, 0), (SRD_WD, 393216)], [(SRD_WD, 2 * 393216), (SRD_WD, 3 * 393216)]]


def bg_mix(every, first=0):
    old = A.bg
    A.bg = []
    k = first
    for it in old:
        if len(it[0]) > 1 and k >= every and PIECES:
            for p in PIECES.pop(0):
                gpf(*p)
            k = 0
        A.bg.append(it)
        k += 1


XRES, GAL, TRB = 88, 136, 84
MK, ONE = 168, 184


L_MASK, L_TRB = 0x27000, 0x2800


def tr_bases_t(dst, rowt, ft, ldsbase):
    t = f'''v_bfe_u32 v40, {V_LANE}, 2, 2
          v_and_b32 v41, 3, {V_LANE}
          {rowt}
          {ft}
          v_lshlrev_b32 v42, 7, v42
          v_and_b32 v40, 1, v41
          v_lshl_add_u32 v42, v40, 3, v42
          v_add_u32 v42, {ldsbase}, v42
          v_lshrrev_b32 v41, 1, v41
          '''
    for ct in range(4):
        t += f'''v_add_u32 v40, {2 * ct}, v41
              v_xor_b32 v40, v40, v43
              v_lshl_add_u32 v{dst + ct}, v40, 4, v42
              '''
    return t


def late_items():
    t = f"""v_lshlrev_b32 v80, 4, {V_C}
          v_lshl_add_u32 v80, {V_G}, 11, v80
          s_lshl_b32 s12, {S_M}, 8
          s_add_u32 s12, s12, {1024 * 4}
          v_add_u32 v80, s12, v80
          v_mov_b32 v81, v55
          s_add_u32 s12, {S_W1K}, {L_MODV}
          v_add_u32 v82, s12, {V_L16}
          v_cmp_eq_u32 vcc, 2, {V_G}
          v_mov_b32 v83, 0
          s_nop 0
          v_cndmask_b32 v83, v83, 1.0, vcc
          """
    t += tr_bases_t(TRB, f'v_lshl_add_u32 v42, {V_G}, 3, v40',
                    f'v_and_b32 v43, 2, v40\n v_and_b32 v44, 1, {V_G}\n v_lshl_add_u32 v43, v44, 2, v43', L_WO)
    return lines(t)


def mask_items():
    t = f'''s_sub_u32 s13, {S_RB}, 1
            s_lshr_b32 s13, s13, 31
            s_lshl_b32 s13, s13, 6
            s_mov_b32 s12, 0xf149f2ca
            v_lshlrev_b32 v40, 2, {V_G}
            v_mov_b32 v42, s12
         '''
    for r in range(4):
        t += f'''v_add_u32 v41, {r}, v40
          v_sub_u32 v43, {V_C}, v41
          v_cmp_gt_u32 vcc, 8, v43
          v_cmp_ge_i32 s[14:15], -9, v43
          v_add_u32 v43, s13, v43
          v_cndmask_b32 v{MK + r}, v42, 0, vcc
          v_cndmask_b32 v{MK + 4 + r}, v42, 0, s[14:15]
          v_cmp_ge_i32 vcc, -9, v43
          v_cmp_gt_i32 s[14:15], 0, v43
          v_cmp_lt_u32 s[18:19], 7, v41
          v_cndmask_b32 v{MK + 12 + r}, v42, 0, vcc
          v_cndmask_b32 v{MK + 8 + r}, v42, 0, s[14:15]
          v_cndmask_b32 v{MK + 8 + r}, v{MK + 8 + r}, v42, s[18:19]
          '''
    return lines(t)


srds = [(40, 0, 2048 * 1024), (64, 64, 512 * 6144), (76, 56, 1024), (44, 8, 512 * 3072), (72, 88, WS_SIZE), (48, 16, 512 * 1024),
        (52, 32, 512 * 2752), (56, 40, 512 * 2752), (60, 48, 1376 * 1024), (68, 72, 2048 * 1024)]
MW, XN, XRAW = 16, 80, 160
e(f"""s_cmp_ge_u32 s2, 256
      s_cbranch_scc1 L_giveup
      {'s_memtime s[100:101]' if args.cyc else 's_memrealtime s[100:101]' if args.stamps else ''}""")
for (d, off, sz) in srds[:5]:
    e(f's_load_dwordx2 s[{d}:{d + 1}], s[0:1], {off}')
e(f"""v_lshrrev_b32 v2, 6, v0
      v_and_b32 v0, 63, v0
      v_readfirstlane_b32 {S_W}, v2
      s_lshr_b32 {S_J}, s2, 3
      s_and_b32 s3, s2, 7
      s_lshr_b32 s10, {S_J}, 3
      s_lshl_b32 {S_RB}, s3, 2
      s_add_u32 {S_RB}, {S_RB}, s10
      s_and_b32 {S_M}, {S_J}, 7
      s_lshl_b32 s12, {S_M}, 2
      s_add_u32 s12, s12, {S_W}
      s_mul_i32 s12, s12, 20
      s_lshl_b32 s13, {S_RB}, 9
      s_add_u32 s12, s12, s13
      s_addk_i32 s12, -128
      v_add_lshl_u32 v7, s12, {V_LANE}, 7
      v_cmp_gt_u32 vcc, 20, {V_LANE}
      v_bfrev_b32 v6, -2
      s_mov_b32 s34, 0x20000
      s_mov_b32 s42, {2048 * 1024}
      v_cndmask_b32 v14, v6, v7, vcc
      s_mov_b32 s43, s34
      s_getpc_b64 s[14:15]
      v_lshlrev_b32 {V_L16}, 4, {V_LANE}
      s_lshl_b32 s12, {S_J}, 2
      s_add_u32 s12, s12, {S_W}
      s_and_b32 s12, s12, 63
      s_min_u32 s12, s12, (L_codeend-{NAME}_kernel)/1024-1
      s_lshl_b32 s12, s12, 10
      s_and_b32 s14, s14, 0xffffff00
      v_add_u32 v4, s12, {V_L16}""")
e(f'global_load_dwordx4 a[244:247], v4, s[14:15]')
A.wait_lg()
A.t = 1100
e(f'buffer_load_dword {V_DUM}, v14, {SRD_X}, 0 offen', tag='xpf')
if args.stamps:
    e(f'v_mov_b32 {V_STAMP}, 0')
    e(f'v_writelane_b32 {V_STAMP}, s100, 0')
    stamp_names.append('entry'); nstamp[0] += 1
e(f's_load_dword s8, s[72:73], {WS_EPOCH}')
for (d, off, sz) in srds[5:]:
    e(f's_load_dwordx2 s[{d}:{d + 1}], s[0:1], {off}')
for (d, off, sz) in srds[1:4]:
    e(f"""s_mov_b32 s{d + 2}, {sz}
          s_mov_b32 s{d + 3}, s34""")
e(f"""s_and_b32 s10, {S_J}, 3
      s_lshr_b32 s12, {S_J}, 2
      s_lshl_b32 s13, s12, 1
      s_add_u32 s13, s13, s10
      s_add_u32 s13, s13, 7
      s_cmp_eq_u32 s10, 0
      s_cselect_b32 s12, s12, s13
      s_lshl_b32 s12, s12, 3
      s_add_u32 s3, s3, s12
      s_lshl_b32 s12, {S_W}, 3
      v_lshrrev_b32 v76, 3, {V_LANE}
      v_add_u32 v76, s12, v76
      v_and_b32 v77, 7, {V_LANE}
      v_lshlrev_b32 v75, 3, v76
      v_mul_u32_u24 v74, {4 * 6144}, v76
      v_lshl_add_u32 v74, v77, 4, v74
      s_and_b32 s13, s3, 3
      s_lshr_b32 s14, s3, 2
      s_mul_i32 s29, s13, {128 * 6144}
      s_lshl_b32 s30, s14, 7
      s_add_u32 s29, s29, s30
      s_lshl_b32 s33, s13, 8
      s_add_u32 s30, s29, 6144
      s_add_u32 s31, s29, {2 * 6144}
      s_add_u32 s32, s29, {3 * 6144}""")
COND_A = 's_cmp_eq_u32 s10, 0'
COND_B = 's_sub_u32 s12, s10, 1\n s_cmp_lt_u32 s12, 2'
mod_task_loads(MW, COND_A, 'mt')
e(f"""s_lshl_b32 s15, s2, 2
      s_add_u32 s15, s15, {S_W}
      s_mul_i32 s12, s15, 12
      v_add_lshl_u32 v7, s12, {V_LANE}, 7
      v_cmp_gt_u32 vcc, 12, {V_LANE}
      v_lshrrev_b32 v12, 2, {V_LANE}        ; c4   (x lane map: c4 = l/4, g4 = l%4)
      v_and_b32 v13, 3, {V_LANE}            ; g4
      v_cndmask_b32 v54, v6, v7, vcc
      s_lshl_b32 s12, {S_J}, 2
      s_add_u32 s12, s12, {S_W}
      s_lshl_b32 s12, s12, 2
      v_add_lshl_u32 v7, s12, {V_LANE}, 10
      v_cmp_gt_u32 vcc, 4, {V_LANE}
      s_nop 1
      v_cndmask_b32 v55, v6, v7, vcc
      v_lshlrev_b32 v4, 11, v12
      v_lshl_add_u32 v4, v13, 4, v4
      s_lshl_b32 s16, {S_RB}, 16
      s_lshl_b32 s17, {S_W}, 8
      s_add_u32 s16, s16, s17
      s_add_u32 s18, s16, 32768""")


def xload(T, j, bg=False):
    q = 5 * j + T
    if T < 4:
        l = f'buffer_load_dwordx4 {vr(XRAW + 4 * q)}, v4, {SRD_X}, {"s16" if T < 2 else "s18"} offen offset:{(T % 2) * 1024 + j * 64}'
    else:
        l = f'buffer_load_dwordx4 {vr(XRAW + 4 * q)}, v5, {SRD_X}, s17 offen offset:{j * 64}'
    if bg:
        A.bg_add([l], f'x{T}')
    else:
        e(l, tag=f'x{T}')


e(f'buffer_load_dword {V_DUM}, v54, {SRD_WQKV}, 0 offen', tag='gq')
for k in range(3):
    c3(SRD_WQKV, k)
A.bg_flush()
for j in range(args.x0):
    xload(0, j)
fine('start')

for (d, off, sz) in srds[4:]:
    e(f"""s_mov_b32 s{d + 2}, {sz}
          s_mov_b32 s{d + 3}, s34""")
e(f"""s_mul_i32 s12, s15, 3
      v_add_lshl_u32 v7, s12, {V_LANE}, 7
      v_cmp_gt_u32 vcc, 3, {V_LANE}
      v_lshrrev_b32 {V_G}, 4, {V_LANE}
      v_and_b32 {V_C}, 15, {V_LANE}
      v_cndmask_b32 v11, v6, v7, vcc
      v_lshlrev_b32 v5, 1, v12
      v_cmp_lt_u32 vcc, 7, v12
      v_mov_b32 v6, -16
      v_mov_b32 v7, -31
      s_lshl_b32 s15, {S_RB}, 6
      v_cndmask_b32 v6, v6, v7, vcc
      v_add3_u32 v5, v5, v6, s15
      v_max_i32 v5, 0, v5
      v_lshlrev_b32 v5, 10, v5
      v_lshl_add_u32 v5, v13, 4, v5
      v_bfe_u32 v6, {V_LANE}, 4, 1
      s_and_b32 s12, {S_W}, 1
      s_lshl_b32 s12, s12, 1
      v_add_u32 v6, s12, v6
      v_lshlrev_b32 v6, 1, v6
      v_xor_b32 v6, v77, v6
      v_lshlrev_b32 v6, 4, v6
      v_mul_u32_u24 v8, 3072, v76
      v_add_u32 v8, v8, v6
      v_lshl_add_u32 v{V_WOD}, v76, 10, v6
      v_lshlrev_b32 v6, 1, {V_G}
      v_xor_b32 v6, v77, v6
      v_lshlrev_b32 v6, 4, v6
      v_lshl_add_u32 v{V_WDD}, v76, 10, v6
      s_mul_i32 {S_W3K}, {S_W}, 3072
      s_lshl_b32 {S_M128}, {S_M}, 7
      s_lshl_b32 {S_W1K}, {S_W}, 10
      s_getreg_b32 {S_XCC}, hwreg(HW_REG_XCC_ID)
      s_and_b32 {S_XCC}, {S_XCC}, 15
      s_mov_b32 {S_ONES}, 0x3f803f80
      s_mov_b32 {S_HI}, 0xffff0000
      s_mov_b32 {S_SPIN}, 0x40000
      s_lshr_b32 {S_GRP}, {S_RB}, 1
      s_lshl_b32 s82, {S_GRP}, 20
      s_add_u32 {S_GRP}, s82, {WS_GRP}
      v_bfe_u32 v78, {V_LANE}, 2, 2          ; r4
      v_mul_u32_u24 v9, 3072, {V_G}
      v_lshl_add_u32 v9, v78, 7, v9
      v_and_b32 v78, 2, v78
      v_and_b32 v6, 1, {V_G}
      v_lshl_add_u32 v78, v6, 2, v78         ; 2f
      v_lshrrev_b32 v6, 1, v13               ; cc/2
      s_lshl_b32 s12, {S_W}, 1
      v_add_u32 v6, s12, v6
      v_xor_b32 v6, v6, v78
      v_lshl_add_u32 v9, v6, 4, v9
      v_and_b32 v79, 1, v13
      v_lshl_add_u32 v9, v79, 3, v9
      v_add_u32 v9, {L_B[0]}, v9""")
for p in range(4):
    e(f's_mov_b32 s{24 + p}, {WS_MODP + p * 12288}')
e(f's_mov_b32 s12, {(1 << 32) // 12 + 1}')
for i in range(3):
    e(f"""v_add_u32 v6, {64 * i}, {V_LANE}
          v_mul_hi_u32 v7, v6, s12
          v_mul_u32_u24 v78, 12, v7
          v_sub_u32 v6, v6, v78
          v_mul_u32_u24 v7, 2752, v7
          v_lshl_add_u32 v{V_P4D + i}, v6, 4, v7""")
e(f"""s_and_b32 s12, {S_RB}, 1
      s_lshl_b32 s12, s12, 3
      s_add_u32 s12, s12, {S_M}
      s_lshl_b32 {S_MM4}, s12, 2
      s_mul_i32 s12, s12, 43
      s_add_u32 s13, s12, 43
      s_lshr_b32 s12, s12, 4
      s_lshr_b32 s13, s13, 4
      s_sub_u32 {S_NU}, s13, s12
      s_lshl_b32 {S_U0}, s12, 1
      s_lshr_b32 s13, {S_W}, 1
      s_mul_i32 s14, s13, {16 * 2752}
      s_lshl_b32 {S_COL}, s12, 6
      s_add_u32 {S_COL}, {S_COL}, s14
      s_mul_i32 s13, s13, 3072
      s_and_b32 s14, {S_W}, 1
      s_mul_i32 s14, s14, {MAT1}
      s_add_u32 s13, s13, s14
      s_add_u32 {S_GUM}, s13, {L_S}
      s_lshl_b32 s13, {S_W}, 12
      s_add_u32 {S_H2M}, s13, {L_H2}
      v_and_b32 v78, 1, {V_G}
      v_lshrrev_b32 v79, 1, {V_G}
      v_lshlrev_b32 v6, 14, v78
      v_lshl_add_u32 v6, v79, 8, v6
      v_lshl_add_u32 v{V_OST}, {V_C}, 4, v6
      v_lshlrev_b32 v6, 11, {V_C}
      v_lshl_add_u32 v6, v78, 5, v6
      v_lshl_add_u32 v{V_XO}, v79, 4, v6
      s_lshr_b32 s12, {S_W}, 1
      s_lshl_b32 s12, s12, 15
      s_and_b32 s13, {S_W}, 1
      s_lshl_b32 s13, s13, 10
      s_add_u32 s12, s12, s13
      s_lshl_b32 s13, {S_RB}, 16
      s_add_u32 s12, s12, s13
      s_add_u32 {S_XOFF}, s12, {S_M128}
      s_and_b32 s15, {S_RB}, 1
      s_lshl_b32 s14, s15, 16
      s_add_u32 s14, s14, s82
      s_lshl_b32 s12, {S_M}, 11
      s_lshl_b32 s13, {S_W}, 9
      s_add_u32 s12, s12, s13
      s_add_u32 s12, s12, s14
      s_add_u32 {S_OST}, s12, {WS_O}
      s_lshl_b32 s12, {S_W}, 14
      s_add_u32 s12, s12, s14
      s_add_u32 {S_OLD}, s12, {WS_O}
      s_lshl_b32 s13, {S_M}, 11
      s_add_u32 s12, s12, s13
      s_add_u32 {S_X1ST}, s12, {WS_X1}
      s_lshr_b32 s13, {S_W}, 1
      s_lshl_b32 s13, s13, 10
      s_add_u32 s12, s82, s13
      s_and_b32 s13, {S_W}, 1
      s_lshl_b32 s13, s13, 16
      s_add_u32 s12, s12, s13
      s_add_u32 {S_X1LD}, s12, {WS_X1}
      s_lshl_b32 s12, s15, 13
      s_lshl_b32 s13, {S_W}, 11
      s_add_u32 s12, s12, s13
      s_add_u32 s12, s12, s82
      s_add_u32 {S_STLD}, s12, {WS_STATS}
      s_lshl_b32 s13, {S_M}, 8
      s_add_u32 {S_STST}, {S_STLD}, s13
      s_and_b32 s12, {S_W}, 1
      s_xor_b32 s13, s12, 1
      s_mul_i32 s12, s12, {HH_PITCH}
      s_mul_i32 s13, s13, {HH_PITCH}
      s_add_u32 s14, {S_U0}, {S_W}
      s_lshl_b32 s14, s14, 10
      s_add_u32 s14, s14, s82
      s_add_u32 s14, s14, {WS_HH}
      s_add_u32 {S_HST}, s12, s14
      s_add_u32 {S_HST2}, s13, s14
      s_mul_i32 s12, s15, {HH_PITCH}
      s_add_u32 s12, s12, s82
      s_add_u32 s12, s12, {WS_HH}
      s_lshr_b32 s13, {S_W}, 1
      s_mul_i32 s13, s13, {86 * 1024}
      s_add_u32 s12, s12, s13
      s_and_b32 s13, {S_W}, 1
      s_lshl_b32 s13, s13, 8
      s_add_u32 {S_HLD}, s12, s13
      s_add_u32 s12, {S_W1K}, {L_MODV}
      v_lshl_add_u32 v{V_GB}, {V_G}, 4, s12
      v_lshlrev_b32 v77, 2, {V_LANE}
      v_and_b32 v78, 31, {V_LANE}
      v_lshlrev_b32 v78, 4, v78
      v_lshrrev_b32 v79, 5, {V_LANE}
      v_lshl_add_u32 v78, v79, 11, v78
      s_lshl_b32 s12, {S_W}, 9
      v_add_u32 v78, s12, v78
      v_cvt_f32_u32 v79, v79
      s_add_u32 s12, {S_W1K}, {L_MODV}
      v_add_u32 v76, s12, {V_L16}
      v_lshlrev_b32 v6, 1, v13
      v_xor_b32 v6, v6, v12
      v_lshl_add_u32 v6, v13, 4, v6
      v_lshlrev_b32 v6, 4, v6
      s_mul_i32 s13, {S_W}, 5120
      s_add_u32 s13, s13, {L_HRING}
      v_lshlrev_b32 v12, 5, v13
      v_add_u32 v12, s12, v12
      v_add_u32 v13, s13, v6
      v_lshlrev_b32 v6, 1, {V_G}
      v_xor_b32 v6, v6, {V_C}
      v_lshl_add_u32 v6, {V_G}, 4, v6
      v_lshlrev_b32 v6, 4, v6
      v_add_u32 v14, {L_HRING}, v6""")
MKT = MK
MK = 96
run(mask_items())
run(late_items())
e(f'v_add_u32 v40, {L_MASK}, {V_L16}')
for i in range(4):
    e(f'ds_write_b128 v40, {vr(MK + 4 * i)} offset:{i * 1024}')
e(f'ds_write_b128 {V_L16}, {vr(TRB)} offset:{L_TRB}')
for i in range(4):
    e(f'v_accvgpr_write_b32 a{250 + i}, v{80 + i}')
e('s_add_u32 s18, s16, 32768')
MK = MKT
A.wait_lg()
e(f"""s_bitcmp1_b32 {S_W}, 0
      s_cselect_b32 s92, s56, s52
      s_cselect_b32 s93, s57, s53
      s_mov_b32 s94, {512 * 2752}
      s_mov_b32 s95, s34
      s_mul_i32 {S_TAG}, {S_TAG}, 1664525
      s_add_u32 {S_TAG}, {S_TAG}, 1013904223""")
lx = A.newlabel('L_x')
e(f'''s_cmp_lg_u32 {S_W}, 1
      s_cbranch_scc1 {lx}
      s_and_b32 s12, {S_TAG}, 0xfffffff0
      s_or_b32 s12, s12, {S_XCC}
      s_add_u32 s13, {S_MM4}, {S_GRP}
      s_mov_b64 exec, 1
      v_mov_b32 v6, s12''')
e(f'buffer_store_dword v6, off, {SRD_WS}, s13 sc1', optional=True)
e('s_mov_b64 exec, -1')
A.label(lx)
fine('setup')
lm, lm2, lj = A.newlabel('L_nomod'), A.newlabel('L_nomod'), A.newlabel('L_mj')
e(COND_A + f'\n s_cbranch_scc1 {lm}')
save = (list(A.vm), list(A.done), A.t, A.t_vm, list(A.log))
XL = [(0, j) for j in range(args.x0, 4)] + [(T, j) for T in (1, 2) for j in range(4)]
for T, j in XL:
    xload(T, j)
e(f's_branch {lj}')
A.vm, A.done, A.t, A.t_vm, A.log = save
A.label(lm)
save = list(A.vm)
A.wait_vm('mt')
A.vm = save
run(interleave(mod_part1(MW, 36, 6), [('f', lambda T=T, j=j: xload(T, j)) for T, j in XL], 0, 96, pred=lambda t: True))
A.wait_lg()
e('s_barrier')
e('v_mov_b32 v52, v4\n v_mov_b32 v53, v5')
mod_part2(MW, lm2, 0)
A.label(lm2)
e('v_mov_b32 v4, v52\n v_mov_b32 v5, v53')
A.label(lj)
A.lg = []
stamp('modpub')
e(COND_B + '\n s_cselect_b32 s12, 0, 0x40000000\n v_or_b32 v74, s12, v74\n v_or_b32 v75, s12, v75')
e('v_accvgpr_write_b32 a254, v74\n v_accvgpr_write_b32 a255, v75')
MTB = [([f'buffer_load_dwordx2 v[112:113], v87, {SRD_C}, s33 offen'], 'mtb')] + [([f'buffer_load_dwordx4 {vr(96 + 4 * i)}, v86, {SRD_WMOD}, s{29 + i} offen'], 'mtb') for i in range(4)]
for T in range(3, 5):
    for j in range(4):
        xload(T, j, bg=True)
dma_wqkv(0)
dma_wqkv(1)
dma_wqkv(2)
for k in range(args.pf0):
    for p in PIECES.pop(0):
        gpf(*p)
A.bg_gap = args.gap0
A.bg_on = True

RS = 64


def unpack(q):
    for d in range(4):
        src = XRAW + 4 * q + d
        lo = XN + 8 * q + 2 * d
        e(f'''v_lshlrev_b32 v{lo}, 16, v{src}
              v_and_b32 v{lo + 1}, {S_HI}, v{src}''')


def scale(q):
    p = vr(RS + 2 * (q % 5), 2)
    for d in range(4):
        lo = XN + 8 * q + 2 * d
        e(f'v_pk_fma_f32 {vr(lo, 2)}, {vr(lo, 2)}, {p}, {p} op_sel:[0,0,1] op_sel_hi:[1,0,1]')


ST = 16
for T in range(5):
    A.wait_vm(f'x{T}')
    if args.s1: stamp(f'x{T}')
    for j in range(4):
        for d in range(4):
            r = XRAW + 4 * (5 * j + T) + d
            first = (j == 0 and d == 0)
            e(f'v_dot2_f32_bf16 v{ST + 2 * T}, v{r}, {S_ONES}, {"0" if first else f"v{ST + 2 * T}"}')
            e(f'v_dot2_f32_bf16 v{ST + 2 * T + 1}, v{r}, v{r}, {"0" if first else f"v{ST + 2 * T + 1}"}')
e(f'''s_lshl_b32 s12, {S_W}, 3
      v_lshrrev_b32 v5, 2, {V_LANE}
      v_lshlrev_b32 v5, 5, v5
      v_add_u32 v4, s12, v5''')
for qp in ('[1,0,3,2]', '[2,3,0,1]'):
    for i in range(10):
        e(f'v_add_f32_dpp v{ST + i}, v{ST + i}, v{ST + i} quad_perm:{qp} row_mask:0xf bank_mask:0xf')
with nobg():
    e('''s_mov_b32 s12, 0x11111111
         s_mov_b32 exec_lo, s12
         s_mov_b32 exec_hi, s12''')
    for T in range(5):
        e(f'ds_write_b64 v4, {vr(ST + 2 * T, 2)} offset:{L_STATS + T * 512}')
    e('s_mov_b64 exec, -1')
for q in range(4):
    unpack(q)
A.wait_lg()
e('s_barrier')
fine('b1')
xcc_ld = f'buffer_load_dword v7, v77, {SRD_WS}, {S_GRP} offen sc1'
front(lambda: [A.bg_add([l], 'm1') for l in mod_loads('v78', 240) + [xcc_ld]])
for T in range(5):
    for h in range(2):
        e(f'ds_read_b128 {vr(16 + 8 * T + 4 * h)}, v5 offset:{L_STATS + T * 512 + h * 16}', tag='st')
for q in range(4, 10):
    unpack(q)
A.wait_lg('st')
e('s_mov_b32 s12, 0x3b000000')
for T in range(5):
    b = 16 + 8 * T
    e(f'''v_pk_add_f32 {vr(b, 2)}, {vr(b, 2)}, {vr(b + 2, 2)}
          v_pk_add_f32 {vr(b + 4, 2)}, {vr(b + 4, 2)}, {vr(b + 6, 2)}
          v_pk_add_f32 {vr(b, 2)}, {vr(b, 2)}, {vr(b + 4, 2)}
          v_pk_mul_f32 {vr(b, 2)}, {vr(b, 2)}, s[12:13] op_sel_hi:[1,0]
          v_fma_f32 v{b + 1}, -v{b}, v{b}, v{b + 1}
          v_max_f32 v{b + 1}, 0, v{b + 1}
          v_add_f32 v{b + 1}, 0x3727c5ac, v{b + 1}
          v_rsq_f32 v{RS + 2 * T}, v{b + 1}''')
for T in range(5):
    e(f'v_mul_f32 v{RS + 2 * T + 1}, -v{16 + 8 * T}, v{RS + 2 * T}')
for q in range(10):
    scale(q)
A.wait_vm('wq0')
e('s_barrier')
fine('b2')
run(tr_wqkv(0))
for q in range(10, 20):
    unpack(q)
    scale(q)
stamp('prenorm')
mod_check('v78', 240, 'm1', 'v76', 'v79')
checked('m1', [xcc_ld], lambda: e(f'''v_xor_b32 v6, {S_TAG}, v7
                                      v_lshrrev_b32 v6, 4, v6
                                      v_cmp_ne_u32 vcc, 0, v6
                                      s_and_b64 vcc, vcc, 0xffff'''))
with nobg():
    e(f'''v_and_b32 v5, 15, v7
          v_cmp_ne_u32 vcc, {S_XCC}, v5
          s_nop 1
          s_and_b64 vcc, vcc, 0xffff
          s_cmp_eq_u64 vcc, 0
          s_cselect_b32 {S_FAST}, {0 if args.slow else 1}, 0
          s_mul_i32 s12, {S_FAST}, {(WS_X1 - WS_O) * args.h2o}
          s_sub_u32 {S_X1ST}, {S_X1ST}, s12
          s_sub_u32 {S_X1LD}, {S_X1LD}, s12''')
stamp('mod')

CS = 64


def cs1_reads(j):
    it = []
    for h in range(2):
        it.append(('i', f'ds_read_b128 {vr(CS + 4 * h)}, v12 offset:{j * 128 + h * 16}', 'cs'))
        it.append(('i', f'ds_read_b128 {vr(CS + 8 + 4 * h)}, v12 offset:{512 + j * 128 + h * 16}', 'cs'))
    return it


def norm1_items(j, pk=False):
    it = [('wl', 'cs')]
    for T in range(5):
        b = XN + 8 * (5 * j + T)
        if pk:
            for i in range(0, 8, 2):
                it.append(('i', f'v_pk_fma_f32 {vr(b + i, 2)}, {vr(b + i, 2)}, {vr(CS + 8 + i, 2)}, {vr(CS + i, 2)}'))
        else:
            for i in range(8):
                it.append(('i', f'v_fma_f32 v{b + i}, v{b + i}, v{CS + 8 + i}, v{CS + i}'))
        for d in range(4):
            it.append(('i', f'v_cvt_pk_bf16_f32 v{b + d}, v{b + 2 * d}, v{b + 2 * d + 1}'))
        it.append(('i', f'ds_write_b128 v13, {vr(b)} offset:{(j % 2) * 20480 + T * 1024}', 'hw'))
    if j < 3:
        it += cs1_reads(j + 1)
    return it


def accQ(T): return 16 + 4 * T
def accK(T): return 32 + 4 * T
def accV(T): return 240 + 4 * T if T < 4 else 52


FR = 192


def rd1(j, pos):
    return [('i', f'ds_read_b128 {ar(FR + (pos % 2) * 20 + 4 * T)}, v14 offset:{(j % 2) * 20480 + (pos * 5 + T) * 1024}', f'f{pos}') for T in range(5)]


def mm1(j, pos):
    it = []
    wb = (j * 4 + pos) * 12
    first = (j == 0 and pos == 0)
    for T in range(5):
        f = ar(FR + (pos % 2) * 20 + 4 * T)
        if T < 4:
            it.append(('i', f'v_mfma_f32_16x16x32_bf16 {vr(accQ(T))}, {ar(wb)}, {f}, {"0" if first else vr(accQ(T))}'))
        it.append(('i', f'v_mfma_f32_16x16x32_bf16 {vr(accK(T))}, {ar(wb + 4)}, {f}, {"0" if first else vr(accK(T))}'))
        it.append(('i', f'v_mfma_f32_16x16x32_bf16 {vr(accV(T))}, {f}, {ar(wb + 8)}, {"0" if first else vr(accV(T))}'))
    return it


A.wait_lg()
run(cs1_reads(0))
e('s_barrier')
run(norm1_items(0, pk=True))
A.wait_vm('wq1')
A.wait_lg('hw')
e('s_barrier')
fine('c0')
e('v_accvgpr_read_b32 v81, a251')
e('v_accvgpr_read_b32 v86, a254\n v_accvgpr_read_b32 v87, a255')
C3[0] = 'v81'
c3(SRD_WO, 0)
A.bg_gap = args.gap1
run(rd1(0, 0))
for j in range(5):
    main = []
    if j > 0:
        main += interleave(mm1(j - 1, 3), rd1(j, 0) if j < 4 else [], 0, 5)
    if j == 4:
        run(main)
        break
    for pos in range(3):
        main += [('wl', [f'f{pos}'] + ([f'trq{pos}'] if j == 3 else []))] + interleave(mm1(j, pos), rd1(j, pos + 1), 0, 5)
    if j != 2:
        tq = tr_wqkv(j + 1 if j < 2 else 3)
        run(tq[:1])
        if j == 3:
            main = interleave(main, tq[1:7], 0, 6)
            main = interleave(main, tq[7:], 6, 24)
        else:
            main = pack(main, tq[1:], 0, -1)
    if j < 3:
        fill = norm1_items(j + 1)
    else:
        fill = lines(f'v_add_u32 v4, {L_MASK}, {V_L16}') + [('i', f'ds_read_b128 {vr(MK + 4 * i)}, v4 offset:{i * 1024}') for i in range(4)]
        fill += [('i', f'ds_read_b128 {vr(TRB)}, {V_L16} offset:{L_TRB}')]
        fill += [('i', f'v_accvgpr_read_b32 v{80 + i}, a{250 + i}') for i in range(4)] + [('i', f'v_mov_b32 v{ONE + r}, {S_ONES}') for r in range(4)] + [('i', f'v_lshlrev_b32 v76, 2, {V_LANE}')]
    if j == 3:
        fill = [('wv', 'mtb')] + mod_part1(96, 200, 216, None, 112, True) + fill
    run(pack(main, fill, 0, -2))
    fine(f'e{j}')
    A.wait_vm(('wq2', 'none', 'wq3', 'none')[j])
    A.wait_lg()
    e('s_barrier')
    fine(f'c{j + 1}')
    if j == 0:
        front(lambda: dma_wqkv(3))
        A.bg[12:12] = MTB
    if j == 1:
        for ks in range(4, 16):
            dma_1k(SRD_WO, V_WOD, ks, L_WO + ks * 4096, 'wo')
        bg_mix(args.pfe2, 3)
        if args.ot:
            touch([], f'v{V_OST}', S_OST)
            touch([f's_add_u32 {S_BT}, {S_OST}, 32768'], f'v{V_OST}', S_BT)
        for p in range(2):
            A.bg_add([f'buffer_load_dwordx4 {vr(XRES + 4 * p)}, v{V_XO}, {SRD_X}, {S_XOFF} offen offset:{p * 64}'], 'xr')
    if j == 3:
        front(lambda: [dma_1k(SRD_WO, V_WOD, ks, L_WO + ks * 4096, 'wo') for ks in range(4)])
        A.bg_add([f'buffer_load_dword {V_DUM}, v76, {SRD_WS}, {S_STST} offen sc1'], 'stt')
        gu_queue()
        bg_mix(3, 3)
with nobg():
    lm = A.newlabel('L_nomod')
    save = (list(A.vm), list(A.lg), A.t, A.t_vm, list(A.done), list(A.log))
    e(COND_B + f'\n s_cbranch_scc0 {lm}')
    mod_part2(96, lm, 3)
    A.label(lm)
    A.vm, A.lg, A.t, A.t_vm, A.done, A.log = save[0] + [(None, True)], *save[1:]
stamp('qkv')

QP, KP, VP = 140, 148, 158
VPOS = {2: 0, 0: 1, 4: 2, 1: 3, 3: 4}
SS, MX, PP, OO, LL, OP = 188, 220, 16, 32, 228, 48
PREV = {0: 4, 1: 4, 2: 0, 3: 1}
PMASK = {0: MK + 8, 1: MK + 12, 2: MK + 4, 3: MK + 4}
VPAIR = {2: 0, 0: 1, 1: 2, 3: 3}
t = ''
for T in range(5):
    for d in range(2):
        if T < 4:
            t += f'v_cvt_pk_bf16_f32 v{QP + 2 * T + d}, v{accQ(T) + 2 * d}, v{accQ(T) + 2 * d + 1}\n'
        t += f'v_cvt_pk_bf16_f32 v{KP + 2 * T + d}, v{accK(T) + 2 * d}, v{accK(T) + 2 * d + 1}\n'
vc = [f'v_cvt_pk_bf16_f32 v{VP + 2 * VPOS[T] + d}, v{accV(T) + 2 * d}, v{accV(T) + 2 * d + 1}\n' for T in range(5) for d in range(2)]
t += vc.pop(0) + vc.pop(0)
for T in (2, 3, 0, 1):
    t += f'v_mfma_f32_16x16x16_bf16 {vr(SS + 8 * T)}, {vr(KP + 2 * T, 2)}, {vr(QP + 2 * T, 2)}, {vr(MK)}\n' + vc.pop(0)
    t += f'v_mfma_f32_16x16x16_bf16 {vr(SS + 8 * T + 4)}, {vr(KP + 2 * PREV[T], 2)}, {vr(QP + 2 * T, 2)}, {vr(PMASK[T])}\n' + vc.pop(0)
t += 's_mov_b32 s12, 0x3eb8aa3b\n'
for T in (2, 3, 0, 1):
    s = SS + 8 * T
    t += f'''v_max3_f32 v{MX + T}, v{s}, v{s + 1}, v{s + 2}
          v_max3_f32 v{MX + 4 + T}, v{s + 3}, v{s + 4}, v{s + 5}
          v_max3_f32 v{MX + T}, v{MX + T}, v{s + 6}, v{s + 7}
          v_max_f32 v{MX + T}, v{MX + T}, v{MX + 4 + T}
          v_mov_b32 v{MX + 4 + T}, v{MX + T}
          '''
for k, sw in enumerate(('v_permlane32_swap_b32', 'v_permlane16_swap_b32')):
    for T in (2, 3, 0, 1):
        t += f'{sw} v{MX + T}, v{MX + 4 + T}\n'
    for T in (2, 3, 0, 1):
        t += f'v_max_f32 v{MX + T}, v{MX + T}, v{MX + 4 + T}\n'
    if k == 0:
        for T in (2, 3, 0, 1):
            t += f'v_mov_b32 v{MX + 4 + T}, v{MX + T}\n'
for T in range(4):
    t += f'v_mul_f32 v{MX + T}, s12, v{MX + T}\n'


def fin(T):
    x = f'v_rcp_f32 v{LL + 4 * T}, v{LL + 4 * T}\n'
    p = vr(LL + 4 * T, 2)
    y = ''
    for i in (0, 2):
        y += f'v_pk_mul_f32 {vr(OO + 4 * T + i, 2)}, {vr(OO + 4 * T + i, 2)}, {p} op_sel_hi:[1,0]\n'
    for d in range(2):
        y += f'v_cvt_pk_bf16_f32 v{OP + 2 * T + d}, v{OO + 4 * T + 2 * d}, v{OO + 4 * T + 2 * d + 1}\n'
    return x, y


for T in range(4):
    s = SS + 8 * T
    for i in range(8):
        t += f'v_fma_f32 v{s + i}, v{s + i}, s12, -v{MX + T}\n'
    for i in range(8):
        t += f'v_exp_f32 v{s + i}, v{s + i}\n'
    if T > 0:
        t += fin(T - 1)[0]
    curfirst = T in (0, 2)
    for d in range(2):
        t += f'v_cvt_pk_bf16_f32 v{PP + 4 * T + (0 if curfirst else 2) + d}, v{s + 2 * d}, v{s + 2 * d + 1}\n'
        t += f'v_cvt_pk_bf16_f32 v{PP + 4 * T + (2 if curfirst else 0) + d}, v{s + 4 + 2 * d}, v{s + 4 + 2 * d + 1}\n'
    if T > 0:
        t += fin(T - 1)[1]
    t += f'v_mfma_f32_16x16x32_bf16 {vr(LL + 4 * T)}, {vr(ONE)}, {vr(PP + 4 * T)}, 0\n'
    t += f'v_mfma_f32_16x16x32_bf16 {vr(OO + 4 * T)}, {vr(VP + 2 * VPAIR[T])}, {vr(PP + 4 * T)}, 0\n'


def wo_reg(ks, ct, hf=None):
    if 4 <= ks < 14:
        b, f = 96 + (ks - 4) * 16 + ct * 4, ar
    else:
        b, f = 160 + (ks if ks < 4 else ks - 10) * 16 + ct * 4, vr
    return f(b) if hf is None else f(b + 2 * hf, 2)


def tr_wo(ks):
    return [('i', f'ds_read_b64_tr_b16 {wo_reg(ks, ct, hf)}, v{TRB + ct} offset:{ks * 4096 + hf * 512}', f'trw{ks}')
            for ct in range(4) for hf in range(2)]


tl = lines(t)
A.bg_gap = args.gapa
run(tl[:args.acut])
A.bg_flush(upto=['wo', 'xr', 'tch'])
A.bg_on = False
run(tl[args.acut:])
for d in range(2):
    e(f'v_permlane16_swap_b32 v{OP + d}, v{OP + 2 + d}')
e(f's_add_u32 s16, {S_OST}, 32768')
stores([f'buffer_store_dwordx4 {vr(OP)}, v{V_OST}, {SRD_WS}, {S_OST} offen'], 'ost', plain=args.ot)
e(fin(3)[0] + fin(3)[1])
for d in range(2):
    e(f'v_permlane16_swap_b32 v{OP + 4 + d}, v{OP + 6 + d}')
stores([f'buffer_store_dwordx4 {vr(OP + 4)}, v{V_OST}, {SRD_WS}, s16 offen'], 'ost', plain=args.ot)
fine('ost')
if args.stop1:
    stamp('end')
    e(f'''s_waitcnt vmcnt(0)
          s_lshl_b32 s12, s2, 2
          s_add_u32 s12, s12, {S_W}
          s_lshl_b32 s12, s12, 8
          s_add_u32 s12, s12, {WS_STAMP}
          v_lshlrev_b32 v4, 2, {V_LANE}
          buffer_store_dword {V_STAMP}, v4, {SRD_WS}, s12 offen
          s_endpgm''')
    args.stamps = False
    keep_names = list(stamp_names)
A.bg_flush(args.b1)
A.wait_vm('xr')
for p in range(2):
    for d in range(2):
        e(f'v_permlane16_swap_b32 v{XRES + 4 * p + d}, v{XRES + 4 * p + 2 + d}')
e(f'''s_add_u32 s17, {S_OLD}, 4096
      s_add_u32 s18, {S_OLD}, 8192
      s_add_u32 s19, {S_OLD}, 12288
      v_bfe_u32 v16, {V_LANE}, 2, 2
      v_lshrrev_b32 v17, 5, {V_LANE}
      v_lshl_add_u32 v16, v17, 2, v16
      v_mul_u32_u24 v16, 192, v16
      v_and_b32 v18, 1, {V_G}
      v_mul_u32_u24 v19, {MAT1}, v18
      v_and_b32 v4, 3, {V_LANE}
      v_lshlrev_b32 v4, 3, v4
      v_add3_u32 v16, v16, v19, v4
      s_lshl_b32 s12, {S_W}, 5
      s_add_u32 s12, s12, {L_S}
      s_lshr_b32 s13, {S_W}, 1
      s_lshl_b32 s13, s13, 5
      s_add_u32 s13, s13, {L_S + 128}
      v_add_u32 v20, s12, v16
      v_add_u32 v21, s13, v16
      v_add_u32 v22, {3 * BLK}, v20
      v_add_u32 v23, {3 * BLK}, v21
      v_lshlrev_b32 v18, 10, v18
      v_lshl_add_u32 v18, v17, 8, v18
      v_lshl_add_u32 v18, {V_C}, 4, v18
      s_and_b32 s12, {S_W}, 1
      s_lshl_b32 s12, s12, 12
      s_xor_b32 s13, s12, 4096
      s_add_u32 s12, s12, {L_H2}
      s_add_u32 s13, s13, {L_H2}
      v_add_u32 v13, s12, v18
      v_add_u32 v14, s13, v18                   ; slots 2,3''')
OA, GA, X1A, X1P = 96, 32, 64, 24
publish_flag(64, 'ost')
A.bg_flush(args.b1d)
e(poll_ld(64), tag='poll')
for l in mod_loads('v80', 64):
    e(l, tag='m3')
stamp('opub')
for ks in range(4, 12):
    run(tr_wo(ks))
poll_check(64)
stamp('owait')


KORD = list(range(4, 16)) + [0, 1, 2, 3]
rest = list(A.bg)
gu_pre(gu_done())
A.bg = [([f'buffer_load_dwordx4 {vr(OA + 4 * n)}, {V_L16}, {SRD_WS}, {(S_OLD, "s17", "s18", "s19")[ks // 4]} offen offset:{(ks % 4) * 1024} sc1'], f'o{n}') for n, ks in enumerate(KORD)]
run(interleave([x for ks in (12, 13, 14, 15, 0, 1, 2, 3) for x in tr_wo(ks)], [('f', lambda: A.bg_flush(1))] * 12, pred=lambda t: True))
mod_check('v80', 64, 'm3', 'v82', 'v83')
for ct in range(4):
    e(f'ds_read_b128 {vr(GA + 4 * ct)}, v{V_GB} offset:{ct * 64}', tag='ga')
e('s_barrier')
gu_post(False)
mv = movers(6)
A.bg += rest[:args.b1c]
rest = rest[args.b1c:]
for n, ks in enumerate(KORD):
    A.wait_vm(f'o{n}')
    A.wait_lg(f'trw{ks}')
    for ct in range(4):
        e(f'v_mfma_f32_16x16x32_bf16 {vr(X1A + 4 * ct)}, {wo_reg(ks, ct)}, {vr(OA + 4 * n)}, {"0" if n == 0 else vr(X1A + 4 * ct)}')
        if ct == 0 and A.bg and (A.bg[0][1].startswith(('o', 'm')) or A.room()):
            A.bg_flush(1)
        if n >= 4 and mv:
            run([mv.pop(0)])
    if n == 12:
        XF = OA + 16
        for i in range(8):
            e(f'''v_lshlrev_b32 v{XF + 2 * i}, 16, v{XRES + i}
                  v_and_b32 v{XF + 2 * i + 1}, {S_HI}, v{XRES + i}''')
run(mv)
A.bg += rest
gu_pre(gu_done())
A.wait_lg()
e('s_barrier')
gu_post()
fine('omm')
for b in range(0, 16, 2):
    e(f'v_pk_fma_f32 {vr(X1A + b, 2)}, {vr(X1A + b, 2)}, {vr(GA + b, 2)}, {vr(XF + b, 2)}')
for i in range(8):
    e(f'v_cvt_pk_bf16_f32 v{X1P + i}, v{X1A + 2 * i}, v{X1A + 2 * i + 1}')
for i in range(8):
    e(f'v_dot2_f32_bf16 v48, v{X1P + i}, {S_ONES}, {"0" if i == 0 else "v48"}')
    e(f'v_dot2_f32_bf16 v49, v{X1P + i}, v{X1P + i}, {"0" if i == 0 else "v49"}')


def rowsum2(a, b):
    e(f'''v_permlane32_swap_b32 v{a}, v{b}
          v_add_f32 v{a}, v{a}, v{b}
          v_mov_b32 v{b}, v{a}
          v_permlane16_swap_b32 v{a}, v{b}
          v_add_f32 v{a}, v{a}, v{b}
          v_mov_b32 v{b}, v{a}
          v_permlane32_swap_b32 v{a}, v{b}''')


e(f'v_mov_b32 v50, {S_TAG}\n v_mov_b32 v51, {S_TAG}')
rowsum2(48, 49)
e('s_mov_b64 exec, 0xffff')
stores([f'buffer_store_dwordx4 v[48:51], {V_L16}, {SRD_WS}, {S_STST} offen'], 'sst', plain=True)
e('s_mov_b64 exec, -1')
fine('sst')
A.bg_flush(args.b2a)
SPT = 144
for i in range(8):
    e(f'''v_lshlrev_b32 v{X1A + 2 * i}, 16, v{X1P + i}
          v_and_b32 v{X1A + 2 * i + 1}, {S_HI}, v{X1P + i}''')
SB, CB, GB = 112, 128, 32
for ct in range(4):
    e(f'ds_read_b128 {vr(SB + 4 * ct)}, v{V_GB} offset:{256 + ct * 64}', tag='ga')
    e(f'ds_read_b128 {vr(CB + 4 * ct)}, v{V_GB} offset:{512 + ct * 64}', tag='ga')
    e(f'ds_read_b128 {vr(GB + 4 * ct)}, v{V_GB} offset:{768 + ct * 64}', tag='ga')
run(movers())
for l in st_loads(SPT):
    e(l, tag='st')
A.bg_flush(args.b2)
checked('st', st_loads(SPT), lambda: e(f'''v_cmp_ne_u32 vcc, {S_TAG}, v{SPT + 2}
                                          v_cmp_ne_u32 s[12:13], {S_TAG}, v{SPT + 6}
                                          s_or_b64 vcc, vcc, s[12:13]'''))
fine('stw')
e(f'v_pk_add_f32 {vr(SPT, 2)}, {vr(SPT, 2)}, {vr(SPT + 4, 2)}')
rowsum2(SPT, SPT + 1)
e(f'''s_mov_b32 s12, 0x3b000000
      v_pk_mul_f32 {vr(SPT, 2)}, {vr(SPT, 2)}, s[12:13] op_sel_hi:[1,0]
      v_fma_f32 v{SPT + 1}, -v{SPT}, v{SPT}, v{SPT + 1}
      v_max_f32 v{SPT + 1}, 0, v{SPT + 1}
      v_add_f32 v{SPT + 1}, 0x3727c5ac, v{SPT + 1}
      v_rsq_f32 v{SPT + 2}, v{SPT + 1}
      v_mul_f32 v{SPT + 3}, -v{SPT}, v{SPT + 2}''')
A.wait_lg()
p = vr(SPT + 2, 2)
H2P = 48
for half in range(2):
    for b in range(8 * half, 8 * half + 8, 2):
        e(f'v_pk_fma_f32 {vr(X1A + b, 2)}, {vr(X1A + b, 2)}, {p}, {p} op_sel:[0,0,1] op_sel_hi:[1,0,1]')
    for b in range(8 * half, 8 * half + 8, 2):
        e(f'v_pk_fma_f32 {vr(X1A + b, 2)}, {vr(X1A + b, 2)}, {vr(CB + b, 2)}, {vr(SB + b, 2)}')
    for i in range(4 * half, 4 * half + 4):
        e(f'v_cvt_pk_bf16_f32 v{H2P + i}, v{X1A + 2 * i}, v{X1A + 2 * i + 1}')
    stores([f'buffer_store_dwordx4 {vr(H2P + 4 * half)}, {V_L16}, {SRD_WS}, {S_X1ST} offen offset:{half * 1024}'], 'xst', plain=args.h2o)
A.bg_flush(args.b2b)
publish_flag(128, 'xst')
GU.pend = gu_done()
gu_post(True)
e(poll_ld(128), tag='poll')
A.bg_flush(args.b2c)
run(movers())
stamp('x1pub')

le, lep, lok = A.newlabel('L_ep'), A.newlabel('L_epp'), A.newlabel('L_eok')
save = (list(A.vm), list(A.done), A.t, A.t_vm, list(A.log))
e(f'''s_xor_b32 s12, {S_W}, 3
      s_or_b32 s12, s2, s12
      s_cmp_lg_u32 s12, 0
      s_cbranch_scc1 {le}
      v_lshrrev_b32 v4, 2, {V_LANE}
      v_lshlrev_b32 v4, 20, v4
      v_and_b32 v5, 3, {V_LANE}
      v_lshl_add_u32 v4, v5, 4, v4
      s_mov_b32 s12, {WS_GRP}''')
A.label(lep)
e(f'buffer_load_dwordx4 v[200:203], v4, {SRD_WS}, s12 offen sc1')
A.wait_vm()
for i in range(4):
    e(f'v_xor_b32 v{200 + i}, {S_TAG}, v{200 + i}')
e(f'''v_or3_b32 v5, v200, v201, v202
      v_or_b32 v5, v5, v203
      v_lshrrev_b32 v5, 4, v5
      v_cmp_ne_u32 vcc, 0, v5
      s_cbranch_vccz {lok}''')
spin_fail(lep)
A.label(lok)
e(f'''v_mov_b32 v5, {S_TAG}
      s_mov_b64 exec, 1''')
e(f's_mov_b32 s12, {WS_EPOCH}')
e(f'buffer_store_dword v5, off, {SRD_WS}, s12 sc1')
e('s_mov_b64 exec, -1')
A.label(le)
A.vm, A.done, A.t, A.t_vm, A.log = save
A.vm += [(None, True)]
e('v_mov_b32 v12, v81')
C3[0] = 'v12'
poll_check(128)
stamp('x1wait')


def dma_h2(q):
    for tt in range(4):
        A.bg_add([f's_add_u32 m0, {S_H2M}, {(q % 4) * 16384 + tt * 1024}', f's_add_u32 {S_BT}, {S_X1LD}, {tt * 16384 + q * 2048}',
                  f'buffer_load_dwordx4 {V_L16}, {SRD_WS}, {S_BT} offen sc1 lds'], f'y{q}')


front(lambda: [dma_h2(q) for q in range(args.y0)])
A.bg_flush(4 * args.y0)
rest = list(A.bg)
A.bg = []
for q in range(args.y0, 4):
    A.bg += rest[:args.b2d]
    rest = rest[args.b2d:]
    dma_h2(q)
A.bg += rest
A.bg_gap = args.gap4
A.bg_on = True
ACC4, FB = 64, 160


def rd4(q, st):
    pos, par = st // 2, st % 2
    return [('i', f'ds_read_b128 {vr(FB + 16 * (st % 2) + 4 * i)}, v{13 + i // 2} offset:{(q % 4) * 16384 + pos * 8192 + (i % 2) * 2048 + par * 512}', f'g{st}') for i in range(4)]


def mm4(q, st):
    first = (q == 0 and st == 0)
    wb = 16 * (2 * q + st // 2) + 8 * (st % 2)
    mm = []
    for k in range(6):
        acc = vr(ACC4 + 16 * k, 16)
        mm.append(('i', f'v_mfma_f32_32x32x16_bf16 {acc}, {ar(wb + 4 * (k // 4))}, {vr(FB + 16 * (st % 2) + 4 * (k % 4))}, {"0" if first else acc}'))
    return mm


WD_ADDR = {}


def wd_blocks(ks0, n, addr):
    for k in range(n):
        WD_ADDR[ks0 + k] = addr + k * 4096
        dma_1k(SRD_WD, V_WDD, ks0 + k, addr + k * 4096, f'wd{ks0 + k}')


def hh_touch(k):
    so = (S_HST, S_HST, S_HST2, S_HST2, 's18', 's18')[k]
    touch([f's_add_u32 {S_BT}, {so}, {(k % 2) * 86 * 1024}'], V_L16, S_BT, 0, 'v[252:255]')


e(f'''s_lshr_b32 s14, {S_W}, 1
      s_add_u32 s14, s14, 4
      s_sub_u32 s14, s14, {S_W}
      s_lshl_b32 s14, s14, 10
      s_sub_u32 s13, {S_NU}, 2
      s_mul_i32 s14, s14, s13
      s_add_u32 s18, {S_HST}, s14''')
def gu_est():
    n = GU.landed
    while n < GU.queued and f'p4w{n}' not in {t for l, t in A.bg} and A.tagdone[f'p4w{n}'] <= A.t + args.slack:
        n += 1
    return n


A.wait_vm('y0')
gu_pre(max(gu_done(), gu_est(), 2))
A.wait_lg()
e('s_barrier')
gu_post()
fine('d0')
run(rd4(0, 0) + movers(1))
wdn = 0
def glu(k, pk):
    b = ACC4 + 16 * k
    t = ''
    if pk:
        for r in range(0, 8, 2):
            t += f'v_pk_mul_f32 {vr(b + r, 2)}, {vr(b + r, 2)}, s[14:15] op_sel_hi:[1,0]\n'
    else:
        for r in range(8):
            t += f'v_mul_f32 v{b + r}, s14, v{b + r}\n'
    for r in range(8):
        t += f'v_exp_f32 v{b + r}, v{b + r}\n'
    if pk:
        for r in range(0, 8, 2):
            t += f'v_pk_add_f32 {vr(b + r, 2)}, {vr(b + r, 2)}, 1.0 op_sel_hi:[1,0]\n'
    else:
        for r in range(8):
            t += f'v_add_f32 v{b + r}, 1.0, v{b + r}\n'
    for r in range(8):
        t += f'v_rcp_f32 v{b + r}, v{b + r}\n'
    if pk:
        for r in range(0, 8, 2):
            t += f'v_pk_mul_f32 {vr(b + r, 2)}, {vr(b + r, 2)}, {vr(b + 8 + r, 2)}\n'
    else:
        for r in range(8):
            t += f'v_mul_f32 v{b + r}, v{b + r}, v{b + 8 + r}\n'
    for d in range(4):
        t += f'v_cvt_pk_bf16_f32 v{b + d}, v{b + 2 * d}, v{b + 2 * d + 1}\n'

    def st():
        st_ = f'buffer_store_dwordx4 {vr(b)}, {V_L16}, {SRD_WS}, {(S_HST, "s16", S_HST2, "s17", "s18", "s19")[k]} offen'
        if k >= 4:
            with nobg():
                ls = A.newlabel('L_sk')
                e(f's_cmp_lt_u32 {S_NU}, 3\n s_cbranch_scc1 {ls}')
                stores([st_], 'hst', optional=True, plain=args.ht)
                A.label(ls)
        else:
            stores([st_], 'hst', plain=args.ht)
    return lines(t) + [('f', st)]


NREG = 16
e(f'''s_mov_b32 s14, 0xbfb8aa3b
      s_add_u32 s16, {S_HST}, {86 * 1024}
      s_add_u32 s17, {S_HST2}, {86 * 1024}
      s_add_u32 s19, s18, {86 * 1024}''')
QL = 8 - args.tailq
NT = 4 * args.tailq


def rdt(i, u):
    q, st = QL + u // 4, u % 4
    n = (i * NT + u) % 8
    return ('i', f'ds_read_b128 {vr(FB + 32 + 4 * n)}, v{13 + i // 2} offset:{(q % 4) * 16384 + (st // 2) * 8192 + (i % 2) * 2048 + (st % 2) * 512}', f'r{i}_{u}')


def after_bar4(q):
    global wdn
    if q < 4:
        dma_h2(q + 4)
    if q < 3:
        c3(SRD_WD, q)
    if GU.freed >= 12 and wdn == 0:
        wd_blocks(0, 7, L_S + 13 * 4096)
        wdn = 7
    if GU.freed == 16 and wdn == 7:
        wd_blocks(7, 13, L_S)
        wdn = 20


for q in range(QL):
    main = []
    for st in range(3):
        main += [('wl', [f'g{st}', f'mv{2 * q + st // 2}'])] + interleave(mm4(q, st), rd4(q, st + 1), 0, 4)
    if q < 6 and args.ht:
        hh_touch(q)
        if True:
            A.bg.insert(min(len(A.bg) - 1, 4), A.bg.pop())
    run(interleave(main, movers(), 0, 10))
    last = q == QL - 1
    A.wait_vm('y7' if last else f'y{q + 1}')
    gu_pre(16 if last else max(gu_done(), gu_est(), 2 * q + 4))
    A.wait_lg()
    e('s_barrier')
    gu_post()
    if q % 2:
        fine(f'd{(q + 1) // 2}')
    after_bar4(q)
    if q >= 4:
        wd_blocks(20 + 4 * (q - 4), 4, L_H2 + (q - 4) * 16384)
    run(interleave(mm4(q, 3), (movers() + [rdt(0, u) for u in range(4)]) if last else (rd4(q + 1, 0) + movers(2 * q + 3)), 0, 5))
seq = [(i, u) for i in range(4) for u in range(NT)]
pend = []
for i in range(4):
    main = []
    for u in range(NT):
        n = i * NT + u
        ks, par = 2 * QL + u // 2, u % 2
        main.append(('wl', [f'r{i}_{u}', f'mv{ks}']))
        for k in ([4 + i, i] if i < 2 else [i]):
            acc = vr(ACC4 + 16 * k, 16)
            main.append(('i', f'v_mfma_f32_32x32x16_bf16 {acc}, {ar(16 * ks + 8 * par + 4 * (k // 4))}, {vr(FB + 32 + 4 * (n % 8))}, {acc}'))
        if n + 4 < len(seq):
            main.append(rdt(*seq[n + 4]))
    nm = sum(1 for it in main if it[0] == 'i' and it[1].startswith('v_mfma'))
    take = min(len(pend), (nm - 2) * args.gper)
    run(interleave(main, pend[:take], 2))
    pend = pend[take:]
    if i == 0 or i == 3:
        A.wait_lg()
        e('s_barrier')
        GU.pend = 16
        gu_post()
        after_bar4(7)
        if i == 3:
            q0 = max(QL, 4)
            wd_blocks(20 + 4 * (q0 - 4), 17 - 4 * (q0 - 4), L_H2 + (q0 - 4) * 16384)
    if i == args.gcut:
        A.bg.sort(key=lambda it: int(it[1][2:]))
        A.bg_flush(upto=f'wd{NREG - 1}')
        A.bg_on = False
    if i < 3:
        for k in ([4 + i, i] if i < 2 else [i]):
            pend += glu(k, args.gper == 0)
assert wdn == 20
stamp('gemm4')
A.bg.sort(key=lambda it: int(it[1][2:]))
run(pend)
run(glu(3, True))
fine('hst')
A.bg_flush(args.b4)
run(lines(tr_bases_t(16, f'''v_lshrrev_b32 v42, 1, {V_G}
          v_lshlrev_b32 v42, 4, v42
          v_and_b32 v43, 1, {V_G}
          v_lshl_add_u32 v42, v43, 2, v42
          v_add_u32 v42, v42, v40''', 'v_and_b32 v43, 6, v42', 0).replace('v40', 'v4').replace('v41', 'v5').replace('v42', 'v6').replace('v43', 'v7')))
for ct in range(4):
    e(f'v_add_u32 v{48 + ct}, 0x10000, v{16 + ct}')
    e(f'v_add_u32 v{52 + ct}, 0x20000, v{16 + ct}')
e(f'''v_lshrrev_b32 v11, 1, {V_G}
      v_lshlrev_b32 v11, 10, v11
      v_and_b32 v5, 1, {V_G}
      v_lshl_add_u32 v11, v5, 9, v11
      v_lshl_add_u32 v11, {V_C}, 4, v11''')
publish_flag(192, ['hst', f'wd{NREG - 1}'])
e(poll_ld(192), tag='poll')
stamp('hpub')


def wd_addr(ks, ct, hf):
    off = WD_ADDR[ks] + hf * 1024
    return f'v{(16, 48, 52)[off >> 16] + ct} offset:{off & 0xffff}'


def tr_wd(ks):
    return [('i', f'ds_read_b64_tr_b16 {ar((ks % 16) * 16 + ct * 4 + hf * 2, 2)}, {wd_addr(ks, ct, hf)}', f't{ks}')
            for ct in range(4) for hf in range(2)]


A.bg_flush(args.b5)
for ks in range(8):
    run(tr_wd(ks))
poll_check(192)
stamp('hwait')
HA, ACC5 = 80, 64
hl = [([f's_add_u32 {S_BT}, {S_HLD}, {ks * 2048}', f'buffer_load_dwordx4 {vr(HA + 4 * ks)}, v11, {SRD_WS}, {S_BT} offen sc1'], f'h{ks}') for ks in range(43)]
rest = list(A.bg)
A.bg = hl[:args.hfirst]
A.bg_flush()
A.wait_lg()
e('s_barrier')
A.bg = rest
wd_blocks(37, 6, L_S + 13 * 4096)
A.bg += hl[args.hfirst:]
A.bg_gap = args.gap5
A.bg_on = True
for ks in range(8, NREG):
    run(tr_wd(ks))
issued = NREG
for ks in range(43):
    if ks == args.kbar:
        A.wait_vm('wd42')
        e('s_barrier')
        fine('wdall')
    A.wait_vm(f'h{ks}')
    A.wait_lg(f't{ks}')
    go = ks >= args.kbar and issued < 43 and issued - 16 <= ks
    for ct in range(4):
        e(f'v_mfma_f32_16x16x32_bf16 {vr(ACC5 + 4 * ct)}, {ar((ks % 16) * 16 + ct * 4)}, {vr(HA + 4 * ks)}, {"0" if ks == 0 else vr(ACC5 + 4 * ct)}')
        if go:
            run(tr_wd(issued)[2 * ct:2 * ct + 2])
    if go:
        issued += 1
    if ks == 30:
        XF5 = 80
        for i in range(8):
            e(f'''v_lshlrev_b32 v{XF5 + 2 * i}, 16, v{X1P + i}
                  v_and_b32 v{XF5 + 2 * i + 1}, {S_HI}, v{X1P + i}''')
assert issued == 43
A.bg_on = False
stamp('gemm5')
for b in range(0, 16, 2):
    e(f'v_pk_fma_f32 {vr(ACC5 + b, 2)}, {vr(ACC5 + b, 2)}, {vr(GB + b, 2)}, {vr(XF5 + b, 2)}')
for i in range(8):
    e(f'v_cvt_pk_bf16_f32 v{X1P + i}, v{ACC5 + 2 * i}, v{ACC5 + 2 * i + 1}')
for p in range(2):
    for d in range(2):
        e(f'v_permlane16_swap_b32 v{X1P + 4 * p + d}, v{X1P + 4 * p + 2 + d}')
for p in range(2):
    e(f'buffer_store_dwordx4 {vr(X1P + 4 * p)}, v{V_XO}, {SRD_OUT}, {S_XOFF} offen offset:{p * 64} {args.outm}')
if args.stamps:
    stamp('end')
    e(f'''s_lshl_b32 s12, s2, 2
          s_add_u32 s12, s12, {S_W}
          s_lshl_b32 s12, s12, 8
          s_add_u32 s12, s12, {WS_STAMP}
          v_lshlrev_b32 v4, 2, {V_LANE}
          buffer_store_dword {V_STAMP}, v4, {SRD_WS}, s12 offen''')
A.label('L_giveup')
e('s_endpgm')
assert not A.bg and not PIECES

nn = A.pad_hazards()
hdr = open(f'cdna_kernels/{NAME}.s.ref').read().split('; Override launch')[0]
wrap = lambda body: hdr + f'''; @launch grid=(256,1,1) block=(256,1,1) lds={LDS_TOTAL}
.amdgcn_target "amdgcn-amd-amdhsa--gfx950"
.text
.globl {NAME}_kernel
.p2align 8
.type {NAME}_kernel,@function
{NAME}_kernel:
''' + body + f'''.rept 256
    s_endpgm
.endr
L_codeend:
.section .rodata,"a"
.p2align 6
.amdhsa_kernel {NAME}_kernel
  .amdhsa_next_free_vgpr 512
  .amdhsa_next_free_sgpr 102
  .amdhsa_accum_offset 256
  .amdhsa_group_segment_fixed_size 0
  .amdhsa_kernarg_size 96
  .amdhsa_user_sgpr_count 2
  .amdhsa_user_sgpr_kernarg_segment_ptr 1
  .amdhsa_system_sgpr_workgroup_id_x 1
.end_amdhsa_kernel
'''
if args.align:
    print('align', align_pass(A, wrap, args.align), file=sys.stderr)
out = wrap(A.text())
if args.stamps or args.stop1:
    out += '; stamps: ' + ','.join(stamp_names) + '\n'
open(args.o, 'w').write(out)
if args.vlog:
    ev = sorted([(t, 'S', n) for n, t in model] + [(t, 'V', f'{tag}->{c}') for t, c, tag in A.log])
    print(' '.join((f'\n=={n}@{int(t)}==' if k == 'S' else f'{int(t)}:{n}') for t, k, n in ev), file=sys.stderr)
print('nvm', len(A.log), file=sys.stderr)
print('model: ' + ' '.join(f'{n}:{int(t)}' for n, t in model), file=sys.stderr)
print(f'wrote {args.o}: {len(A.ins)} instructions, {nn} hazard nops', file=sys.stderr)
```

```python
import sys, argparse
from contextlib import contextmanager
from asmlib import Asm, align_pass

NAME = "adaLN_cond__sliding_local_dilated__glu_gated_glu__prompt"
ap = argparse.ArgumentParser()
ap.add_argument('-o', default=f'cdna_kernels/{NAME}.s')
ap.add_argument('--stamps', action='store_true')
ap.add_argument('--cyc', action='store_true')
ap.add_argument('--fine', action='store_true')
ap.add_argument('--slow', action='store_true')
ap.add_argument('--x', default='')
ap.add_argument('--vlog', action='store_true')
ap.add_argument('--align', type=int, default=5)
ap.add_argument('--stop1', action='store_true')
ap.add_argument('--outm', default='nt')
ap.add_argument('--plan', default='4030000')
ap.add_argument('--touch', action='store_true')
ap.add_argument('--s1', action='store_true')
for k, d in dict(gapa=64, gapaware=1, c3=1, otlb=1, jit1=0, trsp=99, w0=0, w1=0, pg=2, zero=1, pfx=0, pfy=0, pfz=0, x0=2, bpos=8, h2o=1, ot=0, ht=0, gpl=1800, acut=70, gap0=64, gap1=64, gap4=64, gap5=64, s0=4, pfe2=3, pf0=4, b1=7, b1d=0, b2a=0, b2c=3, b2d=3, y0=2, slack=0, b1c=8, b2=5, b2b=2, b3=12, b4=8, win=11, gcut=3, tailq=2, gper=6, b5=6, hfirst=0, kbar=8, lat0=2900).items():
    ap.add_argument('--' + k, type=int, default=d)
args = ap.parse_args()
args.wt = not args.touch

A = Asm()
e = A.e
A.win = args.win
A.lat = {'xpf': (args.lat0, 2.5), 'x': (650, 1), 'gp': (args.gpl, .4), 'mx': (1100, .3), 'gc': (1250, .5), 'gq': (1800, 1.5), 'mtb': (1500, .8), 'mt': (1800, .8), 'ost': (400 if args.ot else 800, .1), 'xst': (400 if args.h2o else 800, .1),
         'hst': (400 if args.ht else 800, .1), 'poll': (650, .1), 'xr': (800, 2), '': (400, .1), 'p4w': (1100, 1.35), 'stt': (1400, .25), 'st': (650, 1), 'sst': (400, .1), 'mg': (1100, .25),
         'm': (1100, 1), 'o': (650 if args.ot else 1100, 1), 'y': (650 if args.h2o else 1100, 1), 'h': (650 if args.ht else 1100, 1), 'tch': (1600, 1)}
model = []

WS_O = 0x30000
WS_X1 = 0x50000
WS_STATS = 0x70000
WS_HH = 0x80000
HH_PITCH = 0x2C000
WS_GRP = 0xF0000
WS_MODP = 0xE0000
WS_EPOCH = 0xEF000
WS_STAMP = 0x1000000
WS_SIZE = 0x1100000 if args.stamps else 0x1000000

L_STATS, L_RED, L_MODV, L_GAGB = 0x0, 0xA00, 0x1000, 0x2000
L_HRING = 0x3000
L_B = [0x3000, 0xF000, 0x1B000, 0xF000]
L_WO = 0x17000
L_H2 = 0x17000
BLK, MAT1 = 12416, 6176
L_S = 0x3000
L_WD = 0x3000
LDS_TOTAL = 163840

S_W, S_RB, S_M, S_J, S_TAG, S_FAST, S_XCC = 's4', 's5', 's6', 's7', 's8', 's9', 's11'
SRD_X, SRD_WQKV, SRD_WO, SRD_WG, SRD_WU, SRD_WD, SRD_WMOD, SRD_OUT, SRD_WS, SRD_C = [
    f's[{b}:{b + 3}]' for b in range(40, 80, 4)]
S_GRP, S_ONES, S_HI, S_SPIN = 's84', 's85', 's86', 's87'
S_XOFF, S_NU, S_U0, S_COL = 's88', 's89', 's90', 's91'
SRD_GU = 's[92:95]'
S_MM4, S_GUM, S_H2M = 's80', 's81', 's39'
S_OST, S_X1ST, S_HST, S_STST = 's96', 's97', 's98', 's99'
S_HST2 = 's83'
S_W3K, S_M128, S_BT, S_W1K = 's20', 's21', 's22', 's23'
S_OLD, S_X1LD, S_STLD, S_HLD = 's35', 's36', 's37', 's38'
V_LANE, V_L16, V_G, V_C = 'v0', 'v1', 'v2', 'v3'
V_DUM, V_STAMP = 'v10', 'v15'
V_WOD, V_P4D, V_OST, V_XO, V_WDD, V_GB = 56, 57, 60, 61, 62, 63
PD = 'v[116:119]'


def vr(b, n=4):
    return f'v[{b}:{b + n - 1}]'


def ar(b, n=4):
    return f'a[{b}:{b + n - 1}]'


@contextmanager
def nobg():
    old = A.bg_on
    A.bg_on = False
    yield
    A.bg_on = old


nstamp = [0]
stamp_names = []


def stamp(name=''):
    model.append((name, A.t))
    if not args.stamps:
        return
    with nobg():
        e('s_memtime s[100:101]' if args.cyc else 's_memrealtime s[100:101]')
        stamp_names.append(name)
        A.wait_lg()
        e(f'v_writelane_b32 {V_STAMP}, s100, {nstamp[0]}')
    nstamp[0] += 1


def fine(name):
    if args.fine:
        stamp(name)


def lines(t):
    return [('i', l.split(';')[0].strip()) for l in t.split('\n') if l.split(';')[0].strip()]


def run(items):
    for it in items:
        if it[0] == 'i':
            e(it[1], tag=it[2] if len(it) > 2 else None)
        elif it[0] == 'wl':
            A.wait_lg(it[1])
        elif it[0] == 'wv':
            A.wait_vm(it[1])
        elif it[0] == 'f':
            it[1]()
        else:
            raise ValueError(it)


def is_mem(it):
    return it[0] == 'f' or (it[0] == 'i' and it[1].startswith(('ds_', 'buffer_')))


def is_valu(it):
    return it[0] == 'i' and it[1].startswith('v_') and not it[1].startswith('v_mfma')


def interleave(main, fill, start=0, end=None, pred=lambda t: t.startswith('v_mfma')):
    slots = [i for i, it in enumerate(main) if it[0] == 'i' and pred(it[1])]
    slots = slots[start:end]
    sset = {i: k for k, i in enumerate(slots)}
    out = []
    n = len(slots)
    done = 0
    i = 0
    while i < len(main):
        out.append(main[i])
        if i in sset:
            k = sset[i] + 1
            while i + 1 < len(main) and is_mem(main[i + 1]) and (i + 1) not in sset:
                i += 1
                out.append(main[i])
            upto = (len(fill) * k + n - 1) // n
            valu = False
            while done < upto:
                it = fill[done]
                if is_mem(it) and valu and k < n and args.gapaware:
                    break
                valu = valu or is_valu(it)
                out.append(it)
                done += 1
        i += 1
    out.extend(fill[done:])
    return out


def cost(it):
    if it[0] != 'i':
        return 1
    if it[1].startswith('ds_write_b128'):
        return 3
    if it[1].startswith(('v_exp', 'v_rcp', 'v_rsq')):
        return 2
    return 1


def pack(main, fill, start=0, end=None):
    gaps = []
    idx = [i for i, it in enumerate(main) if it[0] == 'i' and it[1].startswith('v_mfma')]
    for a, i in enumerate(idx):
        nxt = idx[a + 1] if a + 1 < len(idx) else len(main)
        j = i
        while j + 1 < nxt and is_mem(main[j + 1]):
            j += 1
        gaps.append((j, sum(cost(x) for x in main[i + 1:nxt])))
    gaps = gaps[start:end]
    total = sum(cost(x) for x in fill) + sum(c for _, c in gaps)
    at = {}
    done = 0
    acc = 0.0
    per = total / len(gaps)
    for k, (j, c) in enumerate(gaps):
        acc += per - c
        lst = []
        valu = False
        while done < len(fill) and (acc >= cost(fill[done]) - 0.5 or k == len(gaps) - 1):
            it = fill[done]
            if is_mem(it) and valu and k < len(gaps) - 1:
                break
            valu = valu or is_valu(it)
            lst.append(it)
            acc -= cost(it)
            done += 1
        at[j] = lst
    out = []
    for i, it in enumerate(main):
        out.append(it)
        out.extend(at.get(i, []))
    return out


def spin_fail(lbl_loop):
    e(f'''s_sub_u32 {S_SPIN}, {S_SPIN}, 1
          s_cmp_eq_u32 {S_SPIN}, 0
          s_cbranch_scc1 L_giveup
          s_branch {lbl_loop}''')


def checked(tag, loads, check):
    A.wait_vm(tag)
    with nobg():
        lc, lp, ld = A.newlabel('L_c'), A.newlabel('L_p'), A.newlabel('L_d')
        save = (list(A.vm), list(A.done), A.t, A.t_vm, list(A.log))
        e(f's_branch {lc}')
        A.label(lp)
        for l in loads:
            e(l)
        A.wait_vm()
        A.vm, A.done, A.t, A.t_vm, A.log = save
        A.label(lc)
        check()
        e(f's_cbranch_vccz {ld}')
        spin_fail(lp)
        A.label(ld)


def stores(lst, tag, optional=False, plain=False):
    with nobg():
        if not plain:
            for t in lst:
                e(t + ' sc1', tag=tag, optional=optional)
            return
        l1, l2 = A.newlabel('L_st'), A.newlabel('L_st')
        e(f"""s_cmp_lg_u32 {S_FAST}, 0
              s_cbranch_scc1 {l1}""")
        save = (list(A.vm), list(A.done), A.t, A.t_vm, list(A.log))
        for t in lst:
            e(t + ' sc1')
        e(f's_branch {l2}')
        A.vm, A.done, A.t, A.t_vm, A.log = save
        A.label(l1)
        for t in lst:
            e(t, tag=tag, optional=optional)
        A.label(l2)


def touch(pre, va, so, off=0, dst=None):
    dst = dst or PD
    if True:
        A.bg_add(pre + [f'buffer_load_dwordx4 {dst}, {va}, {SRD_WS}, {so} offen offset:{off} sc1'], 'tch')


def publish_flag(off, tag):
    with nobg():
        e(f'''s_add_u32 s12, {S_MM4}, {S_GRP}
              v_mov_b32 v5, {S_TAG}''')
        if off == 64:
            e(f'''s_and_b32 s13, {S_MM4}, 32
                  v_and_b32 v9, 7, {V_LANE}
                  v_lshl_add_u32 v9, v9, 2, s13''')
        else:
            e(f'v_lshlrev_b32 v9, 2, {V_C}')
        A.wait_vm(tag)
        e('s_barrier')
        l1, l2 = A.newlabel('L_pf'), A.newlabel('L_pf')
        e(f'''s_cmp_lg_u32 {S_W}, 0
              s_cbranch_scc1 {l2}
              s_mov_b64 exec, 1
              s_cmp_lg_u32 {S_FAST}, 0
              s_cbranch_scc1 {l1}''')
        e(f'buffer_store_dword v5, off, {SRD_WS}, s12 offset:{off} sc1', optional=True)
        e(f'''s_mov_b64 exec, -1
              s_branch {l2}''')
        A.label(l1)
        e(f'buffer_store_dword v5, off, {SRD_WS}, s12 offset:{off}', optional=True)
        e('s_mov_b64 exec, -1')
        A.label(l2)


def poll_ld(off):
    return f'buffer_load_dword v8, v9, {SRD_WS}, {S_GRP} offen offset:{off} sc1'


def poll_check(off):
    with nobg():
        checked('poll', [poll_ld(off)], lambda: e(f'v_cmp_ne_u32 vcc, {S_TAG}, v8'))


def st_loads(t0):
    return [f'buffer_load_dwordx4 {vr(t0 + 4 * p)}, {V_L16}, {SRD_WS}, {S_STLD} offen offset:{p * 1024} sc1' for p in range(2)]


def mod_loads(va, t0):
    return [f'buffer_load_dwordx4 {vr(t0 + 4 * p)}, {va}, {SRD_WS}, s{24 + p} offen sc1' for p in range(4)]


def mod_check(va, t0, tag, lds_v, addone_v):
    def chk():
        e(f's_and_b32 s13, {S_TAG}, 0xff')
        for i in range(16):
            e(f'v_xor_b32 v{t0 + i}, s13, v{t0 + i}')
        e(f'v_or3_b32 v5, v{t0}, v{t0 + 1}, v{t0 + 2}')
        e(f'v_or3_b32 v6, v{t0 + 3}, v{t0 + 4}, v{t0 + 5}')
        for i in range(6, 14, 4):
            e(f'v_or3_b32 v5, v5, v{t0 + i}, v{t0 + i + 1}')
            e(f'v_or3_b32 v6, v6, v{t0 + i + 2}, v{t0 + i + 3}')
        e(f'v_or3_b32 v5, v5, v{t0 + 14}, v{t0 + 15}')
        e(f'''v_or_b32 v5, v5, v6
              v_and_b32 v5, 0xff, v5
              v_cmp_ne_u32 vcc, 0, v5''')
    checked(tag, mod_loads(va, t0), chk)
    for i in range(0, 4, 2):
        e(f'v_pk_add_f32 {vr(t0 + i, 2)}, {vr(t0 + i, 2)}, {vr(t0 + 4 + i, 2)}')
        e(f'v_pk_add_f32 {vr(t0 + 8 + i, 2)}, {vr(t0 + 8 + i, 2)}, {vr(t0 + 12 + i, 2)}')
    for i in range(0, 4, 2):
        e(f'v_pk_add_f32 {vr(t0 + i, 2)}, {vr(t0 + i, 2)}, {vr(t0 + 8 + i, 2)}')
    for rnd in range(2):
        e(f'v_cvt_pk_bf16_f32 v5, v{t0}, v{t0 + 1}')
        e(f'v_cvt_pk_bf16_f32 v6, v{t0 + 2}, v{t0 + 3}')
        e(f'v_lshlrev_b32 v{t0}, 16, v5')
        e(f'v_and_b32 v{t0 + 1}, {S_HI}, v5')
        e(f'v_lshlrev_b32 v{t0 + 2}, 16, v6')
        e(f'v_and_b32 v{t0 + 3}, {S_HI}, v6')
        if rnd == 0:
            if addone_v is None:
                break
            for i in range(4):
                e(f'v_add_f32 v{t0 + i}, v{t0 + i}, {addone_v}')
    e(f'ds_write_b128 {lds_v}, {vr(t0)}', tag='modw')


def mod_task_loads(base, cond, tag, rr=vr, va='v74', vc='v75'):
    l = A.newlabel('L_ml')
    with nobg():
        e(cond + f'\n s_cbranch_scc0 {l}')
        e(f'buffer_load_dwordx2 {rr(base + 16, 2)}, {vc}, {SRD_C}, s33 offen', tag=tag, optional=True)
        for i in range(4):
            e(f'buffer_load_dwordx4 {rr(base + 4 * i)}, {va}, {SRD_WMOD}, s{29 + i} offen', tag=tag, optional=True)
        A.label(l)


def mod_part1(base, t, ad, from_a=None, c0=None, fma=False):
    x = ''
    c0 = c0 or base + 16
    if from_a is not None:
        for i in range(18):
            x += f'v_accvgpr_read_b32 v{base + i if i < 16 else c0 + i - 16}, a{from_a + i}\n'
    x += f"""v_lshlrev_b32 v{t + 8}, 16, v{c0}
          v_and_b32 v{t + 9}, {S_HI}, v{c0}
          v_lshlrev_b32 v{t + 10}, 16, v{c0 + 1}
          v_and_b32 v{t + 11}, {S_HI}, v{c0 + 1}
          """
    for op in ('v_mul_f32 v{a}, 0xbfb8aa3b, v{b}', 'v_exp_f32 v{a}, v{a}', 'v_add_f32 v{a}, 1.0, v{a}', 'v_rcp_f32 v{a}, v{a}', 'v_mul_f32 v{b}, v{b}, v{a}'):
        for i in range(4):
            x += op.format(a=t + 12 + i, b=t + 8 + i) + '\n'
    MA = t + 8
    if fma:
        for i in range(4):
            x += f'v_cvt_pk_bf16_f32 v{t + i}, 0, v{t + 8 + i}\n'
        for i in range(4):
            for d in range(4):
                x += f'v_lshlrev_b32 v{t + 4}, 16, v{base + 4 * i + d}\n v_and_b32 v{t + 5}, {S_HI}, v{base + 4 * i + d}\n'
                for h in range(2):
                    if i == 0:
                        x += f'v_mul_f32 v{MA + 2 * d + h}, v{t + 4 + h}, v{t + i}\n'
                    else:
                        x += f'v_fma_f32 v{MA + 2 * d + h}, v{t + 4 + h}, v{t + i}, v{MA + 2 * d + h}\n'
    else:
        for i in range(4):
            x += f'v_cvt_pk_bf16_f32 v{t + i}, v{t + 8 + i}, 0\n'
            x += f'v_cvt_pk_bf16_f32 v{t + 4 + i}, 0, v{t + 8 + i}\n'
        for i in range(4):
            for d in range(4):
                for h in range(2):
                    src2 = '0' if i == 0 else f'v{MA + 2 * d + h}'
                    x += f'v_dot2_f32_bf16 v{MA + 2 * d + h}, v{base + 4 * i + d}, v{t + 4 * h + i}, {src2}\n'
    x += f"""v_and_b32 v{ad}, 7, {V_LANE}
          v_lshlrev_b32 v{ad}, 5, v{ad}
          v_and_b32 v{ad + 1}, 1, {V_G}
          v_lshl_add_u32 v{ad}, v{ad + 1}, 3, v{ad}
          """
    for p in range(4):
        x += f'v_permlane32_swap_b32 v{MA + 2 * p}, v{MA + 2 * p + 1}\n'
    for p in range(4):
        x += f'v_add_f32 v{MA + 2 * p}, v{MA + 2 * p}, v{MA + 2 * p + 1}\n'
    x += f"""v_lshrrev_b32 v{ad + 1}, 1, {V_G}
          v_lshl_add_u32 v{ad}, v{ad + 1}, 2, v{ad}
          """
    for p in range(2):
        x += f'v_permlane16_swap_b32 v{MA + 4 * p}, v{MA + 4 * p + 2}\n'
    for p in range(2):
        x += f'v_add_f32 v{MA + 4 * p}, v{MA + 4 * p}, v{MA + 4 * p + 2}\n'
    x += f"""s_lshl_b32 s28, {S_W}, 8
          v_add_u32 v{ad}, s28, v{ad}
          """
    for p in range(2):
        x += f'v_add_f32_dpp v{MA + 4 * p + 1}, v{MA + 4 * p}, v{MA + 4 * p} row_ror:8 row_mask:0xf bank_mask:0xf\n'
    x += f'ds_write_b32 v{ad}, v{MA + 1} offset:{L_RED}\n'
    x += f'ds_write_b32 v{ad}, v{MA + 5} offset:{L_RED + 16}\n'
    return lines(x)


def mod_part2(base, lm, wave):
    e(f"""s_cmp_lg_u32 {S_W}, {wave}
          s_cbranch_scc1 {lm}
          v_lshlrev_b32 v4, 4, {V_C}""")
    for w in range(4):
        e(f'ds_read_b128 {vr(base + 4 * w)}, v4 offset:{L_RED + w * 256}')
    e(f"""s_and_b32 s13, {S_TAG}, 0xff
          s_mov_b32 s14, 0xffffff00
          v_mov_b32 v5, s13
          s_and_b32 s12, s3, 3
          s_mul_i32 s12, s12, 12288
          s_lshr_b32 s13, s3, 2
          s_lshl_b32 s13, s13, 8
          s_add_u32 s12, s12, s13
          s_add_u32 s12, s12, {WS_MODP}""")
    e('s_waitcnt lgkmcnt(0)')
    for i in range(0, 4, 2):
        e(f'v_pk_add_f32 {vr(base + i, 2)}, {vr(base + i, 2)}, {vr(base + 4 + i, 2)}')
        e(f'v_pk_add_f32 {vr(base + 8 + i, 2)}, {vr(base + 8 + i, 2)}, {vr(base + 12 + i, 2)}')
    for i in range(0, 4, 2):
        e(f'v_pk_add_f32 {vr(base + i, 2)}, {vr(base + i, 2)}, {vr(base + 8 + i, 2)}')
    for i in range(4):
        e(f'v_and_or_b32 v{base + i}, v{base + i}, s14, v5')
    e('s_mov_b64 exec, 0xffff')
    e(f'buffer_store_dwordx4 {vr(base)}, v4, {SRD_WS}, s12 offen sc1', optional=True)
    e('s_mov_b64 exec, -1')
    e('s_nop 0')


def dma_wqkv(j):
    for pos in range(4):
        ks = 4 * pos + j
        for mat in range(3):
            pre = [f's_add_u32 m0, {S_W3K}, {L_B[j] + pos * 12288}', f's_add_u32 {S_BT}, {S_M128}, {ks * 32 * 3072}'] if mat == 0 else []
            A.bg_add(pre + [f'buffer_load_dwordx4 v8, {SRD_WQKV}, {S_BT} offen offset:{mat * 1024} lds'], f'wq{j}')


def tr_wqkv(j):
    it = [('i', f'v_add_u32 v9, {(L_B[j] - L_B[j - 1]) & 0xffffffff}, v9')] if j else []
    return it + [('i', f'ds_read_b64_tr_b16 {ar(((j * 4 + pos) * 3 + mat) * 4 + hf * 2, 2)}, v9 offset:{pos * 12288 + mat * 1024 + hf * 512}', f'trq{j}_{pos}')
                 for pos in range(4) for mat in range(3) for hf in range(2)]


def dma_1k(srd, vreg, ks, ldsaddr, tag):
    A.bg_add([f's_add_u32 m0, {S_W1K}, {ldsaddr}', f's_add_u32 {S_BT}, {S_M128}, {ks * 32768}',
              f'buffer_load_dwordx4 v{vreg}, {srd}, {S_BT} offen lds'], tag)


def dma_p4(n):
    for i in range(3):
        A.bg_add([f's_add_u32 m0, {S_GUM}, {(n % 6) * BLK + i * 1024}', f's_add_u32 {S_BT}, {S_COL}, {n * 32 * 2752}',
                  f'buffer_load_dwordx4 v{V_P4D + i}, {SRD_GU}, {S_BT} offen lds'], f'p4w{n}')


class GU:
    queued = 0
    landed = 0
    moved = 0
    freed = 0


def gu_queue():
    while GU.queued < 16 and GU.queued < GU.freed + 6:
        dma_p4(GU.queued)
        GU.queued += 1


def gu_pre(upto):
    upto = max(upto, GU.landed)
    assert upto <= GU.queued
    if upto > GU.landed:
        A.wait_vm(f'p4w{upto - 1}')
    GU.pend = upto


def gu_post(lg_waited=True):
    GU.landed = GU.pend
    if lg_waited:
        GU.freed = GU.moved
    gu_queue()


def gu_done():
    live = {t for t, o in A.vm} | {t for l, t in A.bg}
    n = 0
    while n < GU.queued and f'p4w{n}' not in live:
        n += 1
    return n


def mover(n):
    return [('i', f'ds_read_b64_tr_b16 {ar(16 * n + 8 * par + 4 * i + 2 * hf, 2)}, v{20 + i + 2 * ((n % 6) // 3)} offset:{(n % 3) * BLK + (16 * hf + 8 * par) * 192}', f'mv{n}')
            for par in range(2) for i in range(2) for hf in range(2)]


def movers(limit=16):
    it = []
    while GU.moved < min(GU.landed, limit):
        it += mover(GU.moved)
        GU.moved += 1
    return it


def front(f):
    rest = list(A.bg)
    A.bg = []
    f()
    A.bg += rest


def c3(srd, piece):
    if args.c3:
        lo = srd[2:srd.index(':')]
        A.bg_add([f's_sub_u32 {S_BT}, 0x180, s{lo}', f's_and_b32 {S_BT}, {S_BT}, 0x380', f's_add_u32 {S_BT}, {S_BT}, {piece * 524288}',
                  f'buffer_load_dword {V_DUM}, {C3[0]}, {srd}, {S_BT} offen'], 'gc')


C3 = ['v55']


def gpf(srd, base):
    A.bg_add([f's_mov_b32 {S_BT}, {base}', f'buffer_load_dword {V_DUM}, v11, {srd}, {S_BT} offen'], 'gp')


Q = 128 * 2752
PIECES = [[(SRD_WO, 0), (SRD_WO, 393216)]] + [[(SRD_WG, q * Q), (SRD_WU, q * Q)] for q in range(4)] + \
         [[(SRD_WD, 0), (SRD_WD, 393216)], [(SRD_WD, 2 * 393216), (SRD_WD, 3 * 393216)]]


PLAN = [int(c) for c in args.plan]


def pieces(point):
    for k in range(PLAN[point]):
        for p in PIECES.pop(0):
            gpf(*p)


def bg_mix(every, first=0):
    old = A.bg
    A.bg = []
    k = first
    for it in old:
        if len(it[0]) > 1 and k >= every and PIECES:
            for p in PIECES.pop(0):
                gpf(*p)
            k = 0
        A.bg.append(it)
        k += 1


XRES, GAL, TRB = 88, 136, 84
MK, ONE = 168, 184


L_MASK, L_TRB = 0x27000, 0x2800


def tr_bases_t(dst, rowt, ft, ldsbase):
    t = f'''v_bfe_u32 v40, {V_LANE}, 2, 2
          v_and_b32 v41, 3, {V_LANE}
          {rowt}
          {ft}
          v_lshlrev_b32 v42, 7, v42
          v_and_b32 v40, 1, v41
          v_lshl_add_u32 v42, v40, 3, v42
          v_add_u32 v42, {ldsbase}, v42
          v_lshrrev_b32 v41, 1, v41
          '''
    for ct in range(4):
        t += f'''v_add_u32 v40, {2 * ct}, v41
              v_xor_b32 v40, v40, v43
              v_lshl_add_u32 v{dst + ct}, v40, 4, v42
              '''
    return t


def late_items():
    t = f"""v_lshlrev_b32 v80, 4, {V_C}
          v_lshl_add_u32 v80, {V_G}, 11, v80
          s_lshl_b32 s12, {S_M}, 8
          s_add_u32 s12, s12, {1024 * 4}
          v_add_u32 v80, s12, v80
          v_mov_b32 v81, v55
          s_add_u32 s12, {S_W1K}, {L_MODV}
          v_add_u32 v82, s12, {V_L16}
          v_cmp_eq_u32 vcc, 2, {V_G}
          v_mov_b32 v83, 0
          s_nop 0
          v_cndmask_b32 v83, v83, 1.0, vcc
          """
    t += tr_bases_t(TRB, f'v_lshl_add_u32 v42, {V_G}, 3, v40',
                    f'v_and_b32 v43, 2, v40\n v_and_b32 v44, 1, {V_G}\n v_lshl_add_u32 v43, v44, 2, v43', L_WO)
    return lines(t)


def mask_items():
    t = f'''s_sub_u32 s13, {S_RB}, 1
            s_lshr_b32 s13, s13, 31
            s_lshl_b32 s13, s13, 6
            s_mov_b32 s12, 0xf149f2ca
            v_lshlrev_b32 v40, 2, {V_G}
            v_mov_b32 v42, s12
         '''
    for r in range(4):
        t += f'''v_add_u32 v41, {r}, v40
          v_sub_u32 v43, {V_C}, v41
          v_cmp_gt_u32 vcc, 8, v43
          v_cmp_ge_i32 s[14:15], -9, v43
          v_add_u32 v43, s13, v43
          v_cndmask_b32 v{MK + r}, v42, 0, vcc
          v_cndmask_b32 v{MK + 4 + r}, v42, 0, s[14:15]
          v_cmp_ge_i32 vcc, -9, v43
          v_cmp_gt_i32 s[14:15], 0, v43
          v_cmp_lt_u32 s[18:19], 7, v41
          v_cndmask_b32 v{MK + 12 + r}, v42, 0, vcc
          v_cndmask_b32 v{MK + 8 + r}, v42, 0, s[14:15]
          v_cndmask_b32 v{MK + 8 + r}, v{MK + 8 + r}, v42, s[18:19]
          '''
    return lines(t)


srds = [(40, 0, 2048 * 1024), (64, 64, 512 * 6144), (76, 56, 1024), (44, 8, 512 * 3072), (72, 88, WS_SIZE), (48, 16, 512 * 1024),
        (52, 32, 512 * 2752), (56, 40, 512 * 2752), (60, 48, 1376 * 1024), (68, 72, 2048 * 1024)]
MW, XN, XRAW = 16, 80, 160
e(f"""s_cmp_ge_u32 s2, 256
      s_cbranch_scc1 L_giveup
      {'s_memtime s[100:101]' if args.cyc else 's_memrealtime s[100:101]' if args.stamps else ''}""")
for (d, off, sz) in srds[:5]:
    e(f's_load_dwordx2 s[{d}:{d + 1}], s[0:1], {off}')
e(f"""v_lshrrev_b32 v2, 6, v0
      v_and_b32 v0, 63, v0
      v_readfirstlane_b32 {S_W}, v2
      s_lshr_b32 {S_J}, s2, 3
      s_and_b32 s3, s2, 7
      s_lshr_b32 s10, {S_J}, 3
      s_lshl_b32 {S_RB}, s3, 2
      s_add_u32 {S_RB}, {S_RB}, s10
      s_and_b32 {S_M}, {S_J}, 7
      s_lshl_b32 s12, {S_M}, 2
      s_add_u32 s12, s12, {S_W}
      s_mul_i32 s12, s12, 20
      s_lshl_b32 s13, {S_RB}, 9
      s_add_u32 s12, s12, s13
      s_addk_i32 s12, -128
      v_add_lshl_u32 v7, s12, {V_LANE}, 7
      v_cmp_gt_u32 vcc, 20, {V_LANE}
      v_bfrev_b32 v6, -2
      s_mov_b32 s34, 0x20000
      s_mov_b32 s42, {2048 * 1024}
      v_cndmask_b32 v14, v6, v7, vcc
      s_mov_b32 s43, s34
      s_getpc_b64 s[14:15]
      v_lshlrev_b32 {V_L16}, 4, {V_LANE}
      s_lshl_b32 s12, {S_J}, 2
      s_add_u32 s12, s12, {S_W}
      s_and_b32 s12, s12, 63
      s_min_u32 s12, s12, (L_codeend-{NAME}_kernel)/1024-1
      s_lshl_b32 s12, s12, 10
      s_and_b32 s14, s14, 0xffffff00
      v_add_u32 v4, s12, {V_L16}""")
e(f'global_load_dwordx4 a[244:247], v4, s[14:15]')
A.wait_lg()
A.t = 1100
e(f'buffer_load_dword {V_DUM}, v14, {SRD_X}, 0 offen', tag='xpf')
if args.stamps:
    e(f'v_mov_b32 {V_STAMP}, 0')
    e(f'v_writelane_b32 {V_STAMP}, s100, 0')
    stamp_names.append('entry'); nstamp[0] += 1
e(f's_load_dword s8, s[72:73], {WS_EPOCH}')
for (d, off, sz) in srds[5:]:
    e(f's_load_dwordx2 s[{d}:{d + 1}], s[0:1], {off}')
for (d, off, sz) in srds[1:4]:
    e(f"""s_mov_b32 s{d + 2}, {sz}
          s_mov_b32 s{d + 3}, s34""")
e(f"""s_and_b32 s10, {S_J}, 3
      s_lshr_b32 s12, {S_J}, 2
      s_lshl_b32 s13, s12, 1
      s_add_u32 s13, s13, s10
      s_add_u32 s13, s13, 7
      s_cmp_eq_u32 s10, 0
      s_cselect_b32 s12, s12, s13
      s_lshl_b32 s12, s12, 3
      s_add_u32 s3, s3, s12
      s_lshl_b32 s12, {S_W}, 3
      v_lshrrev_b32 v76, 3, {V_LANE}
      v_add_u32 v76, s12, v76
      v_and_b32 v77, 7, {V_LANE}
      v_lshlrev_b32 v75, 3, v76
      v_mul_u32_u24 v74, {4 * 6144}, v76
      v_lshl_add_u32 v74, v77, 4, v74
      s_and_b32 s13, s3, 3
      s_lshr_b32 s14, s3, 2
      s_mul_i32 s29, s13, {128 * 6144}
      s_lshl_b32 s30, s14, 7
      s_add_u32 s29, s29, s30
      s_lshl_b32 s33, s13, 8
      s_add_u32 s30, s29, 6144
      s_add_u32 s31, s29, {2 * 6144}
      s_add_u32 s32, s29, {3 * 6144}""")
COND_A = 's_cmp_eq_u32 s10, 0'
COND_B = 's_sub_u32 s12, s10, 1\n s_cmp_lt_u32 s12, 2'
mod_task_loads(MW, COND_A, 'mt')
e(f"""s_lshl_b32 s15, s2, 2
      s_add_u32 s15, s15, {S_W}
      s_mul_i32 s12, s15, 12
      v_add_lshl_u32 v7, s12, {V_LANE}, 7
      v_cmp_gt_u32 vcc, 12, {V_LANE}
      v_lshrrev_b32 v12, 2, {V_LANE}        ; c4   (x lane map: c4 = l/4, g4 = l%4)
      v_and_b32 v13, 3, {V_LANE}            ; g4
      v_cndmask_b32 v54, v6, v7, vcc
      s_lshl_b32 s12, {S_J}, 2
      s_add_u32 s12, s12, {S_W}
      s_lshl_b32 s12, s12, 2
      v_add_lshl_u32 v7, s12, {V_LANE}, 10
      v_cmp_gt_u32 vcc, 4, {V_LANE}
      s_nop 1
      v_cndmask_b32 v55, v6, v7, vcc
      v_lshlrev_b32 v4, 11, v12
      v_lshl_add_u32 v4, v13, 4, v4
      s_lshl_b32 s16, {S_RB}, 16
      s_lshl_b32 s17, {S_W}, 8
      s_add_u32 s16, s16, s17
      s_add_u32 s18, s16, 32768""")


def xload(T, j, bg=False):
    q = 5 * j + T
    if T < 4:
        l = f'buffer_load_dwordx4 {vr(XN + 8 * q + 4)}, v4, {SRD_X}, {"s16" if T < 2 else "s18"} offen offset:{(T % 2) * 1024 + j * 64}'
    else:
        l = f'buffer_load_dwordx4 {vr(XN + 8 * q + 4)}, v5, {SRD_X}, s17 offen offset:{j * 64}'
    if bg:
        A.bg_add([l], f'x{T}')
    else:
        e(l, tag=f'x{T}')


def issue_gq(pos):
    if pos == args.pg:
        e(f'buffer_load_dword {V_DUM}, v54, {SRD_WQKV}, 0 offen', tag='gq')
        for k in range(3):
            c3(SRD_WQKV, k)
        A.bg_flush()


issue_gq(0)
e(f"""      v_bfe_u32 v5, {V_LANE}, 4, 1
      s_and_b32 s12, {S_W}, 1
      s_lshl_b32 s12, s12, 1
      v_add_u32 v5, s12, v5
      v_lshlrev_b32 v5, 1, v5
      v_xor_b32 v5, v77, v5
      v_lshlrev_b32 v5, 4, v5
      v_mul_u32_u24 v8, 3072, v76
      v_add_u32 v8, v8, v5
      v_lshl_add_u32 v{V_WOD}, v76, 10, v5
      s_mul_i32 {S_W3K}, {S_W}, 3072
      s_lshl_b32 {S_M128}, {S_M}, 7
""")
dma_wqkv(0)
A.bg_flush(args.w0)
extra = [A.bg.pop(0) for _ in range(args.w1)]
W0REST = list(A.bg)
A.bg = []
if extra:
    ln = A.newlabel('L_e')
    sv = (list(A.vm), A.t, A.t_vm, list(A.done), list(A.log))
    e(COND_A + f'\n s_cbranch_scc1 {ln}')
    for l_, t_ in extra:
        for l in l_:
            e(l, tag=t_)
    A.label(ln)
    A.vm, A.t, A.t_vm, A.done, A.log = sv
for j in range(args.x0):
    xload(0, j)
fine('start')

for (d, off, sz) in srds[4:]:
    e(f"""s_mov_b32 s{d + 2}, {sz}
          s_mov_b32 s{d + 3}, s34""")
e(f"""s_mul_i32 s12, s15, 3
      v_add_lshl_u32 v7, s12, {V_LANE}, 7
      v_cmp_gt_u32 vcc, 3, {V_LANE}
      v_lshrrev_b32 {V_G}, 4, {V_LANE}
      v_and_b32 {V_C}, 15, {V_LANE}
      v_cndmask_b32 v11, v6, v7, vcc
      v_lshlrev_b32 v5, 1, v12
      v_cmp_lt_u32 vcc, 7, v12
      v_mov_b32 v6, -16
      v_mov_b32 v7, -31
      s_lshl_b32 s15, {S_RB}, 6
      v_cndmask_b32 v6, v6, v7, vcc
      v_add3_u32 v5, v5, v6, s15
      v_max_i32 v5, 0, v5
      v_lshlrev_b32 v5, 10, v5
      v_lshl_add_u32 v5, v13, 4, v5
      v_lshlrev_b32 v6, 1, {V_G}
      v_xor_b32 v6, v77, v6
      v_lshlrev_b32 v6, 4, v6
      v_lshl_add_u32 v{V_WDD}, v76, 10, v6
      s_lshl_b32 {S_W1K}, {S_W}, 10
      s_getreg_b32 {S_XCC}, hwreg(HW_REG_XCC_ID)
      s_and_b32 {S_XCC}, {S_XCC}, 15
      s_mov_b32 {S_ONES}, 0x3f803f80
      s_mov_b32 {S_HI}, 0xffff0000
      s_mov_b32 {S_SPIN}, 0x40000
      s_lshr_b32 {S_GRP}, {S_RB}, 1
      s_lshl_b32 s82, {S_GRP}, 20
      s_add_u32 {S_GRP}, s82, {WS_GRP}
      v_bfe_u32 v78, {V_LANE}, 2, 2          ; r4
      v_mul_u32_u24 v9, 3072, {V_G}
      v_lshl_add_u32 v9, v78, 7, v9
      v_and_b32 v78, 2, v78
      v_and_b32 v6, 1, {V_G}
      v_lshl_add_u32 v78, v6, 2, v78         ; 2f
      v_lshrrev_b32 v6, 1, v13               ; cc/2
      s_lshl_b32 s12, {S_W}, 1
      v_add_u32 v6, s12, v6
      v_xor_b32 v6, v6, v78
      v_lshl_add_u32 v9, v6, 4, v9
      v_and_b32 v79, 1, v13
      v_lshl_add_u32 v9, v79, 3, v9
      v_add_u32 v9, {L_B[0]}, v9""")
for p in range(4):
    e(f's_mov_b32 s{24 + p}, {WS_MODP + p * 12288}')
issue_gq(1)
e(f's_mov_b32 s12, {(1 << 32) // 12 + 1}')
for i in range(3):
    e(f"""v_add_u32 v6, {64 * i}, {V_LANE}
          v_mul_hi_u32 v7, v6, s12
          v_mul_u32_u24 v78, 12, v7
          v_sub_u32 v6, v6, v78
          v_mul_u32_u24 v7, 2752, v7
          v_lshl_add_u32 v{V_P4D + i}, v6, 4, v7
          v_lshlrev_b32 v{44 + i}, 27, v6""")
e(f"""s_and_b32 s12, {S_RB}, 1
      s_lshl_b32 s12, s12, 3
      s_add_u32 s12, s12, {S_M}
      s_lshl_b32 {S_MM4}, s12, 2
      s_mul_i32 s12, s12, 43
      s_add_u32 s13, s12, 43
      s_lshr_b32 s12, s12, 4
      s_lshr_b32 s13, s13, 4
      s_sub_u32 {S_NU}, s13, s12
      s_lshl_b32 {S_U0}, s12, 1
      s_sub_u32 s13, 3, {S_NU}
      s_mul_i32 s13, s13, {0x40000000 * args.zero}
      v_and_or_b32 v{V_P4D}, v44, s13, v{V_P4D}
      v_and_or_b32 v{V_P4D + 1}, v45, s13, v{V_P4D + 1}
      v_and_or_b32 v{V_P4D + 2}, v46, s13, v{V_P4D + 2}
      s_lshr_b32 s13, {S_W}, 1
      s_mul_i32 s14, s13, {16 * 2752}
      s_lshl_b32 {S_COL}, s12, 6
      s_add_u32 {S_COL}, {S_COL}, s14
      s_mul_i32 s13, s13, 3072
      s_and_b32 s14, {S_W}, 1
      s_mul_i32 s14, s14, {MAT1}
      s_add_u32 s13, s13, s14
      s_add_u32 {S_GUM}, s13, {L_S}
      s_lshl_b32 s13, {S_W}, 12
      s_add_u32 {S_H2M}, s13, {L_H2}
      v_and_b32 v78, 1, {V_G}
      v_lshrrev_b32 v79, 1, {V_G}
      v_lshlrev_b32 v6, 14, v78
      v_lshl_add_u32 v6, v79, 8, v6
      v_lshl_add_u32 v{V_OST}, {V_C}, 4, v6
      v_lshlrev_b32 v6, 11, {V_C}
      v_lshl_add_u32 v6, v78, 5, v6
      v_lshl_add_u32 v{V_XO}, v79, 4, v6
      s_lshr_b32 s12, {S_W}, 1
      s_lshl_b32 s12, s12, 15
      s_and_b32 s13, {S_W}, 1
      s_lshl_b32 s13, s13, 10
      s_add_u32 s12, s12, s13
      s_lshl_b32 s13, {S_RB}, 16
      s_add_u32 s12, s12, s13
      s_add_u32 {S_XOFF}, s12, {S_M128}
      s_and_b32 s15, {S_RB}, 1
      s_lshl_b32 s14, s15, 16
      s_add_u32 s14, s14, s82
      s_lshl_b32 s12, {S_M}, 11
      s_lshl_b32 s13, {S_W}, 9
      s_add_u32 s12, s12, s13
      s_add_u32 s12, s12, s14
      s_add_u32 {S_OST}, s12, {WS_O}
      s_lshl_b32 s12, {S_W}, 14
      s_add_u32 s12, s12, s14
      s_add_u32 {S_OLD}, s12, {WS_O}
      s_lshl_b32 s13, {S_M}, 11
      s_add_u32 s12, s12, s13
      s_add_u32 {S_X1ST}, s12, {WS_X1}
      s_lshr_b32 s13, {S_W}, 1
      s_lshl_b32 s13, s13, 10
      s_add_u32 s12, s82, s13
      s_and_b32 s13, {S_W}, 1
      s_lshl_b32 s13, s13, 16
      s_add_u32 s12, s12, s13
      s_add_u32 {S_X1LD}, s12, {WS_X1}
      s_lshl_b32 s12, s15, 13
      s_lshl_b32 s13, {S_W}, 11
      s_add_u32 s12, s12, s13
      s_add_u32 s12, s12, s82
      s_add_u32 {S_STLD}, s12, {WS_STATS}
      s_lshl_b32 s13, {S_M}, 8
      s_add_u32 {S_STST}, {S_STLD}, s13
      s_and_b32 s12, {S_W}, 1
      s_xor_b32 s13, s12, 1
      s_mul_i32 s12, s12, {HH_PITCH}
      s_mul_i32 s13, s13, {HH_PITCH}
      s_add_u32 s14, {S_U0}, {S_W}
      s_lshl_b32 s14, s14, 10
      s_add_u32 s14, s14, s82
      s_add_u32 s14, s14, {WS_HH}
      s_add_u32 {S_HST}, s12, s14
      s_add_u32 {S_HST2}, s13, s14
      s_mul_i32 s12, s15, {HH_PITCH}
      s_add_u32 s12, s12, s82
      s_add_u32 s12, s12, {WS_HH}
      s_lshr_b32 s13, {S_W}, 1
      s_mul_i32 s13, s13, {86 * 1024}
      s_add_u32 s12, s12, s13
      s_and_b32 s13, {S_W}, 1
      s_lshl_b32 s13, s13, 8
      s_add_u32 {S_HLD}, s12, s13
      s_add_u32 s12, {S_W1K}, {L_MODV}
      v_lshl_add_u32 v{V_GB}, {V_G}, 4, s12
      v_lshlrev_b32 v77, 2, {V_LANE}
      v_and_b32 v78, 31, {V_LANE}
      v_lshlrev_b32 v78, 4, v78
      v_lshrrev_b32 v79, 5, {V_LANE}
      v_lshl_add_u32 v78, v79, 11, v78
      s_lshl_b32 s12, {S_W}, 9
      v_add_u32 v78, s12, v78
      v_cvt_f32_u32 v79, v79
      s_add_u32 s12, {S_W1K}, {L_MODV}
      v_add_u32 v76, s12, {V_L16}
      v_lshlrev_b32 v6, 1, v13
      v_xor_b32 v6, v6, v12
      v_lshl_add_u32 v6, v13, 4, v6
      v_lshlrev_b32 v6, 4, v6
      s_mul_i32 s13, {S_W}, 5120
      s_add_u32 s13, s13, {L_HRING}
      v_lshlrev_b32 v12, 5, v13
      v_add_u32 v12, s12, v12
      v_add_u32 v13, s13, v6
      v_lshlrev_b32 v6, 1, {V_G}
      v_xor_b32 v6, v6, {V_C}
      v_lshl_add_u32 v6, {V_G}, 4, v6
      v_lshlrev_b32 v6, 4, v6
      v_add_u32 v14, {L_HRING}, v6""")
issue_gq(2)
MKT = MK
MK = 240
run(mask_items())
run([(k, t.replace('v80', 'v64').replace('v81', 'v65').replace('v82', 'v66').replace('v83', 'v67').replace('v84', 'v68').replace('v85', 'v69').replace('v86', 'v70').replace('v87', 'v71')) for k, t in late_items()])
e(f'v_add_u32 v40, {L_MASK}, {V_L16}')
for i in range(4):
    e(f'ds_write_b128 v40, {vr(MK + 4 * i)} offset:{i * 1024}')
e(f'ds_write_b128 {V_L16}, v[68:71] offset:{L_TRB}')
for i in range(4):
    e(f'v_accvgpr_write_b32 a{250 + i}, v{64 + i}')
e('s_add_u32 s18, s16, 32768')
MK = MKT
A.wait_lg()
e(f"""s_bitcmp1_b32 {S_W}, 0
      s_cselect_b32 s92, s56, s52
      s_cselect_b32 s93, s57, s53
      s_mov_b32 s94, {512 * 2752}
      s_mov_b32 s95, s34
      s_mul_i32 {S_TAG}, {S_TAG}, 1664525
      s_add_u32 {S_TAG}, {S_TAG}, 1013904223""")
lx = A.newlabel('L_x')
e(f'''s_cmp_lg_u32 {S_W}, 1
      s_cbranch_scc1 {lx}
      s_and_b32 s12, {S_TAG}, 0xfffffff0
      s_or_b32 s12, s12, {S_XCC}
      s_add_u32 s13, {S_MM4}, {S_GRP}
      s_mov_b64 exec, 1
      v_mov_b32 v6, s12''')
e(f'buffer_store_dword v6, off, {SRD_WS}, s13 sc1', optional=True)
e('s_mov_b64 exec, -1')
A.label(lx)
issue_gq(3)
fine('setup')
lm, lm2, lj = A.newlabel('L_nomod'), A.newlabel('L_nomod'), A.newlabel('L_mj')
e(COND_A + f'\n s_cbranch_scc1 {lm}')
save = (list(A.vm), list(A.done), A.t, A.t_vm, list(A.log))
XL = [(0, j) for j in range(args.x0, 4)] + [(T, j) for T in (1, 2) for j in range(4)]
for T, j in XL:
    xload(T, j)
e(f's_branch {lj}')
A.vm, A.done, A.t, A.t_vm, A.log = save
A.label(lm)
save = list(A.vm)
A.wait_vm('mt')
A.vm = save
run(interleave(mod_part1(MW, 36, 6), [('f', lambda T=T, j=j: xload(T, j)) for T, j in XL], 0, 96, pred=lambda t: True))
for l_, t_ in extra:
    for l in l_:
        e(l, tag=t_, optional=True)
A.wait_lg()
e('s_barrier')
e('v_mov_b32 v52, v4\n v_mov_b32 v53, v5')
mod_part2(MW, lm2, 0)
A.label(lm2)
e('v_mov_b32 v4, v52\n v_mov_b32 v5, v53')
A.label(lj)
A.lg = []
stamp('modpub')
e(COND_B + '\n s_cselect_b32 s12, 0, 0x40000000\n v_or_b32 v74, s12, v74\n v_or_b32 v75, s12, v75')
e('v_accvgpr_write_b32 a254, v74\n v_accvgpr_write_b32 a255, v75')
MTB = [([f'buffer_load_dwordx2 v[112:113], v87, {SRD_C}, s33 offen'], 'mtb')] + [([f'buffer_load_dwordx4 {vr(96 + 4 * i)}, v86, {SRD_WMOD}, s{29 + i} offen'], 'mtb') for i in range(4)]
for T in range(3, 5):
    for j in range(4):
        xload(T, j, bg=True)
for k in range(args.pfx):
    for p in PIECES.pop(0):
        gpf(*p)
A.bg += W0REST
for k in range(args.pfy):
    for p in PIECES.pop(0):
        gpf(*p)
dma_wqkv(1)
for k in range(args.pfz):
    for p in PIECES.pop(0):
        gpf(*p)
dma_wqkv(2)
pieces(0)
A.bg_gap = args.gap0
A.bg_on = True

RS = 64


def unpack(q):
    for d in range(4):
        src = XN + 8 * q + 4 + d
        lo = XN + 8 * q + 2 * d
        e(f'''v_lshlrev_b32 v{lo}, 16, v{src}
              v_and_b32 v{lo + 1}, {S_HI}, v{src}''')


def scale(q):
    p = vr(RS + 2 * (q % 5), 2)
    for d in range(4):
        lo = XN + 8 * q + 2 * d
        e(f'v_pk_fma_f32 {vr(lo, 2)}, {vr(lo, 2)}, {p}, {p} op_sel:[0,0,1] op_sel_hi:[1,0,1]')


ST = 16
for T in range(5):
    A.wait_vm(f'x{T}')
    if args.s1: stamp(f'x{T}')
    for j in range(4):
        for d in range(4):
            r = XN + 8 * (5 * j + T) + 4 + d
            first = (j == 0 and d == 0)
            e(f'v_dot2_f32_bf16 v{ST + 2 * T}, v{r}, {S_ONES}, {"0" if first else f"v{ST + 2 * T}"}')
            e(f'v_dot2_f32_bf16 v{ST + 2 * T + 1}, v{r}, v{r}, {"0" if first else f"v{ST + 2 * T + 1}"}')
    if T < 4:
        for j in range(4):
            unpack(5 * j + T)
e(f'''s_lshl_b32 s12, {S_W}, 3
      v_lshrrev_b32 v5, 2, {V_LANE}
      v_lshlrev_b32 v5, 5, v5
      v_add_u32 v4, s12, v5''')
for qp in ('[1,0,3,2]', '[2,3,0,1]'):
    for i in range(10):
        e(f'v_add_f32_dpp v{ST + i}, v{ST + i}, v{ST + i} quad_perm:{qp} row_mask:0xf bank_mask:0xf')
with nobg():
    e('''s_mov_b32 s12, 0x11111111
         s_mov_b32 exec_lo, s12
         s_mov_b32 exec_hi, s12''')
    for T in range(5):
        e(f'ds_write_b64 v4, {vr(ST + 2 * T, 2)} offset:{L_STATS + T * 512}')
    e('s_mov_b64 exec, -1')
for j in range(2):
    unpack(5 * j + 4)
A.wait_lg()
e('s_barrier')
fine('b1')
xcc_ld = f'buffer_load_dword v7, v77, {SRD_WS}, {S_GRP} offen sc1'
k0 = max([i + 1 for i, it in enumerate(A.bg) if it[1] == 'wq0'] + [0])
A.bg[k0:k0] = [([xcc_ld], 'mx')] + [([l], 'm1') for l in mod_loads('v78', 240)]
for T in range(5):
    for h in range(2):
        e(f'ds_read_b128 {vr(16 + 8 * T + 4 * h)}, v5 offset:{L_STATS + T * 512 + h * 16}', tag='st')
for j in range(2, 4):
    unpack(5 * j + 4)
A.wait_lg('st')
e('s_mov_b32 s12, 0x3b000000')
for T in range(5):
    b = 16 + 8 * T
    e(f'''v_pk_add_f32 {vr(b, 2)}, {vr(b, 2)}, {vr(b + 2, 2)}
          v_pk_add_f32 {vr(b + 4, 2)}, {vr(b + 4, 2)}, {vr(b + 6, 2)}
          v_pk_add_f32 {vr(b, 2)}, {vr(b, 2)}, {vr(b + 4, 2)}
          v_pk_mul_f32 {vr(b, 2)}, {vr(b, 2)}, s[12:13] op_sel_hi:[1,0]
          v_fma_f32 v{b + 1}, -v{b}, v{b}, v{b + 1}
          v_max_f32 v{b + 1}, 0, v{b + 1}
          v_add_f32 v{b + 1}, 0x3727c5ac, v{b + 1}
          v_rsq_f32 v{RS + 2 * T}, v{b + 1}''')
for T in range(5):
    e(f'v_mul_f32 v{RS + 2 * T + 1}, -v{16 + 8 * T}, v{RS + 2 * T}')
for q in range(10):
    scale(q)
A.wait_vm('wq0')
e('s_barrier')
fine('b2')
run(tr_wqkv(0))
for q in range(10, 20):
    scale(q)
stamp('prenorm')
mod_check('v78', 240, 'm1', 'v76', 'v79')
checked('m1', [xcc_ld], lambda: e(f'''v_xor_b32 v6, {S_TAG}, v7
                                      v_lshrrev_b32 v6, 4, v6
                                      v_cmp_ne_u32 vcc, 0, v6
                                      s_and_b64 vcc, vcc, 0xffff'''))
with nobg():
    e(f'''v_and_b32 v5, 15, v7
          v_cmp_ne_u32 vcc, {S_XCC}, v5
          s_nop 1
          s_and_b64 vcc, vcc, 0xffff
          s_cmp_eq_u64 vcc, 0
          s_cselect_b32 {S_FAST}, {0 if args.slow else 1}, 0
          s_mul_i32 s12, {S_FAST}, {(WS_X1 - WS_O) * args.h2o}
          s_sub_u32 {S_X1ST}, {S_X1ST}, s12
          s_sub_u32 {S_X1LD}, {S_X1LD}, s12''')
stamp('mod')

CS = 64


def cs1_reads(j):
    it = []
    for h in range(2):
        it.append(('i', f'ds_read_b128 {vr(CS + 4 * h)}, v12 offset:{j * 128 + h * 16}', 'cs'))
        it.append(('i', f'ds_read_b128 {vr(CS + 8 + 4 * h)}, v12 offset:{512 + j * 128 + h * 16}', 'cs'))
    return it


def norm1_items(j, pk=False):
    it = [('wl', 'cs')]
    for T in range(5):
        b = XN + 8 * (5 * j + T)
        if pk:
            for i in range(0, 8, 2):
                it.append(('i', f'v_pk_fma_f32 {vr(b + i, 2)}, {vr(b + i, 2)}, {vr(CS + 8 + i, 2)}, {vr(CS + i, 2)}'))
        else:
            for i in range(8):
                it.append(('i', f'v_fma_f32 v{b + i}, v{b + i}, v{CS + 8 + i}, v{CS + i}'))
        for d in range(4):
            it.append(('i', f'v_cvt_pk_bf16_f32 v{b + d}, v{b + 2 * d}, v{b + 2 * d + 1}'))
        it.append(('i', f'ds_write_b128 v13, {vr(b)} offset:{(j % 2) * 20480 + T * 1024}', 'hw'))
    if j < 3:
        it += cs1_reads(j + 1)
    return it


def accQ(T): return 16 + 4 * T
def accK(T): return 32 + 4 * T
def accV(T): return 240 + 4 * T if T < 4 else 52


FR = 192


def rd1(j, pos):
    return [('i', f'ds_read_b128 {ar(FR + (pos % 2) * 20 + 4 * T)}, v14 offset:{(j % 2) * 20480 + (pos * 5 + T) * 1024}', f'f{pos}') for T in range(5)]


def mm1(j, pos):
    it = []
    wb = (j * 4 + pos) * 12
    first = (j == 0 and pos == 0)
    for T in range(5):
        f = ar(FR + (pos % 2) * 20 + 4 * T)
        if T < 4:
            it.append(('i', f'v_mfma_f32_16x16x32_bf16 {vr(accQ(T))}, {ar(wb)}, {f}, {"0" if first else vr(accQ(T))}'))
        it.append(('i', f'v_mfma_f32_16x16x32_bf16 {vr(accK(T))}, {ar(wb + 4)}, {f}, {"0" if first else vr(accK(T))}'))
        it.append(('i', f'v_mfma_f32_16x16x32_bf16 {vr(accV(T))}, {f}, {ar(wb + 8)}, {"0" if first else vr(accV(T))}'))
    return it


A.wait_lg()
run(cs1_reads(0))
e('s_barrier')
run(norm1_items(0, pk=True))
if not args.jit1:
    A.wait_vm('wq1')
A.wait_lg('hw')
e('s_barrier')
fine('c0')
e('v_accvgpr_read_b32 v81, a251')
e('v_accvgpr_read_b32 v86, a254\n v_accvgpr_read_b32 v87, a255')
C3[0] = 'v81'
k0 = max([i + 1 for i, it in enumerate(A.bg) if it[1] == 'wq2'] + [0])
A.bg[k0:k0] = MTB
c3(SRD_WO, 0)
A.bg_gap = args.gap1
run(rd1(0, 0))
for j in range(5):
    main = []
    if j > 0:
        main += interleave(mm1(j - 1, 3), rd1(j, 0) if j < 4 else [], 0, 5)
    if j == 4:
        run(main)
        break
    todo = {0: [] if args.jit1 else [1], 1: [1, 2] if args.jit1 else [2], 2: [], 3: [3]}[j]
    for pos in range(3):
        main += [('wl', [f'f{pos}', f'trq{j}_{pos}'])] + interleave(mm1(j, pos), rd1(j, pos + 1), 0, 5)
    for c in todo:
        tq = tr_wqkv(c)
        if c == j:
            run(tq[:1])
            main = interleave(main, tq[1:7], 0, 6)
            main = interleave(main, tq[7:], 6, 24)
        elif len(todo) > 1:
            main = interleave(main, tq, 26, 52)
        else:
            run(tq[:1])
            main = pack(main, tq[1:], 0, -1)
    if j < 3:
        fill = norm1_items(j + 1)
    else:
        fill = lines(f'v_add_u32 v4, {L_MASK}, {V_L16}') + [('i', f'ds_read_b128 {vr(MK + 4 * i)}, v4 offset:{i * 1024}') for i in range(4)]
        fill += [('i', f'ds_read_b128 {vr(TRB)}, {V_L16} offset:{L_TRB}')]
        fill += [('i', f'v_accvgpr_read_b32 v{80 + i}, a{250 + i}') for i in range(4)] + [('i', f'v_mov_b32 v{ONE + r}, {S_ONES}') for r in range(4)] + [('i', f'v_lshlrev_b32 v76, 2, {V_LANE}')]
    if j == 3:
        fill = [('wv', 'mtb')] + mod_part1(96, 200, 216, None, 112, True) + fill
    run(pack(main, fill, 0, -2))
    fine(f'e{j}')
    A.wait_vm(('wq2', 'none', 'wq3', 'none')[j])
    A.wait_lg()
    e('s_barrier')
    fine(f'c{j + 1}')
    if j == args.jit1:
        front(lambda: dma_wqkv(3))
    if j == 0:
        pieces(1)
    if j == 1:
        for ks in range(4, 16):
            dma_1k(SRD_WO, V_WOD, ks, L_WO + ks * 4096, 'wo')
        pieces(2)
        if args.ot:
            touch([], f'v{V_OST}', S_OST)
            touch([f's_add_u32 {S_BT}, {S_OST}, 32768'], f'v{V_OST}', S_BT)
        for p in range(2):
            A.bg_add([f'buffer_load_dwordx4 {vr(XRES + 4 * p)}, v{V_XO}, {SRD_X}, {S_XOFF} offen offset:{p * 64}'], 'xr')
    if j == 2:
        pieces(3)
    if j == 3:
        front(lambda: [dma_1k(SRD_WO, V_WOD, ks, L_WO + ks * 4096, 'wo') for ks in range(4)])
        A.bg_add([f'buffer_load_dword {V_DUM}, v76, {SRD_WS}, {S_STST} offen sc1'], 'stt')
        if args.otlb:
            A.bg_add([f'buffer_load_dword {V_DUM}, off, {SRD_OUT}, {S_XOFF}'], 'stt')
        pieces(4)
        gu_queue()
with nobg():
    lm = A.newlabel('L_nomod')
    save = (list(A.vm), list(A.lg), A.t, A.t_vm, list(A.done), list(A.log))
    e(COND_B + f'\n s_cbranch_scc0 {lm}')
    mod_part2(96, lm, 3)
    A.label(lm)
    A.vm, A.lg, A.t, A.t_vm, A.done, A.log = save[0] + [(None, True)], *save[1:]
stamp('qkv')

QP, KP, VP = 140, 148, 158
VPOS = {2: 0, 0: 1, 4: 2, 1: 3, 3: 4}
SS, MX, PP, OO, LL, OP = 188, 220, 16, 32, 228, 48
PREV = {0: 4, 1: 4, 2: 0, 3: 1}
PMASK = {0: MK + 8, 1: MK + 12, 2: MK + 4, 3: MK + 4}
VPAIR = {2: 0, 0: 1, 1: 2, 3: 3}
t = ''
for T in range(5):
    for d in range(2):
        if T < 4:
            t += f'v_cvt_pk_bf16_f32 v{QP + 2 * T + d}, v{accQ(T) + 2 * d}, v{accQ(T) + 2 * d + 1}\n'
        t += f'v_cvt_pk_bf16_f32 v{KP + 2 * T + d}, v{accK(T) + 2 * d}, v{accK(T) + 2 * d + 1}\n'
vc = [f'v_cvt_pk_bf16_f32 v{VP + 2 * VPOS[T] + d}, v{accV(T) + 2 * d}, v{accV(T) + 2 * d + 1}\n' for T in range(5) for d in range(2)]
t += vc.pop(0) + vc.pop(0)
for T in (2, 3, 0, 1):
    t += f'v_mfma_f32_16x16x16_bf16 {vr(SS + 8 * T)}, {vr(KP + 2 * T, 2)}, {vr(QP + 2 * T, 2)}, {vr(MK)}\n' + vc.pop(0)
    t += f'v_mfma_f32_16x16x16_bf16 {vr(SS + 8 * T + 4)}, {vr(KP + 2 * PREV[T], 2)}, {vr(QP + 2 * T, 2)}, {vr(PMASK[T])}\n' + vc.pop(0)
t += 's_mov_b32 s12, 0x3eb8aa3b\n'
for T in (2, 3, 0, 1):
    s = SS + 8 * T
    t += f'''v_max3_f32 v{MX + T}, v{s}, v{s + 1}, v{s + 2}
          v_max3_f32 v{MX + 4 + T}, v{s + 3}, v{s + 4}, v{s + 5}
          v_max3_f32 v{MX + T}, v{MX + T}, v{s + 6}, v{s + 7}
          v_max_f32 v{MX + T}, v{MX + T}, v{MX + 4 + T}
          v_mov_b32 v{MX + 4 + T}, v{MX + T}
          '''
for k, sw in enumerate(('v_permlane32_swap_b32', 'v_permlane16_swap_b32')):
    for T in (2, 3, 0, 1):
        t += f'{sw} v{MX + T}, v{MX + 4 + T}\n'
    for T in (2, 3, 0, 1):
        t += f'v_max_f32 v{MX + T}, v{MX + T}, v{MX + 4 + T}\n'
    if k == 0:
        for T in (2, 3, 0, 1):
            t += f'v_mov_b32 v{MX + 4 + T}, v{MX + T}\n'
for T in range(4):
    t += f'v_mul_f32 v{MX + T}, s12, v{MX + T}\n'


def fin(T):
    x = f'v_rcp_f32 v{LL + 4 * T}, v{LL + 4 * T}\n'
    p = vr(LL + 4 * T, 2)
    y = ''
    for i in (0, 2):
        y += f'v_pk_mul_f32 {vr(OO + 4 * T + i, 2)}, {vr(OO + 4 * T + i, 2)}, {p} op_sel_hi:[1,0]\n'
    for d in range(2):
        y += f'v_cvt_pk_bf16_f32 v{OP + 2 * T + d}, v{OO + 4 * T + 2 * d}, v{OO + 4 * T + 2 * d + 1}\n'
    return x, y


for T in range(4):
    s = SS + 8 * T
    for i in range(8):
        t += f'v_fma_f32 v{s + i}, v{s + i}, s12, -v{MX + T}\n'
    for i in range(8):
        t += f'v_exp_f32 v{s + i}, v{s + i}\n'
    if T > 0:
        t += fin(T - 1)[0]
    curfirst = T in (0, 2)
    for d in range(2):
        t += f'v_cvt_pk_bf16_f32 v{PP + 4 * T + (0 if curfirst else 2) + d}, v{s + 2 * d}, v{s + 2 * d + 1}\n'
        t += f'v_cvt_pk_bf16_f32 v{PP + 4 * T + (2 if curfirst else 0) + d}, v{s + 4 + 2 * d}, v{s + 4 + 2 * d + 1}\n'
    if T > 0:
        t += fin(T - 1)[1]
    t += f'v_mfma_f32_16x16x32_bf16 {vr(LL + 4 * T)}, {vr(ONE)}, {vr(PP + 4 * T)}, 0\n'
    t += f'v_mfma_f32_16x16x32_bf16 {vr(OO + 4 * T)}, {vr(VP + 2 * VPAIR[T])}, {vr(PP + 4 * T)}, 0\n'


def wo_reg(ks, ct, hf=None):
    if 4 <= ks < 14:
        b, f = 96 + (ks - 4) * 16 + ct * 4, ar
    else:
        b, f = 160 + (ks if ks < 4 else ks - 10) * 16 + ct * 4, vr
    return f(b) if hf is None else f(b + 2 * hf, 2)


def tr_wo(ks):
    return [('i', f'ds_read_b64_tr_b16 {wo_reg(ks, ct, hf)}, v{TRB + ct} offset:{ks * 4096 + hf * 512}', f'trw{ks}')
            for ct in range(4) for hf in range(2)]


tl = lines(t)
A.bg_gap = args.gapa
run(tl[:args.acut])
A.bg_flush(upto=['wo', 'xr', 'tch'])
A.bg_on = False
run(tl[args.acut:])
for d in range(2):
    e(f'v_permlane16_swap_b32 v{OP + d}, v{OP + 2 + d}')
e(f's_add_u32 s16, {S_OST}, 32768')
stores([f'buffer_store_dwordx4 {vr(OP)}, v{V_OST}, {SRD_WS}, {S_OST} offen'], 'ost', plain=args.ot)
e(fin(3)[0] + fin(3)[1])
for d in range(2):
    e(f'v_permlane16_swap_b32 v{OP + 4 + d}, v{OP + 6 + d}')
stores([f'buffer_store_dwordx4 {vr(OP + 4)}, v{V_OST}, {SRD_WS}, s16 offen'], 'ost', plain=args.ot)
fine('ost')
if args.stop1:
    stamp('end')
    e(f'''s_waitcnt vmcnt(0)
          s_lshl_b32 s12, s2, 2
          s_add_u32 s12, s12, {S_W}
          s_lshl_b32 s12, s12, 8
          s_add_u32 s12, s12, {WS_STAMP}
          v_lshlrev_b32 v4, 2, {V_LANE}
          buffer_store_dword {V_STAMP}, v4, {SRD_WS}, s12 offen
          s_endpgm''')
    args.stamps = False
    keep_names = list(stamp_names)
A.bg_flush(args.b1)
A.wait_vm('xr')
for p in range(2):
    for d in range(2):
        e(f'v_permlane16_swap_b32 v{XRES + 4 * p + d}, v{XRES + 4 * p + 2 + d}')
e(f'''s_add_u32 s17, {S_OLD}, 4096
      s_add_u32 s18, {S_OLD}, 8192
      s_add_u32 s19, {S_OLD}, 12288
      v_bfe_u32 v16, {V_LANE}, 2, 2
      v_lshrrev_b32 v17, 5, {V_LANE}
      v_lshl_add_u32 v16, v17, 2, v16
      v_mul_u32_u24 v16, 192, v16
      v_and_b32 v18, 1, {V_G}
      v_mul_u32_u24 v19, {MAT1}, v18
      v_and_b32 v4, 3, {V_LANE}
      v_lshlrev_b32 v4, 3, v4
      v_add3_u32 v16, v16, v19, v4
      s_lshl_b32 s12, {S_W}, 5
      s_add_u32 s12, s12, {L_S}
      s_lshr_b32 s13, {S_W}, 1
      s_lshl_b32 s13, s13, 5
      s_add_u32 s13, s13, {L_S + 128}
      v_add_u32 v20, s12, v16
      v_add_u32 v21, s13, v16
      v_add_u32 v22, {3 * BLK}, v20
      v_add_u32 v23, {3 * BLK}, v21
      v_lshlrev_b32 v18, 10, v18
      v_lshl_add_u32 v18, v17, 8, v18
      v_lshl_add_u32 v18, {V_C}, 4, v18
      s_and_b32 s12, {S_W}, 1
      s_lshl_b32 s12, s12, 12
      s_xor_b32 s13, s12, 4096
      s_add_u32 s12, s12, {L_H2}
      s_add_u32 s13, s13, {L_H2}
      v_add_u32 v13, s12, v18
      v_add_u32 v14, s13, v18                   ; slots 2,3''')
OA, GA, X1A, X1P = 96, 32, 64, 24
publish_flag(64, 'ost')
A.bg_flush(args.b1d)
e(poll_ld(64), tag='poll')
for l in mod_loads('v80', 64):
    e(l, tag='m3')
stamp('opub')
for ks in range(4, 12):
    run(tr_wo(ks))
poll_check(64)
stamp('owait')


KORD = list(range(4, 16)) + [0, 1, 2, 3]
rest = list(A.bg)
gu_pre(gu_done())
A.bg = [([f'buffer_load_dwordx4 {vr(OA + 4 * n)}, {V_L16}, {SRD_WS}, {(S_OLD, "s17", "s18", "s19")[ks // 4]} offen offset:{(ks % 4) * 1024} sc1'], f'o{n}') for n, ks in enumerate(KORD)]
run(interleave([x for ks in (12, 13, 14, 15, 0, 1, 2, 3) for x in tr_wo(ks)], [('f', lambda: A.bg_flush(1))] * 12, pred=lambda t: True))
mod_check('v80', 64, 'm3', 'v82', 'v83')
for ct in range(4):
    e(f'ds_read_b128 {vr(GA + 4 * ct)}, v{V_GB} offset:{ct * 64}', tag='ga')
e('s_barrier')
gu_post(False)
mv = movers(6)
pieces(5)
A.bg += rest[:args.b1c]
rest = rest[args.b1c:]
for n, ks in enumerate(KORD):
    A.wait_vm(f'o{n}')
    A.wait_lg(f'trw{ks}')
    for ct in range(4):
        e(f'v_mfma_f32_16x16x32_bf16 {vr(X1A + 4 * ct)}, {wo_reg(ks, ct)}, {vr(OA + 4 * n)}, {"0" if n == 0 else vr(X1A + 4 * ct)}')
        if ct == 0 and A.bg and (A.bg[0][1].startswith(('o', 'm')) or A.room()):
            A.bg_flush(1)
        if n >= 4 and mv:
            run([mv.pop(0)])
    if n == 12:
        XF = OA + 16
        for i in range(8):
            e(f'''v_lshlrev_b32 v{XF + 2 * i}, 16, v{XRES + i}
                  v_and_b32 v{XF + 2 * i + 1}, {S_HI}, v{XRES + i}''')
run(mv)
A.bg += rest
gu_pre(gu_done())
A.wait_lg()
e('s_barrier')
gu_post()
fine('omm')
for b in range(0, 16, 2):
    e(f'v_pk_fma_f32 {vr(X1A + b, 2)}, {vr(X1A + b, 2)}, {vr(GA + b, 2)}, {vr(XF + b, 2)}')
for i in range(8):
    e(f'v_cvt_pk_bf16_f32 v{X1P + i}, v{X1A + 2 * i}, v{X1A + 2 * i + 1}')
for i in range(8):
    e(f'v_dot2_f32_bf16 v48, v{X1P + i}, {S_ONES}, {"0" if i == 0 else "v48"}')
    e(f'v_dot2_f32_bf16 v49, v{X1P + i}, v{X1P + i}, {"0" if i == 0 else "v49"}')


def rowsum2(a, b):
    e(f'''v_permlane32_swap_b32 v{a}, v{b}
          v_add_f32 v{a}, v{a}, v{b}
          v_mov_b32 v{b}, v{a}
          v_permlane16_swap_b32 v{a}, v{b}
          v_add_f32 v{a}, v{a}, v{b}
          v_mov_b32 v{b}, v{a}
          v_permlane32_swap_b32 v{a}, v{b}''')


e(f'v_mov_b32 v50, {S_TAG}\n v_mov_b32 v51, {S_TAG}')
rowsum2(48, 49)
e('s_mov_b64 exec, 0xffff')
stores([f'buffer_store_dwordx4 v[48:51], {V_L16}, {SRD_WS}, {S_STST} offen'], 'sst', plain=True)
e('s_mov_b64 exec, -1')
fine('sst')
A.bg_flush(args.b2a)
SPT = 144
for i in range(8):
    e(f'''v_lshlrev_b32 v{X1A + 2 * i}, 16, v{X1P + i}
          v_and_b32 v{X1A + 2 * i + 1}, {S_HI}, v{X1P + i}''')
SB, CB, GB = 112, 128, 32
for ct in range(4):
    e(f'ds_read_b128 {vr(SB + 4 * ct)}, v{V_GB} offset:{256 + ct * 64}', tag='ga')
    e(f'ds_read_b128 {vr(CB + 4 * ct)}, v{V_GB} offset:{512 + ct * 64}', tag='ga')
    e(f'ds_read_b128 {vr(GB + 4 * ct)}, v{V_GB} offset:{768 + ct * 64}', tag='ga')
run(movers())
for l in st_loads(SPT):
    e(l, tag='st')
A.bg_flush(args.b2)
checked('st', st_loads(SPT), lambda: e(f'''v_cmp_ne_u32 vcc, {S_TAG}, v{SPT + 2}
                                          v_cmp_ne_u32 s[12:13], {S_TAG}, v{SPT + 6}
                                          s_or_b64 vcc, vcc, s[12:13]'''))
fine('stw')
e(f'v_pk_add_f32 {vr(SPT, 2)}, {vr(SPT, 2)}, {vr(SPT + 4, 2)}')
rowsum2(SPT, SPT + 1)
e(f'''s_mov_b32 s12, 0x3b000000
      v_pk_mul_f32 {vr(SPT, 2)}, {vr(SPT, 2)}, s[12:13] op_sel_hi:[1,0]
      v_fma_f32 v{SPT + 1}, -v{SPT}, v{SPT}, v{SPT + 1}
      v_max_f32 v{SPT + 1}, 0, v{SPT + 1}
      v_add_f32 v{SPT + 1}, 0x3727c5ac, v{SPT + 1}
      v_rsq_f32 v{SPT + 2}, v{SPT + 1}
      v_mul_f32 v{SPT + 3}, -v{SPT}, v{SPT + 2}''')
A.wait_lg()
p = vr(SPT + 2, 2)
H2P = 96
for half in range(2):
    for b in range(8 * half, 8 * half + 8, 2):
        e(f'v_pk_fma_f32 {vr(X1A + b, 2)}, {vr(X1A + b, 2)}, {p}, {p} op_sel:[0,0,1] op_sel_hi:[1,0,1]')
    for b in range(8 * half, 8 * half + 8, 2):
        e(f'v_pk_fma_f32 {vr(X1A + b, 2)}, {vr(X1A + b, 2)}, {vr(CB + b, 2)}, {vr(SB + b, 2)}')
    for i in range(4 * half, 4 * half + 4):
        e(f'v_cvt_pk_bf16_f32 v{H2P + i}, v{X1A + 2 * i}, v{X1A + 2 * i + 1}')
    stores([f'buffer_store_dwordx4 {vr(H2P + 4 * half)}, {V_L16}, {SRD_WS}, {S_X1ST} offen offset:{half * 1024}'], 'xst', plain=args.h2o)
A.bg_flush(args.b2b)
publish_flag(128, 'xst')
GU.pend = gu_done()
gu_post(True)
e(poll_ld(128), tag='poll')
A.bg_flush(args.b2c)
run(movers())
stamp('x1pub')

le, lep, lok = A.newlabel('L_ep'), A.newlabel('L_epp'), A.newlabel('L_eok')
save = (list(A.vm), list(A.done), A.t, A.t_vm, list(A.log))
e(f'''s_xor_b32 s12, {S_W}, 3
      s_or_b32 s12, s2, s12
      s_cmp_lg_u32 s12, 0
      s_cbranch_scc1 {le}
      v_lshrrev_b32 v4, 2, {V_LANE}
      v_lshlrev_b32 v4, 20, v4
      v_and_b32 v5, 3, {V_LANE}
      v_lshl_add_u32 v4, v5, 4, v4
      s_mov_b32 s12, {WS_GRP}''')
A.label(lep)
e(f'buffer_load_dwordx4 v[200:203], v4, {SRD_WS}, s12 offen sc1')
A.wait_vm()
for i in range(4):
    e(f'v_xor_b32 v{200 + i}, {S_TAG}, v{200 + i}')
e(f'''v_or3_b32 v5, v200, v201, v202
      v_or_b32 v5, v5, v203
      v_lshrrev_b32 v5, 4, v5
      v_cmp_ne_u32 vcc, 0, v5
      s_cbranch_vccz {lok}''')
spin_fail(lep)
A.label(lok)
e(f'''v_mov_b32 v5, {S_TAG}
      s_mov_b64 exec, 1''')
e(f's_mov_b32 s12, {WS_EPOCH}')
e(f'buffer_store_dword v5, off, {SRD_WS}, s12 sc1')
e('s_mov_b64 exec, -1')
A.label(le)
A.vm, A.done, A.t, A.t_vm, A.log = save
A.vm += [(None, True)]
e('v_mov_b32 v12, v81')
C3[0] = 'v12'
poll_check(128)
stamp('x1wait')


def dma_h2(q):
    for tt in range(4):
        A.bg_add([f's_add_u32 m0, {S_H2M}, {(q % 4) * 16384 + tt * 1024}', f's_add_u32 {S_BT}, {S_X1LD}, {tt * 16384 + q * 2048}',
                  f'buffer_load_dwordx4 {V_L16}, {SRD_WS}, {S_BT} offen sc1 lds'], f'y{q}')


front(lambda: [dma_h2(q) for q in range(args.y0)])
A.bg_flush(4 * args.y0)
rest = list(A.bg)
A.bg = []
for q in range(args.y0, 4):
    A.bg += rest[:args.b2d]
    rest = rest[args.b2d:]
    dma_h2(q)
A.bg += rest
A.bg_gap = args.gap4
A.bg_on = True
ACC4, FB = 64, 160


def rd4(q, st):
    pos, par = st // 2, st % 2
    return [('i', f'ds_read_b128 {vr(FB + 16 * (st % 2) + 4 * i)}, v{13 + i // 2} offset:{(q % 4) * 16384 + pos * 8192 + (i % 2) * 2048 + par * 512}', f'g{st}') for i in range(4)]


def mm4(q, st):
    first = (q == 0 and st == 0)
    wb = 16 * (2 * q + st // 2) + 8 * (st % 2)
    mm = []
    for k in range(6):
        acc = vr(ACC4 + 16 * k, 16)
        mm.append(('i', f'v_mfma_f32_32x32x16_bf16 {acc}, {ar(wb + 4 * (k // 4))}, {vr(FB + 16 * (st % 2) + 4 * (k % 4))}, {"0" if first else acc}'))
    return mm


WD_ADDR = {}


class WD:
    queued = 0
    landed = 0
    moved = 0
    freed = 0


def wd_space(addr, n):
    for k in range(n):
        if WD.queued < 43:
            WD_ADDR[WD.queued] = addr + k * 4096
            dma_1k(SRD_WD, V_WDD, WD.queued, addr + k * 4096, f'wd{WD.queued}')
            WD.queued += 1


def wd_est():
    n = WD.landed
    while n < WD.queued and f'wd{n}' not in {t for l, t in A.bg} and A.tagdone[f'wd{n}'] <= A.t + args.slack:
        n += 1
    return n


def wd_done():
    live = {t for t, o in A.vm} | {t for l, t in A.bg}
    n = 0
    while n < WD.queued and f'wd{n}' not in live:
        n += 1
    return n


def wd_pre(upto):
    upto = max(upto, WD.landed)
    if upto > WD.landed:
        A.wait_vm(f'wd{upto - 1}')
    WD.pend = upto


def wd_post():
    WD.landed = WD.pend
    while WD.freed < WD.moved:
        wd_space(WD_ADDR[WD.freed], 1)
        WD.freed += 1


def wd_addr(ks, ct, hf):
    off = WD_ADDR[ks] + hf * 1024
    return f'v{(16, 48, 52)[off >> 16] + ct} offset:{off & 0xffff}'


NWB = 23


def wd_reg(ks, ct, hf=None):
    k = ks % NWB
    f, b = (ar, 16 * k) if k < 16 else (vr, 144 + 16 * (k - 16))
    return f(b + 4 * ct) if hf is None else f(b + 4 * ct + 2 * hf, 2)


def tr_wd(ks):
    return [('i', f'ds_read_b64_tr_b16 {wd_reg(ks, ct, hf)}, {wd_addr(ks, ct, hf)}', f't{ks}')
            for ct in range(4) for hf in range(2)]


def wd_moves(limit):
    it = []
    while WD.moved < min(WD.landed, limit):
        it += tr_wd(WD.moved)
        WD.moved += 1
    return it


run(lines(tr_bases_t(16, f"""v_lshrrev_b32 v42, 1, {V_G}
          v_lshlrev_b32 v42, 4, v42
          v_and_b32 v43, 1, {V_G}
          v_lshl_add_u32 v42, v43, 2, v42
          v_add_u32 v42, v42, v40""", 'v_and_b32 v43, 6, v42', 0).replace('v40', 'v4').replace('v41', 'v5').replace('v42', 'v6').replace('v43', 'v7')))
for ct in range(4):
    e(f'v_add_u32 v{48 + ct}, 0x10000, v{16 + ct}')
    e(f'v_add_u32 v{52 + ct}, 0x20000, v{16 + ct}')
def hh_touch(k):
    so = (S_HST, S_HST, S_HST2, S_HST2, 's18', 's18')[k]
    touch([f's_add_u32 {S_BT}, {so}, {(k % 2) * 86 * 1024}'], V_L16, S_BT, 0, 'v[252:255]')


e(f'''s_lshr_b32 s14, {S_W}, 1
      s_add_u32 s14, s14, 4
      s_sub_u32 s14, s14, {S_W}
      s_lshl_b32 s14, s14, 10
      s_sub_u32 s13, {S_NU}, 2
      s_mul_i32 s14, s14, s13
      s_add_u32 s18, {S_HST}, s14''')
def gu_est():
    n = GU.landed
    while n < GU.queued and f'p4w{n}' not in {t for l, t in A.bg} and A.tagdone[f'p4w{n}'] <= A.t + args.slack:
        n += 1
    return n


A.wait_vm('y0')
gu_pre(max(gu_done(), gu_est(), 2))
A.wait_lg()
e('s_barrier')
gu_post()
fine('d0')
front(lambda: pieces(6))
run(rd4(0, 0) + movers(1))
wdn = 0
def glu(k, pk):
    b = ACC4 + 16 * k
    t = ''
    if pk:
        for r in range(0, 8, 2):
            t += f'v_pk_mul_f32 {vr(b + r, 2)}, {vr(b + r, 2)}, s[14:15] op_sel_hi:[1,0]\n'
    else:
        for r in range(8):
            t += f'v_mul_f32 v{b + r}, s14, v{b + r}\n'
    for r in range(8):
        t += f'v_exp_f32 v{b + r}, v{b + r}\n'
    if pk:
        for r in range(0, 8, 2):
            t += f'v_pk_add_f32 {vr(b + r, 2)}, {vr(b + r, 2)}, 1.0 op_sel_hi:[1,0]\n'
    else:
        for r in range(8):
            t += f'v_add_f32 v{b + r}, 1.0, v{b + r}\n'
    for r in range(8):
        t += f'v_rcp_f32 v{b + r}, v{b + r}\n'
    if pk:
        for r in range(0, 8, 2):
            t += f'v_pk_mul_f32 {vr(b + r, 2)}, {vr(b + r, 2)}, {vr(b + 8 + r, 2)}\n'
    else:
        for r in range(8):
            t += f'v_mul_f32 v{b + r}, v{b + r}, v{b + 8 + r}\n'
    for d in range(4):
        t += f'v_cvt_pk_bf16_f32 v{b + d}, v{b + 2 * d}, v{b + 2 * d + 1}\n'

    def st():
        st_ = f'buffer_store_dwordx4 {vr(b)}, {V_L16}, {SRD_WS}, {(S_HST, "s16", S_HST2, "s17", "s18", "s19")[k]} offen'
        if k >= 4:
            with nobg():
                ls = A.newlabel('L_sk')
                e(f's_cmp_lt_u32 {S_NU}, 3\n s_cbranch_scc1 {ls}')
                stores([st_], 'hst', optional=True, plain=args.ht)
                A.label(ls)
        else:
            stores([st_], 'hst', plain=args.ht)
    return lines(t) + [('f', st)]


NREG = 16
e(f'''s_mov_b32 s14, 0xbfb8aa3b
      s_add_u32 s16, {S_HST}, {86 * 1024}
      s_add_u32 s17, {S_HST2}, {86 * 1024}
      s_add_u32 s19, s18, {86 * 1024}''')
QL = 8 - args.tailq
NT = 4 * args.tailq


def rdt(i, u):
    q, st = QL + u // 4, u % 4
    n = (i * NT + u) % 8
    return ('i', f'ds_read_b128 {vr(FB + 32 + 4 * n)}, v{13 + i // 2} offset:{(q % 4) * 16384 + (st // 2) * 8192 + (i % 2) * 2048 + (st % 2) * 512}', f'r{i}_{u}')


def after_bar4(q):
    global wdn
    if q < 4:
        dma_h2(q + 4)
    if q < 3:
        c3(SRD_WD, q)
    if GU.freed >= 12 and wdn == 0:
        wd_space(L_S + 13 * 4096, 7)
        wd_space(LDS_TOTAL - 4096, 1)
        wdn = 7
    if GU.freed == 16 and wdn == 7:
        wd_space(L_S, 13)
        wdn = 20


for q in range(QL):
    main = []
    for st in range(3):
        main += [('wl', [f'g{st}', f'mv{2 * q + st // 2}'])] + interleave(mm4(q, st), rd4(q, st + 1), 0, 4)
    if q < 6 and args.ht:
        hh_touch(q)
        if True:
            A.bg.insert(min(len(A.bg) - 1, 4), A.bg.pop())
    run(interleave(interleave(main, movers(), 0, 10), wd_moves(min(2 * q, WD.moved + 4)), 2))
    last = q == QL - 1
    A.wait_vm('y7' if last else f'y{q + 1}')
    gu_pre(16 if last else max(gu_done(), gu_est(), 2 * q + 4))
    wd_pre(max(wd_done(), wd_est()))
    A.wait_lg()
    e('s_barrier')
    gu_post()
    if q % 2:
        fine(f'd{(q + 1) // 2}')
    after_bar4(q)
    if q >= 4:
        wd_space(L_H2 + (q - 4) * 16384, 4)
    wd_post()
    run(interleave(mm4(q, 3), (movers() + [rdt(0, u) for u in range(4)]) if last else (rd4(q + 1, 0) + movers(2 * q + 3)), 0, 5))
seq = [(i, u) for i in range(4) for u in range(NT)]
pend = []
for i in range(4):
    main = []
    for u in range(NT):
        n = i * NT + u
        ks, par = 2 * QL + u // 2, u % 2
        main.append(('wl', [f'r{i}_{u}', f'mv{ks}']))
        for k in ([4 + i, i] if i < 2 else [i]):
            acc = vr(ACC4 + 16 * k, 16)
            main.append(('i', f'v_mfma_f32_32x32x16_bf16 {acc}, {ar(16 * ks + 8 * par + 4 * (k // 4))}, {vr(FB + 32 + 4 * (n % 8))}, {acc}'))
        if n + 4 < len(seq):
            main.append(rdt(*seq[n + 4]))
    nm = sum(1 for it in main if it[0] == 'i' and it[1].startswith('v_mfma'))
    take = min(len(pend), (nm - 2) * args.gper)
    if i < 2:
        main = interleave(main, wd_moves(min(2 * QL, WD.moved + (6, 3)[i])), 0)
    run(interleave(main, pend[:take], 2))
    pend = pend[take:]
    if i in (0, 1, 3):
        wd_pre(max(wd_done(), wd_est()))
        A.wait_lg()
        e('s_barrier')
        GU.pend = 16
        gu_post()
        after_bar4(7)
        if i == 3:
            q0 = max(QL, 4)
            wd_space(L_H2 + (q0 - 4) * 16384, 16 - 4 * (q0 - 4))
        wd_post()
    if i == args.gcut:
        A.bg_on = False
    if i < 3:
        for k in ([4 + i, i] if i < 2 else [i]):
            pend += glu(k, args.gper == 0)
assert wdn == 20
stamp('gemm4')
run(pend)
run(glu(3, True))
fine('hst')
A.bg_flush(args.b4)
assert not any(t == 'gp' and 'v11' in l[-1] for l, t in A.bg)
e(f"""v_lshrrev_b32 v11, 1, {V_G}
      v_lshlrev_b32 v11, 10, v11
      v_and_b32 v5, 1, {V_G}
      v_lshl_add_u32 v11, v5, 9, v11
      v_lshl_add_u32 v11, {V_C}, 4, v11""")
run(wd_moves(16))
A.wait_lg()
publish_flag(192, 'hst')
WD.pend = wd_done()
wd_post()
e(poll_ld(192), tag='poll')
stamp('hpub')

A.bg_flush(args.b5)
run(wd_moves(NWB))
poll_check(192)
stamp('hwait')
print('wd: queued', WD.queued, 'landed', WD.landed, 'moved', WD.moved, file=sys.stderr)
assert WD.queued == 43
HA, ACC5, NH = 80, 64, 16
hl = []
for ks in range(43):
    pre = [f's_add_u32 s28, {S_HLD}, {ks * 2048}'] if ks % 2 == 0 else []
    hl.append((pre + [f'buffer_load_dwordx4 {vr(HA + 4 * (ks % NH))}, v11, {SRD_WS}, s28 offen offset:{(ks % 2) * 2048} sc1'], f'h{ks}'))
A.bg_flush()
A.bg = hl[:NH]
A.bg_flush(12)
A.bg_on = False
for ks in range(43):
    if WD.landed < 43 and (ks == args.kbar or WD.moved == WD.landed):
        A.wait_vm('wd42')
        e('s_barrier')
        WD.landed = 43
        fine('wdall')
    if WD.moved <= ks:
        run(wd_moves(ks + 2))
    n0 = len(A.ins)
    A.wait_vm(f'h{ks}')
    A.wait_lg(f't{ks}')
    if len(A.ins) == n0 + 2 and all(i.op == 's_waitcnt' for i in A.ins[n0:]):
        b_, a_ = A.ins.pop(), A.ins.pop()
        A._emit(a_.text + ' ' + b_.text.split(None, 1)[1], None, False)
    nxt = wd_moves(min(WD.moved + 1, ks + NWB + 1)) if (43 - WD.moved) * args.trsp >= (43 - ks - 6) * 10 or WD.moved - ks < 4 else []
    for ct in range(4):
        e(f'v_mfma_f32_16x16x32_bf16 {vr(ACC5 + 4 * ct)}, {wd_reg(ks, ct)}, {vr(HA + 4 * (ks % NH))}, {"0" if ks == 0 else vr(ACC5 + 4 * ct)}')
        if ct == 0:
            A.bg_flush(1)
        run(nxt[2 * ct:2 * ct + 2])
    if ks + NH < 43:
        A.bg.append(hl[ks + NH])
    if ks == 40:
        XF5 = 80
        for i in range(8):
            e(f'''v_lshlrev_b32 v{XF5 + 2 * i}, 16, v{X1P + i}
                  v_and_b32 v{XF5 + 2 * i + 1}, {S_HI}, v{X1P + i}''')
assert WD.moved == 43
A.bg_on = False
stamp('gemm5')
for b in range(0, 16, 2):
    e(f'v_pk_fma_f32 {vr(ACC5 + b, 2)}, {vr(ACC5 + b, 2)}, {vr(GB + b, 2)}, {vr(XF5 + b, 2)}')
for i in range(8):
    e(f'v_cvt_pk_bf16_f32 v{X1P + i}, v{ACC5 + 2 * i}, v{ACC5 + 2 * i + 1}')
for p in range(2):
    for d in range(2):
        e(f'v_permlane16_swap_b32 v{X1P + 4 * p + d}, v{X1P + 4 * p + 2 + d}')
for p in range(2):
    e(f'buffer_store_dwordx4 {vr(X1P + 4 * p)}, v{V_XO}, {SRD_OUT}, {S_XOFF} offen offset:{p * 64} {args.outm}')
if args.stamps:
    stamp('end')
    e(f'''s_lshl_b32 s12, s2, 2
          s_add_u32 s12, s12, {S_W}
          s_lshl_b32 s12, s12, 8
          s_add_u32 s12, s12, {WS_STAMP}
          v_lshlrev_b32 v4, 2, {V_LANE}
          buffer_store_dword {V_STAMP}, v4, {SRD_WS}, s12 offen''')
A.label('L_giveup')
e('s_endpgm')
assert not A.bg and not PIECES

nn = A.pad_hazards()
hdr = open(f'cdna_kernels/{NAME}.s.ref').read().split('; Override launch')[0]
wrap = lambda body: hdr + f'''; @launch grid=(256,1,1) block=(256,1,1) lds={LDS_TOTAL}
.amdgcn_target "amdgcn-amd-amdhsa--gfx950"
.text
.globl {NAME}_kernel
.p2align 8
.type {NAME}_kernel,@function
{NAME}_kernel:
''' + body + f'''.rept 256
    s_endpgm
.endr
L_codeend:
.section .rodata,"a"
.p2align 6
.amdhsa_kernel {NAME}_kernel
  .amdhsa_next_free_vgpr 512
  .amdhsa_next_free_sgpr 102
  .amdhsa_accum_offset 256
  .amdhsa_group_segment_fixed_size 0
  .amdhsa_kernarg_size 96
  .amdhsa_user_sgpr_count 2
  .amdhsa_user_sgpr_kernarg_segment_ptr 1
  .amdhsa_system_sgpr_workgroup_id_x 1
.end_amdhsa_kernel
'''
if args.align:
    print('align', align_pass(A, wrap, args.align), file=sys.stderr)
out = wrap(A.text())
if args.stamps or args.stop1:
    out += '; stamps: ' + ','.join(stamp_names) + '\n'
open(args.o, 'w').write(out)
if args.vlog:
    ev = sorted([(t, 'S', n) for n, t in model] + [(t, 'V', f'{tag}->{c}') for t, c, tag in A.log])
    print(' '.join((f'\n=={n}@{int(t)}==' if k == 'S' else f'{int(t)}:{n}') for t, k, n in ev), file=sys.stderr)
print('nvm', len(A.log), file=sys.stderr)
print('model: ' + ' '.join(f'{n}:{int(t)}' for n, t in model), file=sys.stderr)
print(f'wrote {args.o}: {len(A.ins)} instructions, {nn} hazard nops', file=sys.stderr)
```

```python
import sys, argparse
from contextlib import contextmanager
from asmlib import Asm, align_pass

NAME = "adaLN_cond__sliding_local_dilated__glu_gated_glu__prompt"
ap = argparse.ArgumentParser()
ap.add_argument('-o', default=f'cdna_kernels/{NAME}.s')
ap.add_argument('--stamps', action='store_true')
ap.add_argument('--cyc', action='store_true')
ap.add_argument('--fine', action='store_true')
ap.add_argument('--slow', action='store_true')
ap.add_argument('--x', default='')
ap.add_argument('--vlog', action='store_true')
ap.add_argument('--align', type=int, default=5)
ap.add_argument('--stop1', action='store_true')
ap.add_argument('--outm', default='nt')
ap.add_argument('--plan', default='4030000')
ap.add_argument('--touch', action='store_true')
ap.add_argument('--s1', action='store_true')
for k, d in dict(gapa=64, gapaware=1, c3=1, dbg=-1, otlb=1, jit1=0, trsp=99, w0=0, w1=0, pg=2, zero=1, pfx=0, pfy=0, pfz=0, x0=2, bpos=8, h2o=1, ot=0, ht=0, gpl=1800, acut=70, gap0=64, gap1=64, gap4=64, gap5=64, s0=4, pfe2=3, pf0=4, b1=7, b1d=0, b2a=0, b2c=3, b2d=3, y0=2, slack=0, b1c=8, b2=5, b2b=2, b3=12, b4=8, win=11, gcut=3, tailq=2, gper=6, b5=6, hfirst=0, kbar=8, lat0=2900).items():
    ap.add_argument('--' + k, type=int, default=d)
args = ap.parse_args()
args.wt = not args.touch

A = Asm()
e = A.e
A.win = args.win
A.lat = {'xpf': (args.lat0, 2.5), 'x': (650, 1), 'gp': (args.gpl, .4), 'mx': (1100, .3), 'gc': (1250, .5), 'gq': (1800, 1.5), 'mtb': (1500, .8), 'mt': (1800, .8), 'ost': (400 if args.ot else 800, .1), 'xst': (400 if args.h2o else 800, .1),
         'hst': (400 if args.ht else 800, .1), 'poll': (650, .1), 'xr': (800, 2), '': (400, .1), 'p4w': (1100, 1.35), 'stt': (1400, .25), 'st': (650, 1), 'sst': (400, .1), 'mg': (1100, .25),
         'm': (1100, 1), 'o': (650 if args.ot else 1100, 1), 'y': (650 if args.h2o else 1100, 1), 'h': (650 if args.ht else 1100, 1), 'tch': (1600, 1)}
model = []

WS_O = 0x30000
WS_X1 = 0x50000
WS_STATS = 0x70000
WS_HH = 0x80000
HH_PITCH = 0x2C000
WS_GRP = 0xF0000
WS_MODP = 0xE0000
WS_EPOCH = 0xEF000
WS_STAMP = 0x1000000
WS_SIZE = 0x1100000 if args.stamps else 0x1000000

L_STATS, L_RED, L_MODV, L_GAGB = 0x0, 0xA00, 0x1000, 0x2000
L_HRING = 0x3000
L_B = [0x3000, 0xF000, 0x1B000, 0xF000]
L_WO = 0x17000
L_H2 = 0x17000
BLK, MAT1 = 12416, 6176
L_S = 0x3000
L_WD = 0x3000
LDS_TOTAL = 163840

S_W, S_RB, S_M, S_J, S_TAG, S_FAST, S_XCC = 's4', 's5', 's6', 's7', 's8', 's9', 's11'
SRD_X, SRD_WQKV, SRD_WO, SRD_WG, SRD_WU, SRD_WD, SRD_WMOD, SRD_OUT, SRD_WS, SRD_C = [
    f's[{b}:{b + 3}]' for b in range(40, 80, 4)]
S_GRP, S_ONES, S_HI, S_SPIN = 's84', 's85', 's86', 's87'
S_XOFF, S_NU, S_U0, S_COL = 's88', 's89', 's90', 's91'
SRD_GU = 's[92:95]'
S_MM4, S_GUM, S_H2M = 's80', 's81', 's39'
S_OST, S_X1ST, S_HST, S_STST = 's96', 's97', 's98', 's99'
S_HST2 = 's83'
S_W3K, S_M128, S_BT, S_W1K = 's20', 's21', 's22', 's23'
S_OLD, S_X1LD, S_STLD, S_HLD = 's35', 's36', 's37', 's38'
V_LANE, V_L16, V_G, V_C = 'v0', 'v1', 'v2', 'v3'
V_DUM, V_STAMP = 'v10', 'v15'
V_WOD, V_P4D, V_OST, V_XO, V_WDD, V_GB = 56, 57, 60, 61, 62, 63
PD = 'v[116:119]'


def vr(b, n=4):
    return f'v[{b}:{b + n - 1}]'


def ar(b, n=4):
    return f'a[{b}:{b + n - 1}]'


@contextmanager
def nobg():
    old = A.bg_on
    A.bg_on = False
    yield
    A.bg_on = old


nstamp = [0]
stamp_names = []


def stamp(name=''):
    model.append((name, A.t))
    if not args.stamps:
        return
    with nobg():
        e('s_memtime s[100:101]' if args.cyc else 's_memrealtime s[100:101]')
        stamp_names.append(name)
        A.wait_lg()
        e(f'v_writelane_b32 {V_STAMP}, s100, {nstamp[0]}')
    nstamp[0] += 1


def fine(name):
    if args.fine:
        stamp(name)


def lines(t):
    return [('i', l.split(';')[0].strip()) for l in t.split('\n') if l.split(';')[0].strip()]


def run(items):
    for it in items:
        if it[0] == 'i':
            e(it[1], tag=it[2] if len(it) > 2 else None)
        elif it[0] == 'wl':
            A.wait_lg(it[1])
        elif it[0] == 'wv':
            A.wait_vm(it[1])
        elif it[0] == 'f':
            it[1]()
        else:
            raise ValueError(it)


def is_mem(it):
    return it[0] == 'f' or (it[0] == 'i' and it[1].startswith(('ds_', 'buffer_')))


def is_valu(it):
    return it[0] == 'i' and it[1].startswith('v_') and not it[1].startswith('v_mfma')


def interleave(main, fill, start=0, end=None, pred=lambda t: t.startswith('v_mfma')):
    slots = [i for i, it in enumerate(main) if it[0] == 'i' and pred(it[1])]
    slots = slots[start:end]
    sset = {i: k for k, i in enumerate(slots)}
    out = []
    n = len(slots)
    done = 0
    i = 0
    while i < len(main):
        out.append(main[i])
        if i in sset:
            k = sset[i] + 1
            while i + 1 < len(main) and is_mem(main[i + 1]) and (i + 1) not in sset:
                i += 1
                out.append(main[i])
            upto = (len(fill) * k + n - 1) // n
            valu = False
            while done < upto:
                it = fill[done]
                if is_mem(it) and valu and k < n and args.gapaware:
                    break
                valu = valu or is_valu(it)
                out.append(it)
                done += 1
        i += 1
    out.extend(fill[done:])
    return out


def cost(it):
    if it[0] != 'i':
        return 1
    if it[1].startswith('ds_write_b128'):
        return 3
    if it[1].startswith(('v_exp', 'v_rcp', 'v_rsq')):
        return 2
    return 1


def pack(main, fill, start=0, end=None):
    gaps = []
    idx = [i for i, it in enumerate(main) if it[0] == 'i' and it[1].startswith('v_mfma')]
    for a, i in enumerate(idx):
        nxt = idx[a + 1] if a + 1 < len(idx) else len(main)
        j = i
        while j + 1 < nxt and is_mem(main[j + 1]):
            j += 1
        gaps.append((j, sum(cost(x) for x in main[i + 1:nxt])))
    gaps = gaps[start:end]
    total = sum(cost(x) for x in fill) + sum(c for _, c in gaps)
    at = {}
    done = 0
    acc = 0.0
    per = total / len(gaps)
    for k, (j, c) in enumerate(gaps):
        acc += per - c
        lst = []
        valu = False
        while done < len(fill) and (acc >= cost(fill[done]) - 0.5 or k == len(gaps) - 1):
            it = fill[done]
            if is_mem(it) and valu and k < len(gaps) - 1:
                break
            valu = valu or is_valu(it)
            lst.append(it)
            acc -= cost(it)
            done += 1
        at[j] = lst
    out = []
    for i, it in enumerate(main):
        out.append(it)
        out.extend(at.get(i, []))
    return out


def spin_fail(lbl_loop):
    e(f'''s_sub_u32 {S_SPIN}, {S_SPIN}, 1
          s_cmp_eq_u32 {S_SPIN}, 0
          s_cbranch_scc1 L_giveup
          s_branch {lbl_loop}''')


def checked(tag, loads, check):
    A.wait_vm(tag)
    with nobg():
        lc, lp, ld = A.newlabel('L_c'), A.newlabel('L_p'), A.newlabel('L_d')
        save = (list(A.vm), list(A.done), A.t, A.t_vm, list(A.log))
        e(f's_branch {lc}')
        A.label(lp)
        for l in loads:
            e(l)
        A.wait_vm()
        A.vm, A.done, A.t, A.t_vm, A.log = save
        A.label(lc)
        check()
        e(f's_cbranch_vccz {ld}')
        spin_fail(lp)
        A.label(ld)


def stores(lst, tag, optional=False, plain=False):
    with nobg():
        if not plain:
            for t in lst:
                e(t + ' sc1', tag=tag, optional=optional)
            return
        l1, l2 = A.newlabel('L_st'), A.newlabel('L_st')
        e(f"""s_cmp_lg_u32 {S_FAST}, 0
              s_cbranch_scc1 {l1}""")
        save = (list(A.vm), list(A.done), A.t, A.t_vm, list(A.log))
        for t in lst:
            e(t + ' sc1')
        e(f's_branch {l2}')
        A.vm, A.done, A.t, A.t_vm, A.log = save
        A.label(l1)
        for t in lst:
            e(t, tag=tag, optional=optional)
        A.label(l2)


def touch(pre, va, so, off=0, dst=None):
    dst = dst or PD
    if True:
        A.bg_add(pre + [f'buffer_load_dwordx4 {dst}, {va}, {SRD_WS}, {so} offen offset:{off} sc1'], 'tch')


def publish_flag(off, tag):
    with nobg():
        e(f'''s_add_u32 s12, {S_MM4}, {S_GRP}
              v_mov_b32 v5, {S_TAG}''')
        if off == 64:
            e(f'''s_and_b32 s13, {S_MM4}, 32
                  v_and_b32 v9, 7, {V_LANE}
                  v_lshl_add_u32 v9, v9, 2, s13''')
        else:
            e(f'v_lshlrev_b32 v9, 2, {V_C}')
        A.wait_vm(tag)
        e('s_barrier')
        l1, l2 = A.newlabel('L_pf'), A.newlabel('L_pf')
        e(f'''s_cmp_lg_u32 {S_W}, 0
              s_cbranch_scc1 {l2}
              s_mov_b64 exec, 1
              s_cmp_lg_u32 {S_FAST}, 0
              s_cbranch_scc1 {l1}''')
        e(f'buffer_store_dword v5, off, {SRD_WS}, s12 offset:{off} sc1', optional=True)
        e(f'''s_mov_b64 exec, -1
              s_branch {l2}''')
        A.label(l1)
        e(f'buffer_store_dword v5, off, {SRD_WS}, s12 offset:{off}', optional=True)
        e('s_mov_b64 exec, -1')
        A.label(l2)


def poll_ld(off):
    return f'buffer_load_dword v8, v9, {SRD_WS}, {S_GRP} offen offset:{off} sc1'


def poll_check(off):
    with nobg():
        checked('poll', [poll_ld(off)], lambda: e(f'v_cmp_ne_u32 vcc, {S_TAG}, v8'))


def st_loads(t0):
    return [f'buffer_load_dwordx4 {vr(t0 + 4 * p)}, {V_L16}, {SRD_WS}, {S_STLD} offen offset:{p * 1024} sc1' for p in range(2)]


def mod_loads(va, t0):
    return [f'buffer_load_dwordx4 {vr(t0 + 4 * p)}, {va}, {SRD_WS}, s{24 + p} offen sc1' for p in range(4)]


def mod_check(va, t0, tag, lds_v, addone_v):
    def chk():
        e(f's_and_b32 s13, {S_TAG}, 0xff')
        for i in range(16):
            e(f'v_xor_b32 v{t0 + i}, s13, v{t0 + i}')
        e(f'v_or3_b32 v5, v{t0}, v{t0 + 1}, v{t0 + 2}')
        e(f'v_or3_b32 v6, v{t0 + 3}, v{t0 + 4}, v{t0 + 5}')
        for i in range(6, 14, 4):
            e(f'v_or3_b32 v5, v5, v{t0 + i}, v{t0 + i + 1}')
            e(f'v_or3_b32 v6, v6, v{t0 + i + 2}, v{t0 + i + 3}')
        e(f'v_or3_b32 v5, v5, v{t0 + 14}, v{t0 + 15}')
        e(f'''v_or_b32 v5, v5, v6
              v_and_b32 v5, 0xff, v5
              v_cmp_ne_u32 vcc, 0, v5''')
    checked(tag, mod_loads(va, t0), chk)
    for i in range(0, 4, 2):
        e(f'v_pk_add_f32 {vr(t0 + i, 2)}, {vr(t0 + i, 2)}, {vr(t0 + 4 + i, 2)}')
        e(f'v_pk_add_f32 {vr(t0 + 8 + i, 2)}, {vr(t0 + 8 + i, 2)}, {vr(t0 + 12 + i, 2)}')
    for i in range(0, 4, 2):
        e(f'v_pk_add_f32 {vr(t0 + i, 2)}, {vr(t0 + i, 2)}, {vr(t0 + 8 + i, 2)}')
    for rnd in range(2):
        e(f'v_cvt_pk_bf16_f32 v5, v{t0}, v{t0 + 1}')
        e(f'v_cvt_pk_bf16_f32 v6, v{t0 + 2}, v{t0 + 3}')
        e(f'v_lshlrev_b32 v{t0}, 16, v5')
        e(f'v_and_b32 v{t0 + 1}, {S_HI}, v5')
        e(f'v_lshlrev_b32 v{t0 + 2}, 16, v6')
        e(f'v_and_b32 v{t0 + 3}, {S_HI}, v6')
        if rnd == 0:
            if addone_v is None:
                break
            for i in range(4):
                e(f'v_add_f32 v{t0 + i}, v{t0 + i}, {addone_v}')
    e(f'ds_write_b128 {lds_v}, {vr(t0)}', tag='modw')


def mod_task_loads(base, cond, tag, rr=vr, va='v74', vc='v75'):
    l = A.newlabel('L_ml')
    with nobg():
        e(cond + f'\n s_cbranch_scc0 {l}')
        e(f'buffer_load_dwordx2 {rr(base + 16, 2)}, {vc}, {SRD_C}, s33 offen', tag=tag, optional=True)
        for i in range(4):
            e(f'buffer_load_dwordx4 {rr(base + 4 * i)}, {va}, {SRD_WMOD}, s{29 + i} offen', tag=tag, optional=True)
        A.label(l)


def mod_part1(base, t, ad, from_a=None, c0=None, fma=False):
    x = ''
    c0 = c0 or base + 16
    if from_a is not None:
        for i in range(18):
            x += f'v_accvgpr_read_b32 v{base + i if i < 16 else c0 + i - 16}, a{from_a + i}\n'
    x += f"""v_lshlrev_b32 v{t + 8}, 16, v{c0}
          v_and_b32 v{t + 9}, {S_HI}, v{c0}
          v_lshlrev_b32 v{t + 10}, 16, v{c0 + 1}
          v_and_b32 v{t + 11}, {S_HI}, v{c0 + 1}
          """
    for op in ('v_mul_f32 v{a}, 0xbfb8aa3b, v{b}', 'v_exp_f32 v{a}, v{a}', 'v_add_f32 v{a}, 1.0, v{a}', 'v_rcp_f32 v{a}, v{a}', 'v_mul_f32 v{b}, v{b}, v{a}'):
        for i in range(4):
            x += op.format(a=t + 12 + i, b=t + 8 + i) + '\n'
    MA = t + 8
    if fma:
        for i in range(4):
            x += f'v_cvt_pk_bf16_f32 v{t + i}, 0, v{t + 8 + i}\n'
        for i in range(4):
            for d in range(4):
                x += f'v_lshlrev_b32 v{t + 4}, 16, v{base + 4 * i + d}\n v_and_b32 v{t + 5}, {S_HI}, v{base + 4 * i + d}\n'
                for h in range(2):
                    if i == 0:
                        x += f'v_mul_f32 v{MA + 2 * d + h}, v{t + 4 + h}, v{t + i}\n'
                    else:
                        x += f'v_fma_f32 v{MA + 2 * d + h}, v{t + 4 + h}, v{t + i}, v{MA + 2 * d + h}\n'
    else:
        for i in range(4):
            x += f'v_cvt_pk_bf16_f32 v{t + i}, v{t + 8 + i}, 0\n'
            x += f'v_cvt_pk_bf16_f32 v{t + 4 + i}, 0, v{t + 8 + i}\n'
        for i in range(4):
            for d in range(4):
                for h in range(2):
                    src2 = '0' if i == 0 else f'v{MA + 2 * d + h}'
                    x += f'v_dot2_f32_bf16 v{MA + 2 * d + h}, v{base + 4 * i + d}, v{t + 4 * h + i}, {src2}\n'
    x += f"""v_and_b32 v{ad}, 7, {V_LANE}
          v_lshlrev_b32 v{ad}, 5, v{ad}
          v_and_b32 v{ad + 1}, 1, {V_G}
          v_lshl_add_u32 v{ad}, v{ad + 1}, 3, v{ad}
          """
    for p in range(4):
        x += f'v_permlane32_swap_b32 v{MA + 2 * p}, v{MA + 2 * p + 1}\n'
    for p in range(4):
        x += f'v_add_f32 v{MA + 2 * p}, v{MA + 2 * p}, v{MA + 2 * p + 1}\n'
    x += f"""v_lshrrev_b32 v{ad + 1}, 1, {V_G}
          v_lshl_add_u32 v{ad}, v{ad + 1}, 2, v{ad}
          """
    for p in range(2):
        x += f'v_permlane16_swap_b32 v{MA + 4 * p}, v{MA + 4 * p + 2}\n'
    for p in range(2):
        x += f'v_add_f32 v{MA + 4 * p}, v{MA + 4 * p}, v{MA + 4 * p + 2}\n'
    x += f"""s_lshl_b32 s28, {S_W}, 8
          v_add_u32 v{ad}, s28, v{ad}
          """
    for p in range(2):
        x += f'v_add_f32_dpp v{MA + 4 * p + 1}, v{MA + 4 * p}, v{MA + 4 * p} row_ror:8 row_mask:0xf bank_mask:0xf\n'
    x += f'ds_write_b32 v{ad}, v{MA + 1} offset:{L_RED}\n'
    x += f'ds_write_b32 v{ad}, v{MA + 5} offset:{L_RED + 16}\n'
    return lines(x)


def mod_part2(base, lm, wave):
    e(f"""s_cmp_lg_u32 {S_W}, {wave}
          s_cbranch_scc1 {lm}
          v_lshlrev_b32 v4, 4, {V_C}""")
    for w in range(4):
        e(f'ds_read_b128 {vr(base + 4 * w)}, v4 offset:{L_RED + w * 256}')
    e(f"""s_and_b32 s13, {S_TAG}, 0xff
          s_mov_b32 s14, 0xffffff00
          v_mov_b32 v5, s13
          s_and_b32 s12, s3, 3
          s_mul_i32 s12, s12, 12288
          s_lshr_b32 s13, s3, 2
          s_lshl_b32 s13, s13, 8
          s_add_u32 s12, s12, s13
          s_add_u32 s12, s12, {WS_MODP}""")
    e('s_waitcnt lgkmcnt(0)')
    for i in range(0, 4, 2):
        e(f'v_pk_add_f32 {vr(base + i, 2)}, {vr(base + i, 2)}, {vr(base + 4 + i, 2)}')
        e(f'v_pk_add_f32 {vr(base + 8 + i, 2)}, {vr(base + 8 + i, 2)}, {vr(base + 12 + i, 2)}')
    for i in range(0, 4, 2):
        e(f'v_pk_add_f32 {vr(base + i, 2)}, {vr(base + i, 2)}, {vr(base + 8 + i, 2)}')
    for i in range(4):
        e(f'v_and_or_b32 v{base + i}, v{base + i}, s14, v5')
    e('s_mov_b64 exec, 0xffff')
    e(f'buffer_store_dwordx4 {vr(base)}, v4, {SRD_WS}, s12 offen sc1', optional=True)
    e('s_mov_b64 exec, -1')
    e('s_nop 0')


def dma_wqkv(j):
    for pos in range(4):
        ks = 4 * pos + j
        for mat in range(3):
            pre = [f's_add_u32 m0, {S_W3K}, {L_B[j] + pos * 12288}', f's_add_u32 {S_BT}, {S_M128}, {ks * 32 * 3072}'] if mat == 0 else []
            A.bg_add(pre + [f'buffer_load_dwordx4 v8, {SRD_WQKV}, {S_BT} offen offset:{mat * 1024} lds'], f'wq{j}')


def tr_wqkv(j):
    it = [('i', f'v_add_u32 v9, {(L_B[j] - L_B[j - 1]) & 0xffffffff}, v9')] if j else []
    return it + [('i', f'ds_read_b64_tr_b16 {ar(((j * 4 + pos) * 3 + mat) * 4 + hf * 2, 2)}, v9 offset:{pos * 12288 + mat * 1024 + hf * 512}', f'trq{j}_{pos}')
                 for pos in range(4) for mat in range(3) for hf in range(2)]


def dma_1k(srd, vreg, ks, ldsaddr, tag):
    A.bg_add([f's_add_u32 m0, {S_W1K}, {ldsaddr}', f's_add_u32 {S_BT}, {S_M128}, {ks * 32768}',
              f'buffer_load_dwordx4 v{vreg}, {srd}, {S_BT} offen lds'], tag)


def dma_p4(n):
    for i in range(3):
        A.bg_add([f's_add_u32 m0, {S_GUM}, {(n % 6) * BLK + i * 1024}', f's_add_u32 {S_BT}, {S_COL}, {n * 32 * 2752}',
                  f'buffer_load_dwordx4 v{V_P4D + i}, {SRD_GU}, {S_BT} offen lds'], f'p4w{n}')


class GU:
    queued = 0
    landed = 0
    moved = 0
    freed = 0


def gu_queue():
    while GU.queued < 16 and GU.queued < GU.freed + 6:
        dma_p4(GU.queued)
        GU.queued += 1


def gu_pre(upto):
    upto = max(upto, GU.landed)
    assert upto <= GU.queued
    if upto > GU.landed:
        A.wait_vm(f'p4w{upto - 1}')
    GU.pend = upto


def gu_post(lg_waited=True):
    GU.landed = GU.pend
    if lg_waited:
        GU.freed = GU.moved
    gu_queue()


def gu_done():
    live = {t for t, o in A.vm} | {t for l, t in A.bg}
    n = 0
    while n < GU.queued and f'p4w{n}' not in live:
        n += 1
    return n


def mover(n):
    return [('i', f'ds_read_b64_tr_b16 {ar(16 * n + 8 * par + 4 * i + 2 * hf, 2)}, v{20 + i + 2 * ((n % 6) // 3)} offset:{(n % 3) * BLK + (16 * hf + 8 * par) * 192}', f'mv{n}')
            for par in range(2) for i in range(2) for hf in range(2)]


def movers(limit=16):
    it = []
    while GU.moved < min(GU.landed, limit):
        it += mover(GU.moved)
        GU.moved += 1
    return it


def front(f):
    rest = list(A.bg)
    A.bg = []
    f()
    A.bg += rest


def c3(srd, piece):
    if args.c3:
        lo = srd[2:srd.index(':')]
        A.bg_add([f's_sub_u32 {S_BT}, 0x180, s{lo}', f's_and_b32 {S_BT}, {S_BT}, 0x380', f's_add_u32 {S_BT}, {S_BT}, {piece * 524288}',
                  f'buffer_load_dword {V_DUM}, {C3[0]}, {srd}, {S_BT} offen'], 'gc')


C3 = ['v55']


def gpf(srd, base):
    A.bg_add([f's_mov_b32 {S_BT}, {base}', f'buffer_load_dword {V_DUM}, v11, {srd}, {S_BT} offen'], 'gp')


Q = 128 * 2752
PIECES = [[(SRD_WO, 0), (SRD_WO, 393216)]] + [[(SRD_WG, q * Q), (SRD_WU, q * Q)] for q in range(4)] + \
         [[(SRD_WD, 0), (SRD_WD, 393216)], [(SRD_WD, 2 * 393216), (SRD_WD, 3 * 393216)]]


PLAN = [int(c) for c in args.plan]


def pieces(point):
    for k in range(PLAN[point]):
        for p in PIECES.pop(0):
            gpf(*p)


def bg_mix(every, first=0):
    old = A.bg
    A.bg = []
    k = first
    for it in old:
        if len(it[0]) > 1 and k >= every and PIECES:
            for p in PIECES.pop(0):
                gpf(*p)
            k = 0
        A.bg.append(it)
        k += 1


XRES, GAL, TRB = 88, 136, 84
MK, ONE = 168, 184


L_MASK, L_TRB = 0x27000, 0x2800


def tr_bases_t(dst, rowt, ft, ldsbase):
    t = f'''v_bfe_u32 v40, {V_LANE}, 2, 2
          v_and_b32 v41, 3, {V_LANE}
          {rowt}
          {ft}
          v_lshlrev_b32 v42, 7, v42
          v_and_b32 v40, 1, v41
          v_lshl_add_u32 v42, v40, 3, v42
          v_add_u32 v42, {ldsbase}, v42
          v_lshrrev_b32 v41, 1, v41
          '''
    for ct in range(4):
        t += f'''v_add_u32 v40, {2 * ct}, v41
              v_xor_b32 v40, v40, v43
              v_lshl_add_u32 v{dst + ct}, v40, 4, v42
              '''
    return t


def late_items():
    t = f"""v_lshlrev_b32 v80, 4, {V_C}
          v_lshl_add_u32 v80, {V_G}, 11, v80
          s_lshl_b32 s12, {S_M}, 8
          s_add_u32 s12, s12, {1024 * 4}
          v_add_u32 v80, s12, v80
          v_mov_b32 v81, v55
          s_add_u32 s12, {S_W1K}, {L_MODV}
          v_add_u32 v82, s12, {V_L16}
          v_cmp_eq_u32 vcc, 2, {V_G}
          v_mov_b32 v83, 0
          s_nop 0
          v_cndmask_b32 v83, v83, 1.0, vcc
          """
    t += tr_bases_t(TRB, f'v_lshl_add_u32 v42, {V_G}, 3, v40',
                    f'v_and_b32 v43, 2, v40\n v_and_b32 v44, 1, {V_G}\n v_lshl_add_u32 v43, v44, 2, v43', L_WO)
    return lines(t)


def mask_items():
    t = f'''s_sub_u32 s13, {S_RB}, 1
            s_lshr_b32 s13, s13, 31
            s_lshl_b32 s13, s13, 6
            s_mov_b32 s12, 0xf149f2ca
            v_lshlrev_b32 v40, 2, {V_G}
            v_mov_b32 v42, s12
         '''
    for r in range(4):
        t += f'''v_add_u32 v41, {r}, v40
          v_sub_u32 v43, {V_C}, v41
          v_cmp_gt_u32 vcc, 8, v43
          v_cmp_ge_i32 s[14:15], -9, v43
          v_add_u32 v43, s13, v43
          v_cndmask_b32 v{MK + r}, v42, 0, vcc
          v_cndmask_b32 v{MK + 4 + r}, v42, 0, s[14:15]
          v_cmp_ge_i32 vcc, -9, v43
          v_cmp_gt_i32 s[14:15], 0, v43
          v_cmp_lt_u32 s[18:19], 7, v41
          v_cndmask_b32 v{MK + 12 + r}, v42, 0, vcc
          v_cndmask_b32 v{MK + 8 + r}, v42, 0, s[14:15]
          v_cndmask_b32 v{MK + 8 + r}, v{MK + 8 + r}, v42, s[18:19]
          '''
    return lines(t)


srds = [(40, 0, 2048 * 1024), (64, 64, 512 * 6144), (76, 56, 1024), (44, 8, 512 * 3072), (72, 88, WS_SIZE), (48, 16, 512 * 1024),
        (52, 32, 512 * 2752), (56, 40, 512 * 2752), (60, 48, 1376 * 1024), (68, 72, 2048 * 1024)]
MW, XN, XRAW = 16, 80, 160
e(f"""s_cmp_ge_u32 s2, 256
      s_cbranch_scc1 L_giveup
      {'s_memtime s[100:101]' if args.cyc else 's_memrealtime s[100:101]' if args.stamps else ''}""")
for (d, off, sz) in srds[:5]:
    e(f's_load_dwordx2 s[{d}:{d + 1}], s[0:1], {off}')
e(f"""v_lshrrev_b32 v2, 6, v0
      v_and_b32 v0, 63, v0
      v_readfirstlane_b32 {S_W}, v2
      s_lshr_b32 {S_J}, s2, 3
      s_and_b32 s3, s2, 7
      s_lshr_b32 s10, {S_J}, 3
      s_lshl_b32 {S_RB}, s3, 2
      s_add_u32 {S_RB}, {S_RB}, s10
      s_and_b32 {S_M}, {S_J}, 7
      s_lshl_b32 s12, {S_M}, 2
      s_add_u32 s12, s12, {S_W}
      s_mul_i32 s12, s12, 20
      s_lshl_b32 s13, {S_RB}, 9
      s_add_u32 s12, s12, s13
      s_addk_i32 s12, -128
      v_add_lshl_u32 v7, s12, {V_LANE}, 7
      v_cmp_gt_u32 vcc, 20, {V_LANE}
      v_bfrev_b32 v6, -2
      s_mov_b32 s34, 0x20000
      s_mov_b32 s42, {2048 * 1024}
      v_cndmask_b32 v14, v6, v7, vcc
      s_mov_b32 s43, s34
      s_getpc_b64 s[14:15]
      v_lshlrev_b32 {V_L16}, 4, {V_LANE}
      s_lshl_b32 s12, {S_J}, 2
      s_add_u32 s12, s12, {S_W}
      s_and_b32 s12, s12, 63
      s_min_u32 s12, s12, (L_codeend-{NAME}_kernel)/1024-1
      s_lshl_b32 s12, s12, 10
      s_and_b32 s14, s14, 0xffffff00
      v_add_u32 v4, s12, {V_L16}""")
e(f'global_load_dwordx4 a[244:247], v4, s[14:15]')
A.wait_lg()
A.t = 1100
e(f'buffer_load_dword {V_DUM}, v14, {SRD_X}, 0 offen', tag='xpf')
if args.stamps:
    e(f'v_mov_b32 {V_STAMP}, 0')
    e(f'v_writelane_b32 {V_STAMP}, s100, 0')
    stamp_names.append('entry'); nstamp[0] += 1
e(f's_load_dword s8, s[72:73], {WS_EPOCH}')
for (d, off, sz) in srds[5:]:
    e(f's_load_dwordx2 s[{d}:{d + 1}], s[0:1], {off}')
for (d, off, sz) in srds[1:4]:
    e(f"""s_mov_b32 s{d + 2}, {sz}
          s_mov_b32 s{d + 3}, s34""")
e(f"""s_and_b32 s10, {S_J}, 3
      s_lshr_b32 s12, {S_J}, 2
      s_lshl_b32 s13, s12, 1
      s_add_u32 s13, s13, s10
      s_add_u32 s13, s13, 7
      s_cmp_eq_u32 s10, 0
      s_cselect_b32 s12, s12, s13
      s_lshl_b32 s12, s12, 3
      s_add_u32 s3, s3, s12
      s_lshl_b32 s12, {S_W}, 3
      v_lshrrev_b32 v76, 3, {V_LANE}
      v_add_u32 v76, s12, v76
      v_and_b32 v77, 7, {V_LANE}
      v_lshlrev_b32 v75, 3, v76
      v_mul_u32_u24 v74, {4 * 6144}, v76
      v_lshl_add_u32 v74, v77, 4, v74
      s_and_b32 s13, s3, 3
      s_lshr_b32 s14, s3, 2
      s_mul_i32 s29, s13, {128 * 6144}
      s_lshl_b32 s30, s14, 7
      s_add_u32 s29, s29, s30
      s_lshl_b32 s33, s13, 8
      s_add_u32 s30, s29, 6144
      s_add_u32 s31, s29, {2 * 6144}
      s_add_u32 s32, s29, {3 * 6144}""")
COND_A = 's_cmp_eq_u32 s10, 0'
COND_B = 's_sub_u32 s12, s10, 1\n s_cmp_lt_u32 s12, 2'
mod_task_loads(MW, COND_A, 'mt')
e(f"""s_lshl_b32 s15, s2, 2
      s_add_u32 s15, s15, {S_W}
      s_mul_i32 s12, s15, 12
      v_add_lshl_u32 v7, s12, {V_LANE}, 7
      v_cmp_gt_u32 vcc, 12, {V_LANE}
      v_lshrrev_b32 v12, 2, {V_LANE}        ; c4   (x lane map: c4 = l/4, g4 = l%4)
      v_and_b32 v13, 3, {V_LANE}            ; g4
      v_cndmask_b32 v54, v6, v7, vcc
      s_lshl_b32 s12, {S_J}, 2
      s_add_u32 s12, s12, {S_W}
      s_lshl_b32 s12, s12, 2
      v_add_lshl_u32 v7, s12, {V_LANE}, 10
      v_cmp_gt_u32 vcc, 4, {V_LANE}
      s_nop 1
      v_cndmask_b32 v55, v6, v7, vcc
      v_lshlrev_b32 v4, 11, v12
      v_lshl_add_u32 v4, v13, 4, v4
      s_lshl_b32 s16, {S_RB}, 16
      s_lshl_b32 s17, {S_W}, 8
      s_add_u32 s16, s16, s17
      s_add_u32 s18, s16, 32768""")


def xload(T, j, bg=False):
    q = 5 * j + T
    if T < 4:
        l = f'buffer_load_dwordx4 {vr(XN + 8 * q + 4)}, v4, {SRD_X}, {"s16" if T < 2 else "s18"} offen offset:{(T % 2) * 1024 + j * 64}'
    else:
        l = f'buffer_load_dwordx4 {vr(XN + 8 * q + 4)}, v5, {SRD_X}, s17 offen offset:{j * 64}'
    if bg:
        A.bg_add([l], f'x{T}')
    else:
        e(l, tag=f'x{T}')


def issue_gq(pos):
    if pos == args.pg:
        e(f'buffer_load_dword {V_DUM}, v54, {SRD_WQKV}, 0 offen', tag='gq')
        for k in range(3):
            c3(SRD_WQKV, k)
        A.bg_flush()


issue_gq(0)
e(f"""      v_bfe_u32 v5, {V_LANE}, 4, 1
      s_and_b32 s12, {S_W}, 1
      s_lshl_b32 s12, s12, 1
      v_add_u32 v5, s12, v5
      v_lshlrev_b32 v5, 1, v5
      v_xor_b32 v5, v77, v5
      v_lshlrev_b32 v5, 4, v5
      v_mul_u32_u24 v8, 3072, v76
      v_add_u32 v8, v8, v5
      v_lshl_add_u32 v{V_WOD}, v76, 10, v5
      s_mul_i32 {S_W3K}, {S_W}, 3072
      s_lshl_b32 {S_M128}, {S_M}, 7
""")
dma_wqkv(0)
A.bg_flush(args.w0)
extra = [A.bg.pop(0) for _ in range(args.w1)]
W0REST = list(A.bg)
A.bg = []
if extra:
    ln = A.newlabel('L_e')
    sv = (list(A.vm), A.t, A.t_vm, list(A.done), list(A.log))
    e(COND_A + f'\n s_cbranch_scc1 {ln}')
    for l_, t_ in extra:
        for l in l_:
            e(l, tag=t_)
    A.label(ln)
    A.vm, A.t, A.t_vm, A.done, A.log = sv
for j in range(args.x0):
    xload(0, j)
fine('start')

for (d, off, sz) in srds[4:]:
    e(f"""s_mov_b32 s{d + 2}, {sz}
          s_mov_b32 s{d + 3}, s34""")
e(f"""s_mul_i32 s12, s15, 3
      v_add_lshl_u32 v7, s12, {V_LANE}, 7
      v_cmp_gt_u32 vcc, 3, {V_LANE}
      v_lshrrev_b32 {V_G}, 4, {V_LANE}
      v_and_b32 {V_C}, 15, {V_LANE}
      v_cndmask_b32 v11, v6, v7, vcc
      v_lshlrev_b32 v5, 1, v12
      v_cmp_lt_u32 vcc, 7, v12
      v_mov_b32 v6, -16
      v_mov_b32 v7, -31
      s_lshl_b32 s15, {S_RB}, 6
      v_cndmask_b32 v6, v6, v7, vcc
      v_add3_u32 v5, v5, v6, s15
      v_max_i32 v5, 0, v5
      v_lshlrev_b32 v5, 10, v5
      v_lshl_add_u32 v5, v13, 4, v5
      v_lshlrev_b32 v6, 1, {V_G}
      v_xor_b32 v6, v77, v6
      v_lshlrev_b32 v6, 4, v6
      v_lshl_add_u32 v{V_WDD}, v76, 10, v6
      s_lshl_b32 {S_W1K}, {S_W}, 10
      s_getreg_b32 {S_XCC}, hwreg(HW_REG_XCC_ID)
      s_and_b32 {S_XCC}, {S_XCC}, 15
      s_mov_b32 {S_ONES}, 0x3f803f80
      s_mov_b32 {S_HI}, 0xffff0000
      s_mov_b32 {S_SPIN}, 0x40000
      s_lshr_b32 {S_GRP}, {S_RB}, 1
      s_lshl_b32 s82, {S_GRP}, 20
      s_add_u32 {S_GRP}, s82, {WS_GRP}
      v_bfe_u32 v78, {V_LANE}, 2, 2          ; r4
      v_mul_u32_u24 v9, 3072, {V_G}
      v_lshl_add_u32 v9, v78, 7, v9
      v_and_b32 v78, 2, v78
      v_and_b32 v6, 1, {V_G}
      v_lshl_add_u32 v78, v6, 2, v78         ; 2f
      v_lshrrev_b32 v6, 1, v13               ; cc/2
      s_lshl_b32 s12, {S_W}, 1
      v_add_u32 v6, s12, v6
      v_xor_b32 v6, v6, v78
      v_lshl_add_u32 v9, v6, 4, v9
      v_and_b32 v79, 1, v13
      v_lshl_add_u32 v9, v79, 3, v9
      v_add_u32 v9, {L_B[0]}, v9""")
for p in range(4):
    e(f's_mov_b32 s{24 + p}, {WS_MODP + p * 12288}')
issue_gq(1)
e(f's_mov_b32 s12, {(1 << 32) // 12 + 1}')
for i in range(3):
    e(f"""v_add_u32 v6, {64 * i}, {V_LANE}
          v_mul_hi_u32 v7, v6, s12
          v_mul_u32_u24 v78, 12, v7
          v_sub_u32 v6, v6, v78
          v_mul_u32_u24 v7, 2752, v7
          v_lshl_add_u32 v{V_P4D + i}, v6, 4, v7
          v_lshlrev_b32 v{44 + i}, 27, v6""")
e(f"""s_and_b32 s12, {S_RB}, 1
      s_lshl_b32 s12, s12, 3
      s_add_u32 s12, s12, {S_M}
      s_lshl_b32 {S_MM4}, s12, 2
      s_mul_i32 s12, s12, 43
      s_add_u32 s13, s12, 43
      s_lshr_b32 s12, s12, 4
      s_lshr_b32 s13, s13, 4
      s_sub_u32 {S_NU}, s13, s12
      s_lshl_b32 {S_U0}, s12, 1
      s_sub_u32 s13, 3, {S_NU}
      s_mul_i32 s13, s13, {0x40000000 * args.zero}
      v_and_or_b32 v{V_P4D}, v44, s13, v{V_P4D}
      v_and_or_b32 v{V_P4D + 1}, v45, s13, v{V_P4D + 1}
      v_and_or_b32 v{V_P4D + 2}, v46, s13, v{V_P4D + 2}
      s_lshr_b32 s13, {S_W}, 1
      s_mul_i32 s14, s13, {16 * 2752}
      s_lshl_b32 {S_COL}, s12, 6
      s_add_u32 {S_COL}, {S_COL}, s14
      s_mul_i32 s13, s13, 3072
      s_and_b32 s14, {S_W}, 1
      s_mul_i32 s14, s14, {MAT1}
      s_add_u32 s13, s13, s14
      s_add_u32 {S_GUM}, s13, {L_S}
      s_lshl_b32 s13, {S_W}, 12
      s_add_u32 {S_H2M}, s13, {L_H2}
      v_and_b32 v78, 1, {V_G}
      v_lshrrev_b32 v79, 1, {V_G}
      v_lshlrev_b32 v6, 14, v78
      v_lshl_add_u32 v6, v79, 8, v6
      v_lshl_add_u32 v{V_OST}, {V_C}, 4, v6
      v_lshlrev_b32 v6, 11, {V_C}
      v_lshl_add_u32 v6, v78, 5, v6
      v_lshl_add_u32 v{V_XO}, v79, 4, v6
      s_lshr_b32 s12, {S_W}, 1
      s_lshl_b32 s12, s12, 15
      s_and_b32 s13, {S_W}, 1
      s_lshl_b32 s13, s13, 10
      s_add_u32 s12, s12, s13
      s_lshl_b32 s13, {S_RB}, 16
      s_add_u32 s12, s12, s13
      s_add_u32 {S_XOFF}, s12, {S_M128}
      s_and_b32 s15, {S_RB}, 1
      s_lshl_b32 s14, s15, 16
      s_add_u32 s14, s14, s82
      s_lshl_b32 s12, {S_M}, 11
      s_lshl_b32 s13, {S_W}, 9
      s_add_u32 s12, s12, s13
      s_add_u32 s12, s12, s14
      s_add_u32 {S_OST}, s12, {WS_O}
      s_lshl_b32 s12, {S_W}, 14
      s_add_u32 s12, s12, s14
      s_add_u32 {S_OLD}, s12, {WS_O}
      s_lshl_b32 s13, {S_M}, 11
      s_add_u32 s12, s12, s13
      s_add_u32 {S_X1ST}, s12, {WS_X1}
      s_lshr_b32 s13, {S_W}, 1
      s_lshl_b32 s13, s13, 10
      s_add_u32 s12, s82, s13
      s_and_b32 s13, {S_W}, 1
      s_lshl_b32 s13, s13, 16
      s_add_u32 s12, s12, s13
      s_add_u32 {S_X1LD}, s12, {WS_X1}
      s_lshl_b32 s12, s15, 13
      s_lshl_b32 s13, {S_W}, 11
      s_add_u32 s12, s12, s13
      s_add_u32 s12, s12, s82
      s_add_u32 {S_STLD}, s12, {WS_STATS}
      s_lshl_b32 s13, {S_M}, 8
      s_add_u32 {S_STST}, {S_STLD}, s13
      s_and_b32 s12, {S_W}, 1
      s_xor_b32 s13, s12, 1
      s_mul_i32 s12, s12, {HH_PITCH}
      s_mul_i32 s13, s13, {HH_PITCH}
      s_add_u32 s14, {S_U0}, {S_W}
      s_lshl_b32 s14, s14, 10
      s_add_u32 s14, s14, s82
      s_add_u32 s14, s14, {WS_HH}
      s_add_u32 {S_HST}, s12, s14
      s_add_u32 {S_HST2}, s13, s14
      s_mul_i32 s12, s15, {HH_PITCH}
      s_add_u32 s12, s12, s82
      s_add_u32 s12, s12, {WS_HH}
      s_lshr_b32 s13, {S_W}, 1
      s_mul_i32 s13, s13, {86 * 1024}
      s_add_u32 s12, s12, s13
      s_and_b32 s13, {S_W}, 1
      s_lshl_b32 s13, s13, 8
      s_add_u32 {S_HLD}, s12, s13
      s_add_u32 s12, {S_W1K}, {L_MODV}
      v_lshl_add_u32 v{V_GB}, {V_G}, 4, s12
      v_lshlrev_b32 v77, 2, {V_LANE}
      v_and_b32 v78, 31, {V_LANE}
      v_lshlrev_b32 v78, 4, v78
      v_lshrrev_b32 v79, 5, {V_LANE}
      v_lshl_add_u32 v78, v79, 11, v78
      s_lshl_b32 s12, {S_W}, 9
      v_add_u32 v78, s12, v78
      v_cvt_f32_u32 v79, v79
      s_add_u32 s12, {S_W1K}, {L_MODV}
      v_add_u32 v76, s12, {V_L16}
      v_lshlrev_b32 v6, 1, v13
      v_xor_b32 v6, v6, v12
      v_lshl_add_u32 v6, v13, 4, v6
      v_lshlrev_b32 v6, 4, v6
      s_mul_i32 s13, {S_W}, 5120
      s_add_u32 s13, s13, {L_HRING}
      v_lshlrev_b32 v12, 5, v13
      v_add_u32 v12, s12, v12
      v_add_u32 v13, s13, v6
      v_lshlrev_b32 v6, 1, {V_G}
      v_xor_b32 v6, v6, {V_C}
      v_lshl_add_u32 v6, {V_G}, 4, v6
      v_lshlrev_b32 v6, 4, v6
      v_add_u32 v14, {L_HRING}, v6""")
issue_gq(2)
MKT = MK
MK = 240
run(mask_items())
run([(k, t.replace('v80', 'v64').replace('v81', 'v65').replace('v82', 'v66').replace('v83', 'v67').replace('v84', 'v68').replace('v85', 'v69').replace('v86', 'v70').replace('v87', 'v71')) for k, t in late_items()])
e(f'v_add_u32 v40, {L_MASK}, {V_L16}')
for i in range(4):
    e(f'ds_write_b128 v40, {vr(MK + 4 * i)} offset:{i * 1024}')
e(f'ds_write_b128 {V_L16}, v[68:71] offset:{L_TRB}')
for i in range(4):
    e(f'v_accvgpr_write_b32 a{250 + i}, v{64 + i}')
e('s_add_u32 s18, s16, 32768')
MK = MKT
A.wait_lg()
e(f"""s_bitcmp1_b32 {S_W}, 0
      s_cselect_b32 s92, s56, s52
      s_cselect_b32 s93, s57, s53
      s_mov_b32 s94, {512 * 2752}
      s_mov_b32 s95, s34
      s_mul_i32 {S_TAG}, {S_TAG}, 1664525
      s_add_u32 {S_TAG}, {S_TAG}, 1013904223""")
lx = A.newlabel('L_x')
e(f'''s_cmp_lg_u32 {S_W}, 1
      s_cbranch_scc1 {lx}
      s_and_b32 s12, {S_TAG}, 0xfffffff0
      s_or_b32 s12, s12, {S_XCC}
      s_add_u32 s13, {S_MM4}, {S_GRP}
      s_mov_b64 exec, 1
      v_mov_b32 v6, s12''')
e(f'buffer_store_dword v6, off, {SRD_WS}, s13 sc1', optional=True)
e('s_mov_b64 exec, -1')
A.label(lx)
issue_gq(3)
fine('setup')
lm, lm2, lj = A.newlabel('L_nomod'), A.newlabel('L_nomod'), A.newlabel('L_mj')
e(COND_A + f'\n s_cbranch_scc1 {lm}')
save = (list(A.vm), list(A.done), A.t, A.t_vm, list(A.log))
XL = [(0, j) for j in range(args.x0, 4)] + [(T, j) for T in (1, 2) for j in range(4)]
for T, j in XL:
    xload(T, j)
e(f's_branch {lj}')
A.vm, A.done, A.t, A.t_vm, A.log = save
A.label(lm)
save = list(A.vm)
A.wait_vm('mt')
A.vm = save
run(interleave(mod_part1(MW, 36, 6), [('f', lambda T=T, j=j: xload(T, j)) for T, j in XL], 0, 96, pred=lambda t: True))
for l_, t_ in extra:
    for l in l_:
        e(l, tag=t_, optional=True)
A.wait_lg()
e('s_barrier')
e('v_mov_b32 v52, v4\n v_mov_b32 v53, v5')
mod_part2(MW, lm2, 0)
A.label(lm2)
e('v_mov_b32 v4, v52\n v_mov_b32 v5, v53')
A.label(lj)
A.lg = []
stamp('modpub')
e(COND_B + '\n s_cselect_b32 s12, 0, 0x40000000\n v_or_b32 v74, s12, v74\n v_or_b32 v75, s12, v75')
e('v_accvgpr_write_b32 a254, v74\n v_accvgpr_write_b32 a255, v75')
MTB = [([f'buffer_load_dwordx2 v[112:113], v87, {SRD_C}, s33 offen'], 'mtb')] + [([f'buffer_load_dwordx4 {vr(96 + 4 * i)}, v86, {SRD_WMOD}, s{29 + i} offen'], 'mtb') for i in range(4)]
for T in range(3, 5):
    for j in range(4):
        xload(T, j, bg=True)
for k in range(args.pfx):
    for p in PIECES.pop(0):
        gpf(*p)
A.bg += W0REST
for k in range(args.pfy):
    for p in PIECES.pop(0):
        gpf(*p)
dma_wqkv(1)
for k in range(args.pfz):
    for p in PIECES.pop(0):
        gpf(*p)
dma_wqkv(2)
pieces(0)
A.bg_gap = args.gap0
A.bg_on = True

RS = 64


def unpack(q):
    for d in range(4):
        src = XN + 8 * q + 4 + d
        lo = XN + 8 * q + 2 * d
        e(f'''v_lshlrev_b32 v{lo}, 16, v{src}
              v_and_b32 v{lo + 1}, {S_HI}, v{src}''')


def scale(q):
    p = vr(RS + 2 * (q % 5), 2)
    for d in range(4):
        lo = XN + 8 * q + 2 * d
        e(f'v_pk_fma_f32 {vr(lo, 2)}, {vr(lo, 2)}, {p}, {p} op_sel:[0,0,1] op_sel_hi:[1,0,1]')


ST = 16
for T in range(5):
    A.wait_vm(f'x{T}')
    if args.s1: stamp(f'x{T}')
    for j in range(4):
        for d in range(4):
            r = XN + 8 * (5 * j + T) + 4 + d
            first = (j == 0 and d == 0)
            e(f'v_dot2_f32_bf16 v{ST + 2 * T}, v{r}, {S_ONES}, {"0" if first else f"v{ST + 2 * T}"}')
            e(f'v_dot2_f32_bf16 v{ST + 2 * T + 1}, v{r}, v{r}, {"0" if first else f"v{ST + 2 * T + 1}"}')
    if T < 4:
        for j in range(4):
            unpack(5 * j + T)
e(f'''s_lshl_b32 s12, {S_W}, 3
      v_lshrrev_b32 v5, 2, {V_LANE}
      v_lshlrev_b32 v5, 5, v5
      v_add_u32 v4, s12, v5''')
for qp in ('[1,0,3,2]', '[2,3,0,1]'):
    for i in range(10):
        e(f'v_add_f32_dpp v{ST + i}, v{ST + i}, v{ST + i} quad_perm:{qp} row_mask:0xf bank_mask:0xf')
with nobg():
    e('''s_mov_b32 s12, 0x11111111
         s_mov_b32 exec_lo, s12
         s_mov_b32 exec_hi, s12''')
    for T in range(5):
        e(f'ds_write_b64 v4, {vr(ST + 2 * T, 2)} offset:{L_STATS + T * 512}')
    e('s_mov_b64 exec, -1')
for j in range(2):
    unpack(5 * j + 4)
A.wait_lg()
e('s_barrier')
fine('b1')
xcc_ld = f'buffer_load_dword v7, v77, {SRD_WS}, {S_GRP} offen sc1'
k0 = max([i + 1 for i, it in enumerate(A.bg) if it[1] == 'wq0'] + [0])
A.bg[k0:k0] = [([xcc_ld], 'mx')] + [([l], 'm1') for l in mod_loads('v78', 240)]
for T in range(5):
    for h in range(2):
        e(f'ds_read_b128 {vr(16 + 8 * T + 4 * h)}, v5 offset:{L_STATS + T * 512 + h * 16}', tag='st')
for j in range(2, 4):
    unpack(5 * j + 4)
A.wait_lg('st')
e('s_mov_b32 s12, 0x3b000000')
for T in range(5):
    b = 16 + 8 * T
    e(f'''v_pk_add_f32 {vr(b, 2)}, {vr(b, 2)}, {vr(b + 2, 2)}
          v_pk_add_f32 {vr(b + 4, 2)}, {vr(b + 4, 2)}, {vr(b + 6, 2)}
          v_pk_add_f32 {vr(b, 2)}, {vr(b, 2)}, {vr(b + 4, 2)}
          v_pk_mul_f32 {vr(b, 2)}, {vr(b, 2)}, s[12:13] op_sel_hi:[1,0]
          v_fma_f32 v{b + 1}, -v{b}, v{b}, v{b + 1}
          v_max_f32 v{b + 1}, 0, v{b + 1}
          v_add_f32 v{b + 1}, 0x3727c5ac, v{b + 1}
          v_rsq_f32 v{RS + 2 * T}, v{b + 1}''')
for T in range(5):
    e(f'v_mul_f32 v{RS + 2 * T + 1}, -v{16 + 8 * T}, v{RS + 2 * T}')
for q in range(10):
    scale(q)
A.wait_vm('wq0')
e('s_barrier')
fine('b2')
run(tr_wqkv(0))
for q in range(10, 20):
    scale(q)
stamp('prenorm')
mod_check('v78', 240, 'm1', 'v76', 'v79')
checked('m1', [xcc_ld], lambda: e(f'''v_xor_b32 v6, {S_TAG}, v7
                                      v_lshrrev_b32 v6, 4, v6
                                      v_cmp_ne_u32 vcc, 0, v6
                                      s_and_b64 vcc, vcc, 0xffff'''))
with nobg():
    e(f'''v_and_b32 v5, 15, v7
          v_cmp_ne_u32 vcc, {S_XCC}, v5
          s_nop 1
          s_and_b64 vcc, vcc, 0xffff
          s_cmp_eq_u64 vcc, 0
          s_cselect_b32 {S_FAST}, {0 if args.slow else 1}, 0
          s_mul_i32 s12, {S_FAST}, {(WS_X1 - WS_O) * args.h2o}
          s_sub_u32 {S_X1ST}, {S_X1ST}, s12
          s_sub_u32 {S_X1LD}, {S_X1LD}, s12''')
stamp('mod')

CS = 64


def cs1_reads(j):
    it = []
    for h in range(2):
        it.append(('i', f'ds_read_b128 {vr(CS + 4 * h)}, v12 offset:{j * 128 + h * 16}', 'cs'))
        it.append(('i', f'ds_read_b128 {vr(CS + 8 + 4 * h)}, v12 offset:{512 + j * 128 + h * 16}', 'cs'))
    return it


def norm1_items(j, pk=False):
    it = [('wl', 'cs')]
    for T in range(5):
        b = XN + 8 * (5 * j + T)
        if pk:
            for i in range(0, 8, 2):
                it.append(('i', f'v_pk_fma_f32 {vr(b + i, 2)}, {vr(b + i, 2)}, {vr(CS + 8 + i, 2)}, {vr(CS + i, 2)}'))
        else:
            for i in range(8):
                it.append(('i', f'v_fma_f32 v{b + i}, v{b + i}, v{CS + 8 + i}, v{CS + i}'))
        for d in range(4):
            it.append(('i', f'v_cvt_pk_bf16_f32 v{b + d}, v{b + 2 * d}, v{b + 2 * d + 1}'))
        it.append(('i', f'ds_write_b128 v13, {vr(b)} offset:{(j % 2) * 20480 + T * 1024}', 'hw'))
    if j < 3:
        it += cs1_reads(j + 1)
    return it


def accQ(T): return 16 + 4 * T
def accK(T): return 32 + 4 * T
def accV(T): return 240 + 4 * T if T < 4 else 52


FR = 192


def rd1(j, pos):
    return [('i', f'ds_read_b128 {ar(FR + (pos % 2) * 20 + 4 * T)}, v14 offset:{(j % 2) * 20480 + (pos * 5 + T) * 1024}', f'f{pos}') for T in range(5)]


def mm1(j, pos):
    it = []
    wb = (j * 4 + pos) * 12
    first = (j == 0 and pos == 0)
    for T in range(5):
        f = ar(FR + (pos % 2) * 20 + 4 * T)
        if T < 4:
            it.append(('i', f'v_mfma_f32_16x16x32_bf16 {vr(accQ(T))}, {ar(wb)}, {f}, {"0" if first else vr(accQ(T))}'))
        it.append(('i', f'v_mfma_f32_16x16x32_bf16 {vr(accK(T))}, {ar(wb + 4)}, {f}, {"0" if first else vr(accK(T))}'))
        it.append(('i', f'v_mfma_f32_16x16x32_bf16 {vr(accV(T))}, {f}, {ar(wb + 8)}, {"0" if first else vr(accV(T))}'))
    return it


A.wait_lg()
run(cs1_reads(0))
e('s_barrier')
run(norm1_items(0, pk=True))
if not args.jit1:
    A.wait_vm('wq1')
A.wait_lg('hw')
e('s_barrier')
fine('c0')
e('v_accvgpr_read_b32 v81, a251')
e('v_accvgpr_read_b32 v86, a254\n v_accvgpr_read_b32 v87, a255')
C3[0] = 'v81'
k0 = max([i + 1 for i, it in enumerate(A.bg) if it[1] == 'wq2'] + [0])
A.bg[k0:k0] = MTB
c3(SRD_WO, 0)
A.bg_gap = args.gap1
run(rd1(0, 0))
for j in range(5):
    main = []
    if j > 0:
        main += interleave(mm1(j - 1, 3), rd1(j, 0) if j < 4 else [], 0, 5)
    if j == 4:
        run(main)
        break
    todo = {0: [] if args.jit1 else [1], 1: [1, 2] if args.jit1 else [2], 2: [], 3: [3]}[j]
    for pos in range(3):
        main += [('wl', [f'f{pos}', f'trq{j}_{pos}'])] + interleave(mm1(j, pos), rd1(j, pos + 1), 0, 5)
    for c in todo:
        tq = tr_wqkv(c)
        if c == j:
            run(tq[:1])
            main = interleave(main, tq[1:7], 0, 6)
            main = interleave(main, tq[7:], 6, 24)
        elif len(todo) > 1:
            main = interleave(main, tq, 26, 52)
        else:
            run(tq[:1])
            main = pack(main, tq[1:], 0, -1)
    if j < 3:
        fill = norm1_items(j + 1)
    else:
        fill = lines(f'v_add_u32 v4, {L_MASK}, {V_L16}') + [('i', f'ds_read_b128 {vr(MK + 4 * i)}, v4 offset:{i * 1024}') for i in range(4)]
        fill += [('i', f'ds_read_b128 {vr(TRB)}, {V_L16} offset:{L_TRB}')]
        fill += [('i', f'v_accvgpr_read_b32 v{80 + i}, a{250 + i}') for i in range(4)] + [('i', f'v_mov_b32 v{ONE + r}, {S_ONES}') for r in range(4)] + [('i', f'v_lshlrev_b32 v76, 2, {V_LANE}')]
    if j == 3:
        fill = [('wv', 'mtb')] + mod_part1(96, 200, 216, None, 112, True) + fill
    run(pack(main, fill, 0, -2))
    fine(f'e{j}')
    A.wait_vm(('wq2', 'none', 'wq3', 'none')[j])
    A.wait_lg()
    e('s_barrier')
    fine(f'c{j + 1}')
    if j == args.jit1:
        front(lambda: dma_wqkv(3))
    if j == 0:
        pieces(1)
    if j == 1:
        for ks in range(4, 16):
            dma_1k(SRD_WO, V_WOD, ks, L_WO + ks * 4096, 'wo')
        pieces(2)
        if args.ot:
            touch([], f'v{V_OST}', S_OST)
            touch([f's_add_u32 {S_BT}, {S_OST}, 32768'], f'v{V_OST}', S_BT)
        for p in range(2):
            A.bg_add([f'buffer_load_dwordx4 {vr(XRES + 4 * p)}, v{V_XO}, {SRD_X}, {S_XOFF} offen offset:{p * 64}'], 'xr')
    if j == 2:
        pieces(3)
    if j == 3:
        front(lambda: [dma_1k(SRD_WO, V_WOD, ks, L_WO + ks * 4096, 'wo') for ks in range(4)])
        A.bg_add([f'buffer_load_dword {V_DUM}, v76, {SRD_WS}, {S_STST} offen sc1'], 'stt')
        if args.otlb:
            A.bg_add([f'buffer_load_dword {V_DUM}, off, {SRD_OUT}, {S_XOFF}'], 'stt')
        pieces(4)
        gu_queue()
with nobg():
    lm = A.newlabel('L_nomod')
    save = (list(A.vm), list(A.lg), A.t, A.t_vm, list(A.done), list(A.log))
    e(COND_B + f'\n s_cbranch_scc0 {lm}')
    mod_part2(96, lm, 3)
    A.label(lm)
    A.vm, A.lg, A.t, A.t_vm, A.done, A.log = save[0] + [(None, True)], *save[1:]
stamp('qkv')

QP, KP, VP = 140, 148, 158
VPOS = {2: 0, 0: 1, 4: 2, 1: 3, 3: 4}
SS, MX, PP, OO, LL, OP = 188, 220, 16, 32, 228, 48
PREV = {0: 4, 1: 4, 2: 0, 3: 1}
PMASK = {0: MK + 8, 1: MK + 12, 2: MK + 4, 3: MK + 4}
VPAIR = {2: 0, 0: 1, 1: 2, 3: 3}
t = ''
for T in range(5):
    for d in range(2):
        if T < 4:
            t += f'v_cvt_pk_bf16_f32 v{QP + 2 * T + d}, v{accQ(T) + 2 * d}, v{accQ(T) + 2 * d + 1}\n'
        t += f'v_cvt_pk_bf16_f32 v{KP + 2 * T + d}, v{accK(T) + 2 * d}, v{accK(T) + 2 * d + 1}\n'
vc = [f'v_cvt_pk_bf16_f32 v{VP + 2 * VPOS[T] + d}, v{accV(T) + 2 * d}, v{accV(T) + 2 * d + 1}\n' for T in range(5) for d in range(2)]
t += vc.pop(0) + vc.pop(0)
for T in (2, 3, 0, 1):
    t += f'v_mfma_f32_16x16x16_bf16 {vr(SS + 8 * T)}, {vr(KP + 2 * T, 2)}, {vr(QP + 2 * T, 2)}, {vr(MK)}\n' + vc.pop(0)
    t += f'v_mfma_f32_16x16x16_bf16 {vr(SS + 8 * T + 4)}, {vr(KP + 2 * PREV[T], 2)}, {vr(QP + 2 * T, 2)}, {vr(PMASK[T])}\n' + vc.pop(0)
t += 's_mov_b32 s12, 0x3eb8aa3b\n'
for T in (2, 3, 0, 1):
    s = SS + 8 * T
    t += f'''v_max3_f32 v{MX + T}, v{s}, v{s + 1}, v{s + 2}
          v_max3_f32 v{MX + 4 + T}, v{s + 3}, v{s + 4}, v{s + 5}
          v_max3_f32 v{MX + T}, v{MX + T}, v{s + 6}, v{s + 7}
          v_max_f32 v{MX + T}, v{MX + T}, v{MX + 4 + T}
          v_mov_b32 v{MX + 4 + T}, v{MX + T}
          '''
for k, sw in enumerate(('v_permlane32_swap_b32', 'v_permlane16_swap_b32')):
    for T in (2, 3, 0, 1):
        t += f'{sw} v{MX + T}, v{MX + 4 + T}\n'
    for T in (2, 3, 0, 1):
        t += f'v_max_f32 v{MX + T}, v{MX + T}, v{MX + 4 + T}\n'
    if k == 0:
        for T in (2, 3, 0, 1):
            t += f'v_mov_b32 v{MX + 4 + T}, v{MX + T}\n'
for T in range(4):
    t += f'v_mul_f32 v{MX + T}, s12, v{MX + T}\n'


def fin(T):
    x = f'v_rcp_f32 v{LL + 4 * T}, v{LL + 4 * T}\n'
    p = vr(LL + 4 * T, 2)
    y = ''
    for i in (0, 2):
        y += f'v_pk_mul_f32 {vr(OO + 4 * T + i, 2)}, {vr(OO + 4 * T + i, 2)}, {p} op_sel_hi:[1,0]\n'
    for d in range(2):
        y += f'v_cvt_pk_bf16_f32 v{OP + 2 * T + d}, v{OO + 4 * T + 2 * d}, v{OO + 4 * T + 2 * d + 1}\n'
    return x, y


for T in range(4):
    s = SS + 8 * T
    for i in range(8):
        t += f'v_fma_f32 v{s + i}, v{s + i}, s12, -v{MX + T}\n'
    for i in range(8):
        t += f'v_exp_f32 v{s + i}, v{s + i}\n'
    if T > 0:
        t += fin(T - 1)[0]
    curfirst = T in (0, 2)
    for d in range(2):
        t += f'v_cvt_pk_bf16_f32 v{PP + 4 * T + (0 if curfirst else 2) + d}, v{s + 2 * d}, v{s + 2 * d + 1}\n'
        t += f'v_cvt_pk_bf16_f32 v{PP + 4 * T + (2 if curfirst else 0) + d}, v{s + 4 + 2 * d}, v{s + 4 + 2 * d + 1}\n'
    if T > 0:
        t += fin(T - 1)[1]
    t += f'v_mfma_f32_16x16x32_bf16 {vr(LL + 4 * T)}, {vr(ONE)}, {vr(PP + 4 * T)}, 0\n'
    t += f'v_mfma_f32_16x16x32_bf16 {vr(OO + 4 * T)}, {vr(VP + 2 * VPAIR[T])}, {vr(PP + 4 * T)}, 0\n'


def wo_reg(ks, ct, hf=None):
    if 4 <= ks < 14:
        b, f = 96 + (ks - 4) * 16 + ct * 4, ar
    else:
        b, f = 160 + (ks if ks < 4 else ks - 10) * 16 + ct * 4, vr
    return f(b) if hf is None else f(b + 2 * hf, 2)


def tr_wo(ks):
    return [('i', f'ds_read_b64_tr_b16 {wo_reg(ks, ct, hf)}, v{TRB + ct} offset:{ks * 4096 + hf * 512}', f'trw{ks}')
            for ct in range(4) for hf in range(2)]


tl = lines(t)
A.bg_gap = args.gapa
run(tl[:args.acut])
A.bg_flush(upto=['wo', 'xr', 'tch'])
A.bg_on = False
run(tl[args.acut:])
for d in range(2):
    e(f'v_permlane16_swap_b32 v{OP + d}, v{OP + 2 + d}')
e(f's_add_u32 s16, {S_OST}, 32768')
stores([f'buffer_store_dwordx4 {vr(OP)}, v{V_OST}, {SRD_WS}, {S_OST} offen'], 'ost', plain=args.ot)
e(fin(3)[0] + fin(3)[1])
for d in range(2):
    e(f'v_permlane16_swap_b32 v{OP + 4 + d}, v{OP + 6 + d}')
stores([f'buffer_store_dwordx4 {vr(OP + 4)}, v{V_OST}, {SRD_WS}, s16 offen'], 'ost', plain=args.ot)
fine('ost')
if args.stop1:
    stamp('end')
    e(f'''s_waitcnt vmcnt(0)
          s_lshl_b32 s12, s2, 2
          s_add_u32 s12, s12, {S_W}
          s_lshl_b32 s12, s12, 8
          s_add_u32 s12, s12, {WS_STAMP}
          v_lshlrev_b32 v4, 2, {V_LANE}
          buffer_store_dword {V_STAMP}, v4, {SRD_WS}, s12 offen
          s_endpgm''')
    args.stamps = False
    keep_names = list(stamp_names)
A.bg_flush(args.b1)
A.wait_vm('xr')
for p in range(2):
    for d in range(2):
        e(f'v_permlane16_swap_b32 v{XRES + 4 * p + d}, v{XRES + 4 * p + 2 + d}')
e(f'''s_add_u32 s17, {S_OLD}, 4096
      s_add_u32 s18, {S_OLD}, 8192
      s_add_u32 s19, {S_OLD}, 12288
      v_bfe_u32 v16, {V_LANE}, 2, 2
      v_lshrrev_b32 v17, 5, {V_LANE}
      v_lshl_add_u32 v16, v17, 2, v16
      v_mul_u32_u24 v16, 192, v16
      v_and_b32 v18, 1, {V_G}
      v_mul_u32_u24 v19, {MAT1}, v18
      v_and_b32 v4, 3, {V_LANE}
      v_lshlrev_b32 v4, 3, v4
      v_add3_u32 v16, v16, v19, v4
      s_lshl_b32 s12, {S_W}, 5
      s_add_u32 s12, s12, {L_S}
      s_lshr_b32 s13, {S_W}, 1
      s_lshl_b32 s13, s13, 5
      s_add_u32 s13, s13, {L_S + 128}
      v_add_u32 v20, s12, v16
      v_add_u32 v21, s13, v16
      v_add_u32 v22, {3 * BLK}, v20
      v_add_u32 v23, {3 * BLK}, v21
      v_lshlrev_b32 v18, 10, v18
      v_lshl_add_u32 v18, v17, 8, v18
      v_lshl_add_u32 v18, {V_C}, 4, v18
      s_and_b32 s12, {S_W}, 1
      s_lshl_b32 s12, s12, 12
      s_xor_b32 s13, s12, 4096
      s_add_u32 s12, s12, {L_H2}
      s_add_u32 s13, s13, {L_H2}
      v_add_u32 v13, s12, v18
      v_add_u32 v14, s13, v18                   ; slots 2,3''')
OA, GA, X1A, X1P = 96, 32, 64, 24
publish_flag(64, 'ost')
A.bg_flush(args.b1d)
e(poll_ld(64), tag='poll')
for l in mod_loads('v80', 64):
    e(l, tag='m3')
stamp('opub')
for ks in range(4, 12):
    run(tr_wo(ks))
poll_check(64)
stamp('owait')


KORD = list(range(4, 16)) + [0, 1, 2, 3]
rest = list(A.bg)
gu_pre(gu_done())
A.bg = [([f'buffer_load_dwordx4 {vr(OA + 4 * n)}, {V_L16}, {SRD_WS}, {(S_OLD, "s17", "s18", "s19")[ks // 4]} offen offset:{(ks % 4) * 1024} sc1'], f'o{n}') for n, ks in enumerate(KORD)]
run(interleave([x for ks in (12, 13, 14, 15, 0, 1, 2, 3) for x in tr_wo(ks)], [('f', lambda: A.bg_flush(1))] * 12, pred=lambda t: True))
mod_check('v80', 64, 'm3', 'v82', 'v83')
for ct in range(4):
    e(f'ds_read_b128 {vr(GA + 4 * ct)}, v{V_GB} offset:{ct * 64}', tag='ga')
e('s_barrier')
gu_post(False)
mv = movers(6)
pieces(5)
A.bg += rest[:args.b1c]
rest = rest[args.b1c:]
for n, ks in enumerate(KORD):
    A.wait_vm(f'o{n}')
    A.wait_lg(f'trw{ks}')
    for ct in range(4):
        e(f'v_mfma_f32_16x16x32_bf16 {vr(X1A + 4 * ct)}, {wo_reg(ks, ct)}, {vr(OA + 4 * n)}, {"0" if n == 0 else vr(X1A + 4 * ct)}')
        if ct == 0 and A.bg and (A.bg[0][1].startswith(('o', 'm')) or A.room()):
            A.bg_flush(1)
        if n >= 4 and mv:
            run([mv.pop(0)])
    if n == 12:
        XF = OA + 16
        for i in range(8):
            e(f'''v_lshlrev_b32 v{XF + 2 * i}, 16, v{XRES + i}
                  v_and_b32 v{XF + 2 * i + 1}, {S_HI}, v{XRES + i}''')
run(mv)
A.bg += rest
gu_pre(gu_done())
A.wait_lg()
e('s_barrier')
gu_post()
fine('omm')
for b in range(0, 16, 2):
    e(f'v_pk_fma_f32 {vr(X1A + b, 2)}, {vr(X1A + b, 2)}, {vr(GA + b, 2)}, {vr(XF + b, 2)}')
for i in range(8):
    e(f'v_cvt_pk_bf16_f32 v{X1P + i}, v{X1A + 2 * i}, v{X1A + 2 * i + 1}')
for i in range(8):
    e(f'v_dot2_f32_bf16 v48, v{X1P + i}, {S_ONES}, {"0" if i == 0 else "v48"}')
    e(f'v_dot2_f32_bf16 v49, v{X1P + i}, v{X1P + i}, {"0" if i == 0 else "v49"}')


def rowsum2(a, b):
    e(f'''v_permlane32_swap_b32 v{a}, v{b}
          v_add_f32 v{a}, v{a}, v{b}
          v_mov_b32 v{b}, v{a}
          v_permlane16_swap_b32 v{a}, v{b}
          v_add_f32 v{a}, v{a}, v{b}
          v_mov_b32 v{b}, v{a}
          v_permlane32_swap_b32 v{a}, v{b}''')


e(f'v_mov_b32 v50, {S_TAG}\n v_mov_b32 v51, {S_TAG}')
rowsum2(48, 49)
e('s_mov_b64 exec, 0xffff')
stores([f'buffer_store_dwordx4 v[48:51], {V_L16}, {SRD_WS}, {S_STST} offen'], 'sst', plain=True)
e('s_mov_b64 exec, -1')
fine('sst')
A.bg_flush(args.b2a)
SPT = 144
for i in range(8):
    e(f'''v_lshlrev_b32 v{X1A + 2 * i}, 16, v{X1P + i}
          v_and_b32 v{X1A + 2 * i + 1}, {S_HI}, v{X1P + i}''')
SB, CB, GB = 112, 128, 32
for ct in range(4):
    e(f'ds_read_b128 {vr(SB + 4 * ct)}, v{V_GB} offset:{256 + ct * 64}', tag='ga')
    e(f'ds_read_b128 {vr(CB + 4 * ct)}, v{V_GB} offset:{512 + ct * 64}', tag='ga')
    e(f'ds_read_b128 {vr(GB + 4 * ct)}, v{V_GB} offset:{768 + ct * 64}', tag='ga')
run(movers())
for l in st_loads(SPT):
    e(l, tag='st')
A.bg_flush(args.b2)
checked('st', st_loads(SPT), lambda: e(f'''v_cmp_ne_u32 vcc, {S_TAG}, v{SPT + 2}
                                          v_cmp_ne_u32 s[12:13], {S_TAG}, v{SPT + 6}
                                          s_or_b64 vcc, vcc, s[12:13]'''))
fine('stw')
e(f'v_pk_add_f32 {vr(SPT, 2)}, {vr(SPT, 2)}, {vr(SPT + 4, 2)}')
rowsum2(SPT, SPT + 1)
e(f'''s_mov_b32 s12, 0x3b000000
      v_pk_mul_f32 {vr(SPT, 2)}, {vr(SPT, 2)}, s[12:13] op_sel_hi:[1,0]
      v_fma_f32 v{SPT + 1}, -v{SPT}, v{SPT}, v{SPT + 1}
      v_max_f32 v{SPT + 1}, 0, v{SPT + 1}
      v_add_f32 v{SPT + 1}, 0x3727c5ac, v{SPT + 1}
      v_rsq_f32 v{SPT + 2}, v{SPT + 1}
      v_mul_f32 v{SPT + 3}, -v{SPT}, v{SPT + 2}''')
A.wait_lg()
p = vr(SPT + 2, 2)
H2P = 96
for half in range(2):
    for b in range(8 * half, 8 * half + 8, 2):
        e(f'v_pk_fma_f32 {vr(X1A + b, 2)}, {vr(X1A + b, 2)}, {p}, {p} op_sel:[0,0,1] op_sel_hi:[1,0,1]')
    for b in range(8 * half, 8 * half + 8, 2):
        e(f'v_pk_fma_f32 {vr(X1A + b, 2)}, {vr(X1A + b, 2)}, {vr(CB + b, 2)}, {vr(SB + b, 2)}')
    for i in range(4 * half, 4 * half + 4):
        e(f'v_cvt_pk_bf16_f32 v{H2P + i}, v{X1A + 2 * i}, v{X1A + 2 * i + 1}')
    stores([f'buffer_store_dwordx4 {vr(H2P + 4 * half)}, {V_L16}, {SRD_WS}, {S_X1ST} offen offset:{half * 1024}'], 'xst', plain=args.h2o)
A.bg_flush(args.b2b)
publish_flag(128, 'xst')
GU.pend = gu_done()
gu_post(True)
e(poll_ld(128), tag='poll')
A.bg_flush(args.b2c)
run(movers())
stamp('x1pub')

le, lep, lok = A.newlabel('L_ep'), A.newlabel('L_epp'), A.newlabel('L_eok')
save = (list(A.vm), list(A.done), A.t, A.t_vm, list(A.log))
e(f'''s_xor_b32 s12, {S_W}, 3
      s_or_b32 s12, s2, s12
      s_cmp_lg_u32 s12, 0
      s_cbranch_scc1 {le}
      v_lshrrev_b32 v4, 2, {V_LANE}
      v_lshlrev_b32 v4, 20, v4
      v_and_b32 v5, 3, {V_LANE}
      v_lshl_add_u32 v4, v5, 4, v4
      s_mov_b32 s12, {WS_GRP}''')
A.label(lep)
e(f'buffer_load_dwordx4 v[200:203], v4, {SRD_WS}, s12 offen sc1')
A.wait_vm()
for i in range(4):
    e(f'v_xor_b32 v{200 + i}, {S_TAG}, v{200 + i}')
e(f'''v_or3_b32 v5, v200, v201, v202
      v_or_b32 v5, v5, v203
      v_lshrrev_b32 v5, 4, v5
      v_cmp_ne_u32 vcc, 0, v5
      s_cbranch_vccz {lok}''')
spin_fail(lep)
A.label(lok)
e(f'''v_mov_b32 v5, {S_TAG}
      s_mov_b64 exec, 1''')
e(f's_mov_b32 s12, {WS_EPOCH}')
e(f'buffer_store_dword v5, off, {SRD_WS}, s12 sc1')
e('s_mov_b64 exec, -1')
A.label(le)
A.vm, A.done, A.t, A.t_vm, A.log = save
A.vm += [(None, True)]
e('v_mov_b32 v12, v81')
C3[0] = 'v12'
poll_check(128)
stamp('x1wait')


def dma_h2(q):
    for tt in range(4):
        A.bg_add([f's_add_u32 m0, {S_H2M}, {(q % 4) * 16384 + tt * 1024}', f's_add_u32 {S_BT}, {S_X1LD}, {tt * 16384 + q * 2048}',
                  f'buffer_load_dwordx4 {V_L16}, {SRD_WS}, {S_BT} offen sc1 lds'], f'y{q}')


front(lambda: [dma_h2(q) for q in range(args.y0)])
A.bg_flush(4 * args.y0)
rest = list(A.bg)
A.bg = []
for q in range(args.y0, 4):
    A.bg += rest[:args.b2d]
    rest = rest[args.b2d:]
    dma_h2(q)
A.bg += rest
A.bg_gap = args.gap4
A.bg_on = True
ACC4, FB = 64, 160


def rd4(q, st):
    pos, par = st // 2, st % 2
    return [('i', f'ds_read_b128 {vr(FB + 16 * (st % 2) + 4 * i)}, v{13 + i // 2} offset:{(q % 4) * 16384 + pos * 8192 + (i % 2) * 2048 + par * 512}', f'g{st}') for i in range(4)]


def mm4(q, st):
    first = (q == 0 and st == 0)
    wb = 16 * (2 * q + st // 2) + 8 * (st % 2)
    mm = []
    for k in range(6):
        acc = vr(ACC4 + 16 * k, 16)
        mm.append(('i', f'v_mfma_f32_32x32x16_bf16 {acc}, {ar(wb + 4 * (k // 4))}, {vr(FB + 16 * (st % 2) + 4 * (k % 4))}, {"0" if first else acc}'))
    return mm


WD_ADDR = {}


class WD:
    queued = 0
    landed = 0
    moved = 0
    freed = 0


def wd_space(addr, n):
    for k in range(n):
        if WD.queued < 43:
            WD_ADDR[WD.queued] = addr + k * 4096
            dma_1k(SRD_WD, V_WDD, WD.queued, addr + k * 4096, f'wd{WD.queued}')
            WD.queued += 1


def wd_est():
    n = WD.landed
    while n < WD.queued and f'wd{n}' not in {t for l, t in A.bg} and A.tagdone[f'wd{n}'] <= A.t + args.slack:
        n += 1
    return n


def wd_done():
    live = {t for t, o in A.vm} | {t for l, t in A.bg}
    n = 0
    while n < WD.queued and f'wd{n}' not in live:
        n += 1
    return n


def wd_pre(upto):
    upto = max(upto, WD.landed)
    if upto > WD.landed:
        A.wait_vm(f'wd{upto - 1}')
    WD.pend = upto


def wd_post():
    WD.landed = WD.pend
    while WD.freed < WD.moved:
        wd_space(WD_ADDR[WD.freed], 1)
        WD.freed += 1


def wd_addr(ks, ct, hf):
    off = WD_ADDR[ks] + hf * 1024
    return f'v{(16, 48, 52)[off >> 16] + ct} offset:{off & 0xffff}'


NWB = 23


def wd_reg(ks, ct, hf=None):
    k = ks % NWB
    f, b = (ar, 16 * k) if k < 16 else (vr, 144 + 16 * (k - 16))
    return f(b + 4 * ct) if hf is None else f(b + 4 * ct + 2 * hf, 2)


def tr_wd(ks):
    return [('i', f'ds_read_b64_tr_b16 {wd_reg(ks, ct, hf)}, {wd_addr(ks, ct, hf)}', f't{ks}')
            for ct in range(4) for hf in range(2)]


def wd_moves(limit):
    it = []
    while WD.moved < min(WD.landed, limit):
        it += tr_wd(WD.moved)
        WD.moved += 1
    return it


run(lines(tr_bases_t(16, f"""v_lshrrev_b32 v42, 1, {V_G}
          v_lshlrev_b32 v42, 4, v42
          v_and_b32 v43, 1, {V_G}
          v_lshl_add_u32 v42, v43, 2, v42
          v_add_u32 v42, v42, v40""", 'v_and_b32 v43, 6, v42', 0).replace('v40', 'v4').replace('v41', 'v5').replace('v42', 'v6').replace('v43', 'v7')))
for ct in range(4):
    e(f'v_add_u32 v{48 + ct}, 0x10000, v{16 + ct}')
    e(f'v_add_u32 v{52 + ct}, 0x20000, v{16 + ct}')
def hh_touch(k):
    so = (S_HST, S_HST, S_HST2, S_HST2, 's18', 's18')[k]
    touch([f's_add_u32 {S_BT}, {so}, {(k % 2) * 86 * 1024}'], V_L16, S_BT, 0, 'v[252:255]')


e(f'''s_lshr_b32 s14, {S_W}, 1
      s_add_u32 s14, s14, 4
      s_sub_u32 s14, s14, {S_W}
      s_lshl_b32 s14, s14, 10
      s_sub_u32 s13, {S_NU}, 2
      s_mul_i32 s14, s14, s13
      s_add_u32 s18, {S_HST}, s14''')
def gu_est():
    n = GU.landed
    while n < GU.queued and f'p4w{n}' not in {t for l, t in A.bg} and A.tagdone[f'p4w{n}'] <= A.t + args.slack:
        n += 1
    return n


A.wait_vm('y0')
gu_pre(max(gu_done(), gu_est(), 2))
A.wait_lg()
e('s_barrier')
gu_post()
fine('d0')
front(lambda: pieces(6))
run(rd4(0, 0) + movers(1))
wdn = 0
def glu(k, pk):
    b = ACC4 + 16 * k
    t = ''
    if pk:
        for r in range(0, 8, 2):
            t += f'v_pk_mul_f32 {vr(b + r, 2)}, {vr(b + r, 2)}, s[14:15] op_sel_hi:[1,0]\n'
    else:
        for r in range(8):
            t += f'v_mul_f32 v{b + r}, s14, v{b + r}\n'
    for r in range(8):
        t += f'v_exp_f32 v{b + r}, v{b + r}\n'
    if pk:
        for r in range(0, 8, 2):
            t += f'v_pk_add_f32 {vr(b + r, 2)}, {vr(b + r, 2)}, 1.0 op_sel_hi:[1,0]\n'
    else:
        for r in range(8):
            t += f'v_add_f32 v{b + r}, 1.0, v{b + r}\n'
    for r in range(8):
        t += f'v_rcp_f32 v{b + r}, v{b + r}\n'
    if pk:
        for r in range(0, 8, 2):
            t += f'v_pk_mul_f32 {vr(b + r, 2)}, {vr(b + r, 2)}, {vr(b + 8 + r, 2)}\n'
    else:
        for r in range(8):
            t += f'v_mul_f32 v{b + r}, v{b + r}, v{b + 8 + r}\n'
    for d in range(4):
        t += f'v_cvt_pk_bf16_f32 v{b + d}, v{b + 2 * d}, v{b + 2 * d + 1}\n'

    def st():
        st_ = f'buffer_store_dwordx4 {vr(b)}, {V_L16}, {SRD_WS}, {(S_HST, "s16", S_HST2, "s17", "s18", "s19")[k]} offen'
        if k >= 4:
            with nobg():
                ls = A.newlabel('L_sk')
                e(f's_cmp_lt_u32 {S_NU}, 3\n s_cbranch_scc1 {ls}')
                stores([st_], 'hst', optional=True, plain=args.ht)
                A.label(ls)
        else:
            stores([st_], 'hst', plain=args.ht)
    return lines(t) + [('f', st)]


NREG = 16
e(f'''s_mov_b32 s14, 0xbfb8aa3b
      s_add_u32 s16, {S_HST}, {86 * 1024}
      s_add_u32 s17, {S_HST2}, {86 * 1024}
      s_add_u32 s19, s18, {86 * 1024}''')
QL = 8 - args.tailq
NT = 4 * args.tailq


def rdt(i, u):
    q, st = QL + u // 4, u % 4
    n = (i * NT + u) % 8
    return ('i', f'ds_read_b128 {vr(FB + 32 + 4 * n)}, v{13 + i // 2} offset:{(q % 4) * 16384 + (st // 2) * 8192 + (i % 2) * 2048 + (st % 2) * 512}', f'r{i}_{u}')


def after_bar4(q):
    global wdn
    if q < 4:
        dma_h2(q + 4)
    if q < 3:
        c3(SRD_WD, q)
    if GU.freed >= 12 and wdn == 0:
        wd_space(L_S + 13 * 4096, 7)
        wd_space(LDS_TOTAL - 4096, 1)
        wdn = 7
    if GU.freed == 16 and wdn == 7:
        wd_space(L_S, 13)
        wdn = 20


for q in range(QL):
    main = []
    for st in range(3):
        main += [('wl', [f'g{st}', f'mv{2 * q + st // 2}'])] + interleave(mm4(q, st), rd4(q, st + 1), 0, 4)
    if q < 6 and args.ht:
        hh_touch(q)
        if True:
            A.bg.insert(min(len(A.bg) - 1, 4), A.bg.pop())
    run(interleave(interleave(main, movers(), 0, 10), wd_moves(min(2 * q, WD.moved + 4)), 2))
    last = q == QL - 1
    A.wait_vm('y7' if last else f'y{q + 1}')
    gu_pre(16 if last else max(gu_done(), gu_est(), 2 * q + 4))
    wd_pre(max(wd_done(), wd_est()))
    A.wait_lg()
    e('s_barrier')
    gu_post()
    if q % 2:
        fine(f'd{(q + 1) // 2}')
    after_bar4(q)
    if q >= 4:
        wd_space(L_H2 + (q - 4) * 16384, 4)
    wd_post()
    run(interleave(mm4(q, 3), (movers() + [rdt(0, u) for u in range(4)]) if last else (rd4(q + 1, 0) + movers(2 * q + 3)), 0, 5))
seq = [(i, u) for i in range(4) for u in range(NT)]
pend = []
for i in range(4):
    main = []
    for u in range(NT):
        n = i * NT + u
        ks, par = 2 * QL + u // 2, u % 2
        main.append(('wl', [f'r{i}_{u}', f'mv{ks}']))
        for k in ([4 + i, i] if i < 2 else [i]):
            acc = vr(ACC4 + 16 * k, 16)
            main.append(('i', f'v_mfma_f32_32x32x16_bf16 {acc}, {ar(16 * ks + 8 * par + 4 * (k // 4))}, {vr(FB + 32 + 4 * (n % 8))}, {acc}'))
        if n + 4 < len(seq):
            main.append(rdt(*seq[n + 4]))
    nm = sum(1 for it in main if it[0] == 'i' and it[1].startswith('v_mfma'))
    take = min(len(pend), (nm - 2) * args.gper)
    if i < 2:
        main = interleave(main, wd_moves(min(2 * QL, WD.moved + (6, 3)[i])), 0)
    run(interleave(main, pend[:take], 2))
    pend = pend[take:]
    if i in (0, 1, 3):
        wd_pre(max(wd_done(), wd_est()))
        A.wait_lg()
        e('s_barrier')
        GU.pend = 16
        gu_post()
        after_bar4(7)
        if i == 3:
            q0 = max(QL, 4)
            wd_space(L_H2 + (q0 - 4) * 16384, 16 - 4 * (q0 - 4))
        wd_post()
    if i == args.gcut:
        A.bg_on = False
    if i < 3:
        for k in ([4 + i, i] if i < 2 else [i]):
            pend += glu(k, args.gper == 0)
assert wdn == 20
stamp('gemm4')
run(pend)
run(glu(3, True))
fine('hst')
A.bg_flush(args.b4)
assert not any(t == 'gp' and 'v11' in l[-1] for l, t in A.bg)
e(f"""v_lshrrev_b32 v11, 1, {V_G}
      v_lshlrev_b32 v11, 10, v11
      v_and_b32 v5, 1, {V_G}
      v_lshl_add_u32 v11, v5, 9, v11
      v_lshl_add_u32 v11, {V_C}, 4, v11""")
run(wd_moves(16))
A.wait_lg()
publish_flag(192, 'hst')
WD.pend = wd_done()
wd_post()
e(poll_ld(192), tag='poll')
stamp('hpub')

A.bg_flush(args.b5)
run(wd_moves(NWB))
poll_check(192)
stamp('hwait')
print('wd: queued', WD.queued, 'landed', WD.landed, 'moved', WD.moved, file=sys.stderr)
assert WD.queued == 43
HA, ACC5, NH = 80, 64, 16
hl = []
for ks in range(43):
    pre = [f's_add_u32 s28, {S_HLD}, {ks * 2048}'] if ks % 2 == 0 else []
    hl.append((pre + [f'buffer_load_dwordx4 {vr(HA + 4 * (ks % NH))}, v11, {SRD_WS}, s28 offen offset:{(ks % 2) * 2048} sc1'], f'h{ks}'))
A.bg_flush()
A.bg = hl[:NH]
A.bg_flush(12)
A.bg_on = False
for ks in range(43):
    if WD.landed < 43 and (ks == args.kbar or WD.moved == WD.landed):
        A.wait_vm('wd42')
        e('s_barrier')
        WD.landed = 43
        fine('wdall')
    if WD.moved <= ks:
        run(wd_moves(ks + 2))
    n0 = len(A.ins)
    A.wait_vm(f'h{ks}')
    A.wait_lg(f't{ks}')
    if len(A.ins) == n0 + 2 and all(i.op == 's_waitcnt' for i in A.ins[n0:]):
        b_, a_ = A.ins.pop(), A.ins.pop()
        A._emit(a_.text + ' ' + b_.text.split(None, 1)[1], None, False)
    nxt = wd_moves(min(WD.moved + 1, ks + NWB + 1)) if (43 - WD.moved) * args.trsp >= (43 - ks - 6) * 10 or WD.moved - ks < 4 else []
    for ct in range(4):
        e(f'v_mfma_f32_16x16x32_bf16 {vr(ACC5 + 4 * ct)}, {wd_reg(ks, ct)}, {vr(HA + 4 * (ks % NH))}, {"0" if ks == 0 else vr(ACC5 + 4 * ct)}')
        if ct == 0:
            A.bg_flush(1)
        run(nxt[2 * ct:2 * ct + 2])
    if ks + NH < 43:
        A.bg.append(hl[ks + NH])
    if ks == 40:
        XF5 = 80
        for i in range(8):
            e(f'''v_lshlrev_b32 v{XF5 + 2 * i}, 16, v{X1P + i}
                  v_and_b32 v{XF5 + 2 * i + 1}, {S_HI}, v{X1P + i}''')
assert WD.moved == 43
A.bg_on = False
stamp('gemm5')
for b in range(0, 16, 2):
    e(f'v_pk_fma_f32 {vr(ACC5 + b, 2)}, {vr(ACC5 + b, 2)}, {vr(GB + b, 2)}, {vr(XF5 + b, 2)}')
for i in range(8):
    e(f'v_cvt_pk_bf16_f32 v{X1P + i}, v{ACC5 + 2 * i}, v{ACC5 + 2 * i + 1}')
for p in range(2):
    for d in range(2):
        e(f'v_permlane16_swap_b32 v{X1P + 4 * p + d}, v{X1P + 4 * p + 2 + d}')
for p in range(2):
    e(f'buffer_store_dwordx4 {vr(X1P + 4 * p)}, v{V_XO}, {SRD_OUT}, {S_XOFF} offen offset:{p * 64} {args.outm}')
if args.stamps:
    stamp('end')
    e(f'''s_lshl_b32 s12, s2, 2
          s_add_u32 s12, s12, {S_W}
          s_lshl_b32 s12, s12, 8
          s_add_u32 s12, s12, {WS_STAMP}
          v_lshlrev_b32 v4, 2, {V_LANE}
          buffer_store_dword {V_STAMP}, v4, {SRD_WS}, s12 offen''')
    if args.dbg >= 0:
        e(f'''s_lshl_b32 s12, s2, 2
              s_add_u32 s12, s12, {S_W}
              s_cmp_lg_u32 s12, {args.dbg * 4}
              s_cbranch_scc1 L_giveup
              s_load_dwordx2 s[14:15], s[0:1], 80
              v_readlane_b32 s12, {V_STAMP}, 0
              s_waitcnt lgkmcnt(0)
              v_subrev_u32 v5, s12, {V_STAMP}
              global_store_dword v4, v5, s[14:15]''')
A.label('L_giveup')
e('s_endpgm')
assert not A.bg and not PIECES

nn = A.pad_hazards()
hdr = open(f'cdna_kernels/{NAME}.s.ref').read().split('; Override launch')[0]
wrap = lambda body: hdr + f'''; @launch grid=(256,1,1) block=(256,1,1) lds={LDS_TOTAL}
.amdgcn_target "amdgcn-amd-amdhsa--gfx950"
.text
.globl {NAME}_kernel
.p2align 8
.type {NAME}_kernel,@function
{NAME}_kernel:
''' + body + f'''.rept 256
    s_endpgm
.endr
L_codeend:
.section .rodata,"a"
.p2align 6
.amdhsa_kernel {NAME}_kernel
  .amdhsa_next_free_vgpr 512
  .amdhsa_next_free_sgpr 102
  .amdhsa_accum_offset 256
  .amdhsa_group_segment_fixed_size 0
  .amdhsa_kernarg_size 96
  .amdhsa_user_sgpr_count 2
  .amdhsa_user_sgpr_kernarg_segment_ptr 1
  .amdhsa_system_sgpr_workgroup_id_x 1
.end_amdhsa_kernel
'''
if args.align:
    print('align', align_pass(A, wrap, args.align), file=sys.stderr)
out = wrap(A.text())
if args.stamps or args.stop1:
    out += '; stamps: ' + ','.join(stamp_names) + '\n'
open(args.o, 'w').write(out)
if args.vlog:
    ev = sorted([(t, 'S', n) for n, t in model] + [(t, 'V', f'{tag}->{c}') for t, c, tag in A.log])
    print(' '.join((f'\n=={n}@{int(t)}==' if k == 'S' else f'{int(t)}:{n}') for t, k, n in ev), file=sys.stderr)
print('nvm', len(A.log), file=sys.stderr)
print('model: ' + ' '.join(f'{n}:{int(t)}' for n, t in model), file=sys.stderr)
print(f'wrote {args.o}: {len(A.ins)} instructions, {nn} hazard nops', file=sys.stderr)
```

```python
import sys, argparse
from contextlib import contextmanager
from asmlib import Asm, align_pass

NAME = "adaLN_cond__sliding_local_dilated__glu_gated_glu__prompt"
ap = argparse.ArgumentParser()
ap.add_argument('-o', default=f'cdna_kernels/{NAME}.s')
ap.add_argument('--stamps', action='store_true')
ap.add_argument('--cyc', action='store_true')
ap.add_argument('--fine', action='store_true')
ap.add_argument('--slow', action='store_true')
ap.add_argument('--x', default='')
ap.add_argument('--vlog', action='store_true')
ap.add_argument('--align', type=int, default=5)
ap.add_argument('--stop1', action='store_true')
ap.add_argument('--outm', default='nt')
ap.add_argument('--plan', default='4030000')
ap.add_argument('--touch', action='store_true')
ap.add_argument('--s1', action='store_true')
for k, d in dict(gapa=64, gapaware=1, c3=1, padto=0, dbg=-1, otlb=1, jit1=0, trsp=99, w0=0, w1=0, pg=2, zero=1, pfx=0, pfy=0, pfz=0, x0=2, bpos=8, h2o=1, ot=0, ht=0, gpl=1800, acut=70, gap0=64, gap1=64, gap4=64, gap5=64, s0=4, pfe2=3, pf0=4, b1=7, b1d=0, b2a=0, b2c=3, b2d=3, y0=2, slack=0, b1c=8, b2=5, b2b=2, b3=12, b4=8, win=11, gcut=3, tailq=2, gper=6, b5=6, hfirst=0, kbar=8, lat0=2900).items():
    ap.add_argument('--' + k, type=int, default=d)
args = ap.parse_args()
args.wt = not args.touch

A = Asm()
e = A.e
A.win = args.win
A.lat = {'xpf': (args.lat0, 2.5), 'x': (650, 1), 'gp': (args.gpl, .4), 'mx': (1100, .3), 'gc': (1250, .5), 'gq': (1800, 1.5), 'mtb': (1500, .8), 'mt': (1800, .8), 'ost': (400 if args.ot else 800, .1), 'xst': (400 if args.h2o else 800, .1),
         'hst': (400 if args.ht else 800, .1), 'poll': (650, .1), 'xr': (800, 2), '': (400, .1), 'p4w': (1100, 1.35), 'stt': (1400, .25), 'st': (650, 1), 'sst': (400, .1), 'mg': (1100, .25),
         'm': (1100, 1), 'o': (650 if args.ot else 1100, 1), 'y': (650 if args.h2o else 1100, 1), 'h': (650 if args.ht else 1100, 1), 'tch': (1600, 1)}
model = []

WS_O = 0x30000
WS_X1 = 0x50000
WS_STATS = 0x70000
WS_HH = 0x80000
HH_PITCH = 0x2C000
WS_GRP = 0xF0000
WS_MODP = 0xE0000
WS_EPOCH = 0xEF000
WS_STAMP = 0x1000000
WS_SIZE = 0x1100000 if args.stamps else 0x1000000

L_STATS, L_RED, L_MODV, L_GAGB = 0x0, 0xA00, 0x1000, 0x2000
L_HRING = 0x3000
L_B = [0x3000, 0xF000, 0x1B000, 0xF000]
L_WO = 0x17000
L_H2 = 0x17000
BLK, MAT1 = 12416, 6176
L_S = 0x3000
L_WD = 0x3000
LDS_TOTAL = 163840

S_W, S_RB, S_M, S_J, S_TAG, S_FAST, S_XCC = 's4', 's5', 's6', 's7', 's8', 's9', 's11'
SRD_X, SRD_WQKV, SRD_WO, SRD_WG, SRD_WU, SRD_WD, SRD_WMOD, SRD_OUT, SRD_WS, SRD_C = [
    f's[{b}:{b + 3}]' for b in range(40, 80, 4)]
S_GRP, S_ONES, S_HI, S_SPIN = 's84', 's85', 's86', 's87'
S_XOFF, S_NU, S_U0, S_COL = 's88', 's89', 's90', 's91'
SRD_GU = 's[92:95]'
S_MM4, S_GUM, S_H2M = 's80', 's81', 's39'
S_OST, S_X1ST, S_HST, S_STST = 's96', 's97', 's98', 's99'
S_HST2 = 's83'
S_W3K, S_M128, S_BT, S_W1K = 's20', 's21', 's22', 's23'
S_OLD, S_X1LD, S_STLD, S_HLD = 's35', 's36', 's37', 's38'
V_LANE, V_L16, V_G, V_C = 'v0', 'v1', 'v2', 'v3'
V_DUM, V_STAMP = 'v10', 'v15'
V_WOD, V_P4D, V_OST, V_XO, V_WDD, V_GB = 56, 57, 60, 61, 62, 63
PD = 'v[116:119]'


def vr(b, n=4):
    return f'v[{b}:{b + n - 1}]'


def ar(b, n=4):
    return f'a[{b}:{b + n - 1}]'


@contextmanager
def nobg():
    old = A.bg_on
    A.bg_on = False
    yield
    A.bg_on = old


nstamp = [0]
stamp_names = []


def stamp(name=''):
    model.append((name, A.t))
    if not args.stamps:
        return
    with nobg():
        e('s_memtime s[100:101]' if args.cyc else 's_memrealtime s[100:101]')
        stamp_names.append(name)
        A.wait_lg()
        e(f'v_writelane_b32 {V_STAMP}, s100, {nstamp[0]}')
    nstamp[0] += 1


def fine(name):
    if args.fine:
        stamp(name)


def lines(t):
    return [('i', l.split(';')[0].strip()) for l in t.split('\n') if l.split(';')[0].strip()]


def run(items):
    for it in items:
        if it[0] == 'i':
            e(it[1], tag=it[2] if len(it) > 2 else None)
        elif it[0] == 'wl':
            A.wait_lg(it[1])
        elif it[0] == 'wv':
            A.wait_vm(it[1])
        elif it[0] == 'f':
            it[1]()
        else:
            raise ValueError(it)


def is_mem(it):
    return it[0] == 'f' or (it[0] == 'i' and it[1].startswith(('ds_', 'buffer_')))


def is_valu(it):
    return it[0] == 'i' and it[1].startswith('v_') and not it[1].startswith('v_mfma')


def interleave(main, fill, start=0, end=None, pred=lambda t: t.startswith('v_mfma')):
    slots = [i for i, it in enumerate(main) if it[0] == 'i' and pred(it[1])]
    slots = slots[start:end]
    sset = {i: k for k, i in enumerate(slots)}
    out = []
    n = len(slots)
    done = 0
    i = 0
    while i < len(main):
        out.append(main[i])
        if i in sset:
            k = sset[i] + 1
            while i + 1 < len(main) and is_mem(main[i + 1]) and (i + 1) not in sset:
                i += 1
                out.append(main[i])
            upto = (len(fill) * k + n - 1) // n
            valu = False
            while done < upto:
                it = fill[done]
                if is_mem(it) and valu and k < n and args.gapaware:
                    break
                valu = valu or is_valu(it)
                out.append(it)
                done += 1
        i += 1
    out.extend(fill[done:])
    return out


def cost(it):
    if it[0] != 'i':
        return 1
    if it[1].startswith('ds_write_b128'):
        return 3
    if it[1].startswith(('v_exp', 'v_rcp', 'v_rsq')):
        return 2
    return 1


def pack(main, fill, start=0, end=None):
    gaps = []
    idx = [i for i, it in enumerate(main) if it[0] == 'i' and it[1].startswith('v_mfma')]
    for a, i in enumerate(idx):
        nxt = idx[a + 1] if a + 1 < len(idx) else len(main)
        j = i
        while j + 1 < nxt and is_mem(main[j + 1]):
            j += 1
        gaps.append((j, sum(cost(x) for x in main[i + 1:nxt])))
    gaps = gaps[start:end]
    total = sum(cost(x) for x in fill) + sum(c for _, c in gaps)
    at = {}
    done = 0
    acc = 0.0
    per = total / len(gaps)
    for k, (j, c) in enumerate(gaps):
        acc += per - c
        lst = []
        valu = False
        while done < len(fill) and (acc >= cost(fill[done]) - 0.5 or k == len(gaps) - 1):
            it = fill[done]
            if is_mem(it) and valu and k < len(gaps) - 1:
                break
            valu = valu or is_valu(it)
            lst.append(it)
            acc -= cost(it)
            done += 1
        at[j] = lst
    out = []
    for i, it in enumerate(main):
        out.append(it)
        out.extend(at.get(i, []))
    return out


def spin_fail(lbl_loop):
    e(f'''s_sub_u32 {S_SPIN}, {S_SPIN}, 1
          s_cmp_eq_u32 {S_SPIN}, 0
          s_cbranch_scc1 L_giveup
          s_branch {lbl_loop}''')


def checked(tag, loads, check):
    A.wait_vm(tag)
    with nobg():
        lc, lp, ld = A.newlabel('L_c'), A.newlabel('L_p'), A.newlabel('L_d')
        save = (list(A.vm), list(A.done), A.t, A.t_vm, list(A.log))
        e(f's_branch {lc}')
        A.label(lp)
        for l in loads:
            e(l)
        A.wait_vm()
        A.vm, A.done, A.t, A.t_vm, A.log = save
        A.label(lc)
        check()
        e(f's_cbranch_vccz {ld}')
        spin_fail(lp)
        A.label(ld)


def stores(lst, tag, optional=False, plain=False):
    with nobg():
        if not plain:
            for t in lst:
                e(t + ' sc1', tag=tag, optional=optional)
            return
        l1, l2 = A.newlabel('L_st'), A.newlabel('L_st')
        e(f"""s_cmp_lg_u32 {S_FAST}, 0
              s_cbranch_scc1 {l1}""")
        save = (list(A.vm), list(A.done), A.t, A.t_vm, list(A.log))
        for t in lst:
            e(t + ' sc1')
        e(f's_branch {l2}')
        A.vm, A.done, A.t, A.t_vm, A.log = save
        A.label(l1)
        for t in lst:
            e(t, tag=tag, optional=optional)
        A.label(l2)


def touch(pre, va, so, off=0, dst=None):
    dst = dst or PD
    if True:
        A.bg_add(pre + [f'buffer_load_dwordx4 {dst}, {va}, {SRD_WS}, {so} offen offset:{off} sc1'], 'tch')


def publish_flag(off, tag):
    with nobg():
        e(f'''s_add_u32 s12, {S_MM4}, {S_GRP}
              v_mov_b32 v5, {S_TAG}''')
        if off == 64:
            e(f'''s_and_b32 s13, {S_MM4}, 32
                  v_and_b32 v9, 7, {V_LANE}
                  v_lshl_add_u32 v9, v9, 2, s13''')
        else:
            e(f'v_lshlrev_b32 v9, 2, {V_C}')
        A.wait_vm(tag)
        e('s_barrier')
        l1, l2 = A.newlabel('L_pf'), A.newlabel('L_pf')
        e(f'''s_cmp_lg_u32 {S_W}, 0
              s_cbranch_scc1 {l2}
              s_mov_b64 exec, 1
              s_cmp_lg_u32 {S_FAST}, 0
              s_cbranch_scc1 {l1}''')
        e(f'buffer_store_dword v5, off, {SRD_WS}, s12 offset:{off} sc1', optional=True)
        e(f'''s_mov_b64 exec, -1
              s_branch {l2}''')
        A.label(l1)
        e(f'buffer_store_dword v5, off, {SRD_WS}, s12 offset:{off}', optional=True)
        e('s_mov_b64 exec, -1')
        A.label(l2)


def poll_ld(off):
    return f'buffer_load_dword v8, v9, {SRD_WS}, {S_GRP} offen offset:{off} sc1'


def poll_check(off):
    with nobg():
        checked('poll', [poll_ld(off)], lambda: e(f'v_cmp_ne_u32 vcc, {S_TAG}, v8'))


def st_loads(t0):
    return [f'buffer_load_dwordx4 {vr(t0 + 4 * p)}, {V_L16}, {SRD_WS}, {S_STLD} offen offset:{p * 1024} sc1' for p in range(2)]


def mod_loads(va, t0):
    return [f'buffer_load_dwordx4 {vr(t0 + 4 * p)}, {va}, {SRD_WS}, s{24 + p} offen sc1' for p in range(4)]


def mod_check(va, t0, tag, lds_v, addone_v):
    def chk():
        e(f's_and_b32 s13, {S_TAG}, 0xff')
        for i in range(16):
            e(f'v_xor_b32 v{t0 + i}, s13, v{t0 + i}')
        e(f'v_or3_b32 v5, v{t0}, v{t0 + 1}, v{t0 + 2}')
        e(f'v_or3_b32 v6, v{t0 + 3}, v{t0 + 4}, v{t0 + 5}')
        for i in range(6, 14, 4):
            e(f'v_or3_b32 v5, v5, v{t0 + i}, v{t0 + i + 1}')
            e(f'v_or3_b32 v6, v6, v{t0 + i + 2}, v{t0 + i + 3}')
        e(f'v_or3_b32 v5, v5, v{t0 + 14}, v{t0 + 15}')
        e(f'''v_or_b32 v5, v5, v6
              v_and_b32 v5, 0xff, v5
              v_cmp_ne_u32 vcc, 0, v5''')
    checked(tag, mod_loads(va, t0), chk)
    for i in range(0, 4, 2):
        e(f'v_pk_add_f32 {vr(t0 + i, 2)}, {vr(t0 + i, 2)}, {vr(t0 + 4 + i, 2)}')
        e(f'v_pk_add_f32 {vr(t0 + 8 + i, 2)}, {vr(t0 + 8 + i, 2)}, {vr(t0 + 12 + i, 2)}')
    for i in range(0, 4, 2):
        e(f'v_pk_add_f32 {vr(t0 + i, 2)}, {vr(t0 + i, 2)}, {vr(t0 + 8 + i, 2)}')
    for rnd in range(2):
        e(f'v_cvt_pk_bf16_f32 v5, v{t0}, v{t0 + 1}')
        e(f'v_cvt_pk_bf16_f32 v6, v{t0 + 2}, v{t0 + 3}')
        e(f'v_lshlrev_b32 v{t0}, 16, v5')
        e(f'v_and_b32 v{t0 + 1}, {S_HI}, v5')
        e(f'v_lshlrev_b32 v{t0 + 2}, 16, v6')
        e(f'v_and_b32 v{t0 + 3}, {S_HI}, v6')
        if rnd == 0:
            if addone_v is None:
                break
            for i in range(4):
                e(f'v_add_f32 v{t0 + i}, v{t0 + i}, {addone_v}')
    e(f'ds_write_b128 {lds_v}, {vr(t0)}', tag='modw')


def mod_task_loads(base, cond, tag, rr=vr, va='v74', vc='v75'):
    l = A.newlabel('L_ml')
    with nobg():
        e(cond + f'\n s_cbranch_scc0 {l}')
        e(f'buffer_load_dwordx2 {rr(base + 16, 2)}, {vc}, {SRD_C}, s33 offen', tag=tag, optional=True)
        for i in range(4):
            e(f'buffer_load_dwordx4 {rr(base + 4 * i)}, {va}, {SRD_WMOD}, s{29 + i} offen', tag=tag, optional=True)
        A.label(l)


def mod_part1(base, t, ad, from_a=None, c0=None, fma=False):
    x = ''
    c0 = c0 or base + 16
    if from_a is not None:
        for i in range(18):
            x += f'v_accvgpr_read_b32 v{base + i if i < 16 else c0 + i - 16}, a{from_a + i}\n'
    x += f"""v_lshlrev_b32 v{t + 8}, 16, v{c0}
          v_and_b32 v{t + 9}, {S_HI}, v{c0}
          v_lshlrev_b32 v{t + 10}, 16, v{c0 + 1}
          v_and_b32 v{t + 11}, {S_HI}, v{c0 + 1}
          """
    for op in ('v_mul_f32 v{a}, 0xbfb8aa3b, v{b}', 'v_exp_f32 v{a}, v{a}', 'v_add_f32 v{a}, 1.0, v{a}', 'v_rcp_f32 v{a}, v{a}', 'v_mul_f32 v{b}, v{b}, v{a}'):
        for i in range(4):
            x += op.format(a=t + 12 + i, b=t + 8 + i) + '\n'
    MA = t + 8
    if fma:
        for i in range(4):
            x += f'v_cvt_pk_bf16_f32 v{t + i}, 0, v{t + 8 + i}\n'
        for i in range(4):
            for d in range(4):
                x += f'v_lshlrev_b32 v{t + 4}, 16, v{base + 4 * i + d}\n v_and_b32 v{t + 5}, {S_HI}, v{base + 4 * i + d}\n'
                for h in range(2):
                    if i == 0:
                        x += f'v_mul_f32 v{MA + 2 * d + h}, v{t + 4 + h}, v{t + i}\n'
                    else:
                        x += f'v_fma_f32 v{MA + 2 * d + h}, v{t + 4 + h}, v{t + i}, v{MA + 2 * d + h}\n'
    else:
        for i in range(4):
            x += f'v_cvt_pk_bf16_f32 v{t + i}, v{t + 8 + i}, 0\n'
            x += f'v_cvt_pk_bf16_f32 v{t + 4 + i}, 0, v{t + 8 + i}\n'
        for i in range(4):
            for d in range(4):
                for h in range(2):
                    src2 = '0' if i == 0 else f'v{MA + 2 * d + h}'
                    x += f'v_dot2_f32_bf16 v{MA + 2 * d + h}, v{base + 4 * i + d}, v{t + 4 * h + i}, {src2}\n'
    x += f"""v_and_b32 v{ad}, 7, {V_LANE}
          v_lshlrev_b32 v{ad}, 5, v{ad}
          v_and_b32 v{ad + 1}, 1, {V_G}
          v_lshl_add_u32 v{ad}, v{ad + 1}, 3, v{ad}
          """
    for p in range(4):
        x += f'v_permlane32_swap_b32 v{MA + 2 * p}, v{MA + 2 * p + 1}\n'
    for p in range(4):
        x += f'v_add_f32 v{MA + 2 * p}, v{MA + 2 * p}, v{MA + 2 * p + 1}\n'
    x += f"""v_lshrrev_b32 v{ad + 1}, 1, {V_G}
          v_lshl_add_u32 v{ad}, v{ad + 1}, 2, v{ad}
          """
    for p in range(2):
        x += f'v_permlane16_swap_b32 v{MA + 4 * p}, v{MA + 4 * p + 2}\n'
    for p in range(2):
        x += f'v_add_f32 v{MA + 4 * p}, v{MA + 4 * p}, v{MA + 4 * p + 2}\n'
    x += f"""s_lshl_b32 s28, {S_W}, 8
          v_add_u32 v{ad}, s28, v{ad}
          """
    for p in range(2):
        x += f'v_add_f32_dpp v{MA + 4 * p + 1}, v{MA + 4 * p}, v{MA + 4 * p} row_ror:8 row_mask:0xf bank_mask:0xf\n'
    x += f'ds_write_b32 v{ad}, v{MA + 1} offset:{L_RED}\n'
    x += f'ds_write_b32 v{ad}, v{MA + 5} offset:{L_RED + 16}\n'
    return lines(x)


def mod_part2(base, lm, wave):
    e(f"""s_cmp_lg_u32 {S_W}, {wave}
          s_cbranch_scc1 {lm}
          v_lshlrev_b32 v4, 4, {V_C}""")
    for w in range(4):
        e(f'ds_read_b128 {vr(base + 4 * w)}, v4 offset:{L_RED + w * 256}')
    e(f"""s_and_b32 s13, {S_TAG}, 0xff
          s_mov_b32 s14, 0xffffff00
          v_mov_b32 v5, s13
          s_and_b32 s12, s3, 3
          s_mul_i32 s12, s12, 12288
          s_lshr_b32 s13, s3, 2
          s_lshl_b32 s13, s13, 8
          s_add_u32 s12, s12, s13
          s_add_u32 s12, s12, {WS_MODP}""")
    e('s_waitcnt lgkmcnt(0)')
    for i in range(0, 4, 2):
        e(f'v_pk_add_f32 {vr(base + i, 2)}, {vr(base + i, 2)}, {vr(base + 4 + i, 2)}')
        e(f'v_pk_add_f32 {vr(base + 8 + i, 2)}, {vr(base + 8 + i, 2)}, {vr(base + 12 + i, 2)}')
    for i in range(0, 4, 2):
        e(f'v_pk_add_f32 {vr(base + i, 2)}, {vr(base + i, 2)}, {vr(base + 8 + i, 2)}')
    for i in range(4):
        e(f'v_and_or_b32 v{base + i}, v{base + i}, s14, v5')
    e('s_mov_b64 exec, 0xffff')
    e(f'buffer_store_dwordx4 {vr(base)}, v4, {SRD_WS}, s12 offen sc1', optional=True)
    e('s_mov_b64 exec, -1')
    e('s_nop 0')


def dma_wqkv(j):
    for pos in range(4):
        ks = 4 * pos + j
        for mat in range(3):
            pre = [f's_add_u32 m0, {S_W3K}, {L_B[j] + pos * 12288}', f's_add_u32 {S_BT}, {S_M128}, {ks * 32 * 3072}'] if mat == 0 else []
            A.bg_add(pre + [f'buffer_load_dwordx4 v8, {SRD_WQKV}, {S_BT} offen offset:{mat * 1024} lds'], f'wq{j}')


def tr_wqkv(j):
    it = [('i', f'v_add_u32 v9, {(L_B[j] - L_B[j - 1]) & 0xffffffff}, v9')] if j else []
    return it + [('i', f'ds_read_b64_tr_b16 {ar(((j * 4 + pos) * 3 + mat) * 4 + hf * 2, 2)}, v9 offset:{pos * 12288 + mat * 1024 + hf * 512}', f'trq{j}_{pos}')
                 for pos in range(4) for mat in range(3) for hf in range(2)]


def dma_1k(srd, vreg, ks, ldsaddr, tag):
    A.bg_add([f's_add_u32 m0, {S_W1K}, {ldsaddr}', f's_add_u32 {S_BT}, {S_M128}, {ks * 32768}',
              f'buffer_load_dwordx4 v{vreg}, {srd}, {S_BT} offen lds'], tag)


def dma_p4(n):
    for i in range(3):
        A.bg_add([f's_add_u32 m0, {S_GUM}, {(n % 6) * BLK + i * 1024}', f's_add_u32 {S_BT}, {S_COL}, {n * 32 * 2752}',
                  f'buffer_load_dwordx4 v{V_P4D + i}, {SRD_GU}, {S_BT} offen lds'], f'p4w{n}')


class GU:
    queued = 0
    landed = 0
    moved = 0
    freed = 0


def gu_queue():
    while GU.queued < 16 and GU.queued < GU.freed + 6:
        dma_p4(GU.queued)
        GU.queued += 1


def gu_pre(upto):
    upto = max(upto, GU.landed)
    assert upto <= GU.queued
    if upto > GU.landed:
        A.wait_vm(f'p4w{upto - 1}')
    GU.pend = upto


def gu_post(lg_waited=True):
    GU.landed = GU.pend
    if lg_waited:
        GU.freed = GU.moved
    gu_queue()


def gu_done():
    live = {t for t, o in A.vm} | {t for l, t in A.bg}
    n = 0
    while n < GU.queued and f'p4w{n}' not in live:
        n += 1
    return n


def mover(n):
    return [('i', f'ds_read_b64_tr_b16 {ar(16 * n + 8 * par + 4 * i + 2 * hf, 2)}, v{20 + i + 2 * ((n % 6) // 3)} offset:{(n % 3) * BLK + (16 * hf + 8 * par) * 192}', f'mv{n}')
            for par in range(2) for i in range(2) for hf in range(2)]


def movers(limit=16):
    it = []
    while GU.moved < min(GU.landed, limit):
        it += mover(GU.moved)
        GU.moved += 1
    return it


def front(f):
    rest = list(A.bg)
    A.bg = []
    f()
    A.bg += rest


def c3(srd, piece):
    if args.c3:
        lo = srd[2:srd.index(':')]
        A.bg_add([f's_sub_u32 {S_BT}, 0x180, s{lo}', f's_and_b32 {S_BT}, {S_BT}, 0x380', f's_add_u32 {S_BT}, {S_BT}, {piece * 524288}',
                  f'buffer_load_dword {V_DUM}, {C3[0]}, {srd}, {S_BT} offen'], 'gc')


C3 = ['v55']


def gpf(srd, base):
    A.bg_add([f's_mov_b32 {S_BT}, {base}', f'buffer_load_dword {V_DUM}, v11, {srd}, {S_BT} offen'], 'gp')


Q = 128 * 2752
PIECES = [[(SRD_WO, 0), (SRD_WO, 393216)]] + [[(SRD_WG, q * Q), (SRD_WU, q * Q)] for q in range(4)] + \
         [[(SRD_WD, 0), (SRD_WD, 393216)], [(SRD_WD, 2 * 393216), (SRD_WD, 3 * 393216)]]


PLAN = [int(c) for c in args.plan]


def pieces(point):
    for k in range(PLAN[point]):
        for p in PIECES.pop(0):
            gpf(*p)


def bg_mix(every, first=0):
    old = A.bg
    A.bg = []
    k = first
    for it in old:
        if len(it[0]) > 1 and k >= every and PIECES:
            for p in PIECES.pop(0):
                gpf(*p)
            k = 0
        A.bg.append(it)
        k += 1


XRES, GAL, TRB = 88, 136, 84
MK, ONE = 168, 184


L_MASK, L_TRB = 0x27000, 0x2800


def tr_bases_t(dst, rowt, ft, ldsbase):
    t = f'''v_bfe_u32 v40, {V_LANE}, 2, 2
          v_and_b32 v41, 3, {V_LANE}
          {rowt}
          {ft}
          v_lshlrev_b32 v42, 7, v42
          v_and_b32 v40, 1, v41
          v_lshl_add_u32 v42, v40, 3, v42
          v_add_u32 v42, {ldsbase}, v42
          v_lshrrev_b32 v41, 1, v41
          '''
    for ct in range(4):
        t += f'''v_add_u32 v40, {2 * ct}, v41
              v_xor_b32 v40, v40, v43
              v_lshl_add_u32 v{dst + ct}, v40, 4, v42
              '''
    return t


def late_items():
    t = f"""v_lshlrev_b32 v80, 4, {V_C}
          v_lshl_add_u32 v80, {V_G}, 11, v80
          s_lshl_b32 s12, {S_M}, 8
          s_add_u32 s12, s12, {1024 * 4}
          v_add_u32 v80, s12, v80
          v_mov_b32 v81, v55
          s_add_u32 s12, {S_W1K}, {L_MODV}
          v_add_u32 v82, s12, {V_L16}
          v_cmp_eq_u32 vcc, 2, {V_G}
          v_mov_b32 v83, 0
          s_nop 0
          v_cndmask_b32 v83, v83, 1.0, vcc
          """
    t += tr_bases_t(TRB, f'v_lshl_add_u32 v42, {V_G}, 3, v40',
                    f'v_and_b32 v43, 2, v40\n v_and_b32 v44, 1, {V_G}\n v_lshl_add_u32 v43, v44, 2, v43', L_WO)
    return lines(t)


def mask_items():
    t = f'''s_sub_u32 s13, {S_RB}, 1
            s_lshr_b32 s13, s13, 31
            s_lshl_b32 s13, s13, 6
            s_mov_b32 s12, 0xf149f2ca
            v_lshlrev_b32 v40, 2, {V_G}
            v_mov_b32 v42, s12
         '''
    for r in range(4):
        t += f'''v_add_u32 v41, {r}, v40
          v_sub_u32 v43, {V_C}, v41
          v_cmp_gt_u32 vcc, 8, v43
          v_cmp_ge_i32 s[14:15], -9, v43
          v_add_u32 v43, s13, v43
          v_cndmask_b32 v{MK + r}, v42, 0, vcc
          v_cndmask_b32 v{MK + 4 + r}, v42, 0, s[14:15]
          v_cmp_ge_i32 vcc, -9, v43
          v_cmp_gt_i32 s[14:15], 0, v43
          v_cmp_lt_u32 s[18:19], 7, v41
          v_cndmask_b32 v{MK + 12 + r}, v42, 0, vcc
          v_cndmask_b32 v{MK + 8 + r}, v42, 0, s[14:15]
          v_cndmask_b32 v{MK + 8 + r}, v{MK + 8 + r}, v42, s[18:19]
          '''
    return lines(t)


srds = [(40, 0, 2048 * 1024), (64, 64, 512 * 6144), (76, 56, 1024), (44, 8, 512 * 3072), (72, 88, WS_SIZE), (48, 16, 512 * 1024),
        (52, 32, 512 * 2752), (56, 40, 512 * 2752), (60, 48, 1376 * 1024), (68, 72, 2048 * 1024)]
MW, XN, XRAW = 16, 80, 160
e(f"""s_cmp_ge_u32 s2, 256
      s_cbranch_scc1 L_giveup
      {'s_memtime s[100:101]' if args.cyc else 's_memrealtime s[100:101]' if args.stamps else ''}""")
for (d, off, sz) in srds[:5]:
    e(f's_load_dwordx2 s[{d}:{d + 1}], s[0:1], {off}')
e(f"""v_lshrrev_b32 v2, 6, v0
      v_and_b32 v0, 63, v0
      v_readfirstlane_b32 {S_W}, v2
      s_lshr_b32 {S_J}, s2, 3
      s_and_b32 s3, s2, 7
      s_lshr_b32 s10, {S_J}, 3
      s_lshl_b32 {S_RB}, s3, 2
      s_add_u32 {S_RB}, {S_RB}, s10
      s_and_b32 {S_M}, {S_J}, 7
      s_lshl_b32 s12, {S_M}, 2
      s_add_u32 s12, s12, {S_W}
      s_mul_i32 s12, s12, 20
      s_lshl_b32 s13, {S_RB}, 9
      s_add_u32 s12, s12, s13
      s_addk_i32 s12, -128
      v_add_lshl_u32 v7, s12, {V_LANE}, 7
      v_cmp_gt_u32 vcc, 20, {V_LANE}
      v_bfrev_b32 v6, -2
      s_mov_b32 s34, 0x20000
      s_mov_b32 s42, {2048 * 1024}
      v_cndmask_b32 v14, v6, v7, vcc
      s_mov_b32 s43, s34
      s_getpc_b64 s[14:15]
      v_lshlrev_b32 {V_L16}, 4, {V_LANE}
      s_lshl_b32 s12, {S_J}, 2
      s_add_u32 s12, s12, {S_W}
      s_and_b32 s12, s12, 63
      s_min_u32 s12, s12, (L_codeend-{NAME}_kernel)/1024-1
      s_lshl_b32 s12, s12, 10
      s_and_b32 s14, s14, 0xffffff00
      v_add_u32 v4, s12, {V_L16}""")
e(f'global_load_dwordx4 a[244:247], v4, s[14:15]')
A.wait_lg()
A.t = 1100
e(f'buffer_load_dword {V_DUM}, v14, {SRD_X}, 0 offen', tag='xpf')
if args.stamps:
    e(f'v_mov_b32 {V_STAMP}, 0')
    e(f'v_writelane_b32 {V_STAMP}, s100, 0')
    stamp_names.append('entry'); nstamp[0] += 1
e(f's_load_dword s8, s[72:73], {WS_EPOCH}')
for (d, off, sz) in srds[5:]:
    e(f's_load_dwordx2 s[{d}:{d + 1}], s[0:1], {off}')
for (d, off, sz) in srds[1:4]:
    e(f"""s_mov_b32 s{d + 2}, {sz}
          s_mov_b32 s{d + 3}, s34""")
e(f"""s_and_b32 s10, {S_J}, 3
      s_lshr_b32 s12, {S_J}, 2
      s_lshl_b32 s13, s12, 1
      s_add_u32 s13, s13, s10
      s_add_u32 s13, s13, 7
      s_cmp_eq_u32 s10, 0
      s_cselect_b32 s12, s12, s13
      s_lshl_b32 s12, s12, 3
      s_add_u32 s3, s3, s12
      s_lshl_b32 s12, {S_W}, 3
      v_lshrrev_b32 v76, 3, {V_LANE}
      v_add_u32 v76, s12, v76
      v_and_b32 v77, 7, {V_LANE}
      v_lshlrev_b32 v75, 3, v76
      v_mul_u32_u24 v74, {4 * 6144}, v76
      v_lshl_add_u32 v74, v77, 4, v74
      s_and_b32 s13, s3, 3
      s_lshr_b32 s14, s3, 2
      s_mul_i32 s29, s13, {128 * 6144}
      s_lshl_b32 s30, s14, 7
      s_add_u32 s29, s29, s30
      s_lshl_b32 s33, s13, 8
      s_add_u32 s30, s29, 6144
      s_add_u32 s31, s29, {2 * 6144}
      s_add_u32 s32, s29, {3 * 6144}""")
COND_A = 's_cmp_eq_u32 s10, 0'
COND_B = 's_sub_u32 s12, s10, 1\n s_cmp_lt_u32 s12, 2'
mod_task_loads(MW, COND_A, 'mt')
e(f"""s_lshl_b32 s15, s2, 2
      s_add_u32 s15, s15, {S_W}
      s_mul_i32 s12, s15, 12
      v_add_lshl_u32 v7, s12, {V_LANE}, 7
      v_cmp_gt_u32 vcc, 12, {V_LANE}
      v_lshrrev_b32 v12, 2, {V_LANE}        ; c4   (x lane map: c4 = l/4, g4 = l%4)
      v_and_b32 v13, 3, {V_LANE}            ; g4
      v_cndmask_b32 v54, v6, v7, vcc
      s_lshl_b32 s12, {S_J}, 2
      s_add_u32 s12, s12, {S_W}
      s_lshl_b32 s12, s12, 2
      v_add_lshl_u32 v7, s12, {V_LANE}, 10
      v_cmp_gt_u32 vcc, 4, {V_LANE}
      s_nop 1
      v_cndmask_b32 v55, v6, v7, vcc
      v_lshlrev_b32 v4, 11, v12
      v_lshl_add_u32 v4, v13, 4, v4
      s_lshl_b32 s16, {S_RB}, 16
      s_lshl_b32 s17, {S_W}, 8
      s_add_u32 s16, s16, s17
      s_add_u32 s18, s16, 32768""")


def xload(T, j, bg=False):
    q = 5 * j + T
    if T < 4:
        l = f'buffer_load_dwordx4 {vr(XN + 8 * q + 4)}, v4, {SRD_X}, {"s16" if T < 2 else "s18"} offen offset:{(T % 2) * 1024 + j * 64}'
    else:
        l = f'buffer_load_dwordx4 {vr(XN + 8 * q + 4)}, v5, {SRD_X}, s17 offen offset:{j * 64}'
    if bg:
        A.bg_add([l], f'x{T}')
    else:
        e(l, tag=f'x{T}')


def issue_gq(pos):
    if pos == args.pg:
        e(f'buffer_load_dword {V_DUM}, v54, {SRD_WQKV}, 0 offen', tag='gq')
        for k in range(3):
            c3(SRD_WQKV, k)
        A.bg_flush()


issue_gq(0)
e(f"""      v_bfe_u32 v5, {V_LANE}, 4, 1
      s_and_b32 s12, {S_W}, 1
      s_lshl_b32 s12, s12, 1
      v_add_u32 v5, s12, v5
      v_lshlrev_b32 v5, 1, v5
      v_xor_b32 v5, v77, v5
      v_lshlrev_b32 v5, 4, v5
      v_mul_u32_u24 v8, 3072, v76
      v_add_u32 v8, v8, v5
      v_lshl_add_u32 v{V_WOD}, v76, 10, v5
      s_mul_i32 {S_W3K}, {S_W}, 3072
      s_lshl_b32 {S_M128}, {S_M}, 7
""")
dma_wqkv(0)
A.bg_flush(args.w0)
extra = [A.bg.pop(0) for _ in range(args.w1)]
W0REST = list(A.bg)
A.bg = []
if extra:
    ln = A.newlabel('L_e')
    sv = (list(A.vm), A.t, A.t_vm, list(A.done), list(A.log))
    e(COND_A + f'\n s_cbranch_scc1 {ln}')
    for l_, t_ in extra:
        for l in l_:
            e(l, tag=t_)
    A.label(ln)
    A.vm, A.t, A.t_vm, A.done, A.log = sv
for j in range(args.x0):
    xload(0, j)
fine('start')

for (d, off, sz) in srds[4:]:
    e(f"""s_mov_b32 s{d + 2}, {sz}
          s_mov_b32 s{d + 3}, s34""")
e(f"""s_mul_i32 s12, s15, 3
      v_add_lshl_u32 v7, s12, {V_LANE}, 7
      v_cmp_gt_u32 vcc, 3, {V_LANE}
      v_lshrrev_b32 {V_G}, 4, {V_LANE}
      v_and_b32 {V_C}, 15, {V_LANE}
      v_cndmask_b32 v11, v6, v7, vcc
      v_lshlrev_b32 v5, 1, v12
      v_cmp_lt_u32 vcc, 7, v12
      v_mov_b32 v6, -16
      v_mov_b32 v7, -31
      s_lshl_b32 s15, {S_RB}, 6
      v_cndmask_b32 v6, v6, v7, vcc
      v_add3_u32 v5, v5, v6, s15
      v_max_i32 v5, 0, v5
      v_lshlrev_b32 v5, 10, v5
      v_lshl_add_u32 v5, v13, 4, v5
      v_lshlrev_b32 v6, 1, {V_G}
      v_xor_b32 v6, v77, v6
      v_lshlrev_b32 v6, 4, v6
      v_lshl_add_u32 v{V_WDD}, v76, 10, v6
      s_lshl_b32 {S_W1K}, {S_W}, 10
      s_getreg_b32 {S_XCC}, hwreg(HW_REG_XCC_ID)
      s_and_b32 {S_XCC}, {S_XCC}, 15
      s_mov_b32 {S_ONES}, 0x3f803f80
      s_mov_b32 {S_HI}, 0xffff0000
      s_mov_b32 {S_SPIN}, 0x40000
      s_lshr_b32 {S_GRP}, {S_RB}, 1
      s_lshl_b32 s82, {S_GRP}, 20
      s_add_u32 {S_GRP}, s82, {WS_GRP}
      v_bfe_u32 v78, {V_LANE}, 2, 2          ; r4
      v_mul_u32_u24 v9, 3072, {V_G}
      v_lshl_add_u32 v9, v78, 7, v9
      v_and_b32 v78, 2, v78
      v_and_b32 v6, 1, {V_G}
      v_lshl_add_u32 v78, v6, 2, v78         ; 2f
      v_lshrrev_b32 v6, 1, v13               ; cc/2
      s_lshl_b32 s12, {S_W}, 1
      v_add_u32 v6, s12, v6
      v_xor_b32 v6, v6, v78
      v_lshl_add_u32 v9, v6, 4, v9
      v_and_b32 v79, 1, v13
      v_lshl_add_u32 v9, v79, 3, v9
      v_add_u32 v9, {L_B[0]}, v9""")
for p in range(4):
    e(f's_mov_b32 s{24 + p}, {WS_MODP + p * 12288}')
issue_gq(1)
e(f's_mov_b32 s12, {(1 << 32) // 12 + 1}')
for i in range(3):
    e(f"""v_add_u32 v6, {64 * i}, {V_LANE}
          v_mul_hi_u32 v7, v6, s12
          v_mul_u32_u24 v78, 12, v7
          v_sub_u32 v6, v6, v78
          v_mul_u32_u24 v7, 2752, v7
          v_lshl_add_u32 v{V_P4D + i}, v6, 4, v7
          v_lshlrev_b32 v{44 + i}, 27, v6""")
e(f"""s_and_b32 s12, {S_RB}, 1
      s_lshl_b32 s12, s12, 3
      s_add_u32 s12, s12, {S_M}
      s_lshl_b32 {S_MM4}, s12, 2
      s_mul_i32 s12, s12, 43
      s_add_u32 s13, s12, 43
      s_lshr_b32 s12, s12, 4
      s_lshr_b32 s13, s13, 4
      s_sub_u32 {S_NU}, s13, s12
      s_lshl_b32 {S_U0}, s12, 1
      s_sub_u32 s13, 3, {S_NU}
      s_mul_i32 s13, s13, {0x40000000 * args.zero}
      v_and_or_b32 v{V_P4D}, v44, s13, v{V_P4D}
      v_and_or_b32 v{V_P4D + 1}, v45, s13, v{V_P4D + 1}
      v_and_or_b32 v{V_P4D + 2}, v46, s13, v{V_P4D + 2}
      s_lshr_b32 s13, {S_W}, 1
      s_mul_i32 s14, s13, {16 * 2752}
      s_lshl_b32 {S_COL}, s12, 6
      s_add_u32 {S_COL}, {S_COL}, s14
      s_mul_i32 s13, s13, 3072
      s_and_b32 s14, {S_W}, 1
      s_mul_i32 s14, s14, {MAT1}
      s_add_u32 s13, s13, s14
      s_add_u32 {S_GUM}, s13, {L_S}
      s_lshl_b32 s13, {S_W}, 12
      s_add_u32 {S_H2M}, s13, {L_H2}
      v_and_b32 v78, 1, {V_G}
      v_lshrrev_b32 v79, 1, {V_G}
      v_lshlrev_b32 v6, 14, v78
      v_lshl_add_u32 v6, v79, 8, v6
      v_lshl_add_u32 v{V_OST}, {V_C}, 4, v6
      v_lshlrev_b32 v6, 11, {V_C}
      v_lshl_add_u32 v6, v78, 5, v6
      v_lshl_add_u32 v{V_XO}, v79, 4, v6
      s_lshr_b32 s12, {S_W}, 1
      s_lshl_b32 s12, s12, 15
      s_and_b32 s13, {S_W}, 1
      s_lshl_b32 s13, s13, 10
      s_add_u32 s12, s12, s13
      s_lshl_b32 s13, {S_RB}, 16
      s_add_u32 s12, s12, s13
      s_add_u32 {S_XOFF}, s12, {S_M128}
      s_and_b32 s15, {S_RB}, 1
      s_lshl_b32 s14, s15, 16
      s_add_u32 s14, s14, s82
      s_lshl_b32 s12, {S_M}, 11
      s_lshl_b32 s13, {S_W}, 9
      s_add_u32 s12, s12, s13
      s_add_u32 s12, s12, s14
      s_add_u32 {S_OST}, s12, {WS_O}
      s_lshl_b32 s12, {S_W}, 14
      s_add_u32 s12, s12, s14
      s_add_u32 {S_OLD}, s12, {WS_O}
      s_lshl_b32 s13, {S_M}, 11
      s_add_u32 s12, s12, s13
      s_add_u32 {S_X1ST}, s12, {WS_X1}
      s_lshr_b32 s13, {S_W}, 1
      s_lshl_b32 s13, s13, 10
      s_add_u32 s12, s82, s13
      s_and_b32 s13, {S_W}, 1
      s_lshl_b32 s13, s13, 16
      s_add_u32 s12, s12, s13
      s_add_u32 {S_X1LD}, s12, {WS_X1}
      s_lshl_b32 s12, s15, 13
      s_lshl_b32 s13, {S_W}, 11
      s_add_u32 s12, s12, s13
      s_add_u32 s12, s12, s82
      s_add_u32 {S_STLD}, s12, {WS_STATS}
      s_lshl_b32 s13, {S_M}, 8
      s_add_u32 {S_STST}, {S_STLD}, s13
      s_and_b32 s12, {S_W}, 1
      s_xor_b32 s13, s12, 1
      s_mul_i32 s12, s12, {HH_PITCH}
      s_mul_i32 s13, s13, {HH_PITCH}
      s_add_u32 s14, {S_U0}, {S_W}
      s_lshl_b32 s14, s14, 10
      s_add_u32 s14, s14, s82
      s_add_u32 s14, s14, {WS_HH}
      s_add_u32 {S_HST}, s12, s14
      s_add_u32 {S_HST2}, s13, s14
      s_mul_i32 s12, s15, {HH_PITCH}
      s_add_u32 s12, s12, s82
      s_add_u32 s12, s12, {WS_HH}
      s_lshr_b32 s13, {S_W}, 1
      s_mul_i32 s13, s13, {86 * 1024}
      s_add_u32 s12, s12, s13
      s_and_b32 s13, {S_W}, 1
      s_lshl_b32 s13, s13, 8
      s_add_u32 {S_HLD}, s12, s13
      s_add_u32 s12, {S_W1K}, {L_MODV}
      v_lshl_add_u32 v{V_GB}, {V_G}, 4, s12
      v_lshlrev_b32 v77, 2, {V_LANE}
      v_and_b32 v78, 31, {V_LANE}
      v_lshlrev_b32 v78, 4, v78
      v_lshrrev_b32 v79, 5, {V_LANE}
      v_lshl_add_u32 v78, v79, 11, v78
      s_lshl_b32 s12, {S_W}, 9
      v_add_u32 v78, s12, v78
      v_cvt_f32_u32 v79, v79
      s_add_u32 s12, {S_W1K}, {L_MODV}
      v_add_u32 v76, s12, {V_L16}
      v_lshlrev_b32 v6, 1, v13
      v_xor_b32 v6, v6, v12
      v_lshl_add_u32 v6, v13, 4, v6
      v_lshlrev_b32 v6, 4, v6
      s_mul_i32 s13, {S_W}, 5120
      s_add_u32 s13, s13, {L_HRING}
      v_lshlrev_b32 v12, 5, v13
      v_add_u32 v12, s12, v12
      v_add_u32 v13, s13, v6
      v_lshlrev_b32 v6, 1, {V_G}
      v_xor_b32 v6, v6, {V_C}
      v_lshl_add_u32 v6, {V_G}, 4, v6
      v_lshlrev_b32 v6, 4, v6
      v_add_u32 v14, {L_HRING}, v6""")
issue_gq(2)
MKT = MK
MK = 240
run(mask_items())
run([(k, t.replace('v80', 'v64').replace('v81', 'v65').replace('v82', 'v66').replace('v83', 'v67').replace('v84', 'v68').replace('v85', 'v69').replace('v86', 'v70').replace('v87', 'v71')) for k, t in late_items()])
e(f'v_add_u32 v40, {L_MASK}, {V_L16}')
for i in range(4):
    e(f'ds_write_b128 v40, {vr(MK + 4 * i)} offset:{i * 1024}')
e(f'ds_write_b128 {V_L16}, v[68:71] offset:{L_TRB}')
for i in range(4):
    e(f'v_accvgpr_write_b32 a{250 + i}, v{64 + i}')
e('s_add_u32 s18, s16, 32768')
MK = MKT
A.wait_lg()
e(f"""s_bitcmp1_b32 {S_W}, 0
      s_cselect_b32 s92, s56, s52
      s_cselect_b32 s93, s57, s53
      s_mov_b32 s94, {512 * 2752}
      s_mov_b32 s95, s34
      s_mul_i32 {S_TAG}, {S_TAG}, 1664525
      s_add_u32 {S_TAG}, {S_TAG}, 1013904223""")
lx = A.newlabel('L_x')
e(f'''s_cmp_lg_u32 {S_W}, 1
      s_cbranch_scc1 {lx}
      s_and_b32 s12, {S_TAG}, 0xfffffff0
      s_or_b32 s12, s12, {S_XCC}
      s_add_u32 s13, {S_MM4}, {S_GRP}
      s_mov_b64 exec, 1
      v_mov_b32 v6, s12''')
e(f'buffer_store_dword v6, off, {SRD_WS}, s13 sc1', optional=True)
e('s_mov_b64 exec, -1')
A.label(lx)
issue_gq(3)
fine('setup')
lm, lm2, lj = A.newlabel('L_nomod'), A.newlabel('L_nomod'), A.newlabel('L_mj')
e(COND_A + f'\n s_cbranch_scc1 {lm}')
save = (list(A.vm), list(A.done), A.t, A.t_vm, list(A.log))
XL = [(0, j) for j in range(args.x0, 4)] + [(T, j) for T in (1, 2) for j in range(4)]
for T, j in XL:
    xload(T, j)
e(f's_branch {lj}')
A.vm, A.done, A.t, A.t_vm, A.log = save
A.label(lm)
save = list(A.vm)
A.wait_vm('mt')
A.vm = save
run(interleave(mod_part1(MW, 36, 6), [('f', lambda T=T, j=j: xload(T, j)) for T, j in XL], 0, 96, pred=lambda t: True))
for l_, t_ in extra:
    for l in l_:
        e(l, tag=t_, optional=True)
A.wait_lg()
e('s_barrier')
e('v_mov_b32 v52, v4\n v_mov_b32 v53, v5')
mod_part2(MW, lm2, 0)
A.label(lm2)
e('v_mov_b32 v4, v52\n v_mov_b32 v5, v53')
A.label(lj)
A.lg = []
stamp('modpub')
e(COND_B + '\n s_cselect_b32 s12, 0, 0x40000000\n v_or_b32 v74, s12, v74\n v_or_b32 v75, s12, v75')
e('v_accvgpr_write_b32 a254, v74\n v_accvgpr_write_b32 a255, v75')
MTB = [([f'buffer_load_dwordx2 v[112:113], v87, {SRD_C}, s33 offen'], 'mtb')] + [([f'buffer_load_dwordx4 {vr(96 + 4 * i)}, v86, {SRD_WMOD}, s{29 + i} offen'], 'mtb') for i in range(4)]
for T in range(3, 5):
    for j in range(4):
        xload(T, j, bg=True)
for k in range(args.pfx):
    for p in PIECES.pop(0):
        gpf(*p)
A.bg += W0REST
for k in range(args.pfy):
    for p in PIECES.pop(0):
        gpf(*p)
dma_wqkv(1)
for k in range(args.pfz):
    for p in PIECES.pop(0):
        gpf(*p)
dma_wqkv(2)
pieces(0)
A.bg_gap = args.gap0
A.bg_on = True

RS = 64


def unpack(q):
    for d in range(4):
        src = XN + 8 * q + 4 + d
        lo = XN + 8 * q + 2 * d
        e(f'''v_lshlrev_b32 v{lo}, 16, v{src}
              v_and_b32 v{lo + 1}, {S_HI}, v{src}''')


def scale(q):
    p = vr(RS + 2 * (q % 5), 2)
    for d in range(4):
        lo = XN + 8 * q + 2 * d
        e(f'v_pk_fma_f32 {vr(lo, 2)}, {vr(lo, 2)}, {p}, {p} op_sel:[0,0,1] op_sel_hi:[1,0,1]')


ST = 16
for T in range(5):
    A.wait_vm(f'x{T}')
    if args.s1: stamp(f'x{T}')
    for j in range(4):
        for d in range(4):
            r = XN + 8 * (5 * j + T) + 4 + d
            first = (j == 0 and d == 0)
            e(f'v_dot2_f32_bf16 v{ST + 2 * T}, v{r}, {S_ONES}, {"0" if first else f"v{ST + 2 * T}"}')
            e(f'v_dot2_f32_bf16 v{ST + 2 * T + 1}, v{r}, v{r}, {"0" if first else f"v{ST + 2 * T + 1}"}')
    if T < 4:
        for j in range(4):
            unpack(5 * j + T)
e(f'''s_lshl_b32 s12, {S_W}, 3
      v_lshrrev_b32 v5, 2, {V_LANE}
      v_lshlrev_b32 v5, 5, v5
      v_add_u32 v4, s12, v5''')
for qp in ('[1,0,3,2]', '[2,3,0,1]'):
    for i in range(10):
        e(f'v_add_f32_dpp v{ST + i}, v{ST + i}, v{ST + i} quad_perm:{qp} row_mask:0xf bank_mask:0xf')
with nobg():
    e('''s_mov_b32 s12, 0x11111111
         s_mov_b32 exec_lo, s12
         s_mov_b32 exec_hi, s12''')
    for T in range(5):
        e(f'ds_write_b64 v4, {vr(ST + 2 * T, 2)} offset:{L_STATS + T * 512}')
    e('s_mov_b64 exec, -1')
for j in range(2):
    unpack(5 * j + 4)
A.wait_lg()
e('s_barrier')
fine('b1')
xcc_ld = f'buffer_load_dword v7, v77, {SRD_WS}, {S_GRP} offen sc1'
k0 = max([i + 1 for i, it in enumerate(A.bg) if it[1] == 'wq0'] + [0])
A.bg[k0:k0] = [([xcc_ld], 'mx')] + [([l], 'm1') for l in mod_loads('v78', 240)]
for T in range(5):
    for h in range(2):
        e(f'ds_read_b128 {vr(16 + 8 * T + 4 * h)}, v5 offset:{L_STATS + T * 512 + h * 16}', tag='st')
for j in range(2, 4):
    unpack(5 * j + 4)
A.wait_lg('st')
e('s_mov_b32 s12, 0x3b000000')
for T in range(5):
    b = 16 + 8 * T
    e(f'''v_pk_add_f32 {vr(b, 2)}, {vr(b, 2)}, {vr(b + 2, 2)}
          v_pk_add_f32 {vr(b + 4, 2)}, {vr(b + 4, 2)}, {vr(b + 6, 2)}
          v_pk_add_f32 {vr(b, 2)}, {vr(b, 2)}, {vr(b + 4, 2)}
          v_pk_mul_f32 {vr(b, 2)}, {vr(b, 2)}, s[12:13] op_sel_hi:[1,0]
          v_fma_f32 v{b + 1}, -v{b}, v{b}, v{b + 1}
          v_max_f32 v{b + 1}, 0, v{b + 1}
          v_add_f32 v{b + 1}, 0x3727c5ac, v{b + 1}
          v_rsq_f32 v{RS + 2 * T}, v{b + 1}''')
for T in range(5):
    e(f'v_mul_f32 v{RS + 2 * T + 1}, -v{16 + 8 * T}, v{RS + 2 * T}')
for q in range(10):
    scale(q)
A.wait_vm('wq0')
e('s_barrier')
fine('b2')
run(tr_wqkv(0))
for q in range(10, 20):
    scale(q)
stamp('prenorm')
mod_check('v78', 240, 'm1', 'v76', 'v79')
checked('m1', [xcc_ld], lambda: e(f'''v_xor_b32 v6, {S_TAG}, v7
                                      v_lshrrev_b32 v6, 4, v6
                                      v_cmp_ne_u32 vcc, 0, v6
                                      s_and_b64 vcc, vcc, 0xffff'''))
with nobg():
    e(f'''v_and_b32 v5, 15, v7
          v_cmp_ne_u32 vcc, {S_XCC}, v5
          s_nop 1
          s_and_b64 vcc, vcc, 0xffff
          s_cmp_eq_u64 vcc, 0
          s_cselect_b32 {S_FAST}, {0 if args.slow else 1}, 0
          s_mul_i32 s12, {S_FAST}, {(WS_X1 - WS_O) * args.h2o}
          s_sub_u32 {S_X1ST}, {S_X1ST}, s12
          s_sub_u32 {S_X1LD}, {S_X1LD}, s12''')
stamp('mod')

CS = 64


def cs1_reads(j):
    it = []
    for h in range(2):
        it.append(('i', f'ds_read_b128 {vr(CS + 4 * h)}, v12 offset:{j * 128 + h * 16}', 'cs'))
        it.append(('i', f'ds_read_b128 {vr(CS + 8 + 4 * h)}, v12 offset:{512 + j * 128 + h * 16}', 'cs'))
    return it


def norm1_items(j, pk=False):
    it = [('wl', 'cs')]
    for T in range(5):
        b = XN + 8 * (5 * j + T)
        if pk:
            for i in range(0, 8, 2):
                it.append(('i', f'v_pk_fma_f32 {vr(b + i, 2)}, {vr(b + i, 2)}, {vr(CS + 8 + i, 2)}, {vr(CS + i, 2)}'))
        else:
            for i in range(8):
                it.append(('i', f'v_fma_f32 v{b + i}, v{b + i}, v{CS + 8 + i}, v{CS + i}'))
        for d in range(4):
            it.append(('i', f'v_cvt_pk_bf16_f32 v{b + d}, v{b + 2 * d}, v{b + 2 * d + 1}'))
        it.append(('i', f'ds_write_b128 v13, {vr(b)} offset:{(j % 2) * 20480 + T * 1024}', 'hw'))
    if j < 3:
        it += cs1_reads(j + 1)
    return it


def accQ(T): return 16 + 4 * T
def accK(T): return 32 + 4 * T
def accV(T): return 240 + 4 * T if T < 4 else 52


FR = 192


def rd1(j, pos):
    return [('i', f'ds_read_b128 {ar(FR + (pos % 2) * 20 + 4 * T)}, v14 offset:{(j % 2) * 20480 + (pos * 5 + T) * 1024}', f'f{pos}') for T in range(5)]


def mm1(j, pos):
    it = []
    wb = (j * 4 + pos) * 12
    first = (j == 0 and pos == 0)
    for T in range(5):
        f = ar(FR + (pos % 2) * 20 + 4 * T)
        if T < 4:
            it.append(('i', f'v_mfma_f32_16x16x32_bf16 {vr(accQ(T))}, {ar(wb)}, {f}, {"0" if first else vr(accQ(T))}'))
        it.append(('i', f'v_mfma_f32_16x16x32_bf16 {vr(accK(T))}, {ar(wb + 4)}, {f}, {"0" if first else vr(accK(T))}'))
        it.append(('i', f'v_mfma_f32_16x16x32_bf16 {vr(accV(T))}, {f}, {ar(wb + 8)}, {"0" if first else vr(accV(T))}'))
    return it


A.wait_lg()
run(cs1_reads(0))
e('s_barrier')
run(norm1_items(0, pk=True))
if not args.jit1:
    A.wait_vm('wq1')
A.wait_lg('hw')
e('s_barrier')
fine('c0')
e('v_accvgpr_read_b32 v81, a251')
e('v_accvgpr_read_b32 v86, a254\n v_accvgpr_read_b32 v87, a255')
C3[0] = 'v81'
k0 = max([i + 1 for i, it in enumerate(A.bg) if it[1] == 'wq2'] + [0])
A.bg[k0:k0] = MTB
c3(SRD_WO, 0)
A.bg_gap = args.gap1
run(rd1(0, 0))
for j in range(5):
    main = []
    if j > 0:
        main += interleave(mm1(j - 1, 3), rd1(j, 0) if j < 4 else [], 0, 5)
    if j == 4:
        run(main)
        break
    todo = {0: [] if args.jit1 else [1], 1: [1, 2] if args.jit1 else [2], 2: [], 3: [3]}[j]
    for pos in range(3):
        main += [('wl', [f'f{pos}', f'trq{j}_{pos}'])] + interleave(mm1(j, pos), rd1(j, pos + 1), 0, 5)
    for c in todo:
        tq = tr_wqkv(c)
        if c == j:
            run(tq[:1])
            main = interleave(main, tq[1:7], 0, 6)
            main = interleave(main, tq[7:], 6, 24)
        elif len(todo) > 1:
            main = interleave(main, tq, 26, 52)
        else:
            run(tq[:1])
            main = pack(main, tq[1:], 0, -1)
    if j < 3:
        fill = norm1_items(j + 1)
    else:
        fill = lines(f'v_add_u32 v4, {L_MASK}, {V_L16}') + [('i', f'ds_read_b128 {vr(MK + 4 * i)}, v4 offset:{i * 1024}') for i in range(4)]
        fill += [('i', f'ds_read_b128 {vr(TRB)}, {V_L16} offset:{L_TRB}')]
        fill += [('i', f'v_accvgpr_read_b32 v{80 + i}, a{250 + i}') for i in range(4)] + [('i', f'v_mov_b32 v{ONE + r}, {S_ONES}') for r in range(4)] + [('i', f'v_lshlrev_b32 v76, 2, {V_LANE}')]
    if j == 3:
        fill = [('wv', 'mtb')] + mod_part1(96, 200, 216, None, 112, True) + fill
    run(pack(main, fill, 0, -2))
    fine(f'e{j}')
    A.wait_vm(('wq2', 'none', 'wq3', 'none')[j])
    A.wait_lg()
    e('s_barrier')
    fine(f'c{j + 1}')
    if j == args.jit1:
        front(lambda: dma_wqkv(3))
    if j == 0:
        pieces(1)
    if j == 1:
        for ks in range(4, 16):
            dma_1k(SRD_WO, V_WOD, ks, L_WO + ks * 4096, 'wo')
        pieces(2)
        if args.ot:
            touch([], f'v{V_OST}', S_OST)
            touch([f's_add_u32 {S_BT}, {S_OST}, 32768'], f'v{V_OST}', S_BT)
        for p in range(2):
            A.bg_add([f'buffer_load_dwordx4 {vr(XRES + 4 * p)}, v{V_XO}, {SRD_X}, {S_XOFF} offen offset:{p * 64}'], 'xr')
    if j == 2:
        pieces(3)
    if j == 3:
        front(lambda: [dma_1k(SRD_WO, V_WOD, ks, L_WO + ks * 4096, 'wo') for ks in range(4)])
        A.bg_add([f'buffer_load_dword {V_DUM}, v76, {SRD_WS}, {S_STST} offen sc1'], 'stt')
        if args.otlb:
            A.bg_add([f'buffer_load_dword {V_DUM}, off, {SRD_OUT}, {S_XOFF}'], 'stt')
        pieces(4)
        gu_queue()
with nobg():
    lm = A.newlabel('L_nomod')
    save = (list(A.vm), list(A.lg), A.t, A.t_vm, list(A.done), list(A.log))
    e(COND_B + f'\n s_cbranch_scc0 {lm}')
    mod_part2(96, lm, 3)
    A.label(lm)
    A.vm, A.lg, A.t, A.t_vm, A.done, A.log = save[0] + [(None, True)], *save[1:]
stamp('qkv')

QP, KP, VP = 140, 148, 158
VPOS = {2: 0, 0: 1, 4: 2, 1: 3, 3: 4}
SS, MX, PP, OO, LL, OP = 188, 220, 16, 32, 228, 48
PREV = {0: 4, 1: 4, 2: 0, 3: 1}
PMASK = {0: MK + 8, 1: MK + 12, 2: MK + 4, 3: MK + 4}
VPAIR = {2: 0, 0: 1, 1: 2, 3: 3}
t = ''
for T in range(5):
    for d in range(2):
        if T < 4:
            t += f'v_cvt_pk_bf16_f32 v{QP + 2 * T + d}, v{accQ(T) + 2 * d}, v{accQ(T) + 2 * d + 1}\n'
        t += f'v_cvt_pk_bf16_f32 v{KP + 2 * T + d}, v{accK(T) + 2 * d}, v{accK(T) + 2 * d + 1}\n'
vc = [f'v_cvt_pk_bf16_f32 v{VP + 2 * VPOS[T] + d}, v{accV(T) + 2 * d}, v{accV(T) + 2 * d + 1}\n' for T in range(5) for d in range(2)]
t += vc.pop(0) + vc.pop(0)
for T in (2, 3, 0, 1):
    t += f'v_mfma_f32_16x16x16_bf16 {vr(SS + 8 * T)}, {vr(KP + 2 * T, 2)}, {vr(QP + 2 * T, 2)}, {vr(MK)}\n' + vc.pop(0)
    t += f'v_mfma_f32_16x16x16_bf16 {vr(SS + 8 * T + 4)}, {vr(KP + 2 * PREV[T], 2)}, {vr(QP + 2 * T, 2)}, {vr(PMASK[T])}\n' + vc.pop(0)
t += 's_mov_b32 s12, 0x3eb8aa3b\n'
for T in (2, 3, 0, 1):
    s = SS + 8 * T
    t += f'''v_max3_f32 v{MX + T}, v{s}, v{s + 1}, v{s + 2}
          v_max3_f32 v{MX + 4 + T}, v{s + 3}, v{s + 4}, v{s + 5}
          v_max3_f32 v{MX + T}, v{MX + T}, v{s + 6}, v{s + 7}
          v_max_f32 v{MX + T}, v{MX + T}, v{MX + 4 + T}
          v_mov_b32 v{MX + 4 + T}, v{MX + T}
          '''
for k, sw in enumerate(('v_permlane32_swap_b32', 'v_permlane16_swap_b32')):
    for T in (2, 3, 0, 1):
        t += f'{sw} v{MX + T}, v{MX + 4 + T}\n'
    for T in (2, 3, 0, 1):
        t += f'v_max_f32 v{MX + T}, v{MX + T}, v{MX + 4 + T}\n'
    if k == 0:
        for T in (2, 3, 0, 1):
            t += f'v_mov_b32 v{MX + 4 + T}, v{MX + T}\n'
for T in range(4):
    t += f'v_mul_f32 v{MX + T}, s12, v{MX + T}\n'


def fin(T):
    x = f'v_rcp_f32 v{LL + 4 * T}, v{LL + 4 * T}\n'
    p = vr(LL + 4 * T, 2)
    y = ''
    for i in (0, 2):
        y += f'v_pk_mul_f32 {vr(OO + 4 * T + i, 2)}, {vr(OO + 4 * T + i, 2)}, {p} op_sel_hi:[1,0]\n'
    for d in range(2):
        y += f'v_cvt_pk_bf16_f32 v{OP + 2 * T + d}, v{OO + 4 * T + 2 * d}, v{OO + 4 * T + 2 * d + 1}\n'
    return x, y


for T in range(4):
    s = SS + 8 * T
    for i in range(8):
        t += f'v_fma_f32 v{s + i}, v{s + i}, s12, -v{MX + T}\n'
    for i in range(8):
        t += f'v_exp_f32 v{s + i}, v{s + i}\n'
    if T > 0:
        t += fin(T - 1)[0]
    curfirst = T in (0, 2)
    for d in range(2):
        t += f'v_cvt_pk_bf16_f32 v{PP + 4 * T + (0 if curfirst else 2) + d}, v{s + 2 * d}, v{s + 2 * d + 1}\n'
        t += f'v_cvt_pk_bf16_f32 v{PP + 4 * T + (2 if curfirst else 0) + d}, v{s + 4 + 2 * d}, v{s + 4 + 2 * d + 1}\n'
    if T > 0:
        t += fin(T - 1)[1]
    t += f'v_mfma_f32_16x16x32_bf16 {vr(LL + 4 * T)}, {vr(ONE)}, {vr(PP + 4 * T)}, 0\n'
    t += f'v_mfma_f32_16x16x32_bf16 {vr(OO + 4 * T)}, {vr(VP + 2 * VPAIR[T])}, {vr(PP + 4 * T)}, 0\n'


def wo_reg(ks, ct, hf=None):
    if 4 <= ks < 14:
        b, f = 96 + (ks - 4) * 16 + ct * 4, ar
    else:
        b, f = 160 + (ks if ks < 4 else ks - 10) * 16 + ct * 4, vr
    return f(b) if hf is None else f(b + 2 * hf, 2)


def tr_wo(ks):
    return [('i', f'ds_read_b64_tr_b16 {wo_reg(ks, ct, hf)}, v{TRB + ct} offset:{ks * 4096 + hf * 512}', f'trw{ks}')
            for ct in range(4) for hf in range(2)]


tl = lines(t)
A.bg_gap = args.gapa
run(tl[:args.acut])
A.bg_flush(upto=['wo', 'xr', 'tch'])
A.bg_on = False
run(tl[args.acut:])
for d in range(2):
    e(f'v_permlane16_swap_b32 v{OP + d}, v{OP + 2 + d}')
e(f's_add_u32 s16, {S_OST}, 32768')
stores([f'buffer_store_dwordx4 {vr(OP)}, v{V_OST}, {SRD_WS}, {S_OST} offen'], 'ost', plain=args.ot)
e(fin(3)[0] + fin(3)[1])
for d in range(2):
    e(f'v_permlane16_swap_b32 v{OP + 4 + d}, v{OP + 6 + d}')
stores([f'buffer_store_dwordx4 {vr(OP + 4)}, v{V_OST}, {SRD_WS}, s16 offen'], 'ost', plain=args.ot)
fine('ost')
if args.stop1:
    stamp('end')
    e(f'''s_waitcnt vmcnt(0)
          s_lshl_b32 s12, s2, 2
          s_add_u32 s12, s12, {S_W}
          s_lshl_b32 s12, s12, 8
          s_add_u32 s12, s12, {WS_STAMP}
          v_lshlrev_b32 v4, 2, {V_LANE}
          buffer_store_dword {V_STAMP}, v4, {SRD_WS}, s12 offen
          s_endpgm''')
    args.stamps = False
    keep_names = list(stamp_names)
A.bg_flush(args.b1)
A.wait_vm('xr')
for p in range(2):
    for d in range(2):
        e(f'v_permlane16_swap_b32 v{XRES + 4 * p + d}, v{XRES + 4 * p + 2 + d}')
e(f'''s_add_u32 s17, {S_OLD}, 4096
      s_add_u32 s18, {S_OLD}, 8192
      s_add_u32 s19, {S_OLD}, 12288
      v_bfe_u32 v16, {V_LANE}, 2, 2
      v_lshrrev_b32 v17, 5, {V_LANE}
      v_lshl_add_u32 v16, v17, 2, v16
      v_mul_u32_u24 v16, 192, v16
      v_and_b32 v18, 1, {V_G}
      v_mul_u32_u24 v19, {MAT1}, v18
      v_and_b32 v4, 3, {V_LANE}
      v_lshlrev_b32 v4, 3, v4
      v_add3_u32 v16, v16, v19, v4
      s_lshl_b32 s12, {S_W}, 5
      s_add_u32 s12, s12, {L_S}
      s_lshr_b32 s13, {S_W}, 1
      s_lshl_b32 s13, s13, 5
      s_add_u32 s13, s13, {L_S + 128}
      v_add_u32 v20, s12, v16
      v_add_u32 v21, s13, v16
      v_add_u32 v22, {3 * BLK}, v20
      v_add_u32 v23, {3 * BLK}, v21
      v_lshlrev_b32 v18, 10, v18
      v_lshl_add_u32 v18, v17, 8, v18
      v_lshl_add_u32 v18, {V_C}, 4, v18
      s_and_b32 s12, {S_W}, 1
      s_lshl_b32 s12, s12, 12
      s_xor_b32 s13, s12, 4096
      s_add_u32 s12, s12, {L_H2}
      s_add_u32 s13, s13, {L_H2}
      v_add_u32 v13, s12, v18
      v_add_u32 v14, s13, v18                   ; slots 2,3''')
OA, GA, X1A, X1P = 96, 32, 64, 24
publish_flag(64, 'ost')
A.bg_flush(args.b1d)
e(poll_ld(64), tag='poll')
for l in mod_loads('v80', 64):
    e(l, tag='m3')
stamp('opub')
for ks in range(4, 12):
    run(tr_wo(ks))
poll_check(64)
stamp('owait')


KORD = list(range(4, 16)) + [0, 1, 2, 3]
rest = list(A.bg)
gu_pre(gu_done())
A.bg = [([f'buffer_load_dwordx4 {vr(OA + 4 * n)}, {V_L16}, {SRD_WS}, {(S_OLD, "s17", "s18", "s19")[ks // 4]} offen offset:{(ks % 4) * 1024} sc1'], f'o{n}') for n, ks in enumerate(KORD)]
run(interleave([x for ks in (12, 13, 14, 15, 0, 1, 2, 3) for x in tr_wo(ks)], [('f', lambda: A.bg_flush(1))] * 12, pred=lambda t: True))
mod_check('v80', 64, 'm3', 'v82', 'v83')
for ct in range(4):
    e(f'ds_read_b128 {vr(GA + 4 * ct)}, v{V_GB} offset:{ct * 64}', tag='ga')
e('s_barrier')
gu_post(False)
mv = movers(6)
pieces(5)
A.bg += rest[:args.b1c]
rest = rest[args.b1c:]
for n, ks in enumerate(KORD):
    A.wait_vm(f'o{n}')
    A.wait_lg(f'trw{ks}')
    for ct in range(4):
        e(f'v_mfma_f32_16x16x32_bf16 {vr(X1A + 4 * ct)}, {wo_reg(ks, ct)}, {vr(OA + 4 * n)}, {"0" if n == 0 else vr(X1A + 4 * ct)}')
        if ct == 0 and A.bg and (A.bg[0][1].startswith(('o', 'm')) or A.room()):
            A.bg_flush(1)
        if n >= 4 and mv:
            run([mv.pop(0)])
    if n == 12:
        XF = OA + 16
        for i in range(8):
            e(f'''v_lshlrev_b32 v{XF + 2 * i}, 16, v{XRES + i}
                  v_and_b32 v{XF + 2 * i + 1}, {S_HI}, v{XRES + i}''')
run(mv)
A.bg += rest
gu_pre(gu_done())
A.wait_lg()
e('s_barrier')
gu_post()
fine('omm')
for b in range(0, 16, 2):
    e(f'v_pk_fma_f32 {vr(X1A + b, 2)}, {vr(X1A + b, 2)}, {vr(GA + b, 2)}, {vr(XF + b, 2)}')
for i in range(8):
    e(f'v_cvt_pk_bf16_f32 v{X1P + i}, v{X1A + 2 * i}, v{X1A + 2 * i + 1}')
for i in range(8):
    e(f'v_dot2_f32_bf16 v48, v{X1P + i}, {S_ONES}, {"0" if i == 0 else "v48"}')
    e(f'v_dot2_f32_bf16 v49, v{X1P + i}, v{X1P + i}, {"0" if i == 0 else "v49"}')


def rowsum2(a, b):
    e(f'''v_permlane32_swap_b32 v{a}, v{b}
          v_add_f32 v{a}, v{a}, v{b}
          v_mov_b32 v{b}, v{a}
          v_permlane16_swap_b32 v{a}, v{b}
          v_add_f32 v{a}, v{a}, v{b}
          v_mov_b32 v{b}, v{a}
          v_permlane32_swap_b32 v{a}, v{b}''')


e(f'v_mov_b32 v50, {S_TAG}\n v_mov_b32 v51, {S_TAG}')
rowsum2(48, 49)
e('s_mov_b64 exec, 0xffff')
stores([f'buffer_store_dwordx4 v[48:51], {V_L16}, {SRD_WS}, {S_STST} offen'], 'sst', plain=True)
e('s_mov_b64 exec, -1')
fine('sst')
A.bg_flush(args.b2a)
SPT = 144
for i in range(8):
    e(f'''v_lshlrev_b32 v{X1A + 2 * i}, 16, v{X1P + i}
          v_and_b32 v{X1A + 2 * i + 1}, {S_HI}, v{X1P + i}''')
SB, CB, GB = 112, 128, 32
for ct in range(4):
    e(f'ds_read_b128 {vr(SB + 4 * ct)}, v{V_GB} offset:{256 + ct * 64}', tag='ga')
    e(f'ds_read_b128 {vr(CB + 4 * ct)}, v{V_GB} offset:{512 + ct * 64}', tag='ga')
    e(f'ds_read_b128 {vr(GB + 4 * ct)}, v{V_GB} offset:{768 + ct * 64}', tag='ga')
run(movers())
for l in st_loads(SPT):
    e(l, tag='st')
A.bg_flush(args.b2)
checked('st', st_loads(SPT), lambda: e(f'''v_cmp_ne_u32 vcc, {S_TAG}, v{SPT + 2}
                                          v_cmp_ne_u32 s[12:13], {S_TAG}, v{SPT + 6}
                                          s_or_b64 vcc, vcc, s[12:13]'''))
fine('stw')
e(f'v_pk_add_f32 {vr(SPT, 2)}, {vr(SPT, 2)}, {vr(SPT + 4, 2)}')
rowsum2(SPT, SPT + 1)
e(f'''s_mov_b32 s12, 0x3b000000
      v_pk_mul_f32 {vr(SPT, 2)}, {vr(SPT, 2)}, s[12:13] op_sel_hi:[1,0]
      v_fma_f32 v{SPT + 1}, -v{SPT}, v{SPT}, v{SPT + 1}
      v_max_f32 v{SPT + 1}, 0, v{SPT + 1}
      v_add_f32 v{SPT + 1}, 0x3727c5ac, v{SPT + 1}
      v_rsq_f32 v{SPT + 2}, v{SPT + 1}
      v_mul_f32 v{SPT + 3}, -v{SPT}, v{SPT + 2}''')
A.wait_lg()
p = vr(SPT + 2, 2)
H2P = 96
for half in range(2):
    for b in range(8 * half, 8 * half + 8, 2):
        e(f'v_pk_fma_f32 {vr(X1A + b, 2)}, {vr(X1A + b, 2)}, {p}, {p} op_sel:[0,0,1] op_sel_hi:[1,0,1]')
    for b in range(8 * half, 8 * half + 8, 2):
        e(f'v_pk_fma_f32 {vr(X1A + b, 2)}, {vr(X1A + b, 2)}, {vr(CB + b, 2)}, {vr(SB + b, 2)}')
    for i in range(4 * half, 4 * half + 4):
        e(f'v_cvt_pk_bf16_f32 v{H2P + i}, v{X1A + 2 * i}, v{X1A + 2 * i + 1}')
    stores([f'buffer_store_dwordx4 {vr(H2P + 4 * half)}, {V_L16}, {SRD_WS}, {S_X1ST} offen offset:{half * 1024}'], 'xst', plain=args.h2o)
A.bg_flush(args.b2b)
publish_flag(128, 'xst')
GU.pend = gu_done()
gu_post(True)
e(poll_ld(128), tag='poll')
A.bg_flush(args.b2c)
run(movers())
stamp('x1pub')

le, lep, lok = A.newlabel('L_ep'), A.newlabel('L_epp'), A.newlabel('L_eok')
save = (list(A.vm), list(A.done), A.t, A.t_vm, list(A.log))
e(f'''s_xor_b32 s12, {S_W}, 3
      s_or_b32 s12, s2, s12
      s_cmp_lg_u32 s12, 0
      s_cbranch_scc1 {le}
      v_lshrrev_b32 v4, 2, {V_LANE}
      v_lshlrev_b32 v4, 20, v4
      v_and_b32 v5, 3, {V_LANE}
      v_lshl_add_u32 v4, v5, 4, v4
      s_mov_b32 s12, {WS_GRP}''')
A.label(lep)
e(f'buffer_load_dwordx4 v[200:203], v4, {SRD_WS}, s12 offen sc1')
A.wait_vm()
for i in range(4):
    e(f'v_xor_b32 v{200 + i}, {S_TAG}, v{200 + i}')
e(f'''v_or3_b32 v5, v200, v201, v202
      v_or_b32 v5, v5, v203
      v_lshrrev_b32 v5, 4, v5
      v_cmp_ne_u32 vcc, 0, v5
      s_cbranch_vccz {lok}''')
spin_fail(lep)
A.label(lok)
e(f'''v_mov_b32 v5, {S_TAG}
      s_mov_b64 exec, 1''')
e(f's_mov_b32 s12, {WS_EPOCH}')
e(f'buffer_store_dword v5, off, {SRD_WS}, s12 sc1')
e('s_mov_b64 exec, -1')
A.label(le)
A.vm, A.done, A.t, A.t_vm, A.log = save
A.vm += [(None, True)]
e('v_mov_b32 v12, v81')
C3[0] = 'v12'
poll_check(128)
stamp('x1wait')


def dma_h2(q):
    for tt in range(4):
        A.bg_add([f's_add_u32 m0, {S_H2M}, {(q % 4) * 16384 + tt * 1024}', f's_add_u32 {S_BT}, {S_X1LD}, {tt * 16384 + q * 2048}',
                  f'buffer_load_dwordx4 {V_L16}, {SRD_WS}, {S_BT} offen sc1 lds'], f'y{q}')


front(lambda: [dma_h2(q) for q in range(args.y0)])
A.bg_flush(4 * args.y0)
rest = list(A.bg)
A.bg = []
for q in range(args.y0, 4):
    A.bg += rest[:args.b2d]
    rest = rest[args.b2d:]
    dma_h2(q)
A.bg += rest
A.bg_gap = args.gap4
A.bg_on = True
ACC4, FB = 64, 160


def rd4(q, st):
    pos, par = st // 2, st % 2
    return [('i', f'ds_read_b128 {vr(FB + 16 * (st % 2) + 4 * i)}, v{13 + i // 2} offset:{(q % 4) * 16384 + pos * 8192 + (i % 2) * 2048 + par * 512}', f'g{st}') for i in range(4)]


def mm4(q, st):
    first = (q == 0 and st == 0)
    wb = 16 * (2 * q + st // 2) + 8 * (st % 2)
    mm = []
    for k in range(6):
        acc = vr(ACC4 + 16 * k, 16)
        mm.append(('i', f'v_mfma_f32_32x32x16_bf16 {acc}, {ar(wb + 4 * (k // 4))}, {vr(FB + 16 * (st % 2) + 4 * (k % 4))}, {"0" if first else acc}'))
    return mm


WD_ADDR = {}


class WD:
    queued = 0
    landed = 0
    moved = 0
    freed = 0


def wd_space(addr, n):
    for k in range(n):
        if WD.queued < 43:
            WD_ADDR[WD.queued] = addr + k * 4096
            dma_1k(SRD_WD, V_WDD, WD.queued, addr + k * 4096, f'wd{WD.queued}')
            WD.queued += 1


def wd_est():
    n = WD.landed
    while n < WD.queued and f'wd{n}' not in {t for l, t in A.bg} and A.tagdone[f'wd{n}'] <= A.t + args.slack:
        n += 1
    return n


def wd_done():
    live = {t for t, o in A.vm} | {t for l, t in A.bg}
    n = 0
    while n < WD.queued and f'wd{n}' not in live:
        n += 1
    return n


def wd_pre(upto):
    upto = max(upto, WD.landed)
    if upto > WD.landed:
        A.wait_vm(f'wd{upto - 1}')
    WD.pend = upto


def wd_post():
    WD.landed = WD.pend
    while WD.freed < WD.moved:
        wd_space(WD_ADDR[WD.freed], 1)
        WD.freed += 1


def wd_addr(ks, ct, hf):
    off = WD_ADDR[ks] + hf * 1024
    return f'v{(16, 48, 52)[off >> 16] + ct} offset:{off & 0xffff}'


NWB = 23


def wd_reg(ks, ct, hf=None):
    k = ks % NWB
    f, b = (ar, 16 * k) if k < 16 else (vr, 144 + 16 * (k - 16))
    return f(b + 4 * ct) if hf is None else f(b + 4 * ct + 2 * hf, 2)


def tr_wd(ks):
    return [('i', f'ds_read_b64_tr_b16 {wd_reg(ks, ct, hf)}, {wd_addr(ks, ct, hf)}', f't{ks}')
            for ct in range(4) for hf in range(2)]


def wd_moves(limit):
    it = []
    while WD.moved < min(WD.landed, limit):
        it += tr_wd(WD.moved)
        WD.moved += 1
    return it


run(lines(tr_bases_t(16, f"""v_lshrrev_b32 v42, 1, {V_G}
          v_lshlrev_b32 v42, 4, v42
          v_and_b32 v43, 1, {V_G}
          v_lshl_add_u32 v42, v43, 2, v42
          v_add_u32 v42, v42, v40""", 'v_and_b32 v43, 6, v42', 0).replace('v40', 'v4').replace('v41', 'v5').replace('v42', 'v6').replace('v43', 'v7')))
for ct in range(4):
    e(f'v_add_u32 v{48 + ct}, 0x10000, v{16 + ct}')
    e(f'v_add_u32 v{52 + ct}, 0x20000, v{16 + ct}')
def hh_touch(k):
    so = (S_HST, S_HST, S_HST2, S_HST2, 's18', 's18')[k]
    touch([f's_add_u32 {S_BT}, {so}, {(k % 2) * 86 * 1024}'], V_L16, S_BT, 0, 'v[252:255]')


e(f'''s_lshr_b32 s14, {S_W}, 1
      s_add_u32 s14, s14, 4
      s_sub_u32 s14, s14, {S_W}
      s_lshl_b32 s14, s14, 10
      s_sub_u32 s13, {S_NU}, 2
      s_mul_i32 s14, s14, s13
      s_add_u32 s18, {S_HST}, s14''')
def gu_est():
    n = GU.landed
    while n < GU.queued and f'p4w{n}' not in {t for l, t in A.bg} and A.tagdone[f'p4w{n}'] <= A.t + args.slack:
        n += 1
    return n


A.wait_vm('y0')
gu_pre(max(gu_done(), gu_est(), 2))
A.wait_lg()
e('s_barrier')
gu_post()
fine('d0')
front(lambda: pieces(6))
run(rd4(0, 0) + movers(1))
wdn = 0
def glu(k, pk):
    b = ACC4 + 16 * k
    t = ''
    if pk:
        for r in range(0, 8, 2):
            t += f'v_pk_mul_f32 {vr(b + r, 2)}, {vr(b + r, 2)}, s[14:15] op_sel_hi:[1,0]\n'
    else:
        for r in range(8):
            t += f'v_mul_f32 v{b + r}, s14, v{b + r}\n'
    for r in range(8):
        t += f'v_exp_f32 v{b + r}, v{b + r}\n'
    if pk:
        for r in range(0, 8, 2):
            t += f'v_pk_add_f32 {vr(b + r, 2)}, {vr(b + r, 2)}, 1.0 op_sel_hi:[1,0]\n'
    else:
        for r in range(8):
            t += f'v_add_f32 v{b + r}, 1.0, v{b + r}\n'
    for r in range(8):
        t += f'v_rcp_f32 v{b + r}, v{b + r}\n'
    if pk:
        for r in range(0, 8, 2):
            t += f'v_pk_mul_f32 {vr(b + r, 2)}, {vr(b + r, 2)}, {vr(b + 8 + r, 2)}\n'
    else:
        for r in range(8):
            t += f'v_mul_f32 v{b + r}, v{b + r}, v{b + 8 + r}\n'
    for d in range(4):
        t += f'v_cvt_pk_bf16_f32 v{b + d}, v{b + 2 * d}, v{b + 2 * d + 1}\n'

    def st():
        st_ = f'buffer_store_dwordx4 {vr(b)}, {V_L16}, {SRD_WS}, {(S_HST, "s16", S_HST2, "s17", "s18", "s19")[k]} offen'
        if k >= 4:
            with nobg():
                ls = A.newlabel('L_sk')
                e(f's_cmp_lt_u32 {S_NU}, 3\n s_cbranch_scc1 {ls}')
                stores([st_], 'hst', optional=True, plain=args.ht)
                A.label(ls)
        else:
            stores([st_], 'hst', plain=args.ht)
    return lines(t) + [('f', st)]


NREG = 16
e(f'''s_mov_b32 s14, 0xbfb8aa3b
      s_add_u32 s16, {S_HST}, {86 * 1024}
      s_add_u32 s17, {S_HST2}, {86 * 1024}
      s_add_u32 s19, s18, {86 * 1024}''')
QL = 8 - args.tailq
NT = 4 * args.tailq


def rdt(i, u):
    q, st = QL + u // 4, u % 4
    n = (i * NT + u) % 8
    return ('i', f'ds_read_b128 {vr(FB + 32 + 4 * n)}, v{13 + i // 2} offset:{(q % 4) * 16384 + (st // 2) * 8192 + (i % 2) * 2048 + (st % 2) * 512}', f'r{i}_{u}')


def after_bar4(q):
    global wdn
    if q < 4:
        dma_h2(q + 4)
    if q < 3:
        c3(SRD_WD, q)
    if GU.freed >= 12 and wdn == 0:
        wd_space(L_S + 13 * 4096, 7)
        wd_space(LDS_TOTAL - 4096, 1)
        wdn = 7
    if GU.freed == 16 and wdn == 7:
        wd_space(L_S, 13)
        wdn = 20


for q in range(QL):
    main = []
    for st in range(3):
        main += [('wl', [f'g{st}', f'mv{2 * q + st // 2}'])] + interleave(mm4(q, st), rd4(q, st + 1), 0, 4)
    if q < 6 and args.ht:
        hh_touch(q)
        if True:
            A.bg.insert(min(len(A.bg) - 1, 4), A.bg.pop())
    run(interleave(interleave(main, movers(), 0, 10), wd_moves(min(2 * q, WD.moved + 4)), 2))
    last = q == QL - 1
    A.wait_vm('y7' if last else f'y{q + 1}')
    gu_pre(16 if last else max(gu_done(), gu_est(), 2 * q + 4))
    wd_pre(max(wd_done(), wd_est()))
    A.wait_lg()
    e('s_barrier')
    gu_post()
    if q % 2:
        fine(f'd{(q + 1) // 2}')
    after_bar4(q)
    if q >= 4:
        wd_space(L_H2 + (q - 4) * 16384, 4)
    wd_post()
    run(interleave(mm4(q, 3), (movers() + [rdt(0, u) for u in range(4)]) if last else (rd4(q + 1, 0) + movers(2 * q + 3)), 0, 5))
seq = [(i, u) for i in range(4) for u in range(NT)]
pend = []
for i in range(4):
    main = []
    for u in range(NT):
        n = i * NT + u
        ks, par = 2 * QL + u // 2, u % 2
        main.append(('wl', [f'r{i}_{u}', f'mv{ks}']))
        for k in ([4 + i, i] if i < 2 else [i]):
            acc = vr(ACC4 + 16 * k, 16)
            main.append(('i', f'v_mfma_f32_32x32x16_bf16 {acc}, {ar(16 * ks + 8 * par + 4 * (k // 4))}, {vr(FB + 32 + 4 * (n % 8))}, {acc}'))
        if n + 4 < len(seq):
            main.append(rdt(*seq[n + 4]))
    nm = sum(1 for it in main if it[0] == 'i' and it[1].startswith('v_mfma'))
    take = min(len(pend), (nm - 2) * args.gper)
    if i < 2:
        main = interleave(main, wd_moves(min(2 * QL, WD.moved + (6, 3)[i])), 0)
    run(interleave(main, pend[:take], 2))
    pend = pend[take:]
    if i in (0, 1, 3):
        wd_pre(max(wd_done(), wd_est()))
        A.wait_lg()
        e('s_barrier')
        GU.pend = 16
        gu_post()
        after_bar4(7)
        if i == 3:
            q0 = max(QL, 4)
            wd_space(L_H2 + (q0 - 4) * 16384, 16 - 4 * (q0 - 4))
        wd_post()
    if i == args.gcut:
        A.bg_on = False
    if i < 3:
        for k in ([4 + i, i] if i < 2 else [i]):
            pend += glu(k, args.gper == 0)
assert wdn == 20
stamp('gemm4')
run(pend)
run(glu(3, True))
fine('hst')
A.bg_flush(args.b4)
assert not any(t == 'gp' and 'v11' in l[-1] for l, t in A.bg)
e(f"""v_lshrrev_b32 v11, 1, {V_G}
      v_lshlrev_b32 v11, 10, v11
      v_and_b32 v5, 1, {V_G}
      v_lshl_add_u32 v11, v5, 9, v11
      v_lshl_add_u32 v11, {V_C}, 4, v11""")
run(wd_moves(16))
A.wait_lg()
publish_flag(192, 'hst')
WD.pend = wd_done()
wd_post()
e(poll_ld(192), tag='poll')
stamp('hpub')

A.bg_flush(args.b5)
run(wd_moves(NWB))
poll_check(192)
stamp('hwait')
print('wd: queued', WD.queued, 'landed', WD.landed, 'moved', WD.moved, file=sys.stderr)
assert WD.queued == 43
HA, ACC5, NH = 80, 64, 16
hl = []
for ks in range(43):
    pre = [f's_add_u32 s28, {S_HLD}, {ks * 2048}'] if ks % 2 == 0 else []
    hl.append((pre + [f'buffer_load_dwordx4 {vr(HA + 4 * (ks % NH))}, v11, {SRD_WS}, s28 offen offset:{(ks % 2) * 2048} sc1'], f'h{ks}'))
A.bg_flush()
A.bg = hl[:NH]
A.bg_flush(12)
A.bg_on = False
for ks in range(43):
    if WD.landed < 43 and (ks == args.kbar or WD.moved == WD.landed):
        A.wait_vm('wd42')
        e('s_barrier')
        WD.landed = 43
        fine('wdall')
    if WD.moved <= ks:
        run(wd_moves(ks + 2))
    n0 = len(A.ins)
    A.wait_vm(f'h{ks}')
    A.wait_lg(f't{ks}')
    if len(A.ins) == n0 + 2 and all(i.op == 's_waitcnt' for i in A.ins[n0:]):
        b_, a_ = A.ins.pop(), A.ins.pop()
        A._emit(a_.text + ' ' + b_.text.split(None, 1)[1], None, False)
    nxt = wd_moves(min(WD.moved + 1, ks + NWB + 1)) if (43 - WD.moved) * args.trsp >= (43 - ks - 6) * 10 or WD.moved - ks < 4 else []
    for ct in range(4):
        e(f'v_mfma_f32_16x16x32_bf16 {vr(ACC5 + 4 * ct)}, {wd_reg(ks, ct)}, {vr(HA + 4 * (ks % NH))}, {"0" if ks == 0 else vr(ACC5 + 4 * ct)}')
        if ct == 0:
            A.bg_flush(1)
        run(nxt[2 * ct:2 * ct + 2])
    if ks + NH < 43:
        A.bg.append(hl[ks + NH])
    if ks == 40:
        XF5 = 80
        for i in range(8):
            e(f'''v_lshlrev_b32 v{XF5 + 2 * i}, 16, v{X1P + i}
                  v_and_b32 v{XF5 + 2 * i + 1}, {S_HI}, v{X1P + i}''')
assert WD.moved == 43
A.bg_on = False
stamp('gemm5')
for b in range(0, 16, 2):
    e(f'v_pk_fma_f32 {vr(ACC5 + b, 2)}, {vr(ACC5 + b, 2)}, {vr(GB + b, 2)}, {vr(XF5 + b, 2)}')
for i in range(8):
    e(f'v_cvt_pk_bf16_f32 v{X1P + i}, v{ACC5 + 2 * i}, v{ACC5 + 2 * i + 1}')
for p in range(2):
    for d in range(2):
        e(f'v_permlane16_swap_b32 v{X1P + 4 * p + d}, v{X1P + 4 * p + 2 + d}')
for p in range(2):
    e(f'buffer_store_dwordx4 {vr(X1P + 4 * p)}, v{V_XO}, {SRD_OUT}, {S_XOFF} offen offset:{p * 64} {args.outm}')
if args.stamps:
    stamp('end')
    e(f'''s_lshl_b32 s12, s2, 2
          s_add_u32 s12, s12, {S_W}
          s_lshl_b32 s12, s12, 8
          s_add_u32 s12, s12, {WS_STAMP}
          v_lshlrev_b32 v4, 2, {V_LANE}
          buffer_store_dword {V_STAMP}, v4, {SRD_WS}, s12 offen''')
    if args.dbg >= 0:
        e(f'''s_lshl_b32 s12, s2, 2
              s_add_u32 s12, s12, {S_W}
              s_cmp_lg_u32 s12, {args.dbg * 4}
              s_cbranch_scc1 L_giveup
              s_load_dwordx2 s[14:15], s[0:1], 80
              v_readlane_b32 s12, {V_STAMP}, 0
              s_waitcnt lgkmcnt(0)
              v_subrev_u32 v5, s12, {V_STAMP}
              global_store_dword v4, v5, s[14:15]''')
if args.padto:
    e(f'''v_readlane_b32 s12, {V_STAMP}, 0
          s_add_u32 s12, s12, {args.padto}''')
    A.label('L_pad')
    e('''s_memrealtime s[14:15]
         s_waitcnt lgkmcnt(0)
         s_sub_u32 s13, s14, s12
         s_cmp_lt_i32 s13, 0
         s_cbranch_scc1 L_pad''')
A.label('L_giveup')
e('s_endpgm')
assert not A.bg and not PIECES

nn = A.pad_hazards()
hdr = open(f'cdna_kernels/{NAME}.s.ref').read().split('; Override launch')[0]
wrap = lambda body: hdr + f'''; @launch grid=(256,1,1) block=(256,1,1) lds={LDS_TOTAL}
.amdgcn_target "amdgcn-amd-amdhsa--gfx950"
.text
.globl {NAME}_kernel
.p2align 8
.type {NAME}_kernel,@function
{NAME}_kernel:
''' + body + f'''.rept 256
    s_endpgm
.endr
L_codeend:
.section .rodata,"a"
.p2align 6
.amdhsa_kernel {NAME}_kernel
  .amdhsa_next_free_vgpr 512
  .amdhsa_next_free_sgpr 102
  .amdhsa_accum_offset 256
  .amdhsa_group_segment_fixed_size 0
  .amdhsa_kernarg_size 96
  .amdhsa_user_sgpr_count 2
  .amdhsa_user_sgpr_kernarg_segment_ptr 1
  .amdhsa_system_sgpr_workgroup_id_x 1
.end_amdhsa_kernel
'''
if args.align:
    print('align', align_pass(A, wrap, args.align), file=sys.stderr)
out = wrap(A.text())
if args.stamps or args.stop1:
    out += '; stamps: ' + ','.join(stamp_names) + '\n'
open(args.o, 'w').write(out)
if args.vlog:
    ev = sorted([(t, 'S', n) for n, t in model] + [(t, 'V', f'{tag}->{c}') for t, c, tag in A.log])
    print(' '.join((f'\n=={n}@{int(t)}==' if k == 'S' else f'{int(t)}:{n}') for t, k, n in ev), file=sys.stderr)
print('nvm', len(A.log), file=sys.stderr)
print('model: ' + ' '.join(f'{n}:{int(t)}' for n, t in model), file=sys.stderr)
print(f'wrote {args.o}: {len(A.ins)} instructions, {nn} hazard nops', file=sys.stderr)
```

```python
import re

REG_RE = re.compile(r'\b([vas])(?:\[(\d+):(\d+)\]|(\d+))(?![\w])')


def regs_of(tok):
    out = set()
    t = tok.strip()
    if t in ('vcc',):
        return {('s', 'vcc')}
    if t in ('exec',):
        return {('s', 'exec')}
    if t == 'm0':
        return {('s', 'm0')}
    for m in REG_RE.finditer(t):
        k = m.group(1)
        if m.group(2) is not None:
            for i in range(int(m.group(2)), int(m.group(3)) + 1):
                out.add((k, i))
        else:
            out.add((k, int(m.group(4))))
    return out


TRANS = ('v_exp_f32', 'v_log_f32', 'v_rcp_f32', 'v_rsq_f32', 'v_sqrt_f32', 'v_sin_f32', 'v_cos_f32')


class Ins:
    def __init__(self, text):
        self.text = text
        t = text.split(';')[0].strip()
        self.is_label = t.endswith(':')
        self.is_dir = t.startswith('.')
        parts = t.split(None, 1)
        self.op = parts[0] if parts else ''
        rest = parts[1] if len(parts) > 1 else ''
        ops = [o.strip() for o in re.split(r',(?![^\[]*\])', rest)] if rest else []
        self.ops = ops
        op = self.op
        self.kind = 'other'
        self.wr = set()
        self.rd = set()
        self.mfma_c = set()
        self.mfma_ab = set()
        self.passes = 0
        if self.is_label or self.is_dir or not op:
            self.kind = 'label' if self.is_label else 'dir'
            return
        if op.startswith('v_mfma'):
            self.kind = 'mfma'
            self.wr = regs_of(ops[0])
            self.mfma_ab = regs_of(ops[1]) | regs_of(ops[2])
            self.mfma_c = regs_of(ops[3])
            self.rd = self.mfma_ab | self.mfma_c
            self.passes = 8 if '32x32' in op else 4
        elif op.startswith('v_'):
            self.kind = 'valu'
            base = op.replace('_e32', '').replace('_e64', '')
            if base.startswith('v_cmp'):
                self.wr = regs_of(ops[0])
                for o in ops[1:]:
                    self.rd |= regs_of(o)
            elif base in ('v_permlane16_swap_b32', 'v_permlane32_swap_b32', 'v_swap_b32'):
                self.wr = regs_of(ops[0]) | regs_of(ops[1])
                self.rd = set(self.wr)
            else:
                self.wr = regs_of(ops[0])
                start = 1
                if base in ('v_add_co_u32', 'v_addc_co_u32', 'v_sub_co_u32'):
                    self.wr |= regs_of(ops[1])
                    start = 2
                for o in ops[start:]:
                    self.rd |= regs_of(o)
                if base.startswith('v_fmac') or base.startswith('v_dot2c') or '_dpp' in base:
                    self.rd |= regs_of(ops[0])
            self.trans = base in TRANS
            self.dpp = '_dpp' in op
            self.perml = base.startswith('v_permlane')
            self.rdlane = base in ('v_readfirstlane_b32', 'v_readlane_b32')
            self.dot = base.startswith('v_dot2')
            self.base = base
        elif op.startswith('ds_'):
            self.kind = 'ds'
            if op.startswith('ds_read') or op.startswith('ds_bpermute') or op.startswith('ds_swizzle'):
                self.wr = regs_of(ops[0])
                for o in ops[1:]:
                    self.rd |= regs_of(o)
            else:
                for o in ops:
                    self.rd |= regs_of(o)
        elif op.startswith('buffer_') or op.startswith('global_'):
            self.kind = 'vmem'
            self.lds = bool(re.search(r'\blds\b', t)) or '_lds_' in op
            isload = '_load' in op
            if isload and not self.lds:
                self.wr = regs_of(ops[0])
                for o in ops[1:]:
                    self.rd |= regs_of(o)
            else:
                for o in ops:
                    self.rd |= regs_of(o)
            if self.lds:
                self.rd.add(('s', 'm0'))
            self.wide_store = ('_store_dwordx4' in op or '_store_dwordx3' in op)
            if self.wide_store:
                self.sdata = regs_of(ops[0]) if op.startswith('buffer_') else regs_of(ops[1])
        elif op.startswith('s_'):
            self.kind = 'salu'
            if op in ('s_nop', 's_waitcnt', 's_barrier', 's_branch', 's_endpgm', 's_sleep', 's_setprio') or op.startswith('s_cbranch'):
                pass
            elif op.startswith('s_cmp'):
                for o in ops:
                    self.rd |= regs_of(o)
            else:
                self.wr = regs_of(ops[0])
                for o in ops[1:]:
                    self.rd |= regs_of(o)
                if 'saveexec' in op:
                    self.wr.add(('s', 'exec'))

    def states(self):
        if self.kind in ('label', 'dir'):
            return 0
        if self.op == 's_nop':
            return int(self.ops[0], 0) + 1
        return 1


def need(p, c):
    n = 0
    isv = lambda s: {r for r in s if r[0] in 'va'}
    iss = lambda s: {r for r in s if r[0] == 's'}
    if p.kind == 'valu':
        wv = isv(p.wr)
        ws = iss(p.wr)
        if c.kind == 'mfma' and wv & c.rd:
            n = max(n, 3 if p.dot else 2)
        if c.kind == 'valu':
            if wv & c.rd:
                if p.trans and not c.trans:
                    n = max(n, 1)
                if c.dpp or c.perml:
                    n = max(n, 2)
                if c.rdlane:
                    n = max(n, 1)
                if p.dot and not (c.dot and c.base == p.base and not (wv & (regs_of(c.ops[1]) | regs_of(c.ops[2])))):
                    n = max(n, 3)
            if p.dot and (wv & c.wr) and not (c.dot and c.base == p.base):
                n = max(n, 3)
            if ws & c.rd:
                n = max(n, 4 if c.rdlane else 2)
            if ('s', 'exec') in ws:
                n = max(n, 5)
        if p.dot and c.kind in ('ds', 'vmem') and wv & c.rd:
            n = max(n, 3)
        if c.kind == 'vmem' and ws & c.rd:
            n = max(n, 5)
        if c.kind == 'salu' and ws & c.rd:
            n = max(n, 2)
        if c.kind == 'salu' and c.op in ('s_cbranch_vccz', 's_cbranch_vccnz') and ('s', 'vcc') in ws:
            n = max(n, 2)
    if p.kind == 'mfma':
        d = p.wr
        long_ = {4: 8, 8: 12}[p.passes]
        if c.kind == 'mfma':
            if d & c.mfma_ab:
                n = max(n, long_)
            if d & c.mfma_c and not (d == c.mfma_c and p.passes == c.passes):
                n = max(n, {4: 6, 8: 10}[p.passes])
            if d & c.wr and not (d == c.mfma_c and p.passes == c.passes):
                n = max(n, {4: 6, 8: 10}[p.passes])
        elif c.kind in ('valu', 'ds', 'vmem'):
            if d & (c.rd | c.wr):
                n = max(n, long_)
            if c.kind == 'valu' and (p.mfma_c & c.wr):
                n = max(n, {4: 3, 8: 7}[p.passes])
            if c.kind in ('ds', 'vmem') and (p.mfma_c & c.wr):
                n = max(n, {4: 3, 8: 7}[p.passes])
    if p.kind == 'salu':
        if ('s', 'm0') in p.wr and c.kind == 'vmem' and getattr(c, 'lds', False):
            n = max(n, 1)
    if p.kind == 'vmem' and getattr(p, 'wide_store', False):
        if c.kind in ('valu', 'mfma', 'ds', 'vmem') and (p.sdata & c.wr):
            n = max(n, 2)
    return n


class Asm:
    def __init__(self):
        self.ins = []
        self.vm = []
        self.lg = []
        self.smem = False
        self.nlabel = 0
        self.t = 0
        self.t_mf = 0
        self.t_vm = 0
        self.bg = []
        self.bg_on = False
        self.bg_gap = 72
        self.win = 11
        self.done = []
        self.tagdone = {}
        self.lat = {}
        self.drop = ()
        self.mf_scale = 1.42
        self.log = []

    def _emit(self, line, tag, optional):
        i = Ins(line)
        if i.kind in ('vmem', 'ds') and self.ins and self.ins[-1].kind == 'valu':
            self.t += 8
        if i.kind == 'valu' and (i.dot or i.op.startswith('v_pk_')):
            self.t = max(self.t, self.t_mf + 8)
        self.ins.append(i)
        if i.kind == 'vmem' and i.op not in ('buffer_wbl2', 'buffer_inv'):
            self.vm.append((tag, optional))
            key = (tag or '').rstrip('0123456789_')
            lat, wt = self.lat.get(key, (1100, 1.0))
            self.t = max(self.t, self.free_at(wt, 12.0))
            self.t = max(self.t + 8, self.t_vm + 64)
            self.t_vm = self.t
            c = max(self.t + lat, (self.done[-1][0] if self.done else 0) + 70 * wt)
            self.done.append((c, wt))
            self.log.append((self.t, int(c), tag))
            self.tagdone[tag] = c
        elif i.kind == 'ds':
            self.lg.append(tag)
            self.t += 16 if i.op.startswith('ds_write_b128') else 4
        elif i.kind == 'mfma':
            self.t = max(self.t, self.t_mf)
            self.t_mf = self.t + 4 * i.passes * self.mf_scale
            self.t += 8
        elif i.kind == 'valu':
            self.t += 8 if i.trans else 4
        elif i.kind == 'salu':
            self.t += 4
            if i.op.startswith('s_load') or i.op in ('s_memtime', 's_memrealtime'):
                self.smem = True
        return i

    def e(self, text, tag=None, optional=False):
        for line in text.strip().split('\n'):
            line = line.strip()
            if not line or line.startswith(';'):
                continue
            i = self._emit(line, tag, optional)
            if (i.kind == 'mfma' or (i.kind in ('valu', 'ds') and self.t >= self.t_mf)) and self.bg and self.bg_on and self.t - self.t_vm >= self.bg_gap and self.room():
                self.bg_pop()

    def free_at(self, wt, cap):
        acc = wt
        for c, w in reversed(self.done):
            acc += w
            if acc > cap + 1e-6:
                return c
        return 0

    def next_wt(self):
        return self.lat.get((self.bg[0][1] or '').rstrip('0123456789_'), (1100, 1.0))[1]

    def room(self, t=None):
        t = self.t if t is None else t
        return self.free_at(self.next_wt(), self.win) <= t

    def advance(self, dt, fill=True):
        if fill:
            end = self.t + dt
            while self.bg and self.room() and self.t + 64 < end:
                self.bg_pop()
            self.t = max(self.t, end)
        else:
            self.t += dt

    def bg_add(self, lines, tag=None):
        self.bg.append((lines, tag))

    def bg_pop(self):
        lines, tag = self.bg.pop(0)
        n0 = len(self.ins)
        for l in lines:
            self._emit(l, tag, False)
        if self.drop and (tag or '').startswith(self.drop):
            self.ins[-1] = Ins('s_nop 0')

    def bg_flush(self, n=None, upto=None):
        if upto is not None:
            tags = upto if isinstance(upto, (list, tuple, set)) else [upto]
            idx = [k for k, (l, t) in enumerate(self.bg) if t in tags]
            n = idx[-1] + 1 if idx else 0
        while self.bg and (n is None or n > 0):
            self.bg_pop()
            if n is not None:
                n -= 1

    def label(self, name):
        self.e(name + ':')

    def newlabel(self, base='L'):
        self.nlabel += 1
        return f'{base}_{self.nlabel}'

    def wait_vm(self, tag=None):
        if tag is None:
            self.e('s_waitcnt vmcnt(0)')
            self.vm = []
            return
        tags = tag if isinstance(tag, (list, tuple, set)) else [tag]
        self.bg_flush(upto=tags)
        last = -1
        for i, (t, o) in enumerate(self.vm):
            if t in tags:
                last = i
        if last < 0:
            return
        tgt = max(self.tagdone.get(t, 0) for t in tags)
        if self.bg_on:
            while self.bg and len(self.vm) - last - 1 < 40 and max(self.t, self.t_vm + 64, self.free_at(self.next_wt(), 12.0)) < tgt:
                self.bg_pop()
        n = sum(1 for (t, o) in self.vm[last + 1:] if not o)
        self.e(f's_waitcnt vmcnt({min(n, 63)})')
        self.t = max(self.t, tgt)
        self.vm = self.vm[last + 1:]

    def wait_lg(self, tag=None):
        if tag is None or self.smem:
            self.e('s_waitcnt lgkmcnt(0)')
            self.lg = []
            self.smem = False
            return
        tags = tag if isinstance(tag, (list, tuple, set)) else [tag]
        last = -1
        for i, t in enumerate(self.lg):
            if t in tags:
                last = i
        if last < 0:
            return
        n = len(self.lg) - last - 1
        self.e(f's_waitcnt lgkmcnt({min(n, 15)})')
        self.lg = self.lg[last + 1:]

    def pad_hazards(self):
        out = []
        branch_hist = {}
        WIN = 16
        nn = 0
        for ins in self.ins:
            if ins.kind == 'label':
                out.append(ins)
                continue
            if ins.kind == 'dir':
                out.append(ins)
                continue
            req = 0
            dist = 0
            k = len(out) - 1
            while k >= 0 and dist < WIN:
                p = out[k]
                if p.kind == 'label':
                    name = p.text.split(':')[0].strip()
                    for hist in branch_hist.get(name, []):
                        d2 = dist
                        for q in reversed(hist):
                            if d2 >= WIN:
                                break
                            r = need(q, ins)
                            if r > d2:
                                req = max(req, r - d2)
                            d2 += q.states()
                elif p.kind != 'dir':
                    r = need(p, ins)
                    if r > dist:
                        req = max(req, r - dist)
                    dist += p.states()
                k -= 1
            while req > 0:
                n = min(req, 16)
                out.append(Ins(f's_nop {n - 1}'))
                nn += 1
                req -= n
            out.append(ins)
            if ins.op.startswith('s_cbranch') or ins.op == 's_branch':
                tgt = ins.ops[0]
                hist = [q for q in out[-40:] if q.kind not in ('label', 'dir')]
                branch_hist.setdefault(tgt, []).append(hist)
        self.ins = out
        return nn

    def text(self):
        lines = []
        for i in self.ins:
            lines.append(i.text if i.kind == 'label' else '    ' + i.text)
        return '\n'.join(lines) + '\n'


def align_pass(asm_obj, wrap, thr=5):
    import subprocess
    src = wrap(asm_obj.text())
    open('_al.s', 'w').write(src)
    subprocess.run(['clang', '-x', 'assembler', '-target', 'amdgcn-amd-amdhsa', '-mcpu=gfx950', '-c', '_al.s', '-o', '_al.o'], check=True)
    dis = subprocess.run(['llvm-objdump', '-d', '--mcpu=gfx950', '_al.o'], capture_output=True, text=True).stdout
    sizes = []
    for l in dis.split('\n'):
        m = re.search(r'//\s*[0-9A-F]+:\s*((?:[0-9A-F]{8}\s*)+)', l)
        if m:
            sizes.append(4 * len(m.group(1).split()))
    real = [i for i in asm_obj.ins if i.kind not in ('label', 'dir')]
    for i, sz in zip(real, sizes):
        i.size = sz
    NOPROMO = ('v_readfirstlane', 'v_permlane', 'v_accvgpr', 'v_swap', 'v_nop', 'v_fmac', 'v_cndmask')
    off = 0
    cand = None
    n = bad = nn = 0
    ins_before = {}
    for k, i in enumerate(real):
        if i.size == 8 and off % 8 == 4:
            if cand is not None:
                parts = cand.text.split(None, 1)
                cand.text = parts[0] + '_e64 ' + parts[1]
                cand.size = 8
                off += 4
                n += 1
            else:
                run = 0
                while k + run < len(real) and real[k + run].size == 8:
                    run += 1
                if run >= thr:
                    ins_before[id(i)] = True
                    off += 4
                    nn += 1
                else:
                    bad += 1
        if i.size == 8:
            cand = None
        elif i.kind == 'valu' and not i.op.startswith(NOPROMO) and not i.op.endswith(('_e64', '_e32', '_dpp')):
            cand = i
        off += i.size
    out = []
    for i in asm_obj.ins:
        if id(i) in ins_before:
            out.append(Ins('s_nop 0'))
        out.append(i)
    asm_obj.ins = out
    return n, nn, bad
```

```python
import sys, argparse
from contextlib import contextmanager
from asmlib import Asm, align_pass

NAME = "adaLN_cond__sliding_local_dilated__glu_gated_glu__prompt"
ap = argparse.ArgumentParser()
ap.add_argument('-o', default=f'cdna_kernels/{NAME}.s')
ap.add_argument('--stamps', action='store_true')
ap.add_argument('--cyc', action='store_true')
ap.add_argument('--fine', action='store_true')
ap.add_argument('--slow', action='store_true')
ap.add_argument('--x', default='')
ap.add_argument('--vlog', action='store_true')
ap.add_argument('--align', type=int, default=5)
ap.add_argument('--stop1', action='store_true')
ap.add_argument('--outm', default='nt')
ap.add_argument('--plan', default='4030000')
ap.add_argument('--tb', default='0')
ap.add_argument('--touch', action='store_true')
ap.add_argument('--s1', action='store_true')
for k, d in dict(gapa=64, gapaware=1, c3=1, wmq=2, wmax=6, wmd=5, wmp=5, stop4=7, edf=1, lead=5, gck=5, pf4=8, late4=3, wm0=4, wm1=2, apk=1, padto=0, dbg=-1, otlb=1, jit1=0, trsp=99, w0=0, w1=0, pg=2, zero=1, pfx=0, pfy=0, pfz=0, x0=2, bpos=8, h2o=1, ot=0, ht=0, gpl=1800, acut=70, gap0=64, gap1=64, gap4=84, gap5=64, s0=4, pfe2=3, pf0=4, b1=9, b1d=0, b2a=0, b2c=6, b2d=3, y0=2, slack=0, b1c=10, b2=8, b2b=4, b3=12, b4=8, win=11, gcut=3, tailq=2, gper=3, b5=6, hfirst=0, kbar=8, lat0=2900).items():
    ap.add_argument('--' + k, type=int, default=d)
args = ap.parse_args()
args.wt = not args.touch

A = Asm()
e = A.e
A.win = args.win
A.lat = {'xpf': (args.lat0, 2.5), 'x': (650, 1), 'gp': (args.gpl, .4), 'mx': (1100, .3), 'gc': (1250, .5), 'gq': (1800, 1.5), 'mtb': (1500, .8), 'mt': (1800, .8), 'ost': (400 if args.ot else 800, .1), 'xst': (400 if args.h2o else 800, .1),
         'hst': (400 if args.ht else 800, .1), 'poll': (650, .1), 'xr': (800, 2), '': (400, .1), 'p4w': (1100, 1.35), 'stt': (1400, .25), 'st': (650, 1), 'sst': (400, .1), 'mg': (1100, .25),
         'm': (1100, 1), 'o': (650 if args.ot else 1100, 1), 'y': (650 if args.h2o else 1100, 1), 'h': (650 if args.ht else 1100, 1), 'tch': (1600, 1)}
model = []

WS_O = 0x30000
WS_X1 = 0x50000
WS_STATS = 0x70000
WS_HH = 0x80000
HH_PITCH = 0x2C000
WS_GRP = 0xF0000
WS_MODP = 0xE0000
WS_EPOCH = 0xEF000
WS_STAMP = 0x1000000
WS_SIZE = 0x1100000 if args.stamps else 0x1000000

L_STATS, L_RED, L_MODV, L_GAGB = 0x0, 0xA00, 0x1000, 0x2000
L_HRING = 0x3000
L_B = [0x3000, 0xF000, 0x1B000, 0xF000]
L_WO = 0x17000
L_H2 = 0x17000
BLK, MAT1 = 12416, 6176
L_S = 0x3000
L_WD = 0x3000
LDS_TOTAL = 163840

S_W, S_RB, S_M, S_J, S_TAG, S_FAST, S_XCC = 's4', 's5', 's6', 's7', 's8', 's9', 's11'
SRD_X, SRD_WQKV, SRD_WO, SRD_WG, SRD_WU, SRD_WD, SRD_WMOD, SRD_OUT, SRD_WS, SRD_C = [
    f's[{b}:{b + 3}]' for b in range(40, 80, 4)]
S_GRP, S_ONES, S_HI, S_SPIN = 's84', 's85', 's86', 's87'
S_XOFF, S_NU, S_U0, S_COL = 's88', 's89', 's90', 's91'
SRD_GU = 's[92:95]'
S_MM4, S_GUM, S_H2M = 's80', 's81', 's39'
S_OST, S_X1ST, S_HST, S_STST = 's96', 's97', 's98', 's99'
S_HST2 = 's83'
S_W3K, S_M128, S_BT, S_W1K = 's20', 's21', 's22', 's23'
S_OLD, S_X1LD, S_STLD, S_HLD = 's35', 's36', 's37', 's38'
V_LANE, V_L16, V_G, V_C = 'v0', 'v1', 'v2', 'v3'
V_DUM, V_STAMP = 'v10', 'v15'
V_WOD, V_P4D, V_OST, V_XO, V_WDD, V_GB = 56, 57, 60, 61, 62, 63
PD = 'v[116:119]'


def vr(b, n=4):
    return f'v[{b}:{b + n - 1}]'


def ar(b, n=4):
    return f'a[{b}:{b + n - 1}]'


@contextmanager
def nobg():
    old = A.bg_on
    A.bg_on = False
    yield
    A.bg_on = old


nstamp = [0]
stamp_names = []


def stamp(name=''):
    model.append((name, A.t))
    if not args.stamps:
        return
    with nobg():
        e('s_memtime s[100:101]' if args.cyc else 's_memrealtime s[100:101]')
        stamp_names.append(name)
        A.wait_lg()
        e(f'v_writelane_b32 {V_STAMP}, s100, {nstamp[0]}')
    nstamp[0] += 1


def fine(name):
    if args.fine:
        stamp(name)


def lines(t):
    return [('i', l.split(';')[0].strip()) for l in t.split('\n') if l.split(';')[0].strip()]


def run(items):
    for it in items:
        if it[0] == 'i':
            e(it[1], tag=it[2] if len(it) > 2 else None)
        elif it[0] == 'wl':
            A.wait_lg(it[1])
        elif it[0] == 'wv':
            A.wait_vm(it[1])
        elif it[0] == 'f':
            it[1]()
        else:
            raise ValueError(it)


def is_mem(it):
    return it[0] == 'f' or (it[0] == 'i' and it[1].startswith(('ds_', 'buffer_')))


def is_valu(it):
    return it[0] == 'i' and it[1].startswith('v_') and not it[1].startswith('v_mfma')


def interleave(main, fill, start=0, end=None, pred=lambda t: t.startswith('v_mfma')):
    slots = [i for i, it in enumerate(main) if it[0] == 'i' and pred(it[1])]
    slots = slots[start:end]
    sset = {i: k for k, i in enumerate(slots)}
    out = []
    n = len(slots)
    done = 0
    i = 0
    while i < len(main):
        out.append(main[i])
        if i in sset:
            k = sset[i] + 1
            while i + 1 < len(main) and is_mem(main[i + 1]) and (i + 1) not in sset:
                i += 1
                out.append(main[i])
            upto = (len(fill) * k + n - 1) // n
            valu = False
            while done < upto:
                it = fill[done]
                if is_mem(it) and valu and k < n and args.gapaware:
                    break
                valu = valu or is_valu(it)
                out.append(it)
                done += 1
        i += 1
    out.extend(fill[done:])
    return out


def cost(it):
    if it[0] != 'i':
        return 1
    if it[1].startswith('ds_write_b128'):
        return 3
    if it[1].startswith(('v_exp', 'v_rcp', 'v_rsq')):
        return 2
    return 1


def pack(main, fill, start=0, end=None):
    gaps = []
    idx = [i for i, it in enumerate(main) if it[0] == 'i' and it[1].startswith('v_mfma')]
    for a, i in enumerate(idx):
        nxt = idx[a + 1] if a + 1 < len(idx) else len(main)
        j = i
        while j + 1 < nxt and is_mem(main[j + 1]):
            j += 1
        gaps.append((j, sum(cost(x) for x in main[i + 1:nxt])))
    gaps = gaps[start:end]
    total = sum(cost(x) for x in fill) + sum(c for _, c in gaps)
    at = {}
    done = 0
    acc = 0.0
    per = total / len(gaps)
    for k, (j, c) in enumerate(gaps):
        acc += per - c
        lst = []
        valu = False
        while done < len(fill) and (acc >= cost(fill[done]) - 0.5 or k == len(gaps) - 1):
            it = fill[done]
            if is_mem(it) and valu and k < len(gaps) - 1:
                break
            valu = valu or is_valu(it)
            lst.append(it)
            acc -= cost(it)
            done += 1
        at[j] = lst
    out = []
    for i, it in enumerate(main):
        out.append(it)
        out.extend(at.get(i, []))
    return out


def spin_fail(lbl_loop):
    e(f'''s_sub_u32 {S_SPIN}, {S_SPIN}, 1
          s_cmp_eq_u32 {S_SPIN}, 0
          s_cbranch_scc1 L_giveup
          s_branch {lbl_loop}''')


def checked(tag, loads, check):
    A.wait_vm(tag)
    with nobg():
        lc, lp, ld = A.newlabel('L_c'), A.newlabel('L_p'), A.newlabel('L_d')
        save = (list(A.vm), list(A.done), A.t, A.t_vm, list(A.log))
        e(f's_branch {lc}')
        A.label(lp)
        for l in loads:
            e(l)
        A.wait_vm()
        A.vm, A.done, A.t, A.t_vm, A.log = save
        A.label(lc)
        check()
        e(f's_cbranch_vccz {ld}')
        spin_fail(lp)
        A.label(ld)


def stores(lst, tag, optional=False, plain=False):
    with nobg():
        if not plain:
            for t in lst:
                e(t + ' sc1', tag=tag, optional=optional)
            return
        l1, l2 = A.newlabel('L_st'), A.newlabel('L_st')
        e(f"""s_cmp_lg_u32 {S_FAST}, 0
              s_cbranch_scc1 {l1}""")
        save = (list(A.vm), list(A.done), A.t, A.t_vm, list(A.log))
        for t in lst:
            e(t + ' sc1')
        e(f's_branch {l2}')
        A.vm, A.done, A.t, A.t_vm, A.log = save
        A.label(l1)
        for t in lst:
            e(t, tag=tag, optional=optional)
        A.label(l2)


def touch(pre, va, so, off=0, dst=None):
    dst = dst or PD
    if True:
        A.bg_add(pre + [f'buffer_load_dwordx4 {dst}, {va}, {SRD_WS}, {so} offen offset:{off} sc1'], 'tch')


def publish_flag(off, tag):
    with nobg():
        e(f'''s_add_u32 s12, {S_MM4}, {S_GRP}
              v_mov_b32 v5, {S_TAG}''')
        if off == 64:
            e(f'''s_and_b32 s13, {S_MM4}, 32
                  v_and_b32 v9, 7, {V_LANE}
                  v_lshl_add_u32 v9, v9, 2, s13''')
        else:
            e(f'v_lshlrev_b32 v9, 2, {V_C}')
        A.wait_vm(tag)
        e('s_barrier')
        l1, l2 = A.newlabel('L_pf'), A.newlabel('L_pf')
        e(f'''s_cmp_lg_u32 {S_W}, 0
              s_cbranch_scc1 {l2}
              s_mov_b64 exec, 1
              s_cmp_lg_u32 {S_FAST}, 0
              s_cbranch_scc1 {l1}''')
        e(f'buffer_store_dword v5, off, {SRD_WS}, s12 offset:{off} sc1', optional=True)
        e(f'''s_mov_b64 exec, -1
              s_branch {l2}''')
        A.label(l1)
        e(f'buffer_store_dword v5, off, {SRD_WS}, s12 offset:{off}', optional=True)
        e('s_mov_b64 exec, -1')
        A.label(l2)


def poll_ld(off):
    return f'buffer_load_dword v8, v9, {SRD_WS}, {S_GRP} offen offset:{off} sc1'


def poll_check(off):
    with nobg():
        checked('poll', [poll_ld(off)], lambda: e(f'v_cmp_ne_u32 vcc, {S_TAG}, v8'))


def st_loads(t0):
    return [f'buffer_load_dwordx4 {vr(t0 + 4 * p)}, {V_L16}, {SRD_WS}, {S_STLD} offen offset:{p * 1024} sc1' for p in range(2)]


def mod_loads(va, t0):
    return [f'buffer_load_dwordx4 {vr(t0 + 4 * p)}, {va}, {SRD_WS}, s{24 + p} offen sc1' for p in range(4)]


def mod_check(va, t0, tag, lds_v, addone_v):
    def chk():
        e(f's_and_b32 s13, {S_TAG}, 0xff')
        for i in range(16):
            e(f'v_xor_b32 v{t0 + i}, s13, v{t0 + i}')
        e(f'v_or3_b32 v5, v{t0}, v{t0 + 1}, v{t0 + 2}')
        e(f'v_or3_b32 v6, v{t0 + 3}, v{t0 + 4}, v{t0 + 5}')
        for i in range(6, 14, 4):
            e(f'v_or3_b32 v5, v5, v{t0 + i}, v{t0 + i + 1}')
            e(f'v_or3_b32 v6, v6, v{t0 + i + 2}, v{t0 + i + 3}')
        e(f'v_or3_b32 v5, v5, v{t0 + 14}, v{t0 + 15}')
        e(f'''v_or_b32 v5, v5, v6
              v_and_b32 v5, 0xff, v5
              v_cmp_ne_u32 vcc, 0, v5''')
    checked(tag, mod_loads(va, t0), chk)
    for i in range(0, 4, 2):
        e(f'v_pk_add_f32 {vr(t0 + i, 2)}, {vr(t0 + i, 2)}, {vr(t0 + 4 + i, 2)}')
        e(f'v_pk_add_f32 {vr(t0 + 8 + i, 2)}, {vr(t0 + 8 + i, 2)}, {vr(t0 + 12 + i, 2)}')
    for i in range(0, 4, 2):
        e(f'v_pk_add_f32 {vr(t0 + i, 2)}, {vr(t0 + i, 2)}, {vr(t0 + 8 + i, 2)}')
    for rnd in range(2):
        e(f'v_cvt_pk_bf16_f32 v5, v{t0}, v{t0 + 1}')
        e(f'v_cvt_pk_bf16_f32 v6, v{t0 + 2}, v{t0 + 3}')
        e(f'v_lshlrev_b32 v{t0}, 16, v5')
        e(f'v_and_b32 v{t0 + 1}, {S_HI}, v5')
        e(f'v_lshlrev_b32 v{t0 + 2}, 16, v6')
        e(f'v_and_b32 v{t0 + 3}, {S_HI}, v6')
        if rnd == 0:
            if addone_v is None:
                break
            for i in range(4):
                e(f'v_add_f32 v{t0 + i}, v{t0 + i}, {addone_v}')
    e(f'ds_write_b128 {lds_v}, {vr(t0)}', tag='modw')


def mod_task_loads(base, cond, tag, rr=vr, va='v74', vc='v75'):
    l = A.newlabel('L_ml')
    with nobg():
        e(cond + f'\n s_cbranch_scc0 {l}')
        e(f'buffer_load_dwordx2 {rr(base + 16, 2)}, {vc}, {SRD_C}, s33 offen', tag=tag, optional=True)
        for i in range(4):
            e(f'buffer_load_dwordx4 {rr(base + 4 * i)}, {va}, {SRD_WMOD}, s{29 + i} offen', tag=tag, optional=True)
        A.label(l)


def mod_part1(base, t, ad, from_a=None, c0=None, fma=False):
    x = ''
    c0 = c0 or base + 16
    if from_a is not None:
        for i in range(18):
            x += f'v_accvgpr_read_b32 v{base + i if i < 16 else c0 + i - 16}, a{from_a + i}\n'
    x += f"""v_lshlrev_b32 v{t + 8}, 16, v{c0}
          v_and_b32 v{t + 9}, {S_HI}, v{c0}
          v_lshlrev_b32 v{t + 10}, 16, v{c0 + 1}
          v_and_b32 v{t + 11}, {S_HI}, v{c0 + 1}
          """
    for op in ('v_mul_f32 v{a}, 0xbfb8aa3b, v{b}', 'v_exp_f32 v{a}, v{a}', 'v_add_f32 v{a}, 1.0, v{a}', 'v_rcp_f32 v{a}, v{a}', 'v_mul_f32 v{b}, v{b}, v{a}'):
        for i in range(4):
            x += op.format(a=t + 12 + i, b=t + 8 + i) + '\n'
    MA = t + 8
    if fma:
        for i in range(4):
            x += f'v_cvt_pk_bf16_f32 v{t + i}, 0, v{t + 8 + i}\n'
        for i in range(4):
            for d in range(4):
                x += f'v_lshlrev_b32 v{t + 4}, 16, v{base + 4 * i + d}\n v_and_b32 v{t + 5}, {S_HI}, v{base + 4 * i + d}\n'
                for h in range(2):
                    if i == 0:
                        x += f'v_mul_f32 v{MA + 2 * d + h}, v{t + 4 + h}, v{t + i}\n'
                    else:
                        x += f'v_fma_f32 v{MA + 2 * d + h}, v{t + 4 + h}, v{t + i}, v{MA + 2 * d + h}\n'
    else:
        for i in range(4):
            x += f'v_cvt_pk_bf16_f32 v{t + i}, v{t + 8 + i}, 0\n'
            x += f'v_cvt_pk_bf16_f32 v{t + 4 + i}, 0, v{t + 8 + i}\n'
        for i in range(4):
            for d in range(4):
                for h in range(2):
                    src2 = '0' if i == 0 else f'v{MA + 2 * d + h}'
                    x += f'v_dot2_f32_bf16 v{MA + 2 * d + h}, v{base + 4 * i + d}, v{t + 4 * h + i}, {src2}\n'
    x += f"""v_and_b32 v{ad}, 7, {V_LANE}
          v_lshlrev_b32 v{ad}, 5, v{ad}
          v_and_b32 v{ad + 1}, 1, {V_G}
          v_lshl_add_u32 v{ad}, v{ad + 1}, 3, v{ad}
          """
    for p in range(4):
        x += f'v_permlane32_swap_b32 v{MA + 2 * p}, v{MA + 2 * p + 1}\n'
    for p in range(4):
        x += f'v_add_f32 v{MA + 2 * p}, v{MA + 2 * p}, v{MA + 2 * p + 1}\n'
    x += f"""v_lshrrev_b32 v{ad + 1}, 1, {V_G}
          v_lshl_add_u32 v{ad}, v{ad + 1}, 2, v{ad}
          """
    for p in range(2):
        x += f'v_permlane16_swap_b32 v{MA + 4 * p}, v{MA + 4 * p + 2}\n'
    for p in range(2):
        x += f'v_add_f32 v{MA + 4 * p}, v{MA + 4 * p}, v{MA + 4 * p + 2}\n'
    x += f"""s_lshl_b32 s28, {S_W}, 8
          v_add_u32 v{ad}, s28, v{ad}
          """
    for p in range(2):
        x += f'v_add_f32_dpp v{MA + 4 * p + 1}, v{MA + 4 * p}, v{MA + 4 * p} row_ror:8 row_mask:0xf bank_mask:0xf\n'
    x += f'ds_write_b32 v{ad}, v{MA + 1} offset:{L_RED}\n'
    x += f'ds_write_b32 v{ad}, v{MA + 5} offset:{L_RED + 16}\n'
    return lines(x)


def mod_part2(base, lm, wave):
    e(f"""s_cmp_lg_u32 {S_W}, {wave}
          s_cbranch_scc1 {lm}
          v_lshlrev_b32 v4, 4, {V_C}""")
    for w in range(4):
        e(f'ds_read_b128 {vr(base + 4 * w)}, v4 offset:{L_RED + w * 256}')
    e(f"""s_and_b32 s13, {S_TAG}, 0xff
          s_mov_b32 s14, 0xffffff00
          v_mov_b32 v5, s13
          s_and_b32 s12, s3, 3
          s_mul_i32 s12, s12, 12288
          s_lshr_b32 s13, s3, 2
          s_lshl_b32 s13, s13, 8
          s_add_u32 s12, s12, s13
          s_add_u32 s12, s12, {WS_MODP}""")
    e('s_waitcnt lgkmcnt(0)')
    for i in range(0, 4, 2):
        e(f'v_pk_add_f32 {vr(base + i, 2)}, {vr(base + i, 2)}, {vr(base + 4 + i, 2)}')
        e(f'v_pk_add_f32 {vr(base + 8 + i, 2)}, {vr(base + 8 + i, 2)}, {vr(base + 12 + i, 2)}')
    for i in range(0, 4, 2):
        e(f'v_pk_add_f32 {vr(base + i, 2)}, {vr(base + i, 2)}, {vr(base + 8 + i, 2)}')
    for i in range(4):
        e(f'v_and_or_b32 v{base + i}, v{base + i}, s14, v5')
    e('s_mov_b64 exec, 0xffff')
    e(f'buffer_store_dwordx4 {vr(base)}, v4, {SRD_WS}, s12 offen sc1', optional=True)
    e('s_mov_b64 exec, -1')
    e('s_nop 0')


def dma_wqkv(j):
    for pos in range(4):
        ks = 4 * pos + j
        for mat in range(3):
            pre = [f's_add_u32 m0, {S_W3K}, {L_B[j] + pos * 12288}', f's_add_u32 {S_BT}, {S_M128}, {ks * 32 * 3072}'] if mat == 0 else []
            A.bg_add(pre + [f'buffer_load_dwordx4 v8, {SRD_WQKV}, {S_BT} offen offset:{mat * 1024} lds'], f'wq{j}')


def tr_wqkv(j):
    it = [('i', f'v_add_u32 v9, {(L_B[j] - L_B[j - 1]) & 0xffffffff}, v9')] if j else []
    return it + [('i', f'ds_read_b64_tr_b16 {ar(((j * 4 + pos) * 3 + mat) * 4 + hf * 2, 2)}, v9 offset:{pos * 12288 + mat * 1024 + hf * 512}', f'trq{j}_{pos}')
                 for pos in range(4) for mat in range(3) for hf in range(2)]


def dma_1k(srd, vreg, ks, ldsaddr, tag):
    A.bg_add([f's_add_u32 m0, {S_W1K}, {ldsaddr}', f's_add_u32 {S_BT}, {S_M128}, {ks * 32768}',
              f'buffer_load_dwordx4 v{vreg}, {srd}, {S_BT} offen lds'], tag)


def dma_p4(n):
    for i in range(3):
        A.bg_add([f's_add_u32 m0, {S_GUM}, {(n % 6) * BLK + i * 1024}', f's_add_u32 {S_BT}, {S_COL}, {n * 32 * 2752}',
                  f'buffer_load_dwordx4 v{V_P4D + i}, {SRD_GU}, {S_BT} offen lds'], f'p4w{n}')


class GU:
    queued = 0
    landed = 0
    moved = 0
    freed = 0


def gu_queue():
    while GU.queued < 16 and GU.queued < GU.freed + 6:
        dma_p4(GU.queued)
        GU.queued += 1


def gu_pre(upto):
    upto = max(upto, GU.landed)
    assert upto <= GU.queued
    if upto > GU.landed:
        A.wait_vm(f'p4w{upto - 1}')
    GU.pend = upto


def gu_post(lg_waited=True):
    GU.landed = GU.pend
    if lg_waited:
        GU.freed = GU.moved
    gu_queue()


def gu_done():
    live = {t for t, o in A.vm} | {t for l, t in A.bg}
    n = 0
    while n < GU.queued and f'p4w{n}' not in live:
        n += 1
    return n


def mover(n):
    return [('i', f'ds_read_b64_tr_b16 {ar(16 * n + 8 * i + 4 * mat + 2 * hf, 2)}, v{20 + i + 2 * ((n % 6) // 3)} offset:{(n % 3) * BLK + mat * MAT1 + hf * 16 * 192}', f'mv{n}')
            for i in range(2) for mat in range(2) for hf in range(2)]


def movers(limit=16):
    it = []
    while GU.moved < min(GU.landed, limit):
        it += mover(GU.moved)
        GU.moved += 1
    return it


def front(f):
    rest = list(A.bg)
    A.bg = []
    f()
    A.bg += rest


def c3(srd, piece):
    if args.c3:
        lo = srd[2:srd.index(':')]
        A.bg_add([f's_sub_u32 {S_BT}, 0x180, s{lo}', f's_and_b32 {S_BT}, {S_BT}, 0x380', f's_add_u32 {S_BT}, {S_BT}, {piece * 524288}',
                  f'buffer_load_dword {V_DUM}, {C3[0]}, {srd}, {S_BT} offen'], 'gc')


C3 = ['v55']


def gpf(srd, base):
    A.bg_add([f's_mov_b32 {S_BT}, {base}', f'buffer_load_dword {V_DUM}, v11, {srd}, {S_BT} offen'], 'gp')


Q = 128 * 2752
PIECES = [[(SRD_WO, 0), (SRD_WO, 393216)]] + [[(SRD_WG, q * Q), (SRD_WU, q * Q)] for q in range(4)] + \
         [[(SRD_WD, 0), (SRD_WD, 393216)], [(SRD_WD, 2 * 393216), (SRD_WD, 3 * 393216)]]


PLAN = [int(c) for c in args.plan]


def pieces(point):
    for k in range(PLAN[point]):
        for p in PIECES.pop(0):
            gpf(*p)


def bg_mix(every, first=0):
    old = A.bg
    A.bg = []
    k = first
    for it in old:
        if len(it[0]) > 1 and k >= every and PIECES:
            for p in PIECES.pop(0):
                gpf(*p)
            k = 0
        A.bg.append(it)
        k += 1


XRES, GAL, TRB = 88, 136, 84
MK, ONE = 168, 184


L_MASK, L_TRB = 0x27000, 0x2800


def tr_bases_t(dst, rowt, ft, ldsbase):
    t = f'''v_bfe_u32 v40, {V_LANE}, 2, 2
          v_and_b32 v41, 3, {V_LANE}
          {rowt}
          {ft}
          v_lshlrev_b32 v42, 7, v42
          v_and_b32 v40, 1, v41
          v_lshl_add_u32 v42, v40, 3, v42
          v_add_u32 v42, {ldsbase}, v42
          v_lshrrev_b32 v41, 1, v41
          '''
    for ct in range(4):
        t += f'''v_add_u32 v40, {2 * ct}, v41
              v_xor_b32 v40, v40, v43
              v_lshl_add_u32 v{dst + ct}, v40, 4, v42
              '''
    return t


def late_items():
    t = f"""v_lshlrev_b32 v80, 4, {V_C}
          v_lshl_add_u32 v80, {V_G}, 11, v80
          s_lshl_b32 s12, {S_M}, 8
          s_add_u32 s12, s12, {1024 * 4}
          v_add_u32 v80, s12, v80
          v_mov_b32 v81, v55
          s_add_u32 s12, {S_W1K}, {L_MODV}
          v_add_u32 v82, s12, {V_L16}
          v_cmp_eq_u32 vcc, 2, {V_G}
          v_mov_b32 v83, 0
          s_nop 0
          v_cndmask_b32 v83, v83, 1.0, vcc
          """
    t += tr_bases_t(TRB, f'v_lshl_add_u32 v42, {V_G}, 3, v40',
                    f'v_and_b32 v43, 2, v40\n v_and_b32 v44, 1, {V_G}\n v_lshl_add_u32 v43, v44, 2, v43', L_WO)
    return lines(t)


def mask_items():
    t = f'''s_sub_u32 s13, {S_RB}, 1
            s_lshr_b32 s13, s13, 31
            s_lshl_b32 s13, s13, 6
            s_mov_b32 s12, 0xf149f2ca
            v_lshlrev_b32 v40, 2, {V_G}
            v_mov_b32 v42, s12
         '''
    for r in range(4):
        t += f'''v_add_u32 v41, {r}, v40
          v_sub_u32 v43, {V_C}, v41
          v_cmp_gt_u32 vcc, 8, v43
          v_cmp_ge_i32 s[14:15], -9, v43
          v_add_u32 v43, s13, v43
          v_cndmask_b32 v{MK + r}, v42, 0, vcc
          v_cndmask_b32 v{MK + 4 + r}, v42, 0, s[14:15]
          v_cmp_ge_i32 vcc, -9, v43
          v_cmp_gt_i32 s[14:15], 0, v43
          v_cmp_lt_u32 s[18:19], 7, v41
          v_cndmask_b32 v{MK + 12 + r}, v42, 0, vcc
          v_cndmask_b32 v{MK + 8 + r}, v42, 0, s[14:15]
          v_cndmask_b32 v{MK + 8 + r}, v{MK + 8 + r}, v42, s[18:19]
          '''
    return lines(t)


srds = [(40, 0, 2048 * 1024), (64, 64, 512 * 6144), (76, 56, 1024), (44, 8, 512 * 3072), (72, 88, WS_SIZE), (48, 16, 512 * 1024),
        (52, 32, 512 * 2752), (56, 40, 512 * 2752), (60, 48, 1376 * 1024), (68, 72, 2048 * 1024)]
MW, XN, XRAW = 16, 80, 160
e(f"""s_cmp_ge_u32 s2, 256
      s_cbranch_scc1 L_giveup
      {'s_memtime s[100:101]' if args.cyc else 's_memrealtime s[100:101]' if args.stamps else ''}""")
for (d, off, sz) in srds[:5]:
    e(f's_load_dwordx2 s[{d}:{d + 1}], s[0:1], {off}')
e(f"""v_lshrrev_b32 v2, 6, v0
      v_and_b32 v0, 63, v0
      v_readfirstlane_b32 {S_W}, v2
      s_lshr_b32 {S_J}, s2, 3
      s_and_b32 s3, s2, 7
      s_lshr_b32 s10, {S_J}, 3
      s_lshl_b32 {S_RB}, s3, 2
      s_add_u32 {S_RB}, {S_RB}, s10
      s_and_b32 {S_M}, {S_J}, 7
      s_lshl_b32 s12, {S_M}, 2
      s_add_u32 s12, s12, {S_W}
      s_mul_i32 s12, s12, 20
      s_lshl_b32 s13, {S_RB}, 9
      s_add_u32 s12, s12, s13
      s_addk_i32 s12, -128
      v_add_lshl_u32 v7, s12, {V_LANE}, 7
      v_cmp_gt_u32 vcc, 20, {V_LANE}
      v_bfrev_b32 v6, -2
      s_mov_b32 s34, 0x20000
      s_mov_b32 s42, {2048 * 1024}
      v_cndmask_b32 v14, v6, v7, vcc
      s_mov_b32 s43, s34
      s_getpc_b64 s[14:15]
      v_lshlrev_b32 {V_L16}, 4, {V_LANE}
      s_lshl_b32 s12, {S_J}, 2
      s_add_u32 s12, s12, {S_W}
      s_and_b32 s12, s12, 63
      s_min_u32 s12, s12, (L_codeend-{NAME}_kernel)/1024-1
      s_lshl_b32 s12, s12, 10
      s_and_b32 s14, s14, 0xffffff00
      v_add_u32 v4, s12, {V_L16}""")
e(f'global_load_dwordx4 a[244:247], v4, s[14:15]')
A.wait_lg()
A.t = 1100
e(f'buffer_load_dword {V_DUM}, v14, {SRD_X}, 0 offen', tag='xpf')
if args.stamps:
    e(f'v_mov_b32 {V_STAMP}, 0')
    e(f'v_writelane_b32 {V_STAMP}, s100, 0')
    stamp_names.append('entry'); nstamp[0] += 1
e(f's_load_dword s8, s[72:73], {WS_EPOCH}')
for (d, off, sz) in srds[5:]:
    e(f's_load_dwordx2 s[{d}:{d + 1}], s[0:1], {off}')
for (d, off, sz) in srds[1:4]:
    e(f"""s_mov_b32 s{d + 2}, {sz}
          s_mov_b32 s{d + 3}, s34""")
e(f"""s_and_b32 s10, {S_J}, 3
      s_lshr_b32 s12, {S_J}, 2
      s_lshl_b32 s13, s12, 1
      s_add_u32 s13, s13, s10
      s_add_u32 s13, s13, 7
      s_cmp_eq_u32 s10, 0
      s_cselect_b32 s12, s12, s13
      s_lshl_b32 s12, s12, 3
      s_add_u32 s3, s3, s12
      s_lshl_b32 s12, {S_W}, 3
      v_lshrrev_b32 v76, 3, {V_LANE}
      v_add_u32 v76, s12, v76
      v_and_b32 v77, 7, {V_LANE}
      v_lshlrev_b32 v75, 3, v76
      v_mul_u32_u24 v74, {4 * 6144}, v76
      v_lshl_add_u32 v74, v77, 4, v74
      s_and_b32 s13, s3, 3
      s_lshr_b32 s14, s3, 2
      s_mul_i32 s29, s13, {128 * 6144}
      s_lshl_b32 s30, s14, 7
      s_add_u32 s29, s29, s30
      s_lshl_b32 s33, s13, 8
      s_add_u32 s30, s29, 6144
      s_add_u32 s31, s29, {2 * 6144}
      s_add_u32 s32, s29, {3 * 6144}""")
COND_A = 's_cmp_eq_u32 s10, 0'
COND_B = 's_sub_u32 s12, s10, 1\n s_cmp_lt_u32 s12, 2'
mod_task_loads(MW, COND_A, 'mt')
e(f"""s_lshl_b32 s15, s2, 2
      s_add_u32 s15, s15, {S_W}
      s_mul_i32 s12, s15, 12
      v_add_lshl_u32 v7, s12, {V_LANE}, 7
      v_cmp_gt_u32 vcc, 12, {V_LANE}
      v_lshrrev_b32 v12, 2, {V_LANE}        ; c4   (x lane map: c4 = l/4, g4 = l%4)
      v_and_b32 v13, 3, {V_LANE}            ; g4
      v_cndmask_b32 v54, v6, v7, vcc
      s_lshl_b32 s12, {S_J}, 2
      s_add_u32 s12, s12, {S_W}
      s_lshl_b32 s12, s12, 2
      v_add_lshl_u32 v7, s12, {V_LANE}, 10
      v_cmp_gt_u32 vcc, 4, {V_LANE}
      s_nop 1
      v_cndmask_b32 v55, v6, v7, vcc
      v_lshlrev_b32 v4, 11, v12
      v_lshl_add_u32 v4, v13, 4, v4
      s_lshl_b32 s16, {S_RB}, 16
      s_lshl_b32 s17, {S_W}, 8
      s_add_u32 s16, s16, s17
      s_add_u32 s18, s16, 32768""")


def xload(T, j, bg=False):
    q = 5 * j + T
    if T < 4:
        l = f'buffer_load_dwordx4 {vr(XN + 8 * q + 4)}, v4, {SRD_X}, {"s16" if T < 2 else "s18"} offen offset:{(T % 2) * 1024 + j * 64}'
    else:
        l = f'buffer_load_dwordx4 {vr(XN + 8 * q + 4)}, v5, {SRD_X}, s17 offen offset:{j * 64}'
    if bg:
        A.bg_add([l], f'x{T}')
    else:
        e(l, tag=f'x{T}')


def issue_gq(pos):
    if pos == args.pg:
        e(f'buffer_load_dword {V_DUM}, v54, {SRD_WQKV}, 0 offen', tag='gq')
        for k in range(3):
            c3(SRD_WQKV, k)
        A.bg_flush()


issue_gq(0)
e(f"""      v_bfe_u32 v5, {V_LANE}, 4, 1
      s_and_b32 s12, {S_W}, 1
      s_lshl_b32 s12, s12, 1
      v_add_u32 v5, s12, v5
      v_lshlrev_b32 v5, 1, v5
      v_xor_b32 v5, v77, v5
      v_lshlrev_b32 v5, 4, v5
      v_mul_u32_u24 v8, 3072, v76
      v_add_u32 v8, v8, v5
      v_lshl_add_u32 v{V_WOD}, v76, 10, v5
      s_mul_i32 {S_W3K}, {S_W}, 3072
      s_lshl_b32 {S_M128}, {S_M}, 7
""")
dma_wqkv(0)
A.bg_flush(args.w0)
extra = [A.bg.pop(0) for _ in range(args.w1)]
W0REST = list(A.bg)
A.bg = []
if extra:
    ln = A.newlabel('L_e')
    sv = (list(A.vm), A.t, A.t_vm, list(A.done), list(A.log))
    e(COND_A + f'\n s_cbranch_scc1 {ln}')
    for l_, t_ in extra:
        for l in l_:
            e(l, tag=t_)
    A.label(ln)
    A.vm, A.t, A.t_vm, A.done, A.log = sv
for j in range(args.x0):
    xload(0, j)
fine('start')

for (d, off, sz) in srds[4:]:
    e(f"""s_mov_b32 s{d + 2}, {sz}
          s_mov_b32 s{d + 3}, s34""")
e(f"""s_mul_i32 s12, s15, 3
      v_add_lshl_u32 v7, s12, {V_LANE}, 7
      v_cmp_gt_u32 vcc, 3, {V_LANE}
      v_lshrrev_b32 {V_G}, 4, {V_LANE}
      v_and_b32 {V_C}, 15, {V_LANE}
      v_cndmask_b32 v11, v6, v7, vcc
      v_lshlrev_b32 v5, 1, v12
      v_cmp_lt_u32 vcc, 7, v12
      v_mov_b32 v6, -16
      v_mov_b32 v7, -31
      s_lshl_b32 s15, {S_RB}, 6
      v_cndmask_b32 v6, v6, v7, vcc
      v_add3_u32 v5, v5, v6, s15
      v_max_i32 v5, 0, v5
      v_lshlrev_b32 v5, 10, v5
      v_lshl_add_u32 v5, v13, 4, v5
      v_lshlrev_b32 v6, 1, {V_G}
      v_xor_b32 v6, v77, v6
      v_lshlrev_b32 v6, 4, v6
      v_lshl_add_u32 v{V_WDD}, v76, 10, v6
      s_lshl_b32 {S_W1K}, {S_W}, 10
      s_getreg_b32 {S_XCC}, hwreg(HW_REG_XCC_ID)
      s_and_b32 {S_XCC}, {S_XCC}, 15
      s_mov_b32 {S_ONES}, 0x3f803f80
      s_mov_b32 {S_HI}, 0xffff0000
      s_mov_b32 {S_SPIN}, 0x40000
      s_lshr_b32 {S_GRP}, {S_RB}, 1
      s_lshl_b32 s82, {S_GRP}, 20
      s_add_u32 {S_GRP}, s82, {WS_GRP}
      v_bfe_u32 v78, {V_LANE}, 2, 2          ; r4
      v_mul_u32_u24 v9, 3072, {V_G}
      v_lshl_add_u32 v9, v78, 7, v9
      v_and_b32 v78, 2, v78
      v_and_b32 v6, 1, {V_G}
      v_lshl_add_u32 v78, v6, 2, v78         ; 2f
      v_lshrrev_b32 v6, 1, v13               ; cc/2
      s_lshl_b32 s12, {S_W}, 1
      v_add_u32 v6, s12, v6
      v_xor_b32 v6, v6, v78
      v_lshl_add_u32 v9, v6, 4, v9
      v_and_b32 v79, 1, v13
      v_lshl_add_u32 v9, v79, 3, v9
      v_add_u32 v9, {L_B[0]}, v9""")
for p in range(4):
    e(f's_mov_b32 s{24 + p}, {WS_MODP + p * 12288}')
issue_gq(1)
e(f's_mov_b32 s12, {(1 << 32) // 12 + 1}')
for i in range(3):
    e(f"""v_add_u32 v6, {64 * i}, {V_LANE}
          v_mul_hi_u32 v7, v6, s12
          v_mul_u32_u24 v78, 12, v7
          v_sub_u32 v6, v6, v78
          v_lshrrev_b32 v78, 1, v7
          v_and_b32 v78, 2, v78
          v_xor_b32 v6, v6, v78
          v_mul_u32_u24 v7, 2752, v7
          v_lshl_add_u32 v{V_P4D + i}, v6, 4, v7
          v_lshlrev_b32 v{44 + i}, 27, v6""")
e(f"""s_and_b32 s12, {S_RB}, 1
      s_lshl_b32 s12, s12, 3
      s_add_u32 s12, s12, {S_M}
      s_lshl_b32 {S_MM4}, s12, 2
      s_mul_i32 s12, s12, 43
      s_add_u32 s13, s12, 43
      s_lshr_b32 s12, s12, 4
      s_lshr_b32 s13, s13, 4
      s_sub_u32 {S_NU}, s13, s12
      s_lshl_b32 {S_U0}, s12, 1
      s_sub_u32 s13, 3, {S_NU}
      s_mul_i32 s13, s13, {0x40000000 * args.zero}
      v_and_or_b32 v{V_P4D}, v44, s13, v{V_P4D}
      v_and_or_b32 v{V_P4D + 1}, v45, s13, v{V_P4D + 1}
      v_and_or_b32 v{V_P4D + 2}, v46, s13, v{V_P4D + 2}
      s_lshr_b32 s13, {S_W}, 1
      s_mul_i32 s14, s13, {16 * 2752}
      s_lshl_b32 {S_COL}, s12, 6
      s_add_u32 {S_COL}, {S_COL}, s14
      s_mul_i32 s13, s13, 3072
      s_and_b32 s14, {S_W}, 1
      s_mul_i32 s14, s14, {MAT1}
      s_add_u32 s13, s13, s14
      s_add_u32 {S_GUM}, s13, {L_S}
      s_lshl_b32 s13, {S_W}, 12
      s_add_u32 {S_H2M}, s13, {L_H2}
      v_and_b32 v78, 1, {V_G}
      v_lshrrev_b32 v79, 1, {V_G}
      v_lshlrev_b32 v6, 14, v78
      v_lshl_add_u32 v6, v79, 8, v6
      v_lshl_add_u32 v{V_OST}, {V_C}, 4, v6
      v_lshlrev_b32 v6, 11, {V_C}
      v_lshl_add_u32 v6, v78, 5, v6
      v_lshl_add_u32 v{V_XO}, v79, 4, v6
      s_lshr_b32 s12, {S_W}, 1
      s_lshl_b32 s12, s12, 15
      s_and_b32 s13, {S_W}, 1
      s_lshl_b32 s13, s13, 10
      s_add_u32 s12, s12, s13
      s_lshl_b32 s13, {S_RB}, 16
      s_add_u32 s12, s12, s13
      s_add_u32 {S_XOFF}, s12, {S_M128}
      s_and_b32 s15, {S_RB}, 1
      s_lshl_b32 s14, s15, 16
      s_add_u32 s14, s14, s82
      s_lshl_b32 s12, {S_M}, 11
      s_lshl_b32 s13, {S_W}, 9
      s_add_u32 s12, s12, s13
      s_add_u32 s12, s12, s14
      s_add_u32 {S_OST}, s12, {WS_O}
      s_lshl_b32 s12, {S_W}, 14
      s_add_u32 s12, s12, s14
      s_add_u32 {S_OLD}, s12, {WS_O}
      s_lshl_b32 s13, {S_M}, 11
      s_add_u32 s12, s12, s13
      s_add_u32 {S_X1ST}, s12, {WS_X1}
      s_lshr_b32 s13, {S_W}, 1
      s_lshl_b32 s13, s13, 10
      s_add_u32 s12, s82, s13
      s_and_b32 s13, {S_W}, 1
      s_lshl_b32 s13, s13, 16
      s_add_u32 s12, s12, s13
      s_add_u32 {S_X1LD}, s12, {WS_X1}
      s_lshl_b32 s12, s15, 13
      s_lshl_b32 s13, {S_W}, 11
      s_add_u32 s12, s12, s13
      s_add_u32 s12, s12, s82
      s_add_u32 {S_STLD}, s12, {WS_STATS}
      s_lshl_b32 s13, {S_M}, 8
      s_add_u32 {S_STST}, {S_STLD}, s13
      s_and_b32 s12, {S_W}, 1
      s_xor_b32 s13, s12, 1
      s_mul_i32 s12, s12, {HH_PITCH}
      s_mul_i32 s13, s13, {HH_PITCH}
      s_add_u32 s14, {S_U0}, {S_W}
      s_lshl_b32 s14, s14, 10
      s_add_u32 s14, s14, s82
      s_add_u32 s14, s14, {WS_HH}
      s_add_u32 {S_HST}, s12, s14
      s_add_u32 {S_HST2}, s13, s14
      s_mul_i32 s12, s15, {HH_PITCH}
      s_add_u32 s12, s12, s82
      s_add_u32 s12, s12, {WS_HH}
      s_lshr_b32 s13, {S_W}, 1
      s_mul_i32 s13, s13, {86 * 1024}
      s_add_u32 s12, s12, s13
      s_and_b32 s13, {S_W}, 1
      s_lshl_b32 s13, s13, 8
      s_add_u32 {S_HLD}, s12, s13
      s_add_u32 s12, {S_W1K}, {L_MODV}
      v_lshl_add_u32 v{V_GB}, {V_G}, 4, s12
      v_lshlrev_b32 v77, 2, {V_LANE}
      v_and_b32 v78, 31, {V_LANE}
      v_lshlrev_b32 v78, 4, v78
      v_lshrrev_b32 v79, 5, {V_LANE}
      v_lshl_add_u32 v78, v79, 11, v78
      s_lshl_b32 s12, {S_W}, 9
      v_add_u32 v78, s12, v78
      v_cvt_f32_u32 v79, v79
      s_add_u32 s12, {S_W1K}, {L_MODV}
      v_add_u32 v76, s12, {V_L16}
      v_lshlrev_b32 v6, 1, v13
      v_xor_b32 v6, v6, v12
      v_lshl_add_u32 v6, v13, 4, v6
      v_lshlrev_b32 v6, 4, v6
      s_mul_i32 s13, {S_W}, 5120
      s_add_u32 s13, s13, {L_HRING}
      v_lshlrev_b32 v12, 5, v13
      v_add_u32 v12, s12, v12
      v_add_u32 v13, s13, v6
      v_lshlrev_b32 v6, 1, {V_G}
      v_xor_b32 v6, v6, {V_C}
      v_lshl_add_u32 v6, {V_G}, 4, v6
      v_lshlrev_b32 v6, 4, v6
      v_add_u32 v14, {L_HRING}, v6""")
issue_gq(2)
MKT = MK
MK = 240
run(mask_items())
run([(k, t.replace('v80', 'v64').replace('v81', 'v65').replace('v82', 'v66').replace('v83', 'v67').replace('v84', 'v68').replace('v85', 'v69').replace('v86', 'v70').replace('v87', 'v71')) for k, t in late_items()])
e(f'v_add_u32 v40, {L_MASK}, {V_L16}')
for i in range(4):
    e(f'ds_write_b128 v40, {vr(MK + 4 * i)} offset:{i * 1024}')
e(f'ds_write_b128 {V_L16}, v[68:71] offset:{L_TRB}')
for i in range(4):
    e(f'v_accvgpr_write_b32 a{250 + i}, v{64 + i}')
e('s_add_u32 s18, s16, 32768')
MK = MKT
A.wait_lg()
e(f"""s_bitcmp1_b32 {S_W}, 0
      s_cselect_b32 s92, s56, s52
      s_cselect_b32 s93, s57, s53
      s_mov_b32 s94, {512 * 2752}
      s_mov_b32 s95, s34
      s_mul_i32 {S_TAG}, {S_TAG}, 1664525
      s_add_u32 {S_TAG}, {S_TAG}, 1013904223""")
lx = A.newlabel('L_x')
e(f'''s_cmp_lg_u32 {S_W}, 1
      s_cbranch_scc1 {lx}
      s_and_b32 s12, {S_TAG}, 0xfffffff0
      s_or_b32 s12, s12, {S_XCC}
      s_add_u32 s13, {S_MM4}, {S_GRP}
      s_mov_b64 exec, 1
      v_mov_b32 v6, s12''')
e(f'buffer_store_dword v6, off, {SRD_WS}, s13 sc1', optional=True)
e('s_mov_b64 exec, -1')
A.label(lx)
issue_gq(3)
fine('setup')
lm, lm2, lj = A.newlabel('L_nomod'), A.newlabel('L_nomod'), A.newlabel('L_mj')
e(COND_A + f'\n s_cbranch_scc1 {lm}')
save = (list(A.vm), list(A.done), A.t, A.t_vm, list(A.log))
XL = [(0, j) for j in range(args.x0, 4)] + [(T, j) for T in (1, 2) for j in range(4)]
for T, j in XL:
    xload(T, j)
e(f's_branch {lj}')
A.vm, A.done, A.t, A.t_vm, A.log = save
A.label(lm)
save = list(A.vm)
A.wait_vm('mt')
A.vm = save
run(interleave(mod_part1(MW, 36, 6), [('f', lambda T=T, j=j: xload(T, j)) for T, j in XL], 0, 96, pred=lambda t: True))
for l_, t_ in extra:
    for l in l_:
        e(l, tag=t_, optional=True)
A.wait_lg()
e('s_barrier')
e('v_mov_b32 v52, v4\n v_mov_b32 v53, v5')
mod_part2(MW, lm2, 0)
A.label(lm2)
e('v_mov_b32 v4, v52\n v_mov_b32 v5, v53')
A.label(lj)
A.lg = []
stamp('modpub')
e(COND_B + '\n s_cselect_b32 s12, 0, 0x40000000\n v_or_b32 v74, s12, v74\n v_or_b32 v75, s12, v75')
e('v_accvgpr_write_b32 a254, v74\n v_accvgpr_write_b32 a255, v75')
MTB = [([f'buffer_load_dwordx2 v[112:113], v87, {SRD_C}, s33 offen'], 'mtb')] + [([f'buffer_load_dwordx4 {vr(96 + 4 * i)}, v86, {SRD_WMOD}, s{29 + i} offen'], 'mtb') for i in range(4)]
for T in range(3, 5):
    for j in range(4):
        xload(T, j, bg=True)
for k in range(args.pfx):
    for p in PIECES.pop(0):
        gpf(*p)
A.bg += W0REST
for k in range(args.pfy):
    for p in PIECES.pop(0):
        gpf(*p)
dma_wqkv(1)
for k in range(args.pfz):
    for p in PIECES.pop(0):
        gpf(*p)
dma_wqkv(2)
pieces(0)
A.bg_gap = args.gap0
A.bg_on = True

RS = 64


def unpack(q):
    for d in range(4):
        src = XN + 8 * q + 4 + d
        lo = XN + 8 * q + 2 * d
        e(f'''v_lshlrev_b32 v{lo}, 16, v{src}
              v_and_b32 v{lo + 1}, {S_HI}, v{src}''')


def scale(q):
    p = vr(RS + 2 * (q % 5), 2)
    for d in range(4):
        lo = XN + 8 * q + 2 * d
        e(f'v_pk_fma_f32 {vr(lo, 2)}, {vr(lo, 2)}, {p}, {p} op_sel:[0,0,1] op_sel_hi:[1,0,1]')


ST = 16
for T in range(5):
    A.wait_vm(f'x{T}')
    if args.s1: stamp(f'x{T}')
    for j in range(4):
        for d in range(4):
            r = XN + 8 * (5 * j + T) + 4 + d
            first = (j == 0 and d == 0)
            e(f'v_dot2_f32_bf16 v{ST + 2 * T}, v{r}, {S_ONES}, {"0" if first else f"v{ST + 2 * T}"}')
            e(f'v_dot2_f32_bf16 v{ST + 2 * T + 1}, v{r}, v{r}, {"0" if first else f"v{ST + 2 * T + 1}"}')
    if T < 4:
        for j in range(4):
            unpack(5 * j + T)
e(f'''s_lshl_b32 s12, {S_W}, 3
      v_lshrrev_b32 v5, 2, {V_LANE}
      v_lshlrev_b32 v5, 5, v5
      v_add_u32 v4, s12, v5''')
for qp in ('[1,0,3,2]', '[2,3,0,1]'):
    for i in range(10):
        e(f'v_add_f32_dpp v{ST + i}, v{ST + i}, v{ST + i} quad_perm:{qp} row_mask:0xf bank_mask:0xf')
with nobg():
    e('''s_mov_b32 s12, 0x11111111
         s_mov_b32 exec_lo, s12
         s_mov_b32 exec_hi, s12''')
    for T in range(5):
        e(f'ds_write_b64 v4, {vr(ST + 2 * T, 2)} offset:{L_STATS + T * 512}')
    e('s_mov_b64 exec, -1')
for j in range(2):
    unpack(5 * j + 4)
A.wait_lg()
e('s_barrier')
fine('b1')
xcc_ld = f'buffer_load_dword v77, v76, {SRD_WS}, {S_GRP} offen sc1'
k0 = max([i + 1 for i, it in enumerate(A.bg) if it[1] == 'wq0'] + [0])
A.bg[k0:k0] = [([l], 'm1') for l in mod_loads('v78', 240)]
for T in range(5):
    for h in range(2):
        e(f'ds_read_b128 {vr(16 + 8 * T + 4 * h)}, v5 offset:{L_STATS + T * 512 + h * 16}', tag='st')
for j in range(2, 4):
    unpack(5 * j + 4)
A.wait_lg('st')
e('s_mov_b32 s12, 0x3b000000')
for T in range(5):
    b = 16 + 8 * T
    e(f'''v_pk_add_f32 {vr(b, 2)}, {vr(b, 2)}, {vr(b + 2, 2)}
          v_pk_add_f32 {vr(b + 4, 2)}, {vr(b + 4, 2)}, {vr(b + 6, 2)}
          v_pk_add_f32 {vr(b, 2)}, {vr(b, 2)}, {vr(b + 4, 2)}
          v_pk_mul_f32 {vr(b, 2)}, {vr(b, 2)}, s[12:13] op_sel_hi:[1,0]
          v_fma_f32 v{b + 1}, -v{b}, v{b}, v{b + 1}
          v_max_f32 v{b + 1}, 0, v{b + 1}
          v_add_f32 v{b + 1}, 0x3727c5ac, v{b + 1}
          v_rsq_f32 v{RS + 2 * T}, v{b + 1}''')
for T in range(5):
    e(f'v_mul_f32 v{RS + 2 * T + 1}, -v{16 + 8 * T}, v{RS + 2 * T}')
for q in range(10):
    scale(q)
A.wait_vm('wq0')
e('s_barrier')
fine('b2')
tq = tr_wqkv(0)
for q in range(10, 14):
    run(tq[6 * (q - 10):6 * (q - 9)])
    scale(q)
stamp('prenorm')
mod_check('v78', 240, 'm1', 'v76', 'v79')
for h in range(2):
    e(f'ds_read_b128 {vr(16 + 4 * h)}, v12 offset:{h * 16}', tag='cs')
    e(f'ds_read_b128 {vr(24 + 4 * h)}, v12 offset:{512 + h * 16}', tag='cs')
for q in range(14, 20):
    scale(q)
stamp('mod')

CS = 64


def cs1_reads(j):
    it = []
    for h in range(2):
        it.append(('i', f'ds_read_b128 {vr(CS + 4 * h)}, v12 offset:{j * 128 + h * 16}', 'cs'))
        it.append(('i', f'ds_read_b128 {vr(CS + 8 + 4 * h)}, v12 offset:{512 + j * 128 + h * 16}', 'cs'))
    return it


def norm1_items(j, pk=False):
    it = [('wl', 'cs')]
    for T in range(5):
        b = XN + 8 * (5 * j + T)
        if pk:
            for i in range(0, 8, 2):
                it.append(('i', f'v_pk_fma_f32 {vr(b + i, 2)}, {vr(b + i, 2)}, {vr(24 + i, 2)}, {vr(16 + i, 2)}'))
        else:
            for i in range(8):
                it.append(('i', f'v_fma_f32 v{b + i}, v{b + i}, v{CS + 8 + i}, v{CS + i}'))
        for d in range(4):
            it.append(('i', f'v_cvt_pk_bf16_f32 v{b + d}, v{b + 2 * d}, v{b + 2 * d + 1}'))
        it.append(('i', f'ds_write_b128 v13, {vr(b)} offset:{(j % 2) * 20480 + T * 1024}', 'hw'))
    if j < 3:
        it += cs1_reads(j + 1)
    return it


def accQ(T): return 16 + 4 * T
def accK(T): return 32 + 4 * T
def accV(T): return 240 + 4 * T if T < 4 else 52


FR = 192


def rd1(j, pos):
    return [('i', f'ds_read_b128 {ar(FR + (pos % 2) * 20 + 4 * T)}, v14 offset:{(j % 2) * 20480 + (pos * 5 + T) * 1024}', f'f{pos}') for T in range(5)]


def mm1(j, pos):
    it = []
    wb = (j * 4 + pos) * 12
    first = (j == 0 and pos == 0)
    for T in range(5):
        f = ar(FR + (pos % 2) * 20 + 4 * T)
        if T < 4:
            it.append(('i', f'v_mfma_f32_16x16x32_bf16 {vr(accQ(T))}, {ar(wb)}, {f}, {"0" if first else vr(accQ(T))}'))
        it.append(('i', f'v_mfma_f32_16x16x32_bf16 {vr(accK(T))}, {ar(wb + 4)}, {f}, {"0" if first else vr(accK(T))}'))
        it.append(('i', f'v_mfma_f32_16x16x32_bf16 {vr(accV(T))}, {f}, {ar(wb + 8)}, {"0" if first else vr(accV(T))}'))
    return it


A.wait_lg()
e('s_barrier')
run(norm1_items(0, pk=True))
if not args.jit1:
    A.wait_vm('wq1')
A.wait_lg('hw')
e('s_barrier')
fine('c0')
e('v_accvgpr_read_b32 v81, a251')
e('v_accvgpr_read_b32 v86, a254\n v_accvgpr_read_b32 v87, a255')
C3[0] = 'v81'
k0 = max([i + 1 for i, it in enumerate(A.bg) if it[1] == 'wq2'] + [0])
A.bg[k0:k0] = MTB
c3(SRD_WO, 0)
A.bg_gap = args.gap1
run(rd1(0, 0))
for j in range(5):
    main = []
    if j > 0:
        main += interleave(mm1(j - 1, 3), rd1(j, 0) if j < 4 else [], 0, 5)
    if j == 4:
        run(main)
        break
    todo = {0: [] if args.jit1 else [1], 1: [1, 2] if args.jit1 else [2], 2: [], 3: [3]}[j]
    for pos in range(3):
        main += [('wl', [f'f{pos}', f'trq{j}_{pos}'])] + interleave(mm1(j, pos), rd1(j, pos + 1), 0, 5)
    for c in todo:
        tq = tr_wqkv(c)
        if c == j:
            run(tq[:1])
            main = interleave(main, tq[1:7], 0, 6)
            main = interleave(main, tq[7:], 6, 24)
        elif len(todo) > 1:
            main = interleave(main, tq, 26, 52)
        else:
            run(tq[:1])
            main = pack(main, tq[1:], 0, -1)
    if j < 3:
        fill = norm1_items(j + 1)
    else:
        fill = lines(f'v_add_u32 v4, {L_MASK}, {V_L16}') + [('i', f'ds_read_b128 {vr(MK + 4 * i)}, v4 offset:{i * 1024}') for i in range(4)]
        fill += [('i', f'ds_read_b128 {vr(TRB)}, {V_L16} offset:{L_TRB}')]
        fill += [('i', f'v_accvgpr_read_b32 v{80 + i}, a{250 + i}') for i in range(4)] + [('i', f'v_mov_b32 v{ONE + r}, {S_ONES}') for r in range(4)] + [('i', f'v_lshlrev_b32 v76, 2, {V_LANE}')]
    if j == 3:
        fill = [('wv', 'mtb')] + mod_part1(96, 200, 216, None, 112, True) + fill
    run(pack(main, fill, 0, -2))
    fine(f'e{j}')
    A.wait_vm(('wq2', 'none', 'wq3', 'none')[j])
    A.wait_lg()
    e('s_barrier')
    fine(f'c{j + 1}')
    if j == args.jit1:
        front(lambda: dma_wqkv(3))
    if j == 0:
        pieces(1)
    if j == 1:
        for ks in range(4, 16):
            dma_1k(SRD_WO, V_WOD, ks, L_WO + ks * 4096, 'wo')
        pieces(2)
        if args.ot:
            touch([], f'v{V_OST}', S_OST)
            touch([f's_add_u32 {S_BT}, {S_OST}, 32768'], f'v{V_OST}', S_BT)
        for p in range(2):
            A.bg_add([f'buffer_load_dwordx4 {vr(XRES + 4 * p)}, v{V_XO}, {SRD_X}, {S_XOFF} offen offset:{p * 64}'], 'xr')
    if j == 2:
        pieces(3)
    if j == 3:
        front(lambda: [dma_1k(SRD_WO, V_WOD, ks, L_WO + ks * 4096, 'wo') for ks in range(4)])
        A.bg_add([xcc_ld], 'mx')
        A.bg_add([f'buffer_load_dword {V_DUM}, v76, {SRD_WS}, {S_STST} offen sc1'], 'stt')
        if args.otlb:
            A.bg_add([f'buffer_load_dword {V_DUM}, off, {SRD_OUT}, {S_XOFF}'], 'stt')
        pieces(4)
        gu_queue()
with nobg():
    lm = A.newlabel('L_nomod')
    save = (list(A.vm), list(A.lg), A.t, A.t_vm, list(A.done), list(A.log))
    e(COND_B + f'\n s_cbranch_scc0 {lm}')
    mod_part2(96, lm, 3)
    A.label(lm)
    A.vm, A.lg, A.t, A.t_vm, A.done, A.log = save[0] + [(None, True)], *save[1:]
stamp('qkv')

QP, KP, VP = 140, 148, 158
VPOS = {2: 0, 0: 1, 4: 2, 1: 3, 3: 4}
SS, MX, PP, OO, LL, OP = 188, 220, 16, 32, 228, 48
PREV = {0: 4, 1: 4, 2: 0, 3: 1}
PMASK = {0: MK + 8, 1: MK + 12, 2: MK + 4, 3: MK + 4}
VPAIR = {2: 0, 0: 1, 1: 2, 3: 3}
t = ''
for T in range(5):
    for d in range(2):
        if T < 4:
            t += f'v_cvt_pk_bf16_f32 v{QP + 2 * T + d}, v{accQ(T) + 2 * d}, v{accQ(T) + 2 * d + 1}\n'
        t += f'v_cvt_pk_bf16_f32 v{KP + 2 * T + d}, v{accK(T) + 2 * d}, v{accK(T) + 2 * d + 1}\n'
vc = [f'v_cvt_pk_bf16_f32 v{VP + 2 * VPOS[T] + d}, v{accV(T) + 2 * d}, v{accV(T) + 2 * d + 1}\n' for T in range(5) for d in range(2)]
t += vc.pop(0) + vc.pop(0)
for T in (2, 3, 0, 1):
    t += f'v_mfma_f32_16x16x16_bf16 {vr(SS + 8 * T)}, {vr(KP + 2 * T, 2)}, {vr(QP + 2 * T, 2)}, {vr(MK)}\n' + vc.pop(0)
    t += f'v_mfma_f32_16x16x16_bf16 {vr(SS + 8 * T + 4)}, {vr(KP + 2 * PREV[T], 2)}, {vr(QP + 2 * T, 2)}, {vr(PMASK[T])}\n' + vc.pop(0)
t += 's_mov_b32 s12, 0x3eb8aa3b\n s_mov_b32 s13, 0xbeb8aa3b\n'
for T in (2, 3, 0, 1):
    s = SS + 8 * T
    t += f'''v_max3_f32 v{MX + T}, v{s}, v{s + 1}, v{s + 2}
          v_max3_f32 v{MX + 4 + T}, v{s + 3}, v{s + 4}, v{s + 5}
          v_max3_f32 v{MX + T}, v{MX + T}, v{s + 6}, v{s + 7}
          v_max_f32 v{MX + T}, v{MX + T}, v{MX + 4 + T}
          v_mov_b32 v{MX + 4 + T}, v{MX + T}
          '''
for k, sw in enumerate(('v_permlane32_swap_b32', 'v_permlane16_swap_b32')):
    for T in (2, 3, 0, 1):
        t += f'{sw} v{MX + T}, v{MX + 4 + T}\n'
    for T in (2, 3, 0, 1):
        t += f'v_max_f32 v{MX + T}, v{MX + T}, v{MX + 4 + T}\n'
    if k == 0:
        for T in (2, 3, 0, 1):
            t += f'v_mov_b32 v{MX + 4 + T}, v{MX + T}\n'
for T in range(4):
    t += f'v_mul_f32 v{MX + 4 + T}, -s12, v{MX + T}\n'.replace('-s12', 's13')
if args.apk:
    for T in range(4):
        for i in range(0, 8, 2):
            pr = vr(MX + 4 + (T & 2), 2)
            t += f'v_pk_fma_f32 {vr(SS + 8 * T + i, 2)}, {vr(SS + 8 * T + i, 2)}, s[12:13], {pr} op_sel:[0,0,{T & 1}] op_sel_hi:[1,0,{T & 1}]\n'


def fin(T):
    x = f'v_rcp_f32 v{LL + 4 * T}, v{LL + 4 * T}\n'
    p = vr(LL + 4 * T, 2)
    y = ''
    for i in (0, 2):
        y += f'v_pk_mul_f32 {vr(OO + 4 * T + i, 2)}, {vr(OO + 4 * T + i, 2)}, {p} op_sel_hi:[1,0]\n'
    for d in range(2):
        y += f'v_cvt_pk_bf16_f32 v{OP + 2 * T + d}, v{OO + 4 * T + 2 * d}, v{OO + 4 * T + 2 * d + 1}\n'
    return x, y


for T in range(4):
    s = SS + 8 * T
    for i in range(0 if args.apk else 8):
        t += f'v_fma_f32 v{s + i}, v{s + i}, s12, v{MX + 4 + T}\n'
    for i in range(8):
        t += f'v_exp_f32 v{s + i}, v{s + i}\n'
    if T > 0:
        t += fin(T - 1)[0]
    curfirst = T in (0, 2)
    for d in range(2):
        t += f'v_cvt_pk_bf16_f32 v{PP + 4 * T + (0 if curfirst else 2) + d}, v{s + 2 * d}, v{s + 2 * d + 1}\n'
        t += f'v_cvt_pk_bf16_f32 v{PP + 4 * T + (2 if curfirst else 0) + d}, v{s + 4 + 2 * d}, v{s + 4 + 2 * d + 1}\n'
    if T > 0:
        t += fin(T - 1)[1]
    t += f'v_mfma_f32_16x16x32_bf16 {vr(LL + 4 * T)}, {vr(ONE)}, {vr(PP + 4 * T)}, 0\n'
    t += f'v_mfma_f32_16x16x32_bf16 {vr(OO + 4 * T)}, {vr(VP + 2 * VPAIR[T])}, {vr(PP + 4 * T)}, 0\n'


def wo_reg(ks, ct, hf=None):
    if 4 <= ks < 14:
        b, f = 96 + (ks - 4) * 16 + ct * 4, ar
    else:
        b, f = 160 + (ks if ks < 4 else ks - 10) * 16 + ct * 4, vr
    return f(b) if hf is None else f(b + 2 * hf, 2)


def tr_wo(ks):
    return [('i', f'ds_read_b64_tr_b16 {wo_reg(ks, ct, hf)}, v{TRB + ct} offset:{ks * 4096 + hf * 512}', f'trw{ks}')
            for ct in range(4) for hf in range(2)]


tl = lines(t)
A.bg_gap = args.gapa
run(tl[:args.acut])
A.bg_flush(upto=['wo', 'xr', 'tch', 'mx'])
A.bg_on = False
run(tl[args.acut:])
for d in range(2):
    e(f'v_permlane16_swap_b32 v{OP + d}, v{OP + 2 + d}')
e(f's_add_u32 s16, {S_OST}, 32768')
stores([f'buffer_store_dwordx4 {vr(OP)}, v{V_OST}, {SRD_WS}, {S_OST} offen'], 'ost', plain=args.ot)
e(fin(3)[0] + fin(3)[1])
for d in range(2):
    e(f'v_permlane16_swap_b32 v{OP + 4 + d}, v{OP + 6 + d}')
stores([f'buffer_store_dwordx4 {vr(OP + 4)}, v{V_OST}, {SRD_WS}, s16 offen'], 'ost', plain=args.ot)
fine('ost')
if args.stop1:
    stamp('end')
    e(f'''s_waitcnt vmcnt(0)
          s_lshl_b32 s12, s2, 2
          s_add_u32 s12, s12, {S_W}
          s_lshl_b32 s12, s12, 8
          s_add_u32 s12, s12, {WS_STAMP}
          v_lshlrev_b32 v4, 2, {V_LANE}
          buffer_store_dword {V_STAMP}, v4, {SRD_WS}, s12 offen
          s_endpgm''')
    args.stamps = False
    keep_names = list(stamp_names)
A.bg_flush(args.b1)
checked('mx', [xcc_ld], lambda: e(f'''v_xor_b32 v6, {S_TAG}, v77
                                      v_lshrrev_b32 v6, 4, v6
                                      v_cmp_ne_u32 vcc, 0, v6
                                      s_and_b64 vcc, vcc, 0xffff'''))
with nobg():
    e(f'''v_and_b32 v5, 15, v77
          v_cmp_ne_u32 vcc, {S_XCC}, v5
          s_nop 1
          s_and_b64 vcc, vcc, 0xffff
          s_cmp_eq_u64 vcc, 0
          s_cselect_b32 {S_FAST}, {0 if args.slow else 1}, 0
          s_mul_i32 s12, {S_FAST}, {(WS_X1 - WS_O) * args.h2o}
          s_sub_u32 {S_X1ST}, {S_X1ST}, s12
          s_sub_u32 {S_X1LD}, {S_X1LD}, s12''')
A.wait_vm('xr')
for p in range(2):
    for d in range(2):
        e(f'v_permlane16_swap_b32 v{XRES + 4 * p + d}, v{XRES + 4 * p + 2 + d}')
e(f'''s_add_u32 s17, {S_OLD}, 4096
      s_add_u32 s18, {S_OLD}, 8192
      s_add_u32 s19, {S_OLD}, 12288
      v_lshrrev_b32 v16, 2, {V_LANE}            ; row = 4g + r4
      v_mul_u32_u24 v16, 192, v16
      v_and_b32 v4, 3, {V_LANE}
      v_lshl_add_u32 v16, v4, 3, v16
      v_add_u32 v16, {L_S}, v16
      v_and_b32 v18, 1, {V_G}
      v_xor_b32 v17, {S_W}, v18
      s_lshr_b32 s13, {S_W}, 1
      s_add_u32 s13, s13, 4
      v_xor_b32 v18, s13, v18
      v_lshl_add_u32 v20, v17, 5, v16
      v_lshl_add_u32 v21, v18, 5, v16
      v_add_u32 v22, {3 * BLK}, v20
      v_add_u32 v23, {3 * BLK}, v21
      s_and_b32 s12, {S_W}, 1
      s_lshl_b32 s12, s12, 12
      s_xor_b32 s13, s12, 4096
      s_add_u32 s12, s12, {L_H2}
      s_add_u32 s13, s13, {L_H2}
      v_add_u32 v13, s12, {V_L16}
      v_add_u32 v14, s13, {V_L16}               ; tiles 4..7''')
OA, GA, X1A, X1P = 96, 32, 64, 24
publish_flag(64, 'ost')
A.bg_flush(args.b1d)
e(poll_ld(64), tag='poll')
for l in mod_loads('v80', 64):
    e(l, tag='m3')
stamp('opub')
for ks in range(4, 12):
    run(tr_wo(ks))
poll_check(64)
stamp('owait')


KORD = list(range(4, 16)) + [0, 1, 2, 3]
rest = list(A.bg)
gu_pre(gu_done())
A.bg = [([f'buffer_load_dwordx4 {vr(OA + 4 * n)}, {V_L16}, {SRD_WS}, {(S_OLD, "s17", "s18", "s19")[ks // 4]} offen offset:{(ks % 4) * 1024} sc1'], f'o{n}') for n, ks in enumerate(KORD)]
run(interleave([x for ks in (12, 13, 14, 15, 0, 1, 2, 3) for x in tr_wo(ks)], [('f', lambda: A.bg_flush(1))] * 12, pred=lambda t: True))
mod_check('v80', 64, 'm3', 'v82', 'v83')
for ct in range(4):
    e(f'ds_read_b128 {vr(GA + 4 * ct)}, v{V_GB} offset:{ct * 64}', tag='ga')
e('s_barrier')
gu_post(False)
mv = movers(6)
pieces(5)
A.bg += rest[:args.b1c]
rest = rest[args.b1c:]
for n, ks in enumerate(KORD):
    A.wait_vm(f'o{n}')
    A.wait_lg(f'trw{ks}')
    for ct in range(4):
        e(f'v_mfma_f32_16x16x32_bf16 {vr(X1A + 4 * ct)}, {wo_reg(ks, ct)}, {vr(OA + 4 * n)}, {"0" if n == 0 else vr(X1A + 4 * ct)}')
        if ct == 0 and A.bg and (A.bg[0][1].startswith(('o', 'm')) or A.room()):
            A.bg_flush(1)
        if n >= 4 and mv:
            run([mv.pop(0)])
    if n == 12:
        XF = OA + 16
        for i in range(8):
            e(f'''v_lshlrev_b32 v{XF + 2 * i}, 16, v{XRES + i}
                  v_and_b32 v{XF + 2 * i + 1}, {S_HI}, v{XRES + i}''')
run(mv)
A.bg += rest
gu_pre(gu_done())
A.wait_lg()
e('s_barrier')
gu_post()
fine('omm')
for b in range(0, 16, 2):
    e(f'v_pk_fma_f32 {vr(X1A + b, 2)}, {vr(X1A + b, 2)}, {vr(GA + b, 2)}, {vr(XF + b, 2)}')
for i in range(8):
    e(f'v_cvt_pk_bf16_f32 v{X1P + i}, v{X1A + 2 * i}, v{X1A + 2 * i + 1}')
for i in range(8):
    e(f'v_dot2_f32_bf16 v48, v{X1P + i}, {S_ONES}, {"0" if i == 0 else "v48"}')
    e(f'v_dot2_f32_bf16 v49, v{X1P + i}, v{X1P + i}, {"0" if i == 0 else "v49"}')


def rowsum2(a, b):
    e(f'''v_permlane32_swap_b32 v{a}, v{b}
          v_add_f32 v{a}, v{a}, v{b}
          v_mov_b32 v{b}, v{a}
          v_permlane16_swap_b32 v{a}, v{b}
          v_add_f32 v{a}, v{a}, v{b}
          v_mov_b32 v{b}, v{a}
          v_permlane32_swap_b32 v{a}, v{b}''')


e(f'v_mov_b32 v50, {S_TAG}\n v_mov_b32 v51, {S_TAG}')
rowsum2(48, 49)
e('s_mov_b64 exec, 0xffff')
stores([f'buffer_store_dwordx4 v[48:51], {V_L16}, {SRD_WS}, {S_STST} offen'], 'sst', plain=True)
e('s_mov_b64 exec, -1')
fine('sst')
A.bg_flush(args.b2a)
SPT = 144
for i in range(8):
    e(f'''v_lshlrev_b32 v{X1A + 2 * i}, 16, v{X1P + i}
          v_and_b32 v{X1A + 2 * i + 1}, {S_HI}, v{X1P + i}''')
SB, CB, GB = 112, 128, 32
for ct in range(4):
    e(f'ds_read_b128 {vr(SB + 4 * ct)}, v{V_GB} offset:{256 + ct * 64}', tag='ga')
    e(f'ds_read_b128 {vr(CB + 4 * ct)}, v{V_GB} offset:{512 + ct * 64}', tag='ga')
    e(f'ds_read_b128 {vr(GB + 4 * ct)}, v{V_GB} offset:{768 + ct * 64}', tag='ga')
run(movers())
for l in st_loads(SPT):
    e(l, tag='st')
A.bg_flush(args.b2)
checked('st', st_loads(SPT), lambda: e(f'''v_cmp_ne_u32 vcc, {S_TAG}, v{SPT + 2}
                                          v_cmp_ne_u32 s[12:13], {S_TAG}, v{SPT + 6}
                                          s_or_b64 vcc, vcc, s[12:13]'''))
fine('stw')
e(f'v_pk_add_f32 {vr(SPT, 2)}, {vr(SPT, 2)}, {vr(SPT + 4, 2)}')
rowsum2(SPT, SPT + 1)
e(f'''s_mov_b32 s12, 0x3b000000
      v_pk_mul_f32 {vr(SPT, 2)}, {vr(SPT, 2)}, s[12:13] op_sel_hi:[1,0]
      v_fma_f32 v{SPT + 1}, -v{SPT}, v{SPT}, v{SPT + 1}
      v_max_f32 v{SPT + 1}, 0, v{SPT + 1}
      v_add_f32 v{SPT + 1}, 0x3727c5ac, v{SPT + 1}
      v_rsq_f32 v{SPT + 2}, v{SPT + 1}
      v_mul_f32 v{SPT + 3}, -v{SPT}, v{SPT + 2}''')
A.wait_lg()
p = vr(SPT + 2, 2)
H2P = 96
for half in range(2):
    for b in range(8 * half, 8 * half + 8, 2):
        e(f'v_pk_fma_f32 {vr(X1A + b, 2)}, {vr(X1A + b, 2)}, {p}, {p} op_sel:[0,0,1] op_sel_hi:[1,0,1]')
    for b in range(8 * half, 8 * half + 8, 2):
        e(f'v_pk_fma_f32 {vr(X1A + b, 2)}, {vr(X1A + b, 2)}, {vr(CB + b, 2)}, {vr(SB + b, 2)}')
    for i in range(4 * half, 4 * half + 4):
        e(f'v_cvt_pk_bf16_f32 v{H2P + i}, v{X1A + 2 * i}, v{X1A + 2 * i + 1}')
    stores([f'buffer_store_dwordx4 {vr(H2P + 4 * half)}, {V_L16}, {SRD_WS}, {S_X1ST} offen offset:{half * 1024}'], 'xst', plain=args.h2o)
A.bg_flush(args.b2b)
publish_flag(128, 'xst')
GU.pend = gu_done()
gu_post(True)
e(poll_ld(128), tag='poll')
A.bg_flush(args.b2c)
run(movers())
stamp('x1pub')

le, lep, lok = A.newlabel('L_ep'), A.newlabel('L_epp'), A.newlabel('L_eok')
save = (list(A.vm), list(A.done), A.t, A.t_vm, list(A.log))
e(f'''s_xor_b32 s12, {S_W}, 3
      s_or_b32 s12, s2, s12
      s_cmp_lg_u32 s12, 0
      s_cbranch_scc1 {le}
      v_lshrrev_b32 v4, 2, {V_LANE}
      v_lshlrev_b32 v4, 20, v4
      v_and_b32 v5, 3, {V_LANE}
      v_lshl_add_u32 v4, v5, 4, v4
      s_mov_b32 s12, {WS_GRP}''')
A.label(lep)
e(f'buffer_load_dwordx4 v[200:203], v4, {SRD_WS}, s12 offen sc1')
A.wait_vm()
for i in range(4):
    e(f'v_xor_b32 v{200 + i}, {S_TAG}, v{200 + i}')
e(f'''v_or3_b32 v5, v200, v201, v202
      v_or_b32 v5, v5, v203
      v_lshrrev_b32 v5, 4, v5
      v_cmp_ne_u32 vcc, 0, v5
      s_cbranch_vccz {lok}''')
spin_fail(lep)
A.label(lok)
e(f'''v_mov_b32 v5, {S_TAG}
      s_mov_b64 exec, 1''')
e(f's_mov_b32 s12, {WS_EPOCH}')
e(f'buffer_store_dword v5, off, {SRD_WS}, s12 sc1')
e('s_mov_b64 exec, -1')
A.label(le)
A.vm, A.done, A.t, A.t_vm, A.log = save
A.vm += [(None, True)]
e('v_mov_b32 v12, v81')
C3[0] = 'v12'
poll_check(128)
stamp('x1wait')


def dma_h2(q):
    for tt in range(4):
        A.bg_add([f's_add_u32 m0, {S_H2M}, {(q % 4) * 16384 + tt * 1024}', f's_add_u32 {S_BT}, {S_X1LD}, {tt * 16384 + q * 2048}',
                  f'buffer_load_dwordx4 {V_L16}, {SRD_WS}, {S_BT} offen sc1 lds'], f'y{q}')


front(lambda: [dma_h2(q) for q in range(args.y0)])
A.bg_flush(4 * args.y0)
rest = list(A.bg)
A.bg = []
for q in range(args.y0, 4):
    A.bg += rest[:args.b2d]
    rest = rest[args.b2d:]
    dma_h2(q)
A.bg += rest
A.bg_gap = args.gap4
A.bg_on = True
ACC4, FB = 64, 160


WD_ADDR = {}


class WD:
    queued = 0
    landed = 0
    moved = 0
    freed = 0


def wd_space(addr, n):
    for k in range(n):
        if WD.queued < 43:
            WD_ADDR[WD.queued] = addr + k * 4096
            dma_1k(SRD_WD, V_WOD, WD.queued, addr + k * 4096, f'wd{WD.queued}')
            WD.queued += 1


def wd_est():
    n = WD.landed
    while n < WD.queued and f'wd{n}' not in {t for l, t in A.bg} and A.tagdone[f'wd{n}'] <= A.t + args.slack:
        n += 1
    return n


def wd_done():
    live = {t for t, o in A.vm} | {t for l, t in A.bg}
    n = 0
    while n < WD.queued and f'wd{n}' not in live:
        n += 1
    return n


def wd_pre(upto):
    upto = max(upto, WD.landed)
    if upto > WD.landed:
        A.wait_vm(f'wd{upto - 1}')
    WD.pend = upto


def wd_post():
    WD.landed = WD.pend
    while WD.freed < WD.moved:
        wd_space(WD_ADDR[WD.freed], 1)
        WD.freed += 1


def wd_addr(ks, ct, hf):
    off = WD_ADDR[ks] + hf * 512
    return f'v{(16, 48, 52)[off >> 16] + ct} offset:{off & 0xffff}'


NWB = 23


def wd_reg(ks, ct, hf=None):
    k = ks % NWB
    f, b = (ar, 16 * k) if k < 16 else (vr, 144 + 16 * (k - 16))
    return f(b + 4 * ct) if hf is None else f(b + 4 * ct + 2 * hf, 2)


def tr_wd(ks):
    return [('i', f'ds_read_b64_tr_b16 {wd_reg(ks, ct, hf)}, {wd_addr(ks, ct, hf)}', f't{ks}')
            for ct in range(4) for hf in range(2)]


def wd_moves(limit):
    it = []
    while WD.moved < min(WD.landed, limit):
        it += tr_wd(WD.moved)
        WD.moved += 1
    return it


for ct in range(4):
    e(f'v_add_u32 v{16 + ct}, {-L_WO & 0xffffffff}, v{TRB + ct}')
for ct in range(4):
    e(f'v_add_u32 v{48 + ct}, 0x10000, v{16 + ct}')
    e(f'v_add_u32 v{52 + ct}, 0x20000, v{16 + ct}')
def hh_touch(k):
    so = (S_HST, S_HST, S_HST2, S_HST2, 's18', 's18')[k]
    touch([f's_add_u32 {S_BT}, {so}, {(k % 2) * 86 * 1024}'], V_L16, S_BT, 0, 'v[252:255]')


e(f'''s_lshr_b32 s14, {S_W}, 1
      s_add_u32 s14, s14, 4
      s_sub_u32 s14, s14, {S_W}
      s_lshl_b32 s14, s14, 10
      s_sub_u32 s13, {S_NU}, 2
      s_mul_i32 s14, s14, s13
      s_add_u32 s18, {S_HST}, s14''')
def gu_est():
    n = GU.landed
    while n < GU.queued and f'p4w{n}' not in {t for l, t in A.bg} and A.tagdone[f'p4w{n}'] <= A.t + args.slack:
        n += 1
    return n


A.wait_vm('y0')
gu_pre(max(gu_done(), gu_est(), 2))
A.wait_lg()
e('s_barrier')
gu_post()
fine('d0')
A.drop = tuple(x for x in args.x.split(',') if x)
front(lambda: pieces(6))
wdn = 0
def glu(k, pk):
    b = ACC4 + 16 * k
    t = ''
    if pk:
        for r in range(0, 8, 2):
            t += f'v_pk_mul_f32 {vr(b + r, 2)}, {vr(b + r, 2)}, s[14:15] op_sel_hi:[1,0]\n'
    else:
        for r in range(8):
            t += f'v_mul_f32 v{b + r}, s14, v{b + r}\n'
    for r in range(8):
        t += f'v_exp_f32 v{b + r}, v{b + r}\n'
    if pk:
        for r in range(0, 8, 2):
            t += f'v_pk_add_f32 {vr(b + r, 2)}, {vr(b + r, 2)}, 1.0 op_sel_hi:[1,0]\n'
    else:
        for r in range(8):
            t += f'v_add_f32 v{b + r}, 1.0, v{b + r}\n'
    for r in range(8):
        t += f'v_rcp_f32 v{b + r}, v{b + r}\n'
    if pk:
        for r in range(0, 8, 2):
            t += f'v_pk_mul_f32 {vr(b + r, 2)}, {vr(b + r, 2)}, {vr(b + 8 + r, 2)}\n'
    else:
        for r in range(8):
            t += f'v_mul_f32 v{b + r}, v{b + r}, v{b + 8 + r}\n'
    for d in range(4):
        t += f'v_cvt_pk_bf16_f32 v{b + d}, v{b + 2 * d}, v{b + 2 * d + 1}\n'
    for d in range(2):
        t += f'v_permlane16_swap_b32 v{b + d}, v{b + 2 + d}\n'

    def st():
        st_ = f'buffer_store_dwordx4 {vr(b)}, {V_L16}, {SRD_WS}, {(S_HST, "s16", S_HST2, "s17", "s18", "s19")[k]} offen'
        if k >= 4:
            with nobg():
                ls = A.newlabel('L_sk')
                e(f's_cmp_lt_u32 {S_NU}, 3\n s_cbranch_scc1 {ls}')
                stores([st_], 'hst', optional=True, plain=args.ht)
                A.label(ls)
        else:
            stores([st_], 'hst', plain=args.ht)
    return lines(t) + [('f', st)]


NREG = 16
e(f'''s_mov_b32 s14, 0xbfb8aa3b
      s_add_u32 s16, {S_HST}, {86 * 1024}
      s_add_u32 s17, {S_HST2}, {86 * 1024}
      s_add_u32 s19, s18, {86 * 1024}''')
QL = 8 - args.tailq
NB, PF = 16, args.pf4
SEG = [[q] for q in range(QL)] + [list(range(QL, 8))]
TORD = [0, 1, 2, 3, 4, 5, 6, 7]
frs = [(si, t, ks) for si, sg in enumerate(SEG) for t in TORD for q in sg for ks in (2 * q, 2 * q + 1)]
FIDX = {f: n for n, f in enumerate(frs)}


def rdf(n):
    si, t, ks = frs[n]
    return ('i', f'ds_read_b128 {vr(FB + 4 * (n % NB))}, v{13 + t // 4} offset:{(ks // 2 % 4) * 16384 + (ks % 2) * 8192 + (t % 4) * 1024}', f'r{n}')


def acc4(t, i, mat):
    k = t // 2 if i == 0 else 4 + t // 2
    return ACC4 + 16 * k + 8 * mat + 4 * (t % 2)


issued = [0]


def tile_items(si, t, limit):
    it = []
    for q in SEG[si]:
        n0 = FIDX[(si, t, 2 * q)]
        it.append(('wl', [f'r{n0 + 1}', f'mv{2 * q + 1}']))
        for i in range(2 if t < 4 else 1):
            for mat in range(2):
                for ks in (2 * q, 2 * q + 1):
                    a = vr(acc4(t, i, mat))
                    it.append(('i', f'v_mfma_f32_16x16x32_bf16 {a}, {ar(16 * ks + 8 * i + 4 * mat)}, {vr(FB + 4 * (FIDX[(si, t, ks)] % NB))}, {"0" if ks == 0 else a}'))
                    if issued[0] < min(n0 + 2 + PF, limit):
                        it.append(rdf(issued[0]))
                        issued[0] += 1
    return it


def after_bar4(q):
    global wdn
    if q < 4:
        dma_h2(q + 4)
    if q < 3:
        c3(SRD_WD, q)
    if GU.freed >= 12 and wdn == 0:
        wd_space(L_S + 13 * 4096, 7)
        wd_space(LDS_TOTAL - 4096, 1)
        wdn = 7
    if GU.freed == 16 and wdn == 7:
        wd_space(L_S, 13)
        wdn = 20


def edf():
    def key(it):
        t = it[1]
        if t.startswith('y'):
            return min(int(t[1:]), QL) + 0.01 * int(t[1:])
        if t.startswith('p4w'):
            return min(int(t[3:]) // 2, QL) - args.lead / 10 + 0.001 * int(t[3:])
        if t.startswith('wd'):
            return 20 + int(t[2:])
        return args.gck
    if args.edf:
        A.bg.sort(key=key)


edf()
run(movers(2) + [rdf(n) for n in range(PF)])
issued[0] = PF
carry = []
for q in range(QL):
    end = FIDX[(q + 1, 0, 2 * SEG[q + 1][0])]
    main = carry
    cutt = 8 - args.late4
    for t in TORD[:cutt]:
        main = main + tile_items(q, t, end)
    main += [rdf(n) for n in range(issued[0], end)]
    issued[0] = end
    run(pack(main, movers() + wd_moves(min(2 * q - 2, WD.moved + args.wmq, args.wmax)), 0, -args.stop4))
    last = q == QL - 1
    A.wait_vm('y7' if last else f'y{q + 1}')
    gu_pre(16 if last else max(gu_done(), gu_est(), 2 * q + 4))
    wd_pre(max(wd_done(), wd_est()))
    A.wait_lg()
    e('s_barrier')
    gu_post()
    if q % 2:
        fine(f'd{(q + 1) // 2}')
    after_bar4(q)
    if q >= 4:
        wd_space(L_H2 + (q - 4) * 16384, 4)
    wd_post()
    edf()
    carry = []
    for t in TORD[cutt:]:
        carry += tile_items(q, t, len(frs))
    carry = interleave(carry, movers(16 if last else 2 * q + 4), 0)
run(carry)
pend = []
for p in range(4):
    main = tile_items(QL, 2 * p, len(frs)) + tile_items(QL, 2 * p + 1, len(frs))
    nm = sum(1 for it in main if it[0] == 'i' and it[1].startswith('v_mfma'))
    if p < 2:
        main = interleave(main, wd_moves(min(2 * QL, WD.moved + (args.wm0, args.wm1)[p], args.wmax)), 0)
    take = min(len(pend), (nm - 4) * args.gper // 2)
    run(pack(main, pend[:take], 4) if take else main)
    pend = pend[take:]
    if p == 3 or str(p) in args.tb:
        wd_pre(max(wd_done(), wd_est()))
        A.wait_lg()
        e('s_barrier')
        GU.pend = 16
        gu_post()
        after_bar4(7)
        if p == 3:
            q0 = max(QL, 4)
            wd_space(L_H2 + (q0 - 4) * 16384, 16 - 4 * (q0 - 4))
        wd_post()
    if p == args.gcut:
        A.bg_on = False
    if p < 3:
        for k in ([4 + p, p] if p < 2 else [p]):
            pend += glu(k, args.gper == 0)
assert wdn == 20
stamp('gemm4')
run(pend)
run(glu(3, True))
fine('hst')
A.bg_flush(args.b4)
assert not any(t == 'gp' and 'v11' in l[-1] for l, t in A.bg)
e(f"""v_lshrrev_b32 v11, 1, {V_G}
      v_lshlrev_b32 v11, 10, v11
      v_and_b32 v5, 1, {V_G}
      v_lshl_add_u32 v11, v5, 9, v11
      v_lshl_add_u32 v11, {V_C}, 4, v11""")
run(wd_moves(min(16, max(6, WD.moved + args.wmd))))
A.wait_lg()
publish_flag(192, 'hst')
WD.pend = wd_done()
wd_post()
e(poll_ld(192), tag='poll')
stamp('hpub')

A.bg_flush(args.b5)
run(wd_moves(min(NWB, WD.moved + args.wmp)))
poll_check(192)
stamp('hwait')
print('wd: queued', WD.queued, 'landed', WD.landed, 'moved', WD.moved, file=sys.stderr)
assert WD.queued == 43
HA, ACC5, NH = 80, 64, 16
hl = []
for ks in range(43):
    pre = [f's_add_u32 s28, {S_HLD}, {ks * 2048}'] if ks % 2 == 0 else []
    hl.append((pre + [f'buffer_load_dwordx4 {vr(HA + 4 * (ks % NH))}, v11, {SRD_WS}, s28 offen offset:{(ks % 2) * 2048} sc1'], f'h{ks}'))
A.bg_flush()
A.bg = hl[:NH]
run(interleave(wd_moves(NWB) or [('i', 's_nop 0')], [('f', lambda: A.bg_flush(1))] * 12, 0, 72, pred=lambda t: True))
A.bg_on = False
for ks in range(43):
    if WD.landed < 43 and (ks == args.kbar or WD.moved == WD.landed):
        A.wait_vm('wd42')
        e('s_barrier')
        WD.landed = 43
        fine('wdall')
    if WD.moved <= ks:
        run(wd_moves(ks + 2))
    n0 = len(A.ins)
    A.wait_vm(f'h{ks}')
    A.wait_lg(f't{ks}')
    if len(A.ins) == n0 + 2 and all(i.op == 's_waitcnt' for i in A.ins[n0:]):
        b_, a_ = A.ins.pop(), A.ins.pop()
        A._emit(a_.text + ' ' + b_.text.split(None, 1)[1], None, False)
    nxt = wd_moves(min(WD.moved + 1, ks + NWB + 1)) if (43 - WD.moved) * args.trsp >= (43 - ks - 6) * 10 or WD.moved - ks < 4 else []
    for ct in range(4):
        e(f'v_mfma_f32_16x16x32_bf16 {vr(ACC5 + 4 * ct)}, {wd_reg(ks, ct)}, {vr(HA + 4 * (ks % NH))}, {"0" if ks == 0 else vr(ACC5 + 4 * ct)}')
        if ct == 0:
            A.bg_flush(1)
        run(nxt[2 * ct:2 * ct + 2])
    if ks + NH < 43:
        A.bg.append(hl[ks + NH])
    if ks == 40:
        XF5 = 80
        for i in range(8):
            e(f'''v_lshlrev_b32 v{XF5 + 2 * i}, 16, v{X1P + i}
                  v_and_b32 v{XF5 + 2 * i + 1}, {S_HI}, v{X1P + i}''')
assert WD.moved == 43
A.bg_on = False
stamp('gemm5')
for b in range(0, 16, 2):
    e(f'v_pk_fma_f32 {vr(ACC5 + b, 2)}, {vr(ACC5 + b, 2)}, {vr(GB + b, 2)}, {vr(XF5 + b, 2)}')
for i in range(8):
    e(f'v_cvt_pk_bf16_f32 v{X1P + i}, v{ACC5 + 2 * i}, v{ACC5 + 2 * i + 1}')
for p in range(2):
    for d in range(2):
        e(f'v_permlane16_swap_b32 v{X1P + 4 * p + d}, v{X1P + 4 * p + 2 + d}')
for p in range(2):
    e(f'buffer_store_dwordx4 {vr(X1P + 4 * p)}, v{V_XO}, {SRD_OUT}, {S_XOFF} offen offset:{p * 64} {args.outm}')
if args.stamps:
    stamp('end')
    e(f'''s_lshl_b32 s12, s2, 2
          s_add_u32 s12, s12, {S_W}
          s_lshl_b32 s12, s12, 8
          s_add_u32 s12, s12, {WS_STAMP}
          v_lshlrev_b32 v4, 2, {V_LANE}
          buffer_store_dword {V_STAMP}, v4, {SRD_WS}, s12 offen''')
    if args.dbg >= 0:
        e(f'''s_lshl_b32 s12, s2, 2
              s_add_u32 s12, s12, {S_W}
              s_cmp_lg_u32 s12, {args.dbg * 4}
              s_cbranch_scc1 L_giveup
              s_load_dwordx2 s[14:15], s[0:1], 80
              v_readlane_b32 s12, {V_STAMP}, 0
              s_waitcnt lgkmcnt(0)
              v_subrev_u32 v5, s12, {V_STAMP}
              global_store_dword v4, v5, s[14:15]''')
if args.padto:
    e(f'''v_readlane_b32 s12, {V_STAMP}, 0
          s_add_u32 s12, s12, {args.padto}''')
    A.label('L_pad')
    e('''s_memrealtime s[14:15]
         s_waitcnt lgkmcnt(0)
         s_sub_u32 s13, s14, s12
         s_cmp_lt_i32 s13, 0
         s_cbranch_scc1 L_pad''')
A.label('L_giveup')
e('s_endpgm')
assert not A.bg and not PIECES

nn = A.pad_hazards()
hdr = open(f'cdna_kernels/{NAME}.s.ref').read().split('; Override launch')[0]
wrap = lambda body: hdr + f'''; @launch grid=(256,1,1) block=(256,1,1) lds={LDS_TOTAL}
.amdgcn_target "amdgcn-amd-amdhsa--gfx950"
.text
.globl {NAME}_kernel
.p2align 8
.type {NAME}_kernel,@function
{NAME}_kernel:
''' + body + f'''.rept 256
    s_endpgm
.endr
L_codeend:
.section .rodata,"a"
.p2align 6
.amdhsa_kernel {NAME}_kernel
  .amdhsa_next_free_vgpr 512
  .amdhsa_next_free_sgpr 102
  .amdhsa_accum_offset 256
  .amdhsa_group_segment_fixed_size 0
  .amdhsa_kernarg_size 96
  .amdhsa_user_sgpr_count 2
  .amdhsa_user_sgpr_kernarg_segment_ptr 1
  .amdhsa_system_sgpr_workgroup_id_x 1
.end_amdhsa_kernel
'''
if args.align:
    print('align', align_pass(A, wrap, args.align), file=sys.stderr)
out = wrap(A.text())
if args.stamps or args.stop1:
    out += '; stamps: ' + ','.join(stamp_names) + '\n'
open(args.o, 'w').write(out)
if args.vlog:
    ev = sorted([(t, 'S', n) for n, t in model] + [(t, 'V', f'{tag}->{c}') for t, c, tag in A.log])
    print(' '.join((f'\n=={n}@{int(t)}==' if k == 'S' else f'{int(t)}:{n}') for t, k, n in ev), file=sys.stderr)
print('nvm', len(A.log), file=sys.stderr)
print('model: ' + ' '.join(f'{n}:{int(t)}' for n, t in model), file=sys.stderr)
print(f'wrote {args.o}: {len(A.ins)} instructions, {nn} hazard nops', file=sys.stderr)
```

```python
import sys, argparse
from contextlib import contextmanager
from asmlib import Asm, align_pass

NAME = "adaLN_cond__sliding_local_dilated__glu_gated_glu__prompt"
ap = argparse.ArgumentParser()
ap.add_argument('-o', default=f'cdna_kernels/{NAME}.s')
ap.add_argument('--stamps', action='store_true')
ap.add_argument('--cyc', action='store_true')
ap.add_argument('--fine', action='store_true')
ap.add_argument('--slow', action='store_true')
ap.add_argument('--x', default='')
ap.add_argument('--vlog', action='store_true')
ap.add_argument('--align', type=int, default=5)
ap.add_argument('--stop1', action='store_true')
ap.add_argument('--outm', default='nt')
ap.add_argument('--plan', default='4030000')
ap.add_argument('--tb', default='0')
ap.add_argument('--padph', default='')
ap.add_argument('--touch', action='store_true')
ap.add_argument('--s1', action='store_true')
for k, d in dict(gapa=64, gapaware=1, c3=1, padx=-1, wmq=2, wmax=6, wmd=5, wmp=5, stop4=7, edf=1, lead=5, gck=5, pf4=8, late4=3, wm0=4, wm1=2, apk=1, padto=0, dbg=-1, otlb=1, jit1=0, trsp=99, w0=0, w1=0, pg=2, zero=1, pfx=0, pfy=0, pfz=0, x0=2, bpos=8, h2o=1, ot=0, ht=0, gpl=1800, acut=70, gap0=64, gap1=64, gap4=84, gap5=64, s0=4, pfe2=3, pf0=4, b1=9, b1d=0, b2a=0, b2c=6, b2d=3, y0=2, slack=0, b1c=10, b2=8, b2b=4, b3=12, b4=8, win=11, gcut=3, tailq=2, gper=3, b5=6, hfirst=0, kbar=8, lat0=2900).items():
    ap.add_argument('--' + k, type=int, default=d)
args = ap.parse_args()
args.wt = not args.touch

A = Asm()
e = A.e
A.win = args.win
A.lat = {'xpf': (args.lat0, 2.5), 'x': (650, 1), 'gp': (args.gpl, .4), 'mx': (1100, .3), 'gc': (1250, .5), 'gq': (1800, 1.5), 'mtb': (1500, .8), 'mt': (1800, .8), 'ost': (400 if args.ot else 800, .1), 'xst': (400 if args.h2o else 800, .1),
         'hst': (400 if args.ht else 800, .1), 'poll': (650, .1), 'xr': (800, 2), '': (400, .1), 'p4w': (1100, 1.35), 'stt': (1400, .25), 'st': (650, 1), 'sst': (400, .1), 'mg': (1100, .25),
         'm': (1100, 1), 'o': (650 if args.ot else 1100, 1), 'y': (650 if args.h2o else 1100, 1), 'h': (650 if args.ht else 1100, 1), 'tch': (1600, 1)}
model = []

WS_O = 0x30000
WS_X1 = 0x50000
WS_STATS = 0x70000
WS_HH = 0x80000
HH_PITCH = 0x2C000
WS_GRP = 0xF0000
WS_MODP = 0xE0000
WS_EPOCH = 0xEF000
WS_STAMP = 0x1000000
WS_SIZE = 0x1100000 if args.stamps else 0x1000000

L_STATS, L_RED, L_MODV, L_GAGB = 0x0, 0xA00, 0x1000, 0x2000
L_HRING = 0x3000
L_B = [0x3000, 0xF000, 0x1B000, 0xF000]
L_WO = 0x17000
L_H2 = 0x17000
BLK, MAT1 = 12416, 6176
L_S = 0x3000
L_WD = 0x3000
LDS_TOTAL = 163840

S_W, S_RB, S_M, S_J, S_TAG, S_FAST, S_XCC = 's4', 's5', 's6', 's7', 's8', 's9', 's11'
SRD_X, SRD_WQKV, SRD_WO, SRD_WG, SRD_WU, SRD_WD, SRD_WMOD, SRD_OUT, SRD_WS, SRD_C = [
    f's[{b}:{b + 3}]' for b in range(40, 80, 4)]
S_GRP, S_ONES, S_HI, S_SPIN = 's84', 's85', 's86', 's87'
S_XOFF, S_NU, S_U0, S_COL = 's88', 's89', 's90', 's91'
SRD_GU = 's[92:95]'
S_MM4, S_GUM, S_H2M = 's80', 's81', 's39'
S_OST, S_X1ST, S_HST, S_STST = 's96', 's97', 's98', 's99'
S_HST2 = 's83'
S_W3K, S_M128, S_BT, S_W1K = 's20', 's21', 's22', 's23'
S_OLD, S_X1LD, S_STLD, S_HLD = 's35', 's36', 's37', 's38'
V_LANE, V_L16, V_G, V_C = 'v0', 'v1', 'v2', 'v3'
V_DUM, V_STAMP = 'v10', 'v15'
V_WOD, V_P4D, V_OST, V_XO, V_WDD, V_GB = 56, 57, 60, 61, 62, 63
PD = 'v[116:119]'


def vr(b, n=4):
    return f'v[{b}:{b + n - 1}]'


def ar(b, n=4):
    return f'a[{b}:{b + n - 1}]'


@contextmanager
def nobg():
    old = A.bg_on
    A.bg_on = False
    yield
    A.bg_on = old


nstamp = [0]
stamp_names = []


def stamp(name=''):
    model.append((name, A.t))
    if not args.stamps:
        return
    with nobg():
        e('s_memtime s[100:101]' if args.cyc else 's_memrealtime s[100:101]')
        stamp_names.append(name)
        A.wait_lg()
        e(f'v_writelane_b32 {V_STAMP}, s100, {nstamp[0]}')
    nstamp[0] += 1


def fine(name):
    if args.fine:
        stamp(name)


def lines(t):
    return [('i', l.split(';')[0].strip()) for l in t.split('\n') if l.split(';')[0].strip()]


def run(items):
    for it in items:
        if it[0] == 'i':
            e(it[1], tag=it[2] if len(it) > 2 else None)
        elif it[0] == 'wl':
            A.wait_lg(it[1])
        elif it[0] == 'wv':
            A.wait_vm(it[1])
        elif it[0] == 'f':
            it[1]()
        else:
            raise ValueError(it)


def is_mem(it):
    return it[0] == 'f' or (it[0] == 'i' and it[1].startswith(('ds_', 'buffer_')))


def is_valu(it):
    return it[0] == 'i' and it[1].startswith('v_') and not it[1].startswith('v_mfma')


def interleave(main, fill, start=0, end=None, pred=lambda t: t.startswith('v_mfma')):
    slots = [i for i, it in enumerate(main) if it[0] == 'i' and pred(it[1])]
    slots = slots[start:end]
    sset = {i: k for k, i in enumerate(slots)}
    out = []
    n = len(slots)
    done = 0
    i = 0
    while i < len(main):
        out.append(main[i])
        if i in sset:
            k = sset[i] + 1
            while i + 1 < len(main) and is_mem(main[i + 1]) and (i + 1) not in sset:
                i += 1
                out.append(main[i])
            upto = (len(fill) * k + n - 1) // n
            valu = False
            while done < upto:
                it = fill[done]
                if is_mem(it) and valu and k < n and args.gapaware:
                    break
                valu = valu or is_valu(it)
                out.append(it)
                done += 1
        i += 1
    out.extend(fill[done:])
    return out


def cost(it):
    if it[0] != 'i':
        return 1
    if it[1].startswith('ds_write_b128'):
        return 3
    if it[1].startswith(('v_exp', 'v_rcp', 'v_rsq')):
        return 2
    return 1


def pack(main, fill, start=0, end=None):
    gaps = []
    idx = [i for i, it in enumerate(main) if it[0] == 'i' and it[1].startswith('v_mfma')]
    for a, i in enumerate(idx):
        nxt = idx[a + 1] if a + 1 < len(idx) else len(main)
        j = i
        while j + 1 < nxt and is_mem(main[j + 1]):
            j += 1
        gaps.append((j, sum(cost(x) for x in main[i + 1:nxt])))
    gaps = gaps[start:end]
    total = sum(cost(x) for x in fill) + sum(c for _, c in gaps)
    at = {}
    done = 0
    acc = 0.0
    per = total / len(gaps)
    for k, (j, c) in enumerate(gaps):
        acc += per - c
        lst = []
        valu = False
        while done < len(fill) and (acc >= cost(fill[done]) - 0.5 or k == len(gaps) - 1):
            it = fill[done]
            if is_mem(it) and valu and k < len(gaps) - 1:
                break
            valu = valu or is_valu(it)
            lst.append(it)
            acc -= cost(it)
            done += 1
        at[j] = lst
    out = []
    for i, it in enumerate(main):
        out.append(it)
        out.extend(at.get(i, []))
    return out


def spin_fail(lbl_loop):
    e(f'''s_sub_u32 {S_SPIN}, {S_SPIN}, 1
          s_cmp_eq_u32 {S_SPIN}, 0
          s_cbranch_scc1 L_giveup
          s_branch {lbl_loop}''')


def checked(tag, loads, check):
    A.wait_vm(tag)
    with nobg():
        lc, lp, ld = A.newlabel('L_c'), A.newlabel('L_p'), A.newlabel('L_d')
        save = (list(A.vm), list(A.done), A.t, A.t_vm, list(A.log))
        e(f's_branch {lc}')
        A.label(lp)
        for l in loads:
            e(l)
        A.wait_vm()
        A.vm, A.done, A.t, A.t_vm, A.log = save
        A.label(lc)
        check()
        e(f's_cbranch_vccz {ld}')
        spin_fail(lp)
        A.label(ld)


def stores(lst, tag, optional=False, plain=False):
    with nobg():
        if not plain:
            for t in lst:
                e(t + ' sc1', tag=tag, optional=optional)
            return
        l1, l2 = A.newlabel('L_st'), A.newlabel('L_st')
        e(f"""s_cmp_lg_u32 {S_FAST}, 0
              s_cbranch_scc1 {l1}""")
        save = (list(A.vm), list(A.done), A.t, A.t_vm, list(A.log))
        for t in lst:
            e(t + ' sc1')
        e(f's_branch {l2}')
        A.vm, A.done, A.t, A.t_vm, A.log = save
        A.label(l1)
        for t in lst:
            e(t, tag=tag, optional=optional)
        A.label(l2)


def touch(pre, va, so, off=0, dst=None):
    dst = dst or PD
    if True:
        A.bg_add(pre + [f'buffer_load_dwordx4 {dst}, {va}, {SRD_WS}, {so} offen offset:{off} sc1'], 'tch')


def publish_flag(off, tag):
    with nobg():
        e(f'''s_add_u32 s12, {S_MM4}, {S_GRP}
              v_mov_b32 v5, {S_TAG}''')
        if off == 64:
            e(f'''s_and_b32 s13, {S_MM4}, 32
                  v_and_b32 v9, 7, {V_LANE}
                  v_lshl_add_u32 v9, v9, 2, s13''')
        else:
            e(f'v_lshlrev_b32 v9, 2, {V_C}')
        A.wait_vm(tag)
        e('s_barrier')
        l1, l2 = A.newlabel('L_pf'), A.newlabel('L_pf')
        e(f'''s_cmp_lg_u32 {S_W}, 0
              s_cbranch_scc1 {l2}
              s_mov_b64 exec, 1
              s_cmp_lg_u32 {S_FAST}, 0
              s_cbranch_scc1 {l1}''')
        e(f'buffer_store_dword v5, off, {SRD_WS}, s12 offset:{off} sc1', optional=True)
        e(f'''s_mov_b64 exec, -1
              s_branch {l2}''')
        A.label(l1)
        e(f'buffer_store_dword v5, off, {SRD_WS}, s12 offset:{off}', optional=True)
        e('s_mov_b64 exec, -1')
        A.label(l2)


def poll_ld(off):
    return f'buffer_load_dword v8, v9, {SRD_WS}, {S_GRP} offen offset:{off} sc1'


def poll_check(off):
    with nobg():
        checked('poll', [poll_ld(off)], lambda: e(f'v_cmp_ne_u32 vcc, {S_TAG}, v8'))


def st_loads(t0):
    return [f'buffer_load_dwordx4 {vr(t0 + 4 * p)}, {V_L16}, {SRD_WS}, {S_STLD} offen offset:{p * 1024} sc1' for p in range(2)]


def mod_loads(va, t0):
    return [f'buffer_load_dwordx4 {vr(t0 + 4 * p)}, {va}, {SRD_WS}, s{24 + p} offen sc1' for p in range(4)]


def mod_check(va, t0, tag, lds_v, addone_v):
    def chk():
        e(f's_and_b32 s13, {S_TAG}, 0xff')
        for i in range(16):
            e(f'v_xor_b32 v{t0 + i}, s13, v{t0 + i}')
        e(f'v_or3_b32 v5, v{t0}, v{t0 + 1}, v{t0 + 2}')
        e(f'v_or3_b32 v6, v{t0 + 3}, v{t0 + 4}, v{t0 + 5}')
        for i in range(6, 14, 4):
            e(f'v_or3_b32 v5, v5, v{t0 + i}, v{t0 + i + 1}')
            e(f'v_or3_b32 v6, v6, v{t0 + i + 2}, v{t0 + i + 3}')
        e(f'v_or3_b32 v5, v5, v{t0 + 14}, v{t0 + 15}')
        e(f'''v_or_b32 v5, v5, v6
              v_and_b32 v5, 0xff, v5
              v_cmp_ne_u32 vcc, 0, v5''')
    checked(tag, mod_loads(va, t0), chk)
    for i in range(0, 4, 2):
        e(f'v_pk_add_f32 {vr(t0 + i, 2)}, {vr(t0 + i, 2)}, {vr(t0 + 4 + i, 2)}')
        e(f'v_pk_add_f32 {vr(t0 + 8 + i, 2)}, {vr(t0 + 8 + i, 2)}, {vr(t0 + 12 + i, 2)}')
    for i in range(0, 4, 2):
        e(f'v_pk_add_f32 {vr(t0 + i, 2)}, {vr(t0 + i, 2)}, {vr(t0 + 8 + i, 2)}')
    for rnd in range(2):
        e(f'v_cvt_pk_bf16_f32 v5, v{t0}, v{t0 + 1}')
        e(f'v_cvt_pk_bf16_f32 v6, v{t0 + 2}, v{t0 + 3}')
        e(f'v_lshlrev_b32 v{t0}, 16, v5')
        e(f'v_and_b32 v{t0 + 1}, {S_HI}, v5')
        e(f'v_lshlrev_b32 v{t0 + 2}, 16, v6')
        e(f'v_and_b32 v{t0 + 3}, {S_HI}, v6')
        if rnd == 0:
            if addone_v is None:
                break
            for i in range(4):
                e(f'v_add_f32 v{t0 + i}, v{t0 + i}, {addone_v}')
    e(f'ds_write_b128 {lds_v}, {vr(t0)}', tag='modw')


def mod_task_loads(base, cond, tag, rr=vr, va='v74', vc='v75'):
    l = A.newlabel('L_ml')
    with nobg():
        e(cond + f'\n s_cbranch_scc0 {l}')
        e(f'buffer_load_dwordx2 {rr(base + 16, 2)}, {vc}, {SRD_C}, s33 offen', tag=tag, optional=True)
        for i in range(4):
            e(f'buffer_load_dwordx4 {rr(base + 4 * i)}, {va}, {SRD_WMOD}, s{29 + i} offen', tag=tag, optional=True)
        A.label(l)


def mod_part1(base, t, ad, from_a=None, c0=None, fma=False):
    x = ''
    c0 = c0 or base + 16
    if from_a is not None:
        for i in range(18):
            x += f'v_accvgpr_read_b32 v{base + i if i < 16 else c0 + i - 16}, a{from_a + i}\n'
    x += f"""v_lshlrev_b32 v{t + 8}, 16, v{c0}
          v_and_b32 v{t + 9}, {S_HI}, v{c0}
          v_lshlrev_b32 v{t + 10}, 16, v{c0 + 1}
          v_and_b32 v{t + 11}, {S_HI}, v{c0 + 1}
          """
    for op in ('v_mul_f32 v{a}, 0xbfb8aa3b, v{b}', 'v_exp_f32 v{a}, v{a}', 'v_add_f32 v{a}, 1.0, v{a}', 'v_rcp_f32 v{a}, v{a}', 'v_mul_f32 v{b}, v{b}, v{a}'):
        for i in range(4):
            x += op.format(a=t + 12 + i, b=t + 8 + i) + '\n'
    MA = t + 8
    if fma:
        for i in range(4):
            x += f'v_cvt_pk_bf16_f32 v{t + i}, 0, v{t + 8 + i}\n'
        for i in range(4):
            for d in range(4):
                x += f'v_lshlrev_b32 v{t + 4}, 16, v{base + 4 * i + d}\n v_and_b32 v{t + 5}, {S_HI}, v{base + 4 * i + d}\n'
                for h in range(2):
                    if i == 0:
                        x += f'v_mul_f32 v{MA + 2 * d + h}, v{t + 4 + h}, v{t + i}\n'
                    else:
                        x += f'v_fma_f32 v{MA + 2 * d + h}, v{t + 4 + h}, v{t + i}, v{MA + 2 * d + h}\n'
    else:
        for i in range(4):
            x += f'v_cvt_pk_bf16_f32 v{t + i}, v{t + 8 + i}, 0\n'
            x += f'v_cvt_pk_bf16_f32 v{t + 4 + i}, 0, v{t + 8 + i}\n'
        for i in range(4):
            for d in range(4):
                for h in range(2):
                    src2 = '0' if i == 0 else f'v{MA + 2 * d + h}'
                    x += f'v_dot2_f32_bf16 v{MA + 2 * d + h}, v{base + 4 * i + d}, v{t + 4 * h + i}, {src2}\n'
    x += f"""v_and_b32 v{ad}, 7, {V_LANE}
          v_lshlrev_b32 v{ad}, 5, v{ad}
          v_and_b32 v{ad + 1}, 1, {V_G}
          v_lshl_add_u32 v{ad}, v{ad + 1}, 3, v{ad}
          """
    for p in range(4):
        x += f'v_permlane32_swap_b32 v{MA + 2 * p}, v{MA + 2 * p + 1}\n'
    for p in range(4):
        x += f'v_add_f32 v{MA + 2 * p}, v{MA + 2 * p}, v{MA + 2 * p + 1}\n'
    x += f"""v_lshrrev_b32 v{ad + 1}, 1, {V_G}
          v_lshl_add_u32 v{ad}, v{ad + 1}, 2, v{ad}
          """
    for p in range(2):
        x += f'v_permlane16_swap_b32 v{MA + 4 * p}, v{MA + 4 * p + 2}\n'
    for p in range(2):
        x += f'v_add_f32 v{MA + 4 * p}, v{MA + 4 * p}, v{MA + 4 * p + 2}\n'
    x += f"""s_lshl_b32 s28, {S_W}, 8
          v_add_u32 v{ad}, s28, v{ad}
          """
    for p in range(2):
        x += f'v_add_f32_dpp v{MA + 4 * p + 1}, v{MA + 4 * p}, v{MA + 4 * p} row_ror:8 row_mask:0xf bank_mask:0xf\n'
    x += f'ds_write_b32 v{ad}, v{MA + 1} offset:{L_RED}\n'
    x += f'ds_write_b32 v{ad}, v{MA + 5} offset:{L_RED + 16}\n'
    return lines(x)


def mod_part2(base, lm, wave):
    e(f"""s_cmp_lg_u32 {S_W}, {wave}
          s_cbranch_scc1 {lm}
          v_lshlrev_b32 v4, 4, {V_C}""")
    for w in range(4):
        e(f'ds_read_b128 {vr(base + 4 * w)}, v4 offset:{L_RED + w * 256}')
    e(f"""s_and_b32 s13, {S_TAG}, 0xff
          s_mov_b32 s14, 0xffffff00
          v_mov_b32 v5, s13
          s_and_b32 s12, s3, 3
          s_mul_i32 s12, s12, 12288
          s_lshr_b32 s13, s3, 2
          s_lshl_b32 s13, s13, 8
          s_add_u32 s12, s12, s13
          s_add_u32 s12, s12, {WS_MODP}""")
    e('s_waitcnt lgkmcnt(0)')
    for i in range(0, 4, 2):
        e(f'v_pk_add_f32 {vr(base + i, 2)}, {vr(base + i, 2)}, {vr(base + 4 + i, 2)}')
        e(f'v_pk_add_f32 {vr(base + 8 + i, 2)}, {vr(base + 8 + i, 2)}, {vr(base + 12 + i, 2)}')
    for i in range(0, 4, 2):
        e(f'v_pk_add_f32 {vr(base + i, 2)}, {vr(base + i, 2)}, {vr(base + 8 + i, 2)}')
    for i in range(4):
        e(f'v_and_or_b32 v{base + i}, v{base + i}, s14, v5')
    e('s_mov_b64 exec, 0xffff')
    e(f'buffer_store_dwordx4 {vr(base)}, v4, {SRD_WS}, s12 offen sc1', optional=True)
    e('s_mov_b64 exec, -1')
    e('s_nop 0')


def dma_wqkv(j):
    for pos in range(4):
        ks = 4 * pos + j
        for mat in range(3):
            pre = [f's_add_u32 m0, {S_W3K}, {L_B[j] + pos * 12288}', f's_add_u32 {S_BT}, {S_M128}, {ks * 32 * 3072}'] if mat == 0 else []
            A.bg_add(pre + [f'buffer_load_dwordx4 v8, {SRD_WQKV}, {S_BT} offen offset:{mat * 1024} lds'], f'wq{j}')


def tr_wqkv(j):
    it = [('i', f'v_add_u32 v9, {(L_B[j] - L_B[j - 1]) & 0xffffffff}, v9')] if j else []
    return it + [('i', f'ds_read_b64_tr_b16 {ar(((j * 4 + pos) * 3 + mat) * 4 + hf * 2, 2)}, v9 offset:{pos * 12288 + mat * 1024 + hf * 512}', f'trq{j}_{pos}')
                 for pos in range(4) for mat in range(3) for hf in range(2)]


def dma_1k(srd, vreg, ks, ldsaddr, tag):
    A.bg_add([f's_add_u32 m0, {S_W1K}, {ldsaddr}', f's_add_u32 {S_BT}, {S_M128}, {ks * 32768}',
              f'buffer_load_dwordx4 v{vreg}, {srd}, {S_BT} offen lds'], tag)


def dma_p4(n):
    for i in range(3):
        A.bg_add([f's_add_u32 m0, {S_GUM}, {(n % 6) * BLK + i * 1024}', f's_add_u32 {S_BT}, {S_COL}, {n * 32 * 2752}',
                  f'buffer_load_dwordx4 v{V_P4D + i}, {SRD_GU}, {S_BT} offen lds'], f'p4w{n}')


class GU:
    queued = 0
    landed = 0
    moved = 0
    freed = 0


def gu_queue():
    while GU.queued < 16 and GU.queued < GU.freed + 6:
        dma_p4(GU.queued)
        GU.queued += 1


def gu_pre(upto):
    upto = max(upto, GU.landed)
    assert upto <= GU.queued
    if upto > GU.landed:
        A.wait_vm(f'p4w{upto - 1}')
    GU.pend = upto


def gu_post(lg_waited=True):
    GU.landed = GU.pend
    if lg_waited:
        GU.freed = GU.moved
    gu_queue()


def gu_done():
    live = {t for t, o in A.vm} | {t for l, t in A.bg}
    n = 0
    while n < GU.queued and f'p4w{n}' not in live:
        n += 1
    return n


def mover(n):
    return [('i', f'ds_read_b64_tr_b16 {ar(16 * n + 8 * i + 4 * mat + 2 * hf, 2)}, v{20 + i + 2 * ((n % 6) // 3)} offset:{(n % 3) * BLK + mat * MAT1 + hf * 16 * 192}', f'mv{n}')
            for i in range(2) for mat in range(2) for hf in range(2)]


def movers(limit=16):
    it = []
    while GU.moved < min(GU.landed, limit):
        it += mover(GU.moved)
        GU.moved += 1
    return it


def front(f):
    rest = list(A.bg)
    A.bg = []
    f()
    A.bg += rest


def c3(srd, piece):
    if args.c3:
        lo = srd[2:srd.index(':')]
        A.bg_add([f's_sub_u32 {S_BT}, 0x180, s{lo}', f's_and_b32 {S_BT}, {S_BT}, 0x380', f's_add_u32 {S_BT}, {S_BT}, {piece * 524288}',
                  f'buffer_load_dword {V_DUM}, {C3[0]}, {srd}, {S_BT} offen'], 'gc')


C3 = ['v55']


def gpf(srd, base):
    A.bg_add([f's_mov_b32 {S_BT}, {base}', f'buffer_load_dword {V_DUM}, v11, {srd}, {S_BT} offen'], 'gp')


Q = 128 * 2752
PIECES = [[(SRD_WO, 0), (SRD_WO, 393216)]] + [[(SRD_WG, q * Q), (SRD_WU, q * Q)] for q in range(4)] + \
         [[(SRD_WD, 0), (SRD_WD, 393216)], [(SRD_WD, 2 * 393216), (SRD_WD, 3 * 393216)]]


PLAN = [int(c) for c in args.plan]


def pieces(point):
    for k in range(PLAN[point]):
        for p in PIECES.pop(0):
            gpf(*p)


def bg_mix(every, first=0):
    old = A.bg
    A.bg = []
    k = first
    for it in old:
        if len(it[0]) > 1 and k >= every and PIECES:
            for p in PIECES.pop(0):
                gpf(*p)
            k = 0
        A.bg.append(it)
        k += 1


XRES, GAL, TRB = 88, 136, 84
MK, ONE = 168, 184


L_MASK, L_TRB = 0x27000, 0x2800


def tr_bases_t(dst, rowt, ft, ldsbase):
    t = f'''v_bfe_u32 v40, {V_LANE}, 2, 2
          v_and_b32 v41, 3, {V_LANE}
          {rowt}
          {ft}
          v_lshlrev_b32 v42, 7, v42
          v_and_b32 v40, 1, v41
          v_lshl_add_u32 v42, v40, 3, v42
          v_add_u32 v42, {ldsbase}, v42
          v_lshrrev_b32 v41, 1, v41
          '''
    for ct in range(4):
        t += f'''v_add_u32 v40, {2 * ct}, v41
              v_xor_b32 v40, v40, v43
              v_lshl_add_u32 v{dst + ct}, v40, 4, v42
              '''
    return t


def late_items():
    t = f"""v_lshlrev_b32 v80, 4, {V_C}
          v_lshl_add_u32 v80, {V_G}, 11, v80
          s_lshl_b32 s12, {S_M}, 8
          s_add_u32 s12, s12, {1024 * 4}
          v_add_u32 v80, s12, v80
          v_mov_b32 v81, v55
          s_add_u32 s12, {S_W1K}, {L_MODV}
          v_add_u32 v82, s12, {V_L16}
          v_cmp_eq_u32 vcc, 2, {V_G}
          v_mov_b32 v83, 0
          s_nop 0
          v_cndmask_b32 v83, v83, 1.0, vcc
          """
    t += tr_bases_t(TRB, f'v_lshl_add_u32 v42, {V_G}, 3, v40',
                    f'v_and_b32 v43, 2, v40\n v_and_b32 v44, 1, {V_G}\n v_lshl_add_u32 v43, v44, 2, v43', L_WO)
    return lines(t)


def mask_items():
    t = f'''s_sub_u32 s13, {S_RB}, 1
            s_lshr_b32 s13, s13, 31
            s_lshl_b32 s13, s13, 6
            s_mov_b32 s12, 0xf149f2ca
            v_lshlrev_b32 v40, 2, {V_G}
            v_mov_b32 v42, s12
         '''
    for r in range(4):
        t += f'''v_add_u32 v41, {r}, v40
          v_sub_u32 v43, {V_C}, v41
          v_cmp_gt_u32 vcc, 8, v43
          v_cmp_ge_i32 s[14:15], -9, v43
          v_add_u32 v43, s13, v43
          v_cndmask_b32 v{MK + r}, v42, 0, vcc
          v_cndmask_b32 v{MK + 4 + r}, v42, 0, s[14:15]
          v_cmp_ge_i32 vcc, -9, v43
          v_cmp_gt_i32 s[14:15], 0, v43
          v_cmp_lt_u32 s[18:19], 7, v41
          v_cndmask_b32 v{MK + 12 + r}, v42, 0, vcc
          v_cndmask_b32 v{MK + 8 + r}, v42, 0, s[14:15]
          v_cndmask_b32 v{MK + 8 + r}, v{MK + 8 + r}, v42, s[18:19]
          '''
    return lines(t)


srds = [(40, 0, 2048 * 1024), (64, 64, 512 * 6144), (76, 56, 1024), (44, 8, 512 * 3072), (72, 88, WS_SIZE), (48, 16, 512 * 1024),
        (52, 32, 512 * 2752), (56, 40, 512 * 2752), (60, 48, 1376 * 1024), (68, 72, 2048 * 1024)]
MW, XN, XRAW = 16, 80, 160
e(f"""s_cmp_ge_u32 s2, 256
      s_cbranch_scc1 L_giveup
      {'s_memtime s[100:101]' if args.cyc else 's_memrealtime s[100:101]' if args.stamps else ''}""")
for (d, off, sz) in srds[:5]:
    e(f's_load_dwordx2 s[{d}:{d + 1}], s[0:1], {off}')
e(f"""v_lshrrev_b32 v2, 6, v0
      v_and_b32 v0, 63, v0
      v_readfirstlane_b32 {S_W}, v2
      s_lshr_b32 {S_J}, s2, 3
      s_and_b32 s3, s2, 7
      s_lshr_b32 s10, {S_J}, 3
      s_lshl_b32 {S_RB}, s3, 2
      s_add_u32 {S_RB}, {S_RB}, s10
      s_and_b32 {S_M}, {S_J}, 7
      s_lshl_b32 s12, {S_M}, 2
      s_add_u32 s12, s12, {S_W}
      s_mul_i32 s12, s12, 20
      s_lshl_b32 s13, {S_RB}, 9
      s_add_u32 s12, s12, s13
      s_addk_i32 s12, -128
      v_add_lshl_u32 v7, s12, {V_LANE}, 7
      v_cmp_gt_u32 vcc, 20, {V_LANE}
      v_bfrev_b32 v6, -2
      s_mov_b32 s34, 0x20000
      s_mov_b32 s42, {2048 * 1024}
      v_cndmask_b32 v14, v6, v7, vcc
      s_mov_b32 s43, s34
      s_getpc_b64 s[14:15]
      v_lshlrev_b32 {V_L16}, 4, {V_LANE}
      s_lshl_b32 s12, {S_J}, 2
      s_add_u32 s12, s12, {S_W}
      s_and_b32 s12, s12, 63
      s_min_u32 s12, s12, (L_codeend-{NAME}_kernel)/1024-1
      s_lshl_b32 s12, s12, 10
      s_and_b32 s14, s14, 0xffffff00
      v_add_u32 v4, s12, {V_L16}""")
e(f'global_load_dwordx4 a[244:247], v4, s[14:15]')
A.wait_lg()
A.t = 1100
e(f'buffer_load_dword {V_DUM}, v14, {SRD_X}, 0 offen', tag='xpf')
if args.stamps:
    e(f'v_mov_b32 {V_STAMP}, 0')
    e(f'v_writelane_b32 {V_STAMP}, s100, 0')
    stamp_names.append('entry'); nstamp[0] += 1
e(f's_load_dword s8, s[72:73], {WS_EPOCH}')
for (d, off, sz) in srds[5:]:
    e(f's_load_dwordx2 s[{d}:{d + 1}], s[0:1], {off}')
for (d, off, sz) in srds[1:4]:
    e(f"""s_mov_b32 s{d + 2}, {sz}
          s_mov_b32 s{d + 3}, s34""")
e(f"""s_and_b32 s10, {S_J}, 3
      s_lshr_b32 s12, {S_J}, 2
      s_lshl_b32 s13, s12, 1
      s_add_u32 s13, s13, s10
      s_add_u32 s13, s13, 7
      s_cmp_eq_u32 s10, 0
      s_cselect_b32 s12, s12, s13
      s_lshl_b32 s12, s12, 3
      s_add_u32 s3, s3, s12
      s_lshl_b32 s12, {S_W}, 3
      v_lshrrev_b32 v76, 3, {V_LANE}
      v_add_u32 v76, s12, v76
      v_and_b32 v77, 7, {V_LANE}
      v_lshlrev_b32 v75, 3, v76
      v_mul_u32_u24 v74, {4 * 6144}, v76
      v_lshl_add_u32 v74, v77, 4, v74
      s_and_b32 s13, s3, 3
      s_lshr_b32 s14, s3, 2
      s_mul_i32 s29, s13, {128 * 6144}
      s_lshl_b32 s30, s14, 7
      s_add_u32 s29, s29, s30
      s_lshl_b32 s33, s13, 8
      s_add_u32 s30, s29, 6144
      s_add_u32 s31, s29, {2 * 6144}
      s_add_u32 s32, s29, {3 * 6144}""")
COND_A = 's_cmp_eq_u32 s10, 0'
COND_B = 's_sub_u32 s12, s10, 1\n s_cmp_lt_u32 s12, 2'
mod_task_loads(MW, COND_A, 'mt')
e(f"""s_lshl_b32 s15, s2, 2
      s_add_u32 s15, s15, {S_W}
      s_mul_i32 s12, s15, 12
      v_add_lshl_u32 v7, s12, {V_LANE}, 7
      v_cmp_gt_u32 vcc, 12, {V_LANE}
      v_lshrrev_b32 v12, 2, {V_LANE}        ; c4   (x lane map: c4 = l/4, g4 = l%4)
      v_and_b32 v13, 3, {V_LANE}            ; g4
      v_cndmask_b32 v54, v6, v7, vcc
      s_lshl_b32 s12, {S_J}, 2
      s_add_u32 s12, s12, {S_W}
      s_lshl_b32 s12, s12, 2
      v_add_lshl_u32 v7, s12, {V_LANE}, 10
      v_cmp_gt_u32 vcc, 4, {V_LANE}
      s_nop 1
      v_cndmask_b32 v55, v6, v7, vcc
      v_lshlrev_b32 v4, 11, v12
      v_lshl_add_u32 v4, v13, 4, v4
      s_lshl_b32 s16, {S_RB}, 16
      s_lshl_b32 s17, {S_W}, 8
      s_add_u32 s16, s16, s17
      s_add_u32 s18, s16, 32768""")


def xload(T, j, bg=False):
    q = 5 * j + T
    if T < 4:
        l = f'buffer_load_dwordx4 {vr(XN + 8 * q + 4)}, v4, {SRD_X}, {"s16" if T < 2 else "s18"} offen offset:{(T % 2) * 1024 + j * 64}'
    else:
        l = f'buffer_load_dwordx4 {vr(XN + 8 * q + 4)}, v5, {SRD_X}, s17 offen offset:{j * 64}'
    if bg:
        A.bg_add([l], f'x{T}')
    else:
        e(l, tag=f'x{T}')


def issue_gq(pos):
    if pos == args.pg:
        e(f'buffer_load_dword {V_DUM}, v54, {SRD_WQKV}, 0 offen', tag='gq')
        for k in range(3):
            c3(SRD_WQKV, k)
        A.bg_flush()


issue_gq(0)
e(f"""      v_bfe_u32 v5, {V_LANE}, 4, 1
      s_and_b32 s12, {S_W}, 1
      s_lshl_b32 s12, s12, 1
      v_add_u32 v5, s12, v5
      v_lshlrev_b32 v5, 1, v5
      v_xor_b32 v5, v77, v5
      v_lshlrev_b32 v5, 4, v5
      v_mul_u32_u24 v8, 3072, v76
      v_add_u32 v8, v8, v5
      v_lshl_add_u32 v{V_WOD}, v76, 10, v5
      s_mul_i32 {S_W3K}, {S_W}, 3072
      s_lshl_b32 {S_M128}, {S_M}, 7
""")
dma_wqkv(0)
A.bg_flush(args.w0)
extra = [A.bg.pop(0) for _ in range(args.w1)]
W0REST = list(A.bg)
A.bg = []
if extra:
    ln = A.newlabel('L_e')
    sv = (list(A.vm), A.t, A.t_vm, list(A.done), list(A.log))
    e(COND_A + f'\n s_cbranch_scc1 {ln}')
    for l_, t_ in extra:
        for l in l_:
            e(l, tag=t_)
    A.label(ln)
    A.vm, A.t, A.t_vm, A.done, A.log = sv
for j in range(args.x0):
    xload(0, j)
fine('start')

for (d, off, sz) in srds[4:]:
    e(f"""s_mov_b32 s{d + 2}, {sz}
          s_mov_b32 s{d + 3}, s34""")
e(f"""s_mul_i32 s12, s15, 3
      v_add_lshl_u32 v7, s12, {V_LANE}, 7
      v_cmp_gt_u32 vcc, 3, {V_LANE}
      v_lshrrev_b32 {V_G}, 4, {V_LANE}
      v_and_b32 {V_C}, 15, {V_LANE}
      v_cndmask_b32 v11, v6, v7, vcc
      v_lshlrev_b32 v5, 1, v12
      v_cmp_lt_u32 vcc, 7, v12
      v_mov_b32 v6, -16
      v_mov_b32 v7, -31
      s_lshl_b32 s15, {S_RB}, 6
      v_cndmask_b32 v6, v6, v7, vcc
      v_add3_u32 v5, v5, v6, s15
      v_max_i32 v5, 0, v5
      v_lshlrev_b32 v5, 10, v5
      v_lshl_add_u32 v5, v13, 4, v5
      v_lshlrev_b32 v6, 1, {V_G}
      v_xor_b32 v6, v77, v6
      v_lshlrev_b32 v6, 4, v6
      v_lshl_add_u32 v{V_WDD}, v76, 10, v6
      s_lshl_b32 {S_W1K}, {S_W}, 10
      s_getreg_b32 {S_XCC}, hwreg(HW_REG_XCC_ID)
      s_and_b32 {S_XCC}, {S_XCC}, 15
      s_mov_b32 {S_ONES}, 0x3f803f80
      s_mov_b32 {S_HI}, 0xffff0000
      s_mov_b32 {S_SPIN}, 0x40000
      s_lshr_b32 {S_GRP}, {S_RB}, 1
      s_lshl_b32 s82, {S_GRP}, 20
      s_add_u32 {S_GRP}, s82, {WS_GRP}
      v_bfe_u32 v78, {V_LANE}, 2, 2          ; r4
      v_mul_u32_u24 v9, 3072, {V_G}
      v_lshl_add_u32 v9, v78, 7, v9
      v_and_b32 v78, 2, v78
      v_and_b32 v6, 1, {V_G}
      v_lshl_add_u32 v78, v6, 2, v78         ; 2f
      v_lshrrev_b32 v6, 1, v13               ; cc/2
      s_lshl_b32 s12, {S_W}, 1
      v_add_u32 v6, s12, v6
      v_xor_b32 v6, v6, v78
      v_lshl_add_u32 v9, v6, 4, v9
      v_and_b32 v79, 1, v13
      v_lshl_add_u32 v9, v79, 3, v9
      v_add_u32 v9, {L_B[0]}, v9""")
for p in range(4):
    e(f's_mov_b32 s{24 + p}, {WS_MODP + p * 12288}')
issue_gq(1)
e(f's_mov_b32 s12, {(1 << 32) // 12 + 1}')
for i in range(3):
    e(f"""v_add_u32 v6, {64 * i}, {V_LANE}
          v_mul_hi_u32 v7, v6, s12
          v_mul_u32_u24 v78, 12, v7
          v_sub_u32 v6, v6, v78
          v_lshrrev_b32 v78, 1, v7
          v_and_b32 v78, 2, v78
          v_xor_b32 v6, v6, v78
          v_mul_u32_u24 v7, 2752, v7
          v_lshl_add_u32 v{V_P4D + i}, v6, 4, v7
          v_lshlrev_b32 v{44 + i}, 27, v6""")
e(f"""s_and_b32 s12, {S_RB}, 1
      s_lshl_b32 s12, s12, 3
      s_add_u32 s12, s12, {S_M}
      s_lshl_b32 {S_MM4}, s12, 2
      s_mul_i32 s12, s12, 43
      s_add_u32 s13, s12, 43
      s_lshr_b32 s12, s12, 4
      s_lshr_b32 s13, s13, 4
      s_sub_u32 {S_NU}, s13, s12
      s_lshl_b32 {S_U0}, s12, 1
      s_sub_u32 s13, 3, {S_NU}
      s_mul_i32 s13, s13, {0x40000000 * args.zero}
      v_and_or_b32 v{V_P4D}, v44, s13, v{V_P4D}
      v_and_or_b32 v{V_P4D + 1}, v45, s13, v{V_P4D + 1}
      v_and_or_b32 v{V_P4D + 2}, v46, s13, v{V_P4D + 2}
      s_lshr_b32 s13, {S_W}, 1
      s_mul_i32 s14, s13, {16 * 2752}
      s_lshl_b32 {S_COL}, s12, 6
      s_add_u32 {S_COL}, {S_COL}, s14
      s_mul_i32 s13, s13, 3072
      s_and_b32 s14, {S_W}, 1
      s_mul_i32 s14, s14, {MAT1}
      s_add_u32 s13, s13, s14
      s_add_u32 {S_GUM}, s13, {L_S}
      s_lshl_b32 s13, {S_W}, 12
      s_add_u32 {S_H2M}, s13, {L_H2}
      v_and_b32 v78, 1, {V_G}
      v_lshrrev_b32 v79, 1, {V_G}
      v_lshlrev_b32 v6, 14, v78
      v_lshl_add_u32 v6, v79, 8, v6
      v_lshl_add_u32 v{V_OST}, {V_C}, 4, v6
      v_lshlrev_b32 v6, 11, {V_C}
      v_lshl_add_u32 v6, v78, 5, v6
      v_lshl_add_u32 v{V_XO}, v79, 4, v6
      s_lshr_b32 s12, {S_W}, 1
      s_lshl_b32 s12, s12, 15
      s_and_b32 s13, {S_W}, 1
      s_lshl_b32 s13, s13, 10
      s_add_u32 s12, s12, s13
      s_lshl_b32 s13, {S_RB}, 16
      s_add_u32 s12, s12, s13
      s_add_u32 {S_XOFF}, s12, {S_M128}
      s_and_b32 s15, {S_RB}, 1
      s_lshl_b32 s14, s15, 16
      s_add_u32 s14, s14, s82
      s_lshl_b32 s12, {S_M}, 11
      s_lshl_b32 s13, {S_W}, 9
      s_add_u32 s12, s12, s13
      s_add_u32 s12, s12, s14
      s_add_u32 {S_OST}, s12, {WS_O}
      s_lshl_b32 s12, {S_W}, 14
      s_add_u32 s12, s12, s14
      s_add_u32 {S_OLD}, s12, {WS_O}
      s_lshl_b32 s13, {S_M}, 11
      s_add_u32 s12, s12, s13
      s_add_u32 {S_X1ST}, s12, {WS_X1}
      s_lshr_b32 s13, {S_W}, 1
      s_lshl_b32 s13, s13, 10
      s_add_u32 s12, s82, s13
      s_and_b32 s13, {S_W}, 1
      s_lshl_b32 s13, s13, 16
      s_add_u32 s12, s12, s13
      s_add_u32 {S_X1LD}, s12, {WS_X1}
      s_lshl_b32 s12, s15, 13
      s_lshl_b32 s13, {S_W}, 11
      s_add_u32 s12, s12, s13
      s_add_u32 s12, s12, s82
      s_add_u32 {S_STLD}, s12, {WS_STATS}
      s_lshl_b32 s13, {S_M}, 8
      s_add_u32 {S_STST}, {S_STLD}, s13
      s_and_b32 s12, {S_W}, 1
      s_xor_b32 s13, s12, 1
      s_mul_i32 s12, s12, {HH_PITCH}
      s_mul_i32 s13, s13, {HH_PITCH}
      s_add_u32 s14, {S_U0}, {S_W}
      s_lshl_b32 s14, s14, 10
      s_add_u32 s14, s14, s82
      s_add_u32 s14, s14, {WS_HH}
      s_add_u32 {S_HST}, s12, s14
      s_add_u32 {S_HST2}, s13, s14
      s_mul_i32 s12, s15, {HH_PITCH}
      s_add_u32 s12, s12, s82
      s_add_u32 s12, s12, {WS_HH}
      s_lshr_b32 s13, {S_W}, 1
      s_mul_i32 s13, s13, {86 * 1024}
      s_add_u32 s12, s12, s13
      s_and_b32 s13, {S_W}, 1
      s_lshl_b32 s13, s13, 8
      s_add_u32 {S_HLD}, s12, s13
      s_add_u32 s12, {S_W1K}, {L_MODV}
      v_lshl_add_u32 v{V_GB}, {V_G}, 4, s12
      v_lshlrev_b32 v77, 2, {V_LANE}
      v_and_b32 v78, 31, {V_LANE}
      v_lshlrev_b32 v78, 4, v78
      v_lshrrev_b32 v79, 5, {V_LANE}
      v_lshl_add_u32 v78, v79, 11, v78
      s_lshl_b32 s12, {S_W}, 9
      v_add_u32 v78, s12, v78
      v_cvt_f32_u32 v79, v79
      s_add_u32 s12, {S_W1K}, {L_MODV}
      v_add_u32 v76, s12, {V_L16}
      v_lshlrev_b32 v6, 1, v13
      v_xor_b32 v6, v6, v12
      v_lshl_add_u32 v6, v13, 4, v6
      v_lshlrev_b32 v6, 4, v6
      s_mul_i32 s13, {S_W}, 5120
      s_add_u32 s13, s13, {L_HRING}
      v_lshlrev_b32 v12, 5, v13
      v_add_u32 v12, s12, v12
      v_add_u32 v13, s13, v6
      v_lshlrev_b32 v6, 1, {V_G}
      v_xor_b32 v6, v6, {V_C}
      v_lshl_add_u32 v6, {V_G}, 4, v6
      v_lshlrev_b32 v6, 4, v6
      v_add_u32 v14, {L_HRING}, v6""")
issue_gq(2)
MKT = MK
MK = 240
run(mask_items())
run([(k, t.replace('v80', 'v64').replace('v81', 'v65').replace('v82', 'v66').replace('v83', 'v67').replace('v84', 'v68').replace('v85', 'v69').replace('v86', 'v70').replace('v87', 'v71')) for k, t in late_items()])
e(f'v_add_u32 v40, {L_MASK}, {V_L16}')
for i in range(4):
    e(f'ds_write_b128 v40, {vr(MK + 4 * i)} offset:{i * 1024}')
e(f'ds_write_b128 {V_L16}, v[68:71] offset:{L_TRB}')
for i in range(4):
    e(f'v_accvgpr_write_b32 a{250 + i}, v{64 + i}')
e('s_add_u32 s18, s16, 32768')
MK = MKT
A.wait_lg()
e(f"""s_bitcmp1_b32 {S_W}, 0
      s_cselect_b32 s92, s56, s52
      s_cselect_b32 s93, s57, s53
      s_mov_b32 s94, {512 * 2752}
      s_mov_b32 s95, s34
      s_mul_i32 {S_TAG}, {S_TAG}, 1664525
      s_add_u32 {S_TAG}, {S_TAG}, 1013904223""")
lx = A.newlabel('L_x')
e(f'''s_cmp_lg_u32 {S_W}, 1
      s_cbranch_scc1 {lx}
      s_and_b32 s12, {S_TAG}, 0xfffffff0
      s_or_b32 s12, s12, {S_XCC}
      s_add_u32 s13, {S_MM4}, {S_GRP}
      s_mov_b64 exec, 1
      v_mov_b32 v6, s12''')
e(f'buffer_store_dword v6, off, {SRD_WS}, s13 sc1', optional=True)
e('s_mov_b64 exec, -1')
A.label(lx)
issue_gq(3)
fine('setup')
lm, lm2, lj = A.newlabel('L_nomod'), A.newlabel('L_nomod'), A.newlabel('L_mj')
e(COND_A + f'\n s_cbranch_scc1 {lm}')
save = (list(A.vm), list(A.done), A.t, A.t_vm, list(A.log))
XL = [(0, j) for j in range(args.x0, 4)] + [(T, j) for T in (1, 2) for j in range(4)]
for T, j in XL:
    xload(T, j)
e(f's_branch {lj}')
A.vm, A.done, A.t, A.t_vm, A.log = save
A.label(lm)
save = list(A.vm)
A.wait_vm('mt')
A.vm = save
run(interleave(mod_part1(MW, 36, 6), [('f', lambda T=T, j=j: xload(T, j)) for T, j in XL], 0, 96, pred=lambda t: True))
for l_, t_ in extra:
    for l in l_:
        e(l, tag=t_, optional=True)
A.wait_lg()
e('s_barrier')
e('v_mov_b32 v52, v4\n v_mov_b32 v53, v5')
mod_part2(MW, lm2, 0)
A.label(lm2)
e('v_mov_b32 v4, v52\n v_mov_b32 v5, v53')
A.label(lj)
A.lg = []
stamp('modpub')
e(COND_B + '\n s_cselect_b32 s12, 0, 0x40000000\n v_or_b32 v74, s12, v74\n v_or_b32 v75, s12, v75')
e('v_accvgpr_write_b32 a254, v74\n v_accvgpr_write_b32 a255, v75')
MTB = [([f'buffer_load_dwordx2 v[112:113], v87, {SRD_C}, s33 offen'], 'mtb')] + [([f'buffer_load_dwordx4 {vr(96 + 4 * i)}, v86, {SRD_WMOD}, s{29 + i} offen'], 'mtb') for i in range(4)]
for T in range(3, 5):
    for j in range(4):
        xload(T, j, bg=True)
for k in range(args.pfx):
    for p in PIECES.pop(0):
        gpf(*p)
A.bg += W0REST
for k in range(args.pfy):
    for p in PIECES.pop(0):
        gpf(*p)
dma_wqkv(1)
for k in range(args.pfz):
    for p in PIECES.pop(0):
        gpf(*p)
dma_wqkv(2)
pieces(0)
A.bg_gap = args.gap0
A.bg_on = True

RS = 64


def unpack(q):
    for d in range(4):
        src = XN + 8 * q + 4 + d
        lo = XN + 8 * q + 2 * d
        e(f'''v_lshlrev_b32 v{lo}, 16, v{src}
              v_and_b32 v{lo + 1}, {S_HI}, v{src}''')


def scale(q):
    p = vr(RS + 2 * (q % 5), 2)
    for d in range(4):
        lo = XN + 8 * q + 2 * d
        e(f'v_pk_fma_f32 {vr(lo, 2)}, {vr(lo, 2)}, {p}, {p} op_sel:[0,0,1] op_sel_hi:[1,0,1]')


ST = 16
for T in range(5):
    A.wait_vm(f'x{T}')
    if args.s1: stamp(f'x{T}')
    for j in range(4):
        for d in range(4):
            r = XN + 8 * (5 * j + T) + 4 + d
            first = (j == 0 and d == 0)
            e(f'v_dot2_f32_bf16 v{ST + 2 * T}, v{r}, {S_ONES}, {"0" if first else f"v{ST + 2 * T}"}')
            e(f'v_dot2_f32_bf16 v{ST + 2 * T + 1}, v{r}, v{r}, {"0" if first else f"v{ST + 2 * T + 1}"}')
    if T < 4:
        for j in range(4):
            unpack(5 * j + T)
e(f'''s_lshl_b32 s12, {S_W}, 3
      v_lshrrev_b32 v5, 2, {V_LANE}
      v_lshlrev_b32 v5, 5, v5
      v_add_u32 v4, s12, v5''')
for qp in ('[1,0,3,2]', '[2,3,0,1]'):
    for i in range(10):
        e(f'v_add_f32_dpp v{ST + i}, v{ST + i}, v{ST + i} quad_perm:{qp} row_mask:0xf bank_mask:0xf')
with nobg():
    e('''s_mov_b32 s12, 0x11111111
         s_mov_b32 exec_lo, s12
         s_mov_b32 exec_hi, s12''')
    for T in range(5):
        e(f'ds_write_b64 v4, {vr(ST + 2 * T, 2)} offset:{L_STATS + T * 512}')
    e('s_mov_b64 exec, -1')
for j in range(2):
    unpack(5 * j + 4)
A.wait_lg()
e('s_barrier')
fine('b1')
xcc_ld = f'buffer_load_dword v77, v76, {SRD_WS}, {S_GRP} offen sc1'
k0 = max([i + 1 for i, it in enumerate(A.bg) if it[1] == 'wq0'] + [0])
A.bg[k0:k0] = [([l], 'm1') for l in mod_loads('v78', 240)]
for T in range(5):
    for h in range(2):
        e(f'ds_read_b128 {vr(16 + 8 * T + 4 * h)}, v5 offset:{L_STATS + T * 512 + h * 16}', tag='st')
for j in range(2, 4):
    unpack(5 * j + 4)
A.wait_lg('st')
e('s_mov_b32 s12, 0x3b000000')
for T in range(5):
    b = 16 + 8 * T
    e(f'''v_pk_add_f32 {vr(b, 2)}, {vr(b, 2)}, {vr(b + 2, 2)}
          v_pk_add_f32 {vr(b + 4, 2)}, {vr(b + 4, 2)}, {vr(b + 6, 2)}
          v_pk_add_f32 {vr(b, 2)}, {vr(b, 2)}, {vr(b + 4, 2)}
          v_pk_mul_f32 {vr(b, 2)}, {vr(b, 2)}, s[12:13] op_sel_hi:[1,0]
          v_fma_f32 v{b + 1}, -v{b}, v{b}, v{b + 1}
          v_max_f32 v{b + 1}, 0, v{b + 1}
          v_add_f32 v{b + 1}, 0x3727c5ac, v{b + 1}
          v_rsq_f32 v{RS + 2 * T}, v{b + 1}''')
for T in range(5):
    e(f'v_mul_f32 v{RS + 2 * T + 1}, -v{16 + 8 * T}, v{RS + 2 * T}')
for q in range(10):
    scale(q)
A.wait_vm('wq0')
e('s_barrier')
fine('b2')
tq = tr_wqkv(0)
for q in range(10, 14):
    run(tq[6 * (q - 10):6 * (q - 9)])
    scale(q)
stamp('prenorm')
mod_check('v78', 240, 'm1', 'v76', 'v79')
for h in range(2):
    e(f'ds_read_b128 {vr(16 + 4 * h)}, v12 offset:{h * 16}', tag='cs')
    e(f'ds_read_b128 {vr(24 + 4 * h)}, v12 offset:{512 + h * 16}', tag='cs')
for q in range(14, 20):
    scale(q)
stamp('mod')

CS = 64


def cs1_reads(j):
    it = []
    for h in range(2):
        it.append(('i', f'ds_read_b128 {vr(CS + 4 * h)}, v12 offset:{j * 128 + h * 16}', 'cs'))
        it.append(('i', f'ds_read_b128 {vr(CS + 8 + 4 * h)}, v12 offset:{512 + j * 128 + h * 16}', 'cs'))
    return it


def norm1_items(j, pk=False):
    it = [('wl', 'cs')]
    for T in range(5):
        b = XN + 8 * (5 * j + T)
        if pk:
            for i in range(0, 8, 2):
                it.append(('i', f'v_pk_fma_f32 {vr(b + i, 2)}, {vr(b + i, 2)}, {vr(24 + i, 2)}, {vr(16 + i, 2)}'))
        else:
            for i in range(8):
                it.append(('i', f'v_fma_f32 v{b + i}, v{b + i}, v{CS + 8 + i}, v{CS + i}'))
        for d in range(4):
            it.append(('i', f'v_cvt_pk_bf16_f32 v{b + d}, v{b + 2 * d}, v{b + 2 * d + 1}'))
        it.append(('i', f'ds_write_b128 v13, {vr(b)} offset:{(j % 2) * 20480 + T * 1024}', 'hw'))
    if j < 3:
        it += cs1_reads(j + 1)
    return it


def accQ(T): return 16 + 4 * T
def accK(T): return 32 + 4 * T
def accV(T): return 240 + 4 * T if T < 4 else 52


FR = 192


def rd1(j, pos):
    return [('i', f'ds_read_b128 {ar(FR + (pos % 2) * 20 + 4 * T)}, v14 offset:{(j % 2) * 20480 + (pos * 5 + T) * 1024}', f'f{pos}') for T in range(5)]


def mm1(j, pos):
    it = []
    wb = (j * 4 + pos) * 12
    first = (j == 0 and pos == 0)
    for T in range(5):
        f = ar(FR + (pos % 2) * 20 + 4 * T)
        if T < 4:
            it.append(('i', f'v_mfma_f32_16x16x32_bf16 {vr(accQ(T))}, {ar(wb)}, {f}, {"0" if first else vr(accQ(T))}'))
        it.append(('i', f'v_mfma_f32_16x16x32_bf16 {vr(accK(T))}, {ar(wb + 4)}, {f}, {"0" if first else vr(accK(T))}'))
        it.append(('i', f'v_mfma_f32_16x16x32_bf16 {vr(accV(T))}, {f}, {ar(wb + 8)}, {"0" if first else vr(accV(T))}'))
    return it


A.wait_lg()
e('s_barrier')
run(norm1_items(0, pk=True))
if not args.jit1:
    A.wait_vm('wq1')
A.wait_lg('hw')
e('s_barrier')
fine('c0')
e('v_accvgpr_read_b32 v81, a251')
e('v_accvgpr_read_b32 v86, a254\n v_accvgpr_read_b32 v87, a255')
C3[0] = 'v81'
k0 = max([i + 1 for i, it in enumerate(A.bg) if it[1] == 'wq2'] + [0])
A.bg[k0:k0] = MTB
c3(SRD_WO, 0)
A.bg_gap = args.gap1
run(rd1(0, 0))
for j in range(5):
    main = []
    if j > 0:
        main += interleave(mm1(j - 1, 3), rd1(j, 0) if j < 4 else [], 0, 5)
    if j == 4:
        run(main)
        break
    todo = {0: [] if args.jit1 else [1], 1: [1, 2] if args.jit1 else [2], 2: [], 3: [3]}[j]
    for pos in range(3):
        main += [('wl', [f'f{pos}', f'trq{j}_{pos}'])] + interleave(mm1(j, pos), rd1(j, pos + 1), 0, 5)
    for c in todo:
        tq = tr_wqkv(c)
        if c == j:
            run(tq[:1])
            main = interleave(main, tq[1:7], 0, 6)
            main = interleave(main, tq[7:], 6, 24)
        elif len(todo) > 1:
            main = interleave(main, tq, 26, 52)
        else:
            run(tq[:1])
            main = pack(main, tq[1:], 0, -1)
    if j < 3:
        fill = norm1_items(j + 1)
    else:
        fill = lines(f'v_add_u32 v4, {L_MASK}, {V_L16}') + [('i', f'ds_read_b128 {vr(MK + 4 * i)}, v4 offset:{i * 1024}') for i in range(4)]
        fill += [('i', f'ds_read_b128 {vr(TRB)}, {V_L16} offset:{L_TRB}')]
        fill += [('i', f'v_accvgpr_read_b32 v{80 + i}, a{250 + i}') for i in range(4)] + [('i', f'v_mov_b32 v{ONE + r}, {S_ONES}') for r in range(4)] + [('i', f'v_lshlrev_b32 v76, 2, {V_LANE}')]
    if j == 3:
        fill = [('wv', 'mtb')] + mod_part1(96, 200, 216, None, 112, True) + fill
    run(pack(main, fill, 0, -2))
    fine(f'e{j}')
    A.wait_vm(('wq2', 'none', 'wq3', 'none')[j])
    A.wait_lg()
    e('s_barrier')
    fine(f'c{j + 1}')
    if j == args.jit1:
        front(lambda: dma_wqkv(3))
    if j == 0:
        pieces(1)
    if j == 1:
        for ks in range(4, 16):
            dma_1k(SRD_WO, V_WOD, ks, L_WO + ks * 4096, 'wo')
        pieces(2)
        if args.ot:
            touch([], f'v{V_OST}', S_OST)
            touch([f's_add_u32 {S_BT}, {S_OST}, 32768'], f'v{V_OST}', S_BT)
        for p in range(2):
            A.bg_add([f'buffer_load_dwordx4 {vr(XRES + 4 * p)}, v{V_XO}, {SRD_X}, {S_XOFF} offen offset:{p * 64}'], 'xr')
    if j == 2:
        pieces(3)
    if j == 3:
        front(lambda: [dma_1k(SRD_WO, V_WOD, ks, L_WO + ks * 4096, 'wo') for ks in range(4)])
        A.bg_add([xcc_ld], 'mx')
        A.bg_add([f'buffer_load_dword {V_DUM}, v76, {SRD_WS}, {S_STST} offen sc1'], 'stt')
        if args.otlb:
            A.bg_add([f'buffer_load_dword {V_DUM}, off, {SRD_OUT}, {S_XOFF}'], 'stt')
        pieces(4)
        gu_queue()
with nobg():
    lm = A.newlabel('L_nomod')
    save = (list(A.vm), list(A.lg), A.t, A.t_vm, list(A.done), list(A.log))
    e(COND_B + f'\n s_cbranch_scc0 {lm}')
    mod_part2(96, lm, 3)
    A.label(lm)
    A.vm, A.lg, A.t, A.t_vm, A.done, A.log = save[0] + [(None, True)], *save[1:]
stamp('qkv')

QP, KP, VP = 140, 148, 158
VPOS = {2: 0, 0: 1, 4: 2, 1: 3, 3: 4}
SS, MX, PP, OO, LL, OP = 188, 220, 16, 32, 228, 48
PREV = {0: 4, 1: 4, 2: 0, 3: 1}
PMASK = {0: MK + 8, 1: MK + 12, 2: MK + 4, 3: MK + 4}
VPAIR = {2: 0, 0: 1, 1: 2, 3: 3}
t = ''
for T in range(5):
    for d in range(2):
        if T < 4:
            t += f'v_cvt_pk_bf16_f32 v{QP + 2 * T + d}, v{accQ(T) + 2 * d}, v{accQ(T) + 2 * d + 1}\n'
        t += f'v_cvt_pk_bf16_f32 v{KP + 2 * T + d}, v{accK(T) + 2 * d}, v{accK(T) + 2 * d + 1}\n'
vc = [f'v_cvt_pk_bf16_f32 v{VP + 2 * VPOS[T] + d}, v{accV(T) + 2 * d}, v{accV(T) + 2 * d + 1}\n' for T in range(5) for d in range(2)]
t += vc.pop(0) + vc.pop(0)
for T in (2, 3, 0, 1):
    t += f'v_mfma_f32_16x16x16_bf16 {vr(SS + 8 * T)}, {vr(KP + 2 * T, 2)}, {vr(QP + 2 * T, 2)}, {vr(MK)}\n' + vc.pop(0)
    t += f'v_mfma_f32_16x16x16_bf16 {vr(SS + 8 * T + 4)}, {vr(KP + 2 * PREV[T], 2)}, {vr(QP + 2 * T, 2)}, {vr(PMASK[T])}\n' + vc.pop(0)
t += 's_mov_b32 s12, 0x3eb8aa3b\n s_mov_b32 s13, 0xbeb8aa3b\n'
for T in (2, 3, 0, 1):
    s = SS + 8 * T
    t += f'''v_max3_f32 v{MX + T}, v{s}, v{s + 1}, v{s + 2}
          v_max3_f32 v{MX + 4 + T}, v{s + 3}, v{s + 4}, v{s + 5}
          v_max3_f32 v{MX + T}, v{MX + T}, v{s + 6}, v{s + 7}
          v_max_f32 v{MX + T}, v{MX + T}, v{MX + 4 + T}
          v_mov_b32 v{MX + 4 + T}, v{MX + T}
          '''
for k, sw in enumerate(('v_permlane32_swap_b32', 'v_permlane16_swap_b32')):
    for T in (2, 3, 0, 1):
        t += f'{sw} v{MX + T}, v{MX + 4 + T}\n'
    for T in (2, 3, 0, 1):
        t += f'v_max_f32 v{MX + T}, v{MX + T}, v{MX + 4 + T}\n'
    if k == 0:
        for T in (2, 3, 0, 1):
            t += f'v_mov_b32 v{MX + 4 + T}, v{MX + T}\n'
for T in range(4):
    t += f'v_mul_f32 v{MX + 4 + T}, -s12, v{MX + T}\n'.replace('-s12', 's13')
if args.apk:
    for T in range(4):
        for i in range(0, 8, 2):
            pr = vr(MX + 4 + (T & 2), 2)
            t += f'v_pk_fma_f32 {vr(SS + 8 * T + i, 2)}, {vr(SS + 8 * T + i, 2)}, s[12:13], {pr} op_sel:[0,0,{T & 1}] op_sel_hi:[1,0,{T & 1}]\n'


def fin(T):
    x = f'v_rcp_f32 v{LL + 4 * T}, v{LL + 4 * T}\n'
    p = vr(LL + 4 * T, 2)
    y = ''
    for i in (0, 2):
        y += f'v_pk_mul_f32 {vr(OO + 4 * T + i, 2)}, {vr(OO + 4 * T + i, 2)}, {p} op_sel_hi:[1,0]\n'
    for d in range(2):
        y += f'v_cvt_pk_bf16_f32 v{OP + 2 * T + d}, v{OO + 4 * T + 2 * d}, v{OO + 4 * T + 2 * d + 1}\n'
    return x, y


for T in range(4):
    s = SS + 8 * T
    for i in range(0 if args.apk else 8):
        t += f'v_fma_f32 v{s + i}, v{s + i}, s12, v{MX + 4 + T}\n'
    for i in range(8):
        t += f'v_exp_f32 v{s + i}, v{s + i}\n'
    if T > 0:
        t += fin(T - 1)[0]
    curfirst = T in (0, 2)
    for d in range(2):
        t += f'v_cvt_pk_bf16_f32 v{PP + 4 * T + (0 if curfirst else 2) + d}, v{s + 2 * d}, v{s + 2 * d + 1}\n'
        t += f'v_cvt_pk_bf16_f32 v{PP + 4 * T + (2 if curfirst else 0) + d}, v{s + 4 + 2 * d}, v{s + 4 + 2 * d + 1}\n'
    if T > 0:
        t += fin(T - 1)[1]
    t += f'v_mfma_f32_16x16x32_bf16 {vr(LL + 4 * T)}, {vr(ONE)}, {vr(PP + 4 * T)}, 0\n'
    t += f'v_mfma_f32_16x16x32_bf16 {vr(OO + 4 * T)}, {vr(VP + 2 * VPAIR[T])}, {vr(PP + 4 * T)}, 0\n'


def wo_reg(ks, ct, hf=None):
    if 4 <= ks < 14:
        b, f = 96 + (ks - 4) * 16 + ct * 4, ar
    else:
        b, f = 160 + (ks if ks < 4 else ks - 10) * 16 + ct * 4, vr
    return f(b) if hf is None else f(b + 2 * hf, 2)


def tr_wo(ks):
    return [('i', f'ds_read_b64_tr_b16 {wo_reg(ks, ct, hf)}, v{TRB + ct} offset:{ks * 4096 + hf * 512}', f'trw{ks}')
            for ct in range(4) for hf in range(2)]


tl = lines(t)
A.bg_gap = args.gapa
run(tl[:args.acut])
A.bg_flush(upto=['wo', 'xr', 'tch', 'mx'])
A.bg_on = False
run(tl[args.acut:])
for d in range(2):
    e(f'v_permlane16_swap_b32 v{OP + d}, v{OP + 2 + d}')
e(f's_add_u32 s16, {S_OST}, 32768')
stores([f'buffer_store_dwordx4 {vr(OP)}, v{V_OST}, {SRD_WS}, {S_OST} offen'], 'ost', plain=args.ot)
e(fin(3)[0] + fin(3)[1])
for d in range(2):
    e(f'v_permlane16_swap_b32 v{OP + 4 + d}, v{OP + 6 + d}')
stores([f'buffer_store_dwordx4 {vr(OP + 4)}, v{V_OST}, {SRD_WS}, s16 offen'], 'ost', plain=args.ot)
fine('ost')
if args.stop1:
    stamp('end')
    e(f'''s_waitcnt vmcnt(0)
          s_lshl_b32 s12, s2, 2
          s_add_u32 s12, s12, {S_W}
          s_lshl_b32 s12, s12, 8
          s_add_u32 s12, s12, {WS_STAMP}
          v_lshlrev_b32 v4, 2, {V_LANE}
          buffer_store_dword {V_STAMP}, v4, {SRD_WS}, s12 offen
          s_endpgm''')
    args.stamps = False
    keep_names = list(stamp_names)
A.bg_flush(args.b1)
checked('mx', [xcc_ld], lambda: e(f'''v_xor_b32 v6, {S_TAG}, v77
                                      v_lshrrev_b32 v6, 4, v6
                                      v_cmp_ne_u32 vcc, 0, v6
                                      s_and_b64 vcc, vcc, 0xffff'''))
with nobg():
    e(f'''v_and_b32 v5, 15, v77
          v_cmp_ne_u32 vcc, {S_XCC}, v5
          s_nop 1
          s_and_b64 vcc, vcc, 0xffff
          s_cmp_eq_u64 vcc, 0
          s_cselect_b32 {S_FAST}, {0 if args.slow else 1}, 0
          s_mul_i32 s12, {S_FAST}, {(WS_X1 - WS_O) * args.h2o}
          s_sub_u32 {S_X1ST}, {S_X1ST}, s12
          s_sub_u32 {S_X1LD}, {S_X1LD}, s12''')
A.wait_vm('xr')
for p in range(2):
    for d in range(2):
        e(f'v_permlane16_swap_b32 v{XRES + 4 * p + d}, v{XRES + 4 * p + 2 + d}')
e(f'''s_add_u32 s17, {S_OLD}, 4096
      s_add_u32 s18, {S_OLD}, 8192
      s_add_u32 s19, {S_OLD}, 12288
      v_lshrrev_b32 v16, 2, {V_LANE}            ; row = 4g + r4
      v_mul_u32_u24 v16, 192, v16
      v_and_b32 v4, 3, {V_LANE}
      v_lshl_add_u32 v16, v4, 3, v16
      v_add_u32 v16, {L_S}, v16
      v_and_b32 v18, 1, {V_G}
      v_xor_b32 v17, {S_W}, v18
      s_lshr_b32 s13, {S_W}, 1
      s_add_u32 s13, s13, 4
      v_xor_b32 v18, s13, v18
      v_lshl_add_u32 v20, v17, 5, v16
      v_lshl_add_u32 v21, v18, 5, v16
      v_add_u32 v22, {3 * BLK}, v20
      v_add_u32 v23, {3 * BLK}, v21
      s_and_b32 s12, {S_W}, 1
      s_lshl_b32 s12, s12, 12
      s_xor_b32 s13, s12, 4096
      s_add_u32 s12, s12, {L_H2}
      s_add_u32 s13, s13, {L_H2}
      v_add_u32 v13, s12, {V_L16}
      v_add_u32 v14, s13, {V_L16}               ; tiles 4..7''')
OA, GA, X1A, X1P = 96, 32, 64, 24
publish_flag(64, 'ost')
A.bg_flush(args.b1d)
e(poll_ld(64), tag='poll')
for l in mod_loads('v80', 64):
    e(l, tag='m3')
stamp('opub')
for ks in range(4, 12):
    run(tr_wo(ks))
poll_check(64)
stamp('owait')


KORD = list(range(4, 16)) + [0, 1, 2, 3]
rest = list(A.bg)
gu_pre(gu_done())
A.bg = [([f'buffer_load_dwordx4 {vr(OA + 4 * n)}, {V_L16}, {SRD_WS}, {(S_OLD, "s17", "s18", "s19")[ks // 4]} offen offset:{(ks % 4) * 1024} sc1'], f'o{n}') for n, ks in enumerate(KORD)]
run(interleave([x for ks in (12, 13, 14, 15, 0, 1, 2, 3) for x in tr_wo(ks)], [('f', lambda: A.bg_flush(1))] * 12, pred=lambda t: True))
mod_check('v80', 64, 'm3', 'v82', 'v83')
for ct in range(4):
    e(f'ds_read_b128 {vr(GA + 4 * ct)}, v{V_GB} offset:{ct * 64}', tag='ga')
e('s_barrier')
gu_post(False)
mv = movers(6)
pieces(5)
A.bg += rest[:args.b1c]
rest = rest[args.b1c:]
for n, ks in enumerate(KORD):
    A.wait_vm(f'o{n}')
    A.wait_lg(f'trw{ks}')
    for ct in range(4):
        e(f'v_mfma_f32_16x16x32_bf16 {vr(X1A + 4 * ct)}, {wo_reg(ks, ct)}, {vr(OA + 4 * n)}, {"0" if n == 0 else vr(X1A + 4 * ct)}')
        if ct == 0 and A.bg and (A.bg[0][1].startswith(('o', 'm')) or A.room()):
            A.bg_flush(1)
        if n >= 4 and mv:
            run([mv.pop(0)])
    if n == 12:
        XF = OA + 16
        for i in range(8):
            e(f'''v_lshlrev_b32 v{XF + 2 * i}, 16, v{XRES + i}
                  v_and_b32 v{XF + 2 * i + 1}, {S_HI}, v{XRES + i}''')
run(mv)
A.bg += rest
gu_pre(gu_done())
A.wait_lg()
e('s_barrier')
gu_post()
fine('omm')
for b in range(0, 16, 2):
    e(f'v_pk_fma_f32 {vr(X1A + b, 2)}, {vr(X1A + b, 2)}, {vr(GA + b, 2)}, {vr(XF + b, 2)}')
for i in range(8):
    e(f'v_cvt_pk_bf16_f32 v{X1P + i}, v{X1A + 2 * i}, v{X1A + 2 * i + 1}')
for i in range(8):
    e(f'v_dot2_f32_bf16 v48, v{X1P + i}, {S_ONES}, {"0" if i == 0 else "v48"}')
    e(f'v_dot2_f32_bf16 v49, v{X1P + i}, v{X1P + i}, {"0" if i == 0 else "v49"}')


def rowsum2(a, b):
    e(f'''v_permlane32_swap_b32 v{a}, v{b}
          v_add_f32 v{a}, v{a}, v{b}
          v_mov_b32 v{b}, v{a}
          v_permlane16_swap_b32 v{a}, v{b}
          v_add_f32 v{a}, v{a}, v{b}
          v_mov_b32 v{b}, v{a}
          v_permlane32_swap_b32 v{a}, v{b}''')


e(f'v_mov_b32 v50, {S_TAG}\n v_mov_b32 v51, {S_TAG}')
rowsum2(48, 49)
e('s_mov_b64 exec, 0xffff')
stores([f'buffer_store_dwordx4 v[48:51], {V_L16}, {SRD_WS}, {S_STST} offen'], 'sst', plain=True)
e('s_mov_b64 exec, -1')
fine('sst')
A.bg_flush(args.b2a)
SPT = 144
for i in range(8):
    e(f'''v_lshlrev_b32 v{X1A + 2 * i}, 16, v{X1P + i}
          v_and_b32 v{X1A + 2 * i + 1}, {S_HI}, v{X1P + i}''')
SB, CB, GB = 112, 128, 32
for ct in range(4):
    e(f'ds_read_b128 {vr(SB + 4 * ct)}, v{V_GB} offset:{256 + ct * 64}', tag='ga')
    e(f'ds_read_b128 {vr(CB + 4 * ct)}, v{V_GB} offset:{512 + ct * 64}', tag='ga')
    e(f'ds_read_b128 {vr(GB + 4 * ct)}, v{V_GB} offset:{768 + ct * 64}', tag='ga')
run(movers())
for l in st_loads(SPT):
    e(l, tag='st')
A.bg_flush(args.b2)
checked('st', st_loads(SPT), lambda: e(f'''v_cmp_ne_u32 vcc, {S_TAG}, v{SPT + 2}
                                          v_cmp_ne_u32 s[12:13], {S_TAG}, v{SPT + 6}
                                          s_or_b64 vcc, vcc, s[12:13]'''))
fine('stw')
e(f'v_pk_add_f32 {vr(SPT, 2)}, {vr(SPT, 2)}, {vr(SPT + 4, 2)}')
rowsum2(SPT, SPT + 1)
e(f'''s_mov_b32 s12, 0x3b000000
      v_pk_mul_f32 {vr(SPT, 2)}, {vr(SPT, 2)}, s[12:13] op_sel_hi:[1,0]
      v_fma_f32 v{SPT + 1}, -v{SPT}, v{SPT}, v{SPT + 1}
      v_max_f32 v{SPT + 1}, 0, v{SPT + 1}
      v_add_f32 v{SPT + 1}, 0x3727c5ac, v{SPT + 1}
      v_rsq_f32 v{SPT + 2}, v{SPT + 1}
      v_mul_f32 v{SPT + 3}, -v{SPT}, v{SPT + 2}''')
A.wait_lg()
p = vr(SPT + 2, 2)
H2P = 96
for half in range(2):
    for b in range(8 * half, 8 * half + 8, 2):
        e(f'v_pk_fma_f32 {vr(X1A + b, 2)}, {vr(X1A + b, 2)}, {p}, {p} op_sel:[0,0,1] op_sel_hi:[1,0,1]')
    for b in range(8 * half, 8 * half + 8, 2):
        e(f'v_pk_fma_f32 {vr(X1A + b, 2)}, {vr(X1A + b, 2)}, {vr(CB + b, 2)}, {vr(SB + b, 2)}')
    for i in range(4 * half, 4 * half + 4):
        e(f'v_cvt_pk_bf16_f32 v{H2P + i}, v{X1A + 2 * i}, v{X1A + 2 * i + 1}')
    stores([f'buffer_store_dwordx4 {vr(H2P + 4 * half)}, {V_L16}, {SRD_WS}, {S_X1ST} offen offset:{half * 1024}'], 'xst', plain=args.h2o)
A.bg_flush(args.b2b)
publish_flag(128, 'xst')
GU.pend = gu_done()
gu_post(True)
e(poll_ld(128), tag='poll')
A.bg_flush(args.b2c)
run(movers())
stamp('x1pub')

le, lep, lok = A.newlabel('L_ep'), A.newlabel('L_epp'), A.newlabel('L_eok')
save = (list(A.vm), list(A.done), A.t, A.t_vm, list(A.log))
e(f'''s_xor_b32 s12, {S_W}, 3
      s_or_b32 s12, s2, s12
      s_cmp_lg_u32 s12, 0
      s_cbranch_scc1 {le}
      v_lshrrev_b32 v4, 2, {V_LANE}
      v_lshlrev_b32 v4, 20, v4
      v_and_b32 v5, 3, {V_LANE}
      v_lshl_add_u32 v4, v5, 4, v4
      s_mov_b32 s12, {WS_GRP}''')
A.label(lep)
e(f'buffer_load_dwordx4 v[200:203], v4, {SRD_WS}, s12 offen sc1')
A.wait_vm()
for i in range(4):
    e(f'v_xor_b32 v{200 + i}, {S_TAG}, v{200 + i}')
e(f'''v_or3_b32 v5, v200, v201, v202
      v_or_b32 v5, v5, v203
      v_lshrrev_b32 v5, 4, v5
      v_cmp_ne_u32 vcc, 0, v5
      s_cbranch_vccz {lok}''')
spin_fail(lep)
A.label(lok)
e(f'''v_mov_b32 v5, {S_TAG}
      s_mov_b64 exec, 1''')
e(f's_mov_b32 s12, {WS_EPOCH}')
e(f'buffer_store_dword v5, off, {SRD_WS}, s12 sc1')
e('s_mov_b64 exec, -1')
A.label(le)
A.vm, A.done, A.t, A.t_vm, A.log = save
A.vm += [(None, True)]
e('v_mov_b32 v12, v81')
C3[0] = 'v12'
poll_check(128)
stamp('x1wait')


def dma_h2(q):
    for tt in range(4):
        A.bg_add([f's_add_u32 m0, {S_H2M}, {(q % 4) * 16384 + tt * 1024}', f's_add_u32 {S_BT}, {S_X1LD}, {tt * 16384 + q * 2048}',
                  f'buffer_load_dwordx4 {V_L16}, {SRD_WS}, {S_BT} offen sc1 lds'], f'y{q}')


front(lambda: [dma_h2(q) for q in range(args.y0)])
A.bg_flush(4 * args.y0)
rest = list(A.bg)
A.bg = []
for q in range(args.y0, 4):
    A.bg += rest[:args.b2d]
    rest = rest[args.b2d:]
    dma_h2(q)
A.bg += rest
A.bg_gap = args.gap4
A.bg_on = True
ACC4, FB = 64, 160


WD_ADDR = {}


class WD:
    queued = 0
    landed = 0
    moved = 0
    freed = 0


def wd_space(addr, n):
    for k in range(n):
        if WD.queued < 43:
            WD_ADDR[WD.queued] = addr + k * 4096
            dma_1k(SRD_WD, V_WOD, WD.queued, addr + k * 4096, f'wd{WD.queued}')
            WD.queued += 1


def wd_est():
    n = WD.landed
    while n < WD.queued and f'wd{n}' not in {t for l, t in A.bg} and A.tagdone[f'wd{n}'] <= A.t + args.slack:
        n += 1
    return n


def wd_done():
    live = {t for t, o in A.vm} | {t for l, t in A.bg}
    n = 0
    while n < WD.queued and f'wd{n}' not in live:
        n += 1
    return n


def wd_pre(upto):
    upto = max(upto, WD.landed)
    if upto > WD.landed:
        A.wait_vm(f'wd{upto - 1}')
    WD.pend = upto


def wd_post():
    WD.landed = WD.pend
    while WD.freed < WD.moved:
        wd_space(WD_ADDR[WD.freed], 1)
        WD.freed += 1


def wd_addr(ks, ct, hf):
    off = WD_ADDR[ks] + hf * 512
    return f'v{(16, 48, 52)[off >> 16] + ct} offset:{off & 0xffff}'


NWB = 23


def wd_reg(ks, ct, hf=None):
    k = ks % NWB
    f, b = (ar, 16 * k) if k < 16 else (vr, 144 + 16 * (k - 16))
    return f(b + 4 * ct) if hf is None else f(b + 4 * ct + 2 * hf, 2)


def tr_wd(ks):
    return [('i', f'ds_read_b64_tr_b16 {wd_reg(ks, ct, hf)}, {wd_addr(ks, ct, hf)}', f't{ks}')
            for ct in range(4) for hf in range(2)]


def wd_moves(limit):
    it = []
    while WD.moved < min(WD.landed, limit):
        it += tr_wd(WD.moved)
        WD.moved += 1
    return it


for ct in range(4):
    e(f'v_add_u32 v{16 + ct}, {-L_WO & 0xffffffff}, v{TRB + ct}')
for ct in range(4):
    e(f'v_add_u32 v{48 + ct}, 0x10000, v{16 + ct}')
    e(f'v_add_u32 v{52 + ct}, 0x20000, v{16 + ct}')
def hh_touch(k):
    so = (S_HST, S_HST, S_HST2, S_HST2, 's18', 's18')[k]
    touch([f's_add_u32 {S_BT}, {so}, {(k % 2) * 86 * 1024}'], V_L16, S_BT, 0, 'v[252:255]')


e(f'''s_lshr_b32 s14, {S_W}, 1
      s_add_u32 s14, s14, 4
      s_sub_u32 s14, s14, {S_W}
      s_lshl_b32 s14, s14, 10
      s_sub_u32 s13, {S_NU}, 2
      s_mul_i32 s14, s14, s13
      s_add_u32 s18, {S_HST}, s14''')
def gu_est():
    n = GU.landed
    while n < GU.queued and f'p4w{n}' not in {t for l, t in A.bg} and A.tagdone[f'p4w{n}'] <= A.t + args.slack:
        n += 1
    return n


A.wait_vm('y0')
gu_pre(max(gu_done(), gu_est(), 2))
A.wait_lg()
e('s_barrier')
gu_post()
fine('d0')
A.drop = tuple(x for x in args.x.split(',') if x)
front(lambda: pieces(6))
wdn = 0
def glu(k, pk):
    b = ACC4 + 16 * k
    t = ''
    if pk:
        for r in range(0, 8, 2):
            t += f'v_pk_mul_f32 {vr(b + r, 2)}, {vr(b + r, 2)}, s[14:15] op_sel_hi:[1,0]\n'
    else:
        for r in range(8):
            t += f'v_mul_f32 v{b + r}, s14, v{b + r}\n'
    for r in range(8):
        t += f'v_exp_f32 v{b + r}, v{b + r}\n'
    if pk:
        for r in range(0, 8, 2):
            t += f'v_pk_add_f32 {vr(b + r, 2)}, {vr(b + r, 2)}, 1.0 op_sel_hi:[1,0]\n'
    else:
        for r in range(8):
            t += f'v_add_f32 v{b + r}, 1.0, v{b + r}\n'
    for r in range(8):
        t += f'v_rcp_f32 v{b + r}, v{b + r}\n'
    if pk:
        for r in range(0, 8, 2):
            t += f'v_pk_mul_f32 {vr(b + r, 2)}, {vr(b + r, 2)}, {vr(b + 8 + r, 2)}\n'
    else:
        for r in range(8):
            t += f'v_mul_f32 v{b + r}, v{b + r}, v{b + 8 + r}\n'
    for d in range(4):
        t += f'v_cvt_pk_bf16_f32 v{b + d}, v{b + 2 * d}, v{b + 2 * d + 1}\n'
    for d in range(2):
        t += f'v_permlane16_swap_b32 v{b + d}, v{b + 2 + d}\n'

    def st():
        st_ = f'buffer_store_dwordx4 {vr(b)}, {V_L16}, {SRD_WS}, {(S_HST, "s16", S_HST2, "s17", "s18", "s19")[k]} offen'
        if k >= 4:
            with nobg():
                ls = A.newlabel('L_sk')
                e(f's_cmp_lt_u32 {S_NU}, 3\n s_cbranch_scc1 {ls}')
                stores([st_], 'hst', optional=True, plain=args.ht)
                A.label(ls)
        else:
            stores([st_], 'hst', plain=args.ht)
    return lines(t) + [('f', st)]


NREG = 16
e(f'''s_mov_b32 s14, 0xbfb8aa3b
      s_add_u32 s16, {S_HST}, {86 * 1024}
      s_add_u32 s17, {S_HST2}, {86 * 1024}
      s_add_u32 s19, s18, {86 * 1024}''')
QL = 8 - args.tailq
NB, PF = 16, args.pf4
SEG = [[q] for q in range(QL)] + [list(range(QL, 8))]
TORD = [0, 1, 2, 3, 4, 5, 6, 7]
frs = [(si, t, ks) for si, sg in enumerate(SEG) for t in TORD for q in sg for ks in (2 * q, 2 * q + 1)]
FIDX = {f: n for n, f in enumerate(frs)}


def rdf(n):
    si, t, ks = frs[n]
    return ('i', f'ds_read_b128 {vr(FB + 4 * (n % NB))}, v{13 + t // 4} offset:{(ks // 2 % 4) * 16384 + (ks % 2) * 8192 + (t % 4) * 1024}', f'r{n}')


def acc4(t, i, mat):
    k = t // 2 if i == 0 else 4 + t // 2
    return ACC4 + 16 * k + 8 * mat + 4 * (t % 2)


issued = [0]


def tile_items(si, t, limit):
    it = []
    for q in SEG[si]:
        n0 = FIDX[(si, t, 2 * q)]
        it.append(('wl', [f'r{n0 + 1}', f'mv{2 * q + 1}']))
        for i in range(2 if t < 4 else 1):
            for mat in range(2):
                for ks in (2 * q, 2 * q + 1):
                    a = vr(acc4(t, i, mat))
                    it.append(('i', f'v_mfma_f32_16x16x32_bf16 {a}, {ar(16 * ks + 8 * i + 4 * mat)}, {vr(FB + 4 * (FIDX[(si, t, ks)] % NB))}, {"0" if ks == 0 else a}'))
                    if issued[0] < min(n0 + 2 + PF, limit):
                        it.append(rdf(issued[0]))
                        issued[0] += 1
    return it


def after_bar4(q):
    global wdn
    if q < 4:
        dma_h2(q + 4)
    if q < 3:
        c3(SRD_WD, q)
    if GU.freed >= 12 and wdn == 0:
        wd_space(L_S + 13 * 4096, 7)
        wd_space(LDS_TOTAL - 4096, 1)
        wdn = 7
    if GU.freed == 16 and wdn == 7:
        wd_space(L_S, 13)
        wdn = 20


def edf():
    def key(it):
        t = it[1]
        if t.startswith('y'):
            return min(int(t[1:]), QL) + 0.01 * int(t[1:])
        if t.startswith('p4w'):
            return min(int(t[3:]) // 2, QL) - args.lead / 10 + 0.001 * int(t[3:])
        if t.startswith('wd'):
            return 20 + int(t[2:])
        return args.gck
    if args.edf:
        A.bg.sort(key=key)


edf()
run(movers(2) + [rdf(n) for n in range(PF)])
issued[0] = PF
carry = []
for q in range(QL):
    end = FIDX[(q + 1, 0, 2 * SEG[q + 1][0])]
    main = carry
    cutt = 8 - args.late4
    for t in TORD[:cutt]:
        main = main + tile_items(q, t, end)
    main += [rdf(n) for n in range(issued[0], end)]
    issued[0] = end
    run(pack(main, movers() + wd_moves(min(2 * q - 2, WD.moved + args.wmq, args.wmax)), 0, -args.stop4))
    last = q == QL - 1
    A.wait_vm('y7' if last else f'y{q + 1}')
    gu_pre(16 if last else max(gu_done(), gu_est(), 2 * q + 4))
    wd_pre(max(wd_done(), wd_est()))
    A.wait_lg()
    e('s_barrier')
    gu_post()
    if q % 2:
        fine(f'd{(q + 1) // 2}')
    after_bar4(q)
    if q >= 4:
        wd_space(L_H2 + (q - 4) * 16384, 4)
    wd_post()
    edf()
    carry = []
    for t in TORD[cutt:]:
        carry += tile_items(q, t, len(frs))
    carry = interleave(carry, movers(16 if last else 2 * q + 4), 0)
run(carry)
pend = []
for p in range(4):
    main = tile_items(QL, 2 * p, len(frs)) + tile_items(QL, 2 * p + 1, len(frs))
    nm = sum(1 for it in main if it[0] == 'i' and it[1].startswith('v_mfma'))
    if p < 2:
        main = interleave(main, wd_moves(min(2 * QL, WD.moved + (args.wm0, args.wm1)[p], args.wmax)), 0)
    take = min(len(pend), (nm - 4) * args.gper // 2)
    run(pack(main, pend[:take], 4) if take else main)
    pend = pend[take:]
    if p == 3 or str(p) in args.tb:
        wd_pre(max(wd_done(), wd_est()))
        A.wait_lg()
        e('s_barrier')
        GU.pend = 16
        gu_post()
        after_bar4(7)
        if p == 3:
            q0 = max(QL, 4)
            wd_space(L_H2 + (q0 - 4) * 16384, 16 - 4 * (q0 - 4))
        wd_post()
    if p == args.gcut:
        A.bg_on = False
    if p < 3:
        for k in ([4 + p, p] if p < 2 else [p]):
            pend += glu(k, args.gper == 0)
assert wdn == 20
stamp('gemm4')
run(pend)
run(glu(3, True))
fine('hst')
A.bg_flush(args.b4)
assert not any(t == 'gp' and 'v11' in l[-1] for l, t in A.bg)
e(f"""v_lshrrev_b32 v11, 1, {V_G}
      v_lshlrev_b32 v11, 10, v11
      v_and_b32 v5, 1, {V_G}
      v_lshl_add_u32 v11, v5, 9, v11
      v_lshl_add_u32 v11, {V_C}, 4, v11""")
run(wd_moves(min(16, max(6, WD.moved + args.wmd))))
A.wait_lg()
publish_flag(192, 'hst')
WD.pend = wd_done()
wd_post()
e(poll_ld(192), tag='poll')
stamp('hpub')

A.bg_flush(args.b5)
run(wd_moves(min(NWB, WD.moved + args.wmp)))
poll_check(192)
stamp('hwait')
print('wd: queued', WD.queued, 'landed', WD.landed, 'moved', WD.moved, file=sys.stderr)
assert WD.queued == 43
HA, ACC5, NH = 80, 64, 16
hl = []
for ks in range(43):
    pre = [f's_add_u32 s28, {S_HLD}, {ks * 2048}'] if ks % 2 == 0 else []
    hl.append((pre + [f'buffer_load_dwordx4 {vr(HA + 4 * (ks % NH))}, v11, {SRD_WS}, s28 offen offset:{(ks % 2) * 2048} sc1'], f'h{ks}'))
A.bg_flush()
A.bg = hl[:NH]
run(interleave(wd_moves(NWB) or [('i', 's_nop 0')], [('f', lambda: A.bg_flush(1))] * 12, 0, 72, pred=lambda t: True))
A.bg_on = False
for ks in range(43):
    if WD.landed < 43 and (ks == args.kbar or WD.moved == WD.landed):
        A.wait_vm('wd42')
        e('s_barrier')
        WD.landed = 43
        fine('wdall')
    if WD.moved <= ks:
        run(wd_moves(ks + 2))
    n0 = len(A.ins)
    A.wait_vm(f'h{ks}')
    A.wait_lg(f't{ks}')
    if len(A.ins) == n0 + 2 and all(i.op == 's_waitcnt' for i in A.ins[n0:]):
        b_, a_ = A.ins.pop(), A.ins.pop()
        A._emit(a_.text + ' ' + b_.text.split(None, 1)[1], None, False)
    nxt = wd_moves(min(WD.moved + 1, ks + NWB + 1)) if (43 - WD.moved) * args.trsp >= (43 - ks - 6) * 10 or WD.moved - ks < 4 else []
    for ct in range(4):
        e(f'v_mfma_f32_16x16x32_bf16 {vr(ACC5 + 4 * ct)}, {wd_reg(ks, ct)}, {vr(HA + 4 * (ks % NH))}, {"0" if ks == 0 else vr(ACC5 + 4 * ct)}')
        if ct == 0:
            A.bg_flush(1)
        run(nxt[2 * ct:2 * ct + 2])
    if ks + NH < 43:
        A.bg.append(hl[ks + NH])
    if ks == 40:
        XF5 = 80
        for i in range(8):
            e(f'''v_lshlrev_b32 v{XF5 + 2 * i}, 16, v{X1P + i}
                  v_and_b32 v{XF5 + 2 * i + 1}, {S_HI}, v{X1P + i}''')
assert WD.moved == 43
A.bg_on = False
stamp('gemm5')
for b in range(0, 16, 2):
    e(f'v_pk_fma_f32 {vr(ACC5 + b, 2)}, {vr(ACC5 + b, 2)}, {vr(GB + b, 2)}, {vr(XF5 + b, 2)}')
for i in range(8):
    e(f'v_cvt_pk_bf16_f32 v{X1P + i}, v{ACC5 + 2 * i}, v{ACC5 + 2 * i + 1}')
for p in range(2):
    for d in range(2):
        e(f'v_permlane16_swap_b32 v{X1P + 4 * p + d}, v{X1P + 4 * p + 2 + d}')
for p in range(2):
    e(f'buffer_store_dwordx4 {vr(X1P + 4 * p)}, v{V_XO}, {SRD_OUT}, {S_XOFF} offen offset:{p * 64} {args.outm}')
if args.stamps:
    stamp('end')
    e(f'''s_lshl_b32 s12, s2, 2
          s_add_u32 s12, s12, {S_W}
          s_lshl_b32 s12, s12, 8
          s_add_u32 s12, s12, {WS_STAMP}
          v_lshlrev_b32 v4, 2, {V_LANE}
          buffer_store_dword {V_STAMP}, v4, {SRD_WS}, s12 offen''')
    if args.dbg >= 0:
        e(f'''s_lshl_b32 s12, s2, 2
              s_add_u32 s12, s12, {S_W}
              s_cmp_lg_u32 s12, {args.dbg * 4}
              s_cbranch_scc1 L_giveup
              s_load_dwordx2 s[14:15], s[0:1], 80
              v_readlane_b32 s12, {V_STAMP}, 0
              s_waitcnt lgkmcnt(0)
              v_subrev_u32 v5, s12, {V_STAMP}
              global_store_dword v4, v5, s[14:15]''')
if args.padph:
    i_, j_ = [stamp_names.index(n) for n in args.padph.split(',')]
    e(f'''v_readlane_b32 s12, {V_STAMP}, {j_}
          v_readlane_b32 s13, {V_STAMP}, {i_}
          v_readlane_b32 s16, {V_STAMP}, {stamp_names.index('end')}
          s_sub_u32 s12, s12, s13
          s_add_u32 s12, s12, s16''')
    if args.padx >= 0:
        e(f's_cmp_lg_u32 {S_XCC}, {args.padx}\n s_cbranch_scc1 L_giveup')
    A.label('L_pad2')
    e('''s_memrealtime s[14:15]
         s_waitcnt lgkmcnt(0)
         s_sub_u32 s13, s14, s12
         s_cmp_lt_i32 s13, 0
         s_cbranch_scc1 L_pad2''')
if args.padto:
    e(f'''v_readlane_b32 s12, {V_STAMP}, 0
          s_add_u32 s12, s12, {args.padto}''')
    A.label('L_pad')
    e('''s_memrealtime s[14:15]
         s_waitcnt lgkmcnt(0)
         s_sub_u32 s13, s14, s12
         s_cmp_lt_i32 s13, 0
         s_cbranch_scc1 L_pad''')
A.label('L_giveup')
e('s_endpgm')
assert not A.bg and not PIECES

nn = A.pad_hazards()
hdr = open(f'cdna_kernels/{NAME}.s.ref').read().split('; Override launch')[0]
wrap = lambda body: hdr + f'''; @launch grid=(256,1,1) block=(256,1,1) lds={LDS_TOTAL}
.amdgcn_target "amdgcn-amd-amdhsa--gfx950"
.text
.globl {NAME}_kernel
.p2align 8
.type {NAME}_kernel,@function
{NAME}_kernel:
''' + body + f'''.rept 256
    s_endpgm
.endr
L_codeend:
.section .rodata,"a"
.p2align 6
.amdhsa_kernel {NAME}_kernel
  .amdhsa_next_free_vgpr 512
  .amdhsa_next_free_sgpr 102
  .amdhsa_accum_offset 256
  .amdhsa_group_segment_fixed_size 0
  .amdhsa_kernarg_size 96
  .amdhsa_user_sgpr_count 2
  .amdhsa_user_sgpr_kernarg_segment_ptr 1
  .amdhsa_system_sgpr_workgroup_id_x 1
.end_amdhsa_kernel
'''
if args.align:
    print('align', align_pass(A, wrap, args.align), file=sys.stderr)
out = wrap(A.text())
if args.stamps or args.stop1:
    out += '; stamps: ' + ','.join(stamp_names) + '\n'
open(args.o, 'w').write(out)
if args.vlog:
    ev = sorted([(t, 'S', n) for n, t in model] + [(t, 'V', f'{tag}->{c}') for t, c, tag in A.log])
    print(' '.join((f'\n=={n}@{int(t)}==' if k == 'S' else f'{int(t)}:{n}') for t, k, n in ev), file=sys.stderr)
print('nvm', len(A.log), file=sys.stderr)
print('model: ' + ' '.join(f'{n}:{int(t)}' for n, t in model), file=sys.stderr)
print(f'wrote {args.o}: {len(A.ins)} instructions, {nn} hazard nops', file=sys.stderr)
```

```python
import sys, argparse
from contextlib import contextmanager
from asmlib import Asm, align_pass

NAME = "adaLN_cond__sliding_local_dilated__glu_gated_glu__prompt"
ap = argparse.ArgumentParser()
ap.add_argument('-o', default=f'cdna_kernels/{NAME}.s')
ap.add_argument('--stamps', action='store_true')
ap.add_argument('--cyc', action='store_true')
ap.add_argument('--fine', action='store_true')
ap.add_argument('--slow', action='store_true')
ap.add_argument('--x', default='')
ap.add_argument('--vlog', action='store_true')
ap.add_argument('--align', type=int, default=999)
ap.add_argument('--stop1', action='store_true')
ap.add_argument('--outm', default='nt')
ap.add_argument('--plan', default='3220000')
ap.add_argument('--tb', default='0')
ap.add_argument('--padph', default='')
ap.add_argument('--g1', default='')
ap.add_argument('--plan3', default='0000000')
ap.add_argument('--touch', action='store_true')
ap.add_argument('--s1', action='store_true')
for k, d in dict(gapa=64, gapaware=1, c3=1, xq=-1, xqn=2, fat=6, w64=0, padx=-1, wmq=2, wmax=6, wmd=5, wmp=5, stop4=7, edf=1, lead=5, gck=5, pf4=8, late4=3, wm0=4, wm1=2, apk=1, padto=0, dbg=-1, otlb=0, jit1=0, trsp=99, w0=0, w1=0, pg=2, zero=1, pfx=0, pfy=0, pfz=0, x0=2, bpos=8, h2o=1, ot=0, ht=0, gpl=1800, acut=70, gap0=64, gap1=64, gap4=84, gap5=64, s0=4, pfe2=3, pf0=4, b1=9, b1d=0, b2a=4, b2c=8, b2d=3, y0=2, slack=0, b1c=10, b2=4, b2b=4, b3=12, b4=8, win=11, gcut=3, tailq=2, gper=3, b5=6, hfirst=0, kbar=8, lat0=2900).items():
    ap.add_argument('--' + k, type=int, default=d)
args = ap.parse_args()
args.wt = not args.touch

A = Asm()
e = A.e
A.win = args.win
A.lat = {'xpf': (args.lat0, 2.5), 'x': (650, 1), 'gp': (args.gpl, .4), 'mx': (1100, .3), 'xq': (1800, 3 * args.xqn), 'gc': (1250, .5), 'gq': (1800, 1.5), 'mtb': (1500, .8), 'mt': (1800, .8), 'ost': (400 if args.ot else 800, .1), 'xst': (400 if args.h2o else 800, .1),
         'hst': (400 if args.ht else 800, .1), 'poll': (650, .1), 'xr': (800, 2), '': (400, .1), 'p4w': (1100, 1.35), 'stt': (1400, .25), 'st': (650, 1), 'sst': (400, .1), 'mg': (1100, .25),
         'm': (1100, 1), 'o': (650 if args.ot else 1100, 1), 'y': (650 if args.h2o else 1100, 1), 'h': (650 if args.ht else 1100, 1), 'tch': (1600, 1)}
model = []

WS_O = 0x30000
WS_X1 = 0x50000
WS_STATS = 0x70000
WS_HH = 0x80000
HH_PITCH = 0x2C000
WS_GRP = 0xF0000
WS_MODP = 0xE0000
WS_EPOCH = 0xEF000
WS_STAMP = 0x1000000
WS_SIZE = 0x1100000 if args.stamps else 0x1000000

L_STATS, L_RED, L_MODV, L_GAGB = 0x0, 0xA00, 0x1000, 0x2000
L_HRING = 0x3000
L_B = [0x3000, 0xF000, 0x1B000, 0xF000]
L_WO = 0x17000
L_H2 = 0x17000
BLK, MAT1 = 12416, 6176
L_S = 0x3000
L_WD = 0x3000
LDS_TOTAL = 163840

S_W, S_RB, S_M, S_J, S_TAG, S_FAST, S_XCC = 's4', 's5', 's6', 's7', 's8', 's9', 's11'
SRD_X, SRD_WQKV, SRD_WO, SRD_WG, SRD_WU, SRD_WD, SRD_WMOD, SRD_OUT, SRD_WS, SRD_C = [
    f's[{b}:{b + 3}]' for b in range(40, 80, 4)]
S_GRP, S_ONES, S_HI, S_SPIN = 's84', 's85', 's86', 's87'
S_XOFF, S_NU, S_U0, S_COL = 's88', 's89', 's90', 's91'
SRD_GU = 's[92:95]'
S_MM4, S_GUM, S_H2M = 's80', 's81', 's39'
S_OST, S_X1ST, S_HST, S_STST = 's96', 's97', 's98', 's99'
S_HST2 = 's83'
S_W3K, S_M128, S_BT, S_W1K = 's20', 's21', 's22', 's23'
S_OLD, S_X1LD, S_STLD, S_HLD = 's35', 's36', 's37', 's38'
V_LANE, V_L16, V_G, V_C = 'v0', 'v1', 'v2', 'v3'
V_DUM, V_STAMP = 'v10', 'v15'
V_WOD, V_P4D, V_OST, V_XO, V_WDD, V_GB = 56, 57, 60, 61, 62, 63
PD = 'v[116:119]'


def vr(b, n=4):
    return f'v[{b}:{b + n - 1}]'


def ar(b, n=4):
    return f'a[{b}:{b + n - 1}]'


@contextmanager
def nobg():
    old = A.bg_on
    A.bg_on = False
    yield
    A.bg_on = old


nstamp = [0]
stamp_names = []


def stamp(name=''):
    model.append((name, A.t))
    if not args.stamps:
        return
    with nobg():
        e('s_memtime s[100:101]' if args.cyc else 's_memrealtime s[100:101]')
        stamp_names.append(name)
        A.wait_lg()
        e(f'v_writelane_b32 {V_STAMP}, s100, {nstamp[0]}')
    nstamp[0] += 1


def fine(name):
    if args.fine:
        stamp(name)


def lines(t):
    return [('i', l.split(';')[0].strip()) for l in t.split('\n') if l.split(';')[0].strip()]


def run(items):
    for it in items:
        if it[0] == 'i':
            e(it[1], tag=it[2] if len(it) > 2 else None)
        elif it[0] == 'wl':
            A.wait_lg(it[1])
        elif it[0] == 'wv':
            A.wait_vm(it[1])
        elif it[0] == 'f':
            it[1]()
        else:
            raise ValueError(it)


def is_mem(it):
    return it[0] == 'f' or (it[0] == 'i' and it[1].startswith(('ds_', 'buffer_')))


def is_valu(it):
    return it[0] == 'i' and it[1].startswith('v_') and not it[1].startswith('v_mfma')


def interleave(main, fill, start=0, end=None, pred=lambda t: t.startswith('v_mfma')):
    slots = [i for i, it in enumerate(main) if it[0] == 'i' and pred(it[1])]
    slots = slots[start:end]
    sset = {i: k for k, i in enumerate(slots)}
    out = []
    n = len(slots)
    done = 0
    i = 0
    while i < len(main):
        out.append(main[i])
        if i in sset:
            k = sset[i] + 1
            while i + 1 < len(main) and is_mem(main[i + 1]) and (i + 1) not in sset:
                i += 1
                out.append(main[i])
            upto = (len(fill) * k + n - 1) // n
            valu = False
            while done < upto:
                it = fill[done]
                if is_mem(it) and valu and k < n and args.gapaware:
                    break
                valu = valu or is_valu(it)
                out.append(it)
                done += 1
        i += 1
    out.extend(fill[done:])
    return out


def cost(it):
    if it[0] != 'i':
        return 1
    if it[1].startswith('ds_write_b128'):
        return 3
    if it[1].startswith('ds_write_b64'):
        return 2
    if it[1].startswith(('v_exp', 'v_rcp', 'v_rsq')):
        return 2
    return 1


def pack(main, fill, start=0, end=None):
    gaps = []
    idx = [i for i, it in enumerate(main) if it[0] == 'i' and it[1].startswith('v_mfma')]
    for a, i in enumerate(idx):
        nxt = idx[a + 1] if a + 1 < len(idx) else len(main)
        j = i
        while j + 1 < nxt and is_mem(main[j + 1]):
            j += 1
        gaps.append((j, sum(cost(x) for x in main[i + 1:nxt])))
    gaps = gaps[start:end]
    total = sum(cost(x) for x in fill) + sum(c for _, c in gaps)
    at = {}
    done = 0
    acc = 0.0
    per = total / len(gaps)
    for k, (j, c) in enumerate(gaps):
        acc += per - c
        lst = []
        valu = False
        while done < len(fill) and (acc >= cost(fill[done]) - 0.5 or k == len(gaps) - 1):
            it = fill[done]
            if is_mem(it) and valu and k < len(gaps) - 1:
                break
            valu = valu or is_valu(it)
            lst.append(it)
            acc -= cost(it)
            done += 1
        at[j] = lst
    out = []
    for i, it in enumerate(main):
        out.append(it)
        out.extend(at.get(i, []))
    return out


def spin_fail(lbl_loop):
    e(f'''s_sub_u32 {S_SPIN}, {S_SPIN}, 1
          s_cmp_eq_u32 {S_SPIN}, 0
          s_cbranch_scc1 L_giveup
          s_branch {lbl_loop}''')


def checked(tag, loads, check):
    A.wait_vm(tag)
    with nobg():
        lc, lp, ld = A.newlabel('L_c'), A.newlabel('L_p'), A.newlabel('L_d')
        save = (list(A.vm), list(A.done), A.t, A.t_vm, list(A.log))
        e(f's_branch {lc}')
        A.label(lp)
        for l in loads:
            e(l)
        A.wait_vm()
        A.vm, A.done, A.t, A.t_vm, A.log = save
        A.label(lc)
        check()
        e(f's_cbranch_vccz {ld}')
        spin_fail(lp)
        A.label(ld)


def stores(lst, tag, optional=False, plain=False):
    with nobg():
        if not plain:
            for t in lst:
                e(t + ' sc1', tag=tag, optional=optional)
            return
        l1, l2 = A.newlabel('L_st'), A.newlabel('L_st')
        e(f"""s_cmp_lg_u32 {S_FAST}, 0
              s_cbranch_scc1 {l1}""")
        save = (list(A.vm), list(A.done), A.t, A.t_vm, list(A.log))
        for t in lst:
            e(t + ' sc1')
        e(f's_branch {l2}')
        A.vm, A.done, A.t, A.t_vm, A.log = save
        A.label(l1)
        for t in lst:
            e(t, tag=tag, optional=optional)
        A.label(l2)


def touch(pre, va, so, off=0, dst=None):
    dst = dst or PD
    if True:
        A.bg_add(pre + [f'buffer_load_dwordx4 {dst}, {va}, {SRD_WS}, {so} offen offset:{off} sc1'], 'tch')


def publish_flag(off, tag):
    with nobg():
        e(f'''s_add_u32 s12, {S_MM4}, {S_GRP}
              v_mov_b32 v5, {S_TAG}''')
        if off == 64:
            e(f'''s_and_b32 s13, {S_MM4}, 32
                  v_and_b32 v9, 7, {V_LANE}
                  v_lshl_add_u32 v9, v9, 2, s13''')
        else:
            e(f'v_lshlrev_b32 v9, 2, {V_C}')
        A.wait_vm(tag)
        e('s_barrier')
        l1, l2 = A.newlabel('L_pf'), A.newlabel('L_pf')
        e(f'''s_cmp_lg_u32 {S_W}, 0
              s_cbranch_scc1 {l2}
              s_mov_b64 exec, 1
              s_cmp_lg_u32 {S_FAST}, 0
              s_cbranch_scc1 {l1}''')
        e(f'buffer_store_dword v5, off, {SRD_WS}, s12 offset:{off} sc1', optional=True)
        e(f'''s_mov_b64 exec, -1
              s_branch {l2}''')
        A.label(l1)
        e(f'buffer_store_dword v5, off, {SRD_WS}, s12 offset:{off}', optional=True)
        e('s_mov_b64 exec, -1')
        A.label(l2)


def poll_ld(off):
    return f'buffer_load_dword v8, v9, {SRD_WS}, {S_GRP} offen offset:{off} sc1'


def poll_check(off):
    with nobg():
        checked('poll', [poll_ld(off)], lambda: e(f'v_cmp_ne_u32 vcc, {S_TAG}, v8'))


def st_loads(t0):
    return [f'buffer_load_dwordx4 {vr(t0 + 4 * p)}, {V_L16}, {SRD_WS}, {S_STLD} offen offset:{p * 1024} sc1' for p in range(2)]


def mod_loads(va, t0):
    return [f'buffer_load_dwordx4 {vr(t0 + 4 * p)}, {va}, {SRD_WS}, s{24 + p} offen sc1' for p in range(4)]


def mod_check(va, t0, tag, lds_v, addone_v):
    def chk():
        e(f's_and_b32 s13, {S_TAG}, 0xff')
        for i in range(16):
            e(f'v_xor_b32 v{t0 + i}, s13, v{t0 + i}')
        e(f'v_or3_b32 v5, v{t0}, v{t0 + 1}, v{t0 + 2}')
        e(f'v_or3_b32 v6, v{t0 + 3}, v{t0 + 4}, v{t0 + 5}')
        for i in range(6, 14, 4):
            e(f'v_or3_b32 v5, v5, v{t0 + i}, v{t0 + i + 1}')
            e(f'v_or3_b32 v6, v6, v{t0 + i + 2}, v{t0 + i + 3}')
        e(f'v_or3_b32 v5, v5, v{t0 + 14}, v{t0 + 15}')
        e(f'''v_or_b32 v5, v5, v6
              v_and_b32 v5, 0xff, v5
              v_cmp_ne_u32 vcc, 0, v5''')
    checked(tag, mod_loads(va, t0), chk)
    for i in range(0, 4, 2):
        e(f'v_pk_add_f32 {vr(t0 + i, 2)}, {vr(t0 + i, 2)}, {vr(t0 + 4 + i, 2)}')
        e(f'v_pk_add_f32 {vr(t0 + 8 + i, 2)}, {vr(t0 + 8 + i, 2)}, {vr(t0 + 12 + i, 2)}')
    for i in range(0, 4, 2):
        e(f'v_pk_add_f32 {vr(t0 + i, 2)}, {vr(t0 + i, 2)}, {vr(t0 + 8 + i, 2)}')
    for rnd in range(2):
        e(f'v_cvt_pk_bf16_f32 v5, v{t0}, v{t0 + 1}')
        e(f'v_cvt_pk_bf16_f32 v6, v{t0 + 2}, v{t0 + 3}')
        e(f'v_lshlrev_b32 v{t0}, 16, v5')
        e(f'v_and_b32 v{t0 + 1}, {S_HI}, v5')
        e(f'v_lshlrev_b32 v{t0 + 2}, 16, v6')
        e(f'v_and_b32 v{t0 + 3}, {S_HI}, v6')
        if rnd == 0:
            if addone_v is None:
                break
            for i in range(4):
                e(f'v_add_f32 v{t0 + i}, v{t0 + i}, {addone_v}')
    e(f'ds_write_b128 {lds_v}, {vr(t0)}', tag='modw')


def mod_task_loads(base, cond, tag, rr=vr, va='v74', vc='v75'):
    l = A.newlabel('L_ml')
    with nobg():
        e(cond + f'\n s_cbranch_scc0 {l}')
        e(f'buffer_load_dwordx2 {rr(base + 16, 2)}, {vc}, {SRD_C}, s33 offen', tag=tag, optional=True)
        for i in range(4):
            e(f'buffer_load_dwordx4 {rr(base + 4 * i)}, {va}, {SRD_WMOD}, s{29 + i} offen', tag=tag, optional=True)
        A.label(l)


def mod_part1(base, t, ad, from_a=None, c0=None, fma=False):
    x = ''
    c0 = c0 or base + 16
    if from_a is not None:
        for i in range(18):
            x += f'v_accvgpr_read_b32 v{base + i if i < 16 else c0 + i - 16}, a{from_a + i}\n'
    x += f"""v_lshlrev_b32 v{t + 8}, 16, v{c0}
          v_and_b32 v{t + 9}, {S_HI}, v{c0}
          v_lshlrev_b32 v{t + 10}, 16, v{c0 + 1}
          v_and_b32 v{t + 11}, {S_HI}, v{c0 + 1}
          """
    for op in ('v_mul_f32 v{a}, 0xbfb8aa3b, v{b}', 'v_exp_f32 v{a}, v{a}', 'v_add_f32 v{a}, 1.0, v{a}', 'v_rcp_f32 v{a}, v{a}', 'v_mul_f32 v{b}, v{b}, v{a}'):
        for i in range(4):
            x += op.format(a=t + 12 + i, b=t + 8 + i) + '\n'
    MA = t + 8
    if fma:
        for i in range(4):
            x += f'v_cvt_pk_bf16_f32 v{t + i}, 0, v{t + 8 + i}\n'
        for i in range(4):
            for d in range(4):
                x += f'v_lshlrev_b32 v{t + 4}, 16, v{base + 4 * i + d}\n v_and_b32 v{t + 5}, {S_HI}, v{base + 4 * i + d}\n'
                for h in range(2):
                    if i == 0:
                        x += f'v_mul_f32 v{MA + 2 * d + h}, v{t + 4 + h}, v{t + i}\n'
                    else:
                        x += f'v_fma_f32 v{MA + 2 * d + h}, v{t + 4 + h}, v{t + i}, v{MA + 2 * d + h}\n'
    else:
        for i in range(4):
            x += f'v_cvt_pk_bf16_f32 v{t + i}, v{t + 8 + i}, 0\n'
            x += f'v_cvt_pk_bf16_f32 v{t + 4 + i}, 0, v{t + 8 + i}\n'
        for i in range(4):
            for d in range(4):
                for h in range(2):
                    src2 = '0' if i == 0 else f'v{MA + 2 * d + h}'
                    x += f'v_dot2_f32_bf16 v{MA + 2 * d + h}, v{base + 4 * i + d}, v{t + 4 * h + i}, {src2}\n'
    x += f"""v_and_b32 v{ad}, 7, {V_LANE}
          v_lshlrev_b32 v{ad}, 5, v{ad}
          v_and_b32 v{ad + 1}, 1, {V_G}
          v_lshl_add_u32 v{ad}, v{ad + 1}, 3, v{ad}
          """
    for p in range(4):
        x += f'v_permlane32_swap_b32 v{MA + 2 * p}, v{MA + 2 * p + 1}\n'
    for p in range(4):
        x += f'v_add_f32 v{MA + 2 * p}, v{MA + 2 * p}, v{MA + 2 * p + 1}\n'
    x += f"""v_lshrrev_b32 v{ad + 1}, 1, {V_G}
          v_lshl_add_u32 v{ad}, v{ad + 1}, 2, v{ad}
          """
    for p in range(2):
        x += f'v_permlane16_swap_b32 v{MA + 4 * p}, v{MA + 4 * p + 2}\n'
    for p in range(2):
        x += f'v_add_f32 v{MA + 4 * p}, v{MA + 4 * p}, v{MA + 4 * p + 2}\n'
    x += f"""s_lshl_b32 s28, {S_W}, 8
          v_add_u32 v{ad}, s28, v{ad}
          """
    for p in range(2):
        x += f'v_add_f32_dpp v{MA + 4 * p + 1}, v{MA + 4 * p}, v{MA + 4 * p} row_ror:8 row_mask:0xf bank_mask:0xf\n'
    x += f'ds_write_b32 v{ad}, v{MA + 1} offset:{L_RED}\n'
    x += f'ds_write_b32 v{ad}, v{MA + 5} offset:{L_RED + 16}\n'
    return lines(x)


def mod_part2(base, lm, wave):
    e(f"""s_cmp_lg_u32 {S_W}, {wave}
          s_cbranch_scc1 {lm}
          v_lshlrev_b32 v4, 4, {V_C}""")
    for w in range(4):
        e(f'ds_read_b128 {vr(base + 4 * w)}, v4 offset:{L_RED + w * 256}')
    e(f"""s_and_b32 s13, {S_TAG}, 0xff
          s_mov_b32 s14, 0xffffff00
          v_mov_b32 v5, s13
          s_and_b32 s12, s3, 3
          s_mul_i32 s12, s12, 12288
          s_lshr_b32 s13, s3, 2
          s_lshl_b32 s13, s13, 8
          s_add_u32 s12, s12, s13
          s_add_u32 s12, s12, {WS_MODP}""")
    e('s_waitcnt lgkmcnt(0)')
    for i in range(0, 4, 2):
        e(f'v_pk_add_f32 {vr(base + i, 2)}, {vr(base + i, 2)}, {vr(base + 4 + i, 2)}')
        e(f'v_pk_add_f32 {vr(base + 8 + i, 2)}, {vr(base + 8 + i, 2)}, {vr(base + 12 + i, 2)}')
    for i in range(0, 4, 2):
        e(f'v_pk_add_f32 {vr(base + i, 2)}, {vr(base + i, 2)}, {vr(base + 8 + i, 2)}')
    for i in range(4):
        e(f'v_and_or_b32 v{base + i}, v{base + i}, s14, v5')
    e('s_mov_b64 exec, 0xffff')
    e(f'buffer_store_dwordx4 {vr(base)}, v4, {SRD_WS}, s12 offen sc1', optional=True)
    e('s_mov_b64 exec, -1')
    e('s_nop 0')


def dma_wqkv(j):
    for pos in range(4):
        ks = 4 * pos + j
        for mat in range(3):
            pre = [f's_add_u32 m0, {S_W3K}, {L_B[j] + pos * 12288}', f's_add_u32 {S_BT}, {S_M128}, {ks * 32 * 3072}'] if mat == 0 else []
            A.bg_add(pre + [f'buffer_load_dwordx4 v8, {SRD_WQKV}, {S_BT} offen offset:{mat * 1024} lds'], f'wq{j}')


def tr_wqkv(j):
    it = [('i', f'v_add_u32 v9, {(L_B[j] - L_B[j - 1]) & 0xffffffff}, v9')] if j else []
    return it + [('i', f'ds_read_b64_tr_b16 {ar(((j * 4 + pos) * 3 + mat) * 4 + hf * 2, 2)}, v9 offset:{pos * 12288 + mat * 1024 + hf * 512}', f'trq{j}_{pos}')
                 for pos in range(4) for mat in range(3) for hf in range(2)]


def dma_1k(srd, vreg, ks, ldsaddr, tag):
    A.bg_add([f's_add_u32 m0, {S_W1K}, {ldsaddr}', f's_add_u32 {S_BT}, {S_M128}, {ks * 32768}',
              f'buffer_load_dwordx4 v{vreg}, {srd}, {S_BT} offen lds'], tag)


def dma_p4(n):
    for i in range(3):
        A.bg_add([f's_add_u32 m0, {S_GUM}, {(n % 6) * BLK + i * 1024}', f's_add_u32 {S_BT}, {S_COL}, {n * 32 * 2752}',
                  f'buffer_load_dwordx4 v{V_P4D + i}, {SRD_GU}, {S_BT} offen lds'], f'p4w{n}')


class GU:
    queued = 0
    landed = 0
    moved = 0
    freed = 0


def gu_queue():
    while GU.queued < 16 and GU.queued < GU.freed + 6:
        dma_p4(GU.queued)
        GU.queued += 1


def gu_pre(upto):
    upto = max(upto, GU.landed)
    assert upto <= GU.queued
    if upto > GU.landed:
        A.wait_vm(f'p4w{upto - 1}')
    GU.pend = upto


def gu_post(lg_waited=True):
    GU.landed = GU.pend
    if lg_waited:
        GU.freed = GU.moved
    gu_queue()


def gu_done():
    live = {t for t, o in A.vm} | {t for l, t in A.bg}
    n = 0
    while n < GU.queued and f'p4w{n}' not in live:
        n += 1
    return n


def mover(n):
    return [('i', f'ds_read_b64_tr_b16 {ar(16 * n + 8 * i + 4 * mat + 2 * hf, 2)}, v{20 + i + 2 * ((n % 6) // 3)} offset:{(n % 3) * BLK + mat * MAT1 + hf * 16 * 192}', f'mv{n}')
            for i in range(2) for mat in range(2) for hf in range(2)]


def movers(limit=16):
    it = []
    while GU.moved < min(GU.landed, limit):
        it += mover(GU.moved)
        GU.moved += 1
    return it


def front(f):
    rest = list(A.bg)
    A.bg = []
    f()
    A.bg += rest


def c3(srd, piece):
    if args.c3:
        lo = srd[2:srd.index(':')]
        A.bg_add([f's_sub_u32 {S_BT}, 0x180, s{lo}', f's_and_b32 {S_BT}, {S_BT}, 0x380', f's_add_u32 {S_BT}, {S_BT}, {piece * 524288}',
                  f'buffer_load_dword {V_DUM}, {C3[0]}, {srd}, {S_BT} offen'], 'gc')


C3 = ['v55']


def gpf(srd, base):
    A.bg_add([f's_mov_b32 {S_BT}, {base}', f'buffer_load_dword {V_DUM}, v11, {srd}, {S_BT} offen'], 'gp')


Q = 128 * 2752
PIECES = [[(SRD_WO, 0), (SRD_WO, 393216)]] + [[(SRD_WG, q * Q), (SRD_WU, q * Q)] for q in range(4)] + \
         [[(SRD_WD, 0), (SRD_WD, 393216)], [(SRD_WD, 2 * 393216), (SRD_WD, 3 * 393216)]]


if args.fat:
    NL = args.fat
    PIECES = [[(srd, k * NL * 131072)] for srd, n in ((SRD_WO, 4), (SRD_WG, 11), (SRD_WU, 11), (SRD_WD, 11)) for k in range(-(-n // NL))]
    if NL < 11:
        g = [p for p in PIECES if p[0][0] == SRD_WG]; u = [p for p in PIECES if p[0][0] == SRD_WU]
        PIECES = PIECES[:1] + [x for ab in zip(g, u) for x in ab] + [p for p in PIECES if p[0][0] == SRD_WD]
    A.lat['gp'] = (args.gpl, NL / 8)
PLAN = [int(c) for c in args.plan]


def pieces(point):
    for k in range(PLAN[point]):
        for p in PIECES.pop(0):
            gpf(*p)
    for k in range(int(args.plan3[point])):
        c3(SRD_WG, C3N[0])
        c3(SRD_WU, C3N[0])
        C3N[0] += 1


C3N = [0]


def bg_mix(every, first=0):
    old = A.bg
    A.bg = []
    k = first
    for it in old:
        if len(it[0]) > 1 and k >= every and PIECES:
            for p in PIECES.pop(0):
                gpf(*p)
            k = 0
        A.bg.append(it)
        k += 1


XRES, GAL, TRB = 88, 136, 84
MK, ONE = 168, 184


L_MASK, L_TRB = 0x27000, 0x2800


def tr_bases_t(dst, rowt, ft, ldsbase):
    t = f'''v_bfe_u32 v40, {V_LANE}, 2, 2
          v_and_b32 v41, 3, {V_LANE}
          {rowt}
          {ft}
          v_lshlrev_b32 v42, 7, v42
          v_and_b32 v40, 1, v41
          v_lshl_add_u32 v42, v40, 3, v42
          v_add_u32 v42, {ldsbase}, v42
          v_lshrrev_b32 v41, 1, v41
          '''
    for ct in range(4):
        t += f'''v_add_u32 v40, {2 * ct}, v41
              v_xor_b32 v40, v40, v43
              v_lshl_add_u32 v{dst + ct}, v40, 4, v42
              '''
    return t


def late_items():
    t = f"""v_lshlrev_b32 v80, 4, {V_C}
          v_lshl_add_u32 v80, {V_G}, 11, v80
          s_lshl_b32 s12, {S_M}, 8
          s_add_u32 s12, s12, {1024 * 4}
          v_add_u32 v80, s12, v80
          v_mov_b32 v81, v55
          s_add_u32 s12, {S_W1K}, {L_MODV}
          v_add_u32 v82, s12, {V_L16}
          v_cmp_eq_u32 vcc, 2, {V_G}
          v_mov_b32 v83, 0
          s_nop 0
          v_cndmask_b32 v83, v83, 1.0, vcc
          """
    t += tr_bases_t(TRB, f'v_lshl_add_u32 v42, {V_G}, 3, v40',
                    f'v_and_b32 v43, 2, v40\n v_and_b32 v44, 1, {V_G}\n v_lshl_add_u32 v43, v44, 2, v43', L_WO)
    return lines(t)


def mask_items():
    t = f'''s_sub_u32 s13, {S_RB}, 1
            s_lshr_b32 s13, s13, 31
            s_lshl_b32 s13, s13, 6
            s_mov_b32 s12, 0xf149f2ca
            v_lshlrev_b32 v40, 2, {V_G}
            v_mov_b32 v42, s12
         '''
    for r in range(4):
        t += f'''v_add_u32 v41, {r}, v40
          v_sub_u32 v43, {V_C}, v41
          v_cmp_gt_u32 vcc, 8, v43
          v_cmp_ge_i32 s[14:15], -9, v43
          v_add_u32 v43, s13, v43
          v_cndmask_b32 v{MK + r}, v42, 0, vcc
          v_cndmask_b32 v{MK + 4 + r}, v42, 0, s[14:15]
          v_cmp_ge_i32 vcc, -9, v43
          v_cmp_gt_i32 s[14:15], 0, v43
          v_cmp_lt_u32 s[18:19], 7, v41
          v_cndmask_b32 v{MK + 12 + r}, v42, 0, vcc
          v_cndmask_b32 v{MK + 8 + r}, v42, 0, s[14:15]
          v_cndmask_b32 v{MK + 8 + r}, v{MK + 8 + r}, v42, s[18:19]
          '''
    return lines(t)


srds = [(40, 0, 2048 * 1024), (64, 64, 512 * 6144), (76, 56, 1024), (44, 8, 512 * 3072), (72, 88, WS_SIZE), (48, 16, 512 * 1024),
        (52, 32, 512 * 2752), (56, 40, 512 * 2752), (60, 48, 1376 * 1024), (68, 72, 2048 * 1024)]
MW, XN, XRAW = 16, 80, 160
e(f"""s_cmp_ge_u32 s2, 256
      s_cbranch_scc1 L_giveup
      {'s_memtime s[100:101]' if args.cyc else 's_memrealtime s[100:101]' if args.stamps else ''}""")
for (d, off, sz) in srds[:5]:
    e(f's_load_dwordx2 s[{d}:{d + 1}], s[0:1], {off}')
e(f"""v_lshrrev_b32 v2, 6, v0
      v_and_b32 v0, 63, v0
      v_readfirstlane_b32 {S_W}, v2
      s_lshr_b32 {S_J}, s2, 3
      s_and_b32 s3, s2, 7
      s_lshr_b32 s10, {S_J}, 3
      s_lshl_b32 {S_RB}, s3, 2
      s_add_u32 {S_RB}, {S_RB}, s10
      s_and_b32 {S_M}, {S_J}, 7
      s_lshl_b32 s12, {S_M}, 2
      s_add_u32 s12, s12, {S_W}
      s_mul_i32 s12, s12, 20
      s_lshl_b32 s13, {S_RB}, 9
      s_add_u32 s12, s12, s13
      s_addk_i32 s12, -128
      v_add_lshl_u32 v7, s12, {V_LANE}, 7
      v_cmp_gt_u32 vcc, 20, {V_LANE}
      v_bfrev_b32 v6, -2
      s_mov_b32 s34, 0x20000
      s_mov_b32 s42, {2048 * 1024}
      v_cndmask_b32 v14, v6, v7, vcc
      s_mov_b32 s43, s34
      s_getpc_b64 s[14:15]
      v_lshlrev_b32 {V_L16}, 4, {V_LANE}
      s_lshl_b32 s12, {S_J}, 2
      s_add_u32 s12, s12, {S_W}
      s_and_b32 s12, s12, 63
      s_min_u32 s12, s12, (L_codeend-{NAME}_kernel)/1024-1
      s_lshl_b32 s12, s12, 10
      s_and_b32 s14, s14, 0xffffff00
      v_add_u32 v4, s12, {V_L16}""")
e(f'global_load_dwordx4 a[244:247], v4, s[14:15]')
A.wait_lg()
A.t = 1100
e(f'buffer_load_dword {V_DUM}, v14, {SRD_X}, 0 offen', tag='xpf')
if args.stamps:
    e(f'v_mov_b32 {V_STAMP}, 0')
    e(f'v_writelane_b32 {V_STAMP}, s100, 0')
    stamp_names.append('entry'); nstamp[0] += 1
e(f's_load_dword s8, s[72:73], {WS_EPOCH}')
for (d, off, sz) in srds[5:]:
    e(f's_load_dwordx2 s[{d}:{d + 1}], s[0:1], {off}')
for (d, off, sz) in srds[1:4]:
    e(f"""s_mov_b32 s{d + 2}, {sz}
          s_mov_b32 s{d + 3}, s34""")
e(f"""s_and_b32 s10, {S_J}, 3
      s_lshr_b32 s12, {S_J}, 2
      s_lshl_b32 s13, s12, 1
      s_add_u32 s13, s13, s10
      s_add_u32 s13, s13, 7
      s_cmp_eq_u32 s10, 0
      s_cselect_b32 s12, s12, s13
      s_lshl_b32 s12, s12, 3
      s_add_u32 s3, s3, s12
      s_lshl_b32 s12, {S_W}, 3
      v_lshrrev_b32 v76, 3, {V_LANE}
      v_add_u32 v76, s12, v76
      v_and_b32 v77, 7, {V_LANE}
      v_lshlrev_b32 v75, 3, v76
      v_mul_u32_u24 v74, {4 * 6144}, v76
      v_lshl_add_u32 v74, v77, 4, v74
      s_and_b32 s13, s3, 3
      s_lshr_b32 s14, s3, 2
      s_mul_i32 s29, s13, {128 * 6144}
      s_lshl_b32 s30, s14, 7
      s_add_u32 s29, s29, s30
      s_lshl_b32 s33, s13, 8
      s_add_u32 s30, s29, 6144
      s_add_u32 s31, s29, {2 * 6144}
      s_add_u32 s32, s29, {3 * 6144}""")
COND_A = 's_cmp_eq_u32 s10, 0'
COND_B = 's_sub_u32 s12, s10, 1\n s_cmp_lt_u32 s12, 2'
mod_task_loads(MW, COND_A, 'mt')
e(f"""s_lshl_b32 s15, s2, 2
      s_add_u32 s15, s15, {S_W}
      s_mul_i32 s12, s15, 12
      v_add_lshl_u32 v7, s12, {V_LANE}, 7
      v_cmp_gt_u32 vcc, 12, {V_LANE}
      v_lshrrev_b32 v12, 2, {V_LANE}        ; c4   (x lane map: c4 = l/4, g4 = l%4)
      v_and_b32 v13, 3, {V_LANE}            ; g4
      v_cndmask_b32 v54, v6, v7, vcc
      s_lshl_b32 s12, {S_J}, 2
      s_add_u32 s12, s12, {S_W}
      s_lshl_b32 s12, s12, 2
      v_add_lshl_u32 v7, s12, {V_LANE}, 10
      v_cmp_gt_u32 vcc, 4, {V_LANE}
      s_nop 1
      v_cndmask_b32 v55, v6, v7, vcc
      v_lshlrev_b32 v4, 11, v12
      v_lshl_add_u32 v4, v13, 4, v4
      s_lshl_b32 s16, {S_RB}, 16
      s_lshl_b32 s17, {S_W}, 8
      s_add_u32 s16, s16, s17
      s_add_u32 s18, s16, 32768""")


def xload(T, j, bg=False):
    q = 5 * j + T
    if T < 4:
        l = f'buffer_load_dwordx4 {vr(XN + 8 * q + 4)}, v4, {SRD_X}, {"s16" if T < 2 else "s18"} offen offset:{(T % 2) * 1024 + j * 64}'
    else:
        l = f'buffer_load_dwordx4 {vr(XN + 8 * q + 4)}, v5, {SRD_X}, s17 offen offset:{j * 64}'
    if bg:
        A.bg_add([l], f'x{T}')
    else:
        e(l, tag=f'x{T}')


def issue_gq(pos):
    if pos == args.xq:
        e(f'''s_lshl_b32 s12, {S_J}, 2
              s_add_u32 s12, s12, {S_W}
              s_lshr_b32 s13, s12, 5
              s_and_b32 s12, s12, 31
              s_mul_i32 s13, s13, {128 * 3072}
              s_mul_i32 s12, s12, {args.xqn * 3072}
              s_add_u32 s12, s12, s13
              v_lshlrev_b32 v53, 7, {V_LANE}
              s_mov_b32 exec_hi, {(1 << max(0, 24 * args.xqn - 32)) - 1}
              s_mov_b32 exec_lo, {(1 << min(32, 24 * args.xqn)) - 1}''')
        e(f'buffer_load_dword {V_DUM}, v53, {SRD_WQKV}, s12 offen', tag='xq')
        e('s_mov_b64 exec, -1')
    if pos == args.pg:
        e(f'buffer_load_dword {V_DUM}, v54, {SRD_WQKV}, 0 offen', tag='gq')
        for k in range(3):
            c3(SRD_WQKV, k)
        A.bg_flush()


issue_gq(0)
e(f"""      v_bfe_u32 v5, {V_LANE}, 4, 1
      s_and_b32 s12, {S_W}, 1
      s_lshl_b32 s12, s12, 1
      v_add_u32 v5, s12, v5
      v_lshlrev_b32 v5, 1, v5
      v_xor_b32 v5, v77, v5
      v_lshlrev_b32 v5, 4, v5
      v_mul_u32_u24 v8, 3072, v76
      v_add_u32 v8, v8, v5
      v_lshl_add_u32 v{V_WOD}, v76, 10, v5
      s_mul_i32 {S_W3K}, {S_W}, 3072
      s_lshl_b32 {S_M128}, {S_M}, 7
""")
dma_wqkv(0)
A.bg_flush(args.w0)
extra = [A.bg.pop(0) for _ in range(args.w1)]
W0REST = list(A.bg)
A.bg = []
if extra:
    ln = A.newlabel('L_e')
    sv = (list(A.vm), A.t, A.t_vm, list(A.done), list(A.log))
    e(COND_A + f'\n s_cbranch_scc1 {ln}')
    for l_, t_ in extra:
        for l in l_:
            e(l, tag=t_)
    A.label(ln)
    A.vm, A.t, A.t_vm, A.done, A.log = sv
for j in range(args.x0):
    xload(0, j)
fine('start')

for (d, off, sz) in srds[4:]:
    e(f"""s_mov_b32 s{d + 2}, {sz}
          s_mov_b32 s{d + 3}, s34""")
e(f"""s_mul_i32 s12, s15, {args.fat or 3}
      v_add_lshl_u32 v7, s12, {V_LANE}, 7
      v_cmp_gt_u32 vcc, {args.fat or 3}, {V_LANE}
      v_lshrrev_b32 {V_G}, 4, {V_LANE}
      v_and_b32 {V_C}, 15, {V_LANE}
      v_cndmask_b32 v11, v6, v7, vcc
      v_lshlrev_b32 v5, 1, v12
      v_cmp_lt_u32 vcc, 7, v12
      v_mov_b32 v6, -16
      v_mov_b32 v7, -31
      s_lshl_b32 s15, {S_RB}, 6
      v_cndmask_b32 v6, v6, v7, vcc
      v_add3_u32 v5, v5, v6, s15
      v_max_i32 v5, 0, v5
      v_lshlrev_b32 v5, 10, v5
      v_lshl_add_u32 v5, v13, 4, v5
      v_lshlrev_b32 v6, 1, {V_G}
      v_xor_b32 v6, v77, v6
      v_lshlrev_b32 v6, 4, v6
      v_lshl_add_u32 v{V_WDD}, v76, 10, v6
      s_lshl_b32 {S_W1K}, {S_W}, 10
      s_getreg_b32 {S_XCC}, hwreg(HW_REG_XCC_ID)
      s_and_b32 {S_XCC}, {S_XCC}, 15
      s_mov_b32 {S_ONES}, 0x3f803f80
      s_mov_b32 {S_HI}, 0xffff0000
      s_mov_b32 {S_SPIN}, 0x40000
      s_lshr_b32 {S_GRP}, {S_RB}, 1
      s_lshl_b32 s82, {S_GRP}, 20
      s_add_u32 {S_GRP}, s82, {WS_GRP}
      v_bfe_u32 v78, {V_LANE}, 2, 2          ; r4
      v_mul_u32_u24 v9, 3072, {V_G}
      v_lshl_add_u32 v9, v78, 7, v9
      v_and_b32 v78, 2, v78
      v_and_b32 v6, 1, {V_G}
      v_lshl_add_u32 v78, v6, 2, v78         ; 2f
      v_lshrrev_b32 v6, 1, v13               ; cc/2
      s_lshl_b32 s12, {S_W}, 1
      v_add_u32 v6, s12, v6
      v_xor_b32 v6, v6, v78
      v_lshl_add_u32 v9, v6, 4, v9
      v_and_b32 v79, 1, v13
      v_lshl_add_u32 v9, v79, 3, v9
      v_add_u32 v9, {L_B[0]}, v9""")
for p in range(4):
    e(f's_mov_b32 s{24 + p}, {WS_MODP + p * 12288}')
issue_gq(1)
e(f's_mov_b32 s12, {(1 << 32) // 12 + 1}')
for i in range(3):
    e(f"""v_add_u32 v6, {64 * i}, {V_LANE}
          v_mul_hi_u32 v7, v6, s12
          v_mul_u32_u24 v78, 12, v7
          v_sub_u32 v6, v6, v78
          v_lshrrev_b32 v78, 1, v7
          v_and_b32 v78, 2, v78
          v_xor_b32 v6, v6, v78
          v_mul_u32_u24 v7, 2752, v7
          v_lshl_add_u32 v{V_P4D + i}, v6, 4, v7
          v_lshlrev_b32 v{44 + i}, 27, v6""")
e(f"""s_and_b32 s12, {S_RB}, 1
      s_lshl_b32 s12, s12, 3
      s_add_u32 s12, s12, {S_M}
      s_lshl_b32 {S_MM4}, s12, 2
      s_mul_i32 s12, s12, 43
      s_add_u32 s13, s12, 43
      s_lshr_b32 s12, s12, 4
      s_lshr_b32 s13, s13, 4
      s_sub_u32 {S_NU}, s13, s12
      s_lshl_b32 {S_U0}, s12, 1
      s_sub_u32 s13, 3, {S_NU}
      s_mul_i32 s13, s13, {0x40000000 * args.zero}
      v_and_or_b32 v{V_P4D}, v44, s13, v{V_P4D}
      v_and_or_b32 v{V_P4D + 1}, v45, s13, v{V_P4D + 1}
      v_and_or_b32 v{V_P4D + 2}, v46, s13, v{V_P4D + 2}
      s_lshr_b32 s13, {S_W}, 1
      s_mul_i32 s14, s13, {16 * 2752}
      s_lshl_b32 {S_COL}, s12, 6
      s_add_u32 {S_COL}, {S_COL}, s14
      s_mul_i32 s13, s13, 3072
      s_and_b32 s14, {S_W}, 1
      s_mul_i32 s14, s14, {MAT1}
      s_add_u32 s13, s13, s14
      s_add_u32 {S_GUM}, s13, {L_S}
      s_lshl_b32 s13, {S_W}, 12
      s_add_u32 {S_H2M}, s13, {L_H2}
      v_and_b32 v78, 1, {V_G}
      v_lshrrev_b32 v79, 1, {V_G}
      v_lshlrev_b32 v6, 14, v78
      v_lshl_add_u32 v6, v79, 8, v6
      v_lshl_add_u32 v{V_OST}, {V_C}, 4, v6
      v_lshlrev_b32 v6, 11, {V_C}
      v_lshl_add_u32 v6, v78, 5, v6
      v_lshl_add_u32 v{V_XO}, v79, 4, v6
      s_lshr_b32 s12, {S_W}, 1
      s_lshl_b32 s12, s12, 15
      s_and_b32 s13, {S_W}, 1
      s_lshl_b32 s13, s13, 10
      s_add_u32 s12, s12, s13
      s_lshl_b32 s13, {S_RB}, 16
      s_add_u32 s12, s12, s13
      s_add_u32 {S_XOFF}, s12, {S_M128}
      s_and_b32 s15, {S_RB}, 1
      s_lshl_b32 s14, s15, 16
      s_add_u32 s14, s14, s82
      s_lshl_b32 s12, {S_M}, 11
      s_lshl_b32 s13, {S_W}, 9
      s_add_u32 s12, s12, s13
      s_add_u32 s12, s12, s14
      s_add_u32 {S_OST}, s12, {WS_O}
      s_lshl_b32 s12, {S_W}, 14
      s_add_u32 s12, s12, s14
      s_add_u32 {S_OLD}, s12, {WS_O}
      s_lshl_b32 s13, {S_M}, 11
      s_add_u32 s12, s12, s13
      s_add_u32 {S_X1ST}, s12, {WS_X1}
      s_lshr_b32 s13, {S_W}, 1
      s_lshl_b32 s13, s13, 10
      s_add_u32 s12, s82, s13
      s_and_b32 s13, {S_W}, 1
      s_lshl_b32 s13, s13, 16
      s_add_u32 s12, s12, s13
      s_add_u32 {S_X1LD}, s12, {WS_X1}
      s_lshl_b32 s12, s15, 13
      s_lshl_b32 s13, {S_W}, 11
      s_add_u32 s12, s12, s13
      s_add_u32 s12, s12, s82
      s_add_u32 {S_STLD}, s12, {WS_STATS}
      s_lshl_b32 s13, {S_M}, 8
      s_add_u32 {S_STST}, {S_STLD}, s13
      s_and_b32 s12, {S_W}, 1
      s_xor_b32 s13, s12, 1
      s_mul_i32 s12, s12, {HH_PITCH}
      s_mul_i32 s13, s13, {HH_PITCH}
      s_add_u32 s14, {S_U0}, {S_W}
      s_lshl_b32 s14, s14, 10
      s_add_u32 s14, s14, s82
      s_add_u32 s14, s14, {WS_HH}
      s_add_u32 {S_HST}, s12, s14
      s_add_u32 {S_HST2}, s13, s14
      s_mul_i32 s12, s15, {HH_PITCH}
      s_add_u32 s12, s12, s82
      s_add_u32 s12, s12, {WS_HH}
      s_lshr_b32 s13, {S_W}, 1
      s_mul_i32 s13, s13, {86 * 1024}
      s_add_u32 s12, s12, s13
      s_and_b32 s13, {S_W}, 1
      s_lshl_b32 s13, s13, 8
      s_add_u32 {S_HLD}, s12, s13
      s_add_u32 s12, {S_W1K}, {L_MODV}
      v_lshl_add_u32 v{V_GB}, {V_G}, 4, s12
      v_lshlrev_b32 v77, 2, {V_LANE}
      v_and_b32 v78, 31, {V_LANE}
      v_lshlrev_b32 v78, 4, v78
      v_lshrrev_b32 v79, 5, {V_LANE}
      v_lshl_add_u32 v78, v79, 11, v78
      s_lshl_b32 s12, {S_W}, 9
      v_add_u32 v78, s12, v78
      v_cvt_f32_u32 v79, v79
      s_add_u32 s12, {S_W1K}, {L_MODV}
      v_add_u32 v76, s12, {V_L16}
      v_lshlrev_b32 v6, 1, v13
      v_xor_b32 v6, v6, v12
      v_lshl_add_u32 v6, v13, 4, v6
      v_lshlrev_b32 v6, 4, v6
      s_mul_i32 s13, {S_W}, 5120
      s_add_u32 s13, s13, {L_HRING}
      v_lshlrev_b32 v12, 5, v13
      v_add_u32 v12, s12, v12
      v_add_u32 v13, s13, v6
      v_lshlrev_b32 v6, 1, {V_G}
      v_xor_b32 v6, v6, {V_C}
      v_lshl_add_u32 v6, {V_G}, 4, v6
      v_lshlrev_b32 v6, 4, v6
      v_add_u32 v14, {L_HRING}, v6""")
issue_gq(2)
MKT = MK
MK = 240
run(mask_items())
run([(k, t.replace('v80', 'v64').replace('v81', 'v65').replace('v82', 'v66').replace('v83', 'v67').replace('v84', 'v68').replace('v85', 'v69').replace('v86', 'v70').replace('v87', 'v71')) for k, t in late_items()])
e(f'v_add_u32 v40, {L_MASK}, {V_L16}')
for i in range(4):
    e(f'ds_write_b128 v40, {vr(MK + 4 * i)} offset:{i * 1024}')
e(f'ds_write_b128 {V_L16}, v[68:71] offset:{L_TRB}')
for i in range(4):
    e(f'v_accvgpr_write_b32 a{250 + i}, v{64 + i}')
e('s_add_u32 s18, s16, 32768')
MK = MKT
A.wait_lg()
e(f"""s_bitcmp1_b32 {S_W}, 0
      s_cselect_b32 s92, s56, s52
      s_cselect_b32 s93, s57, s53
      s_mov_b32 s94, {512 * 2752}
      s_mov_b32 s95, s34
      s_mul_i32 {S_TAG}, {S_TAG}, 1664525
      s_add_u32 {S_TAG}, {S_TAG}, 1013904223""")
lx = A.newlabel('L_x')
e(f'''s_cmp_lg_u32 {S_W}, 1
      s_cbranch_scc1 {lx}
      s_and_b32 s12, {S_TAG}, 0xfffffff0
      s_or_b32 s12, s12, {S_XCC}
      s_add_u32 s13, {S_MM4}, {S_GRP}
      s_mov_b64 exec, 1
      v_mov_b32 v6, s12''')
e(f'buffer_store_dword v6, off, {SRD_WS}, s13 sc1', optional=True)
e('s_mov_b64 exec, -1')
A.label(lx)
issue_gq(3)
fine('setup')
lm, lm2, lj = A.newlabel('L_nomod'), A.newlabel('L_nomod'), A.newlabel('L_mj')
e(COND_A + f'\n s_cbranch_scc1 {lm}')
save = (list(A.vm), list(A.done), A.t, A.t_vm, list(A.log))
XL = [(0, j) for j in range(args.x0, 4)] + [(T, j) for T in (1, 2) for j in range(4)]
for T, j in XL:
    xload(T, j)
e(f's_branch {lj}')
A.vm, A.done, A.t, A.t_vm, A.log = save
A.label(lm)
save = list(A.vm)
A.wait_vm('mt')
A.vm = save
run(interleave(mod_part1(MW, 36, 6), [('f', lambda T=T, j=j: xload(T, j)) for T, j in XL], 0, 96, pred=lambda t: True))
for l_, t_ in extra:
    for l in l_:
        e(l, tag=t_, optional=True)
A.wait_lg()
e('s_barrier')
e('v_mov_b32 v52, v4\n v_mov_b32 v53, v5')
mod_part2(MW, lm2, 0)
A.label(lm2)
e('v_mov_b32 v4, v52\n v_mov_b32 v5, v53')
A.label(lj)
A.lg = []
stamp('modpub')
e(COND_B + '\n s_cselect_b32 s12, 0, 0x40000000\n v_or_b32 v74, s12, v74\n v_or_b32 v75, s12, v75')
e('v_accvgpr_write_b32 a254, v74\n v_accvgpr_write_b32 a255, v75')
MTB = [([f'buffer_load_dwordx2 v[112:113], v87, {SRD_C}, s33 offen'], 'mtb')] + [([f'buffer_load_dwordx4 {vr(96 + 4 * i)}, v86, {SRD_WMOD}, s{29 + i} offen'], 'mtb') for i in range(4)]
for T in range(3, 5):
    for j in range(4):
        xload(T, j, bg=True)
for k in range(args.pfx):
    for p in PIECES.pop(0):
        gpf(*p)
A.bg += W0REST
for k in range(args.pfy):
    for p in PIECES.pop(0):
        gpf(*p)
dma_wqkv(1)
for k in range(args.pfz):
    for p in PIECES.pop(0):
        gpf(*p)
dma_wqkv(2)
pieces(0)
A.bg_gap = args.gap0
A.bg_on = True

RS = 64


def unpack(q):
    for d in range(4):
        src = XN + 8 * q + 4 + d
        lo = XN + 8 * q + 2 * d
        e(f'''v_lshlrev_b32 v{lo}, 16, v{src}
              v_and_b32 v{lo + 1}, {S_HI}, v{src}''')


def scale(q):
    p = vr(RS + 2 * (q % 5), 2)
    for d in range(4):
        lo = XN + 8 * q + 2 * d
        e(f'v_pk_fma_f32 {vr(lo, 2)}, {vr(lo, 2)}, {p}, {p} op_sel:[0,0,1] op_sel_hi:[1,0,1]')


ST = 16
for T in range(5):
    A.wait_vm(f'x{T}')
    if args.s1: stamp(f'x{T}')
    for j in range(4):
        for d in range(4):
            r = XN + 8 * (5 * j + T) + 4 + d
            first = (j == 0 and d == 0)
            e(f'v_dot2_f32_bf16 v{ST + 2 * T}, v{r}, {S_ONES}, {"0" if first else f"v{ST + 2 * T}"}')
            e(f'v_dot2_f32_bf16 v{ST + 2 * T + 1}, v{r}, v{r}, {"0" if first else f"v{ST + 2 * T + 1}"}')
    if T < 4:
        for j in range(4):
            unpack(5 * j + T)
e(f'''s_lshl_b32 s12, {S_W}, 3
      v_lshrrev_b32 v5, 2, {V_LANE}
      v_lshlrev_b32 v5, 5, v5
      v_add_u32 v4, s12, v5''')
for qp in ('[1,0,3,2]', '[2,3,0,1]'):
    for i in range(10):
        e(f'v_add_f32_dpp v{ST + i}, v{ST + i}, v{ST + i} quad_perm:{qp} row_mask:0xf bank_mask:0xf')
with nobg():
    e('''s_mov_b32 s12, 0x11111111
         s_mov_b32 exec_lo, s12
         s_mov_b32 exec_hi, s12''')
    for T in range(5):
        e(f'ds_write_b64 v4, {vr(ST + 2 * T, 2)} offset:{L_STATS + T * 512}')
    e('s_mov_b64 exec, -1')
for j in range(2):
    unpack(5 * j + 4)
A.wait_lg()
e('s_barrier')
fine('b1')
xcc_ld = f'buffer_load_dword v77, v76, {SRD_WS}, {S_GRP} offen sc1'
k0 = max([i + 1 for i, it in enumerate(A.bg) if it[1] == 'wq0'] + [0])
A.bg[k0:k0] = [([l], 'm1') for l in mod_loads('v78', 240)]
for T in range(5):
    for h in range(2):
        e(f'ds_read_b128 {vr(16 + 8 * T + 4 * h)}, v5 offset:{L_STATS + T * 512 + h * 16}', tag='st')
for j in range(2, 4):
    unpack(5 * j + 4)
A.wait_lg('st')
e('s_mov_b32 s12, 0x3b000000')
for T in range(5):
    b = 16 + 8 * T
    e(f'''v_pk_add_f32 {vr(b, 2)}, {vr(b, 2)}, {vr(b + 2, 2)}
          v_pk_add_f32 {vr(b + 4, 2)}, {vr(b + 4, 2)}, {vr(b + 6, 2)}
          v_pk_add_f32 {vr(b, 2)}, {vr(b, 2)}, {vr(b + 4, 2)}
          v_pk_mul_f32 {vr(b, 2)}, {vr(b, 2)}, s[12:13] op_sel_hi:[1,0]
          v_fma_f32 v{b + 1}, -v{b}, v{b}, v{b + 1}
          v_max_f32 v{b + 1}, 0, v{b + 1}
          v_add_f32 v{b + 1}, 0x3727c5ac, v{b + 1}
          v_rsq_f32 v{RS + 2 * T}, v{b + 1}''')
for T in range(5):
    e(f'v_mul_f32 v{RS + 2 * T + 1}, -v{16 + 8 * T}, v{RS + 2 * T}')
for q in range(10):
    scale(q)
A.wait_vm('wq0')
e('s_barrier')
fine('b2')
tq = tr_wqkv(0)
for q in range(10, 14):
    run(tq[6 * (q - 10):6 * (q - 9)])
    scale(q)
stamp('prenorm')
mod_check('v78', 240, 'm1', 'v76', 'v79')
for h in range(2):
    e(f'ds_read_b128 {vr(16 + 4 * h)}, v12 offset:{h * 16}', tag='cs')
    e(f'ds_read_b128 {vr(24 + 4 * h)}, v12 offset:{512 + h * 16}', tag='cs')
for q in range(14, 20):
    scale(q)
stamp('mod')

CS = 64


def cs1_reads(j):
    it = []
    for h in range(2):
        it.append(('i', f'ds_read_b128 {vr(CS + 4 * h)}, v12 offset:{j * 128 + h * 16}', 'cs'))
        it.append(('i', f'ds_read_b128 {vr(CS + 8 + 4 * h)}, v12 offset:{512 + j * 128 + h * 16}', 'cs'))
    return it


def norm1_items(j, pk=False):
    it = [('wl', 'cs')]
    for T in range(5):
        b = XN + 8 * (5 * j + T)
        if pk:
            for i in range(0, 8, 2):
                it.append(('i', f'v_pk_fma_f32 {vr(b + i, 2)}, {vr(b + i, 2)}, {vr(24 + i, 2)}, {vr(16 + i, 2)}'))
        else:
            for i in range(8):
                it.append(('i', f'v_fma_f32 v{b + i}, v{b + i}, v{CS + 8 + i}, v{CS + i}'))
        if args.w64 and not pk:
            it = it[:-8]
            for h in range(2):
                for i in range(4 * h, 4 * h + 4):
                    it.append(('i', f'v_fma_f32 v{b + i}, v{b + i}, v{CS + 8 + i}, v{CS + i}'))
                for d in range(2):
                    it.append(('i', f'v_cvt_pk_bf16_f32 v{b + 4 * h + d}, v{b + 4 * h + 2 * d}, v{b + 4 * h + 2 * d + 1}'))
                it.append(('i', f'ds_write_b64 v13, {vr(b + 4 * h, 2)} offset:{(j % 2) * 20480 + T * 1024 + 8 * h}', 'hw'))
            continue
        for d in range(4):
            it.append(('i', f'v_cvt_pk_bf16_f32 v{b + d}, v{b + 2 * d}, v{b + 2 * d + 1}'))
        it.append(('i', f'ds_write_b128 v13, {vr(b)} offset:{(j % 2) * 20480 + T * 1024}', 'hw'))
    if j < 3:
        it += cs1_reads(j + 1)
    return it


def accQ(T): return 16 + 4 * T
def accK(T): return 32 + 4 * T
def accV(T): return 240 + 4 * T if T < 4 else 52


FR = 192


def rd1(j, pos):
    return [('i', f'ds_read_b128 {ar(FR + (pos % 2) * 20 + 4 * T)}, v14 offset:{(j % 2) * 20480 + (pos * 5 + T) * 1024}', f'f{pos}') for T in range(5)]


def mm1(j, pos):
    it = []
    wb = (j * 4 + pos) * 12
    first = (j == 0 and pos == 0)
    for T in range(5):
        f = ar(FR + (pos % 2) * 20 + 4 * T)
        if T < 4:
            it.append(('i', f'v_mfma_f32_16x16x32_bf16 {vr(accQ(T))}, {ar(wb)}, {f}, {"0" if first else vr(accQ(T))}'))
        it.append(('i', f'v_mfma_f32_16x16x32_bf16 {vr(accK(T))}, {ar(wb + 4)}, {f}, {"0" if first else vr(accK(T))}'))
        it.append(('i', f'v_mfma_f32_16x16x32_bf16 {vr(accV(T))}, {f}, {ar(wb + 8)}, {"0" if first else vr(accV(T))}'))
    return it


A.wait_lg()
e('s_barrier')
run(norm1_items(0, pk=True))
if not args.jit1:
    A.wait_vm('wq1')
A.wait_lg('hw')
e('s_barrier')
stamp('c0')
if 'nm' in args.g1: A.drop = ('w', 'g', 'm', 'x')
e('v_accvgpr_read_b32 v81, a251')
e('v_accvgpr_read_b32 v86, a254\n v_accvgpr_read_b32 v87, a255')
C3[0] = 'v81'
k0 = max([i + 1 for i, it in enumerate(A.bg) if it[1] == 'wq2'] + [0])
A.bg[k0:k0] = MTB
c3(SRD_WO, 0)
A.bg_gap = args.gap1
run(rd1(0, 0))
for j in range(5):
    main = []
    if j > 0:
        main += interleave(mm1(j - 1, 3), rd1(j, 0) if j < 4 else [], 0, 5)
    if j == 4:
        run(main)
        break
    todo = {0: [] if args.jit1 else [1], 1: [1, 2] if args.jit1 else [2], 2: [], 3: [3]}[j]
    for pos in range(3):
        main += [('wl', [f'f{pos}', f'trq{j}_{pos}'])] + interleave(mm1(j, pos), rd1(j, pos + 1), 0, 5)
    for c in todo:
        tq = tr_wqkv(c)
        if c == j:
            run(tq[:1])
            main = interleave(main, tq[1:7], 0, 6)
            main = interleave(main, tq[7:], 6, 24)
        elif len(todo) > 1:
            main = interleave(main, tq, 26, 52)
        else:
            run(tq[:1])
            main = pack(main, tq[1:], 0, -1)
    if j < 3:
        fill = norm1_items(j + 1)
    else:
        fill = lines(f'v_add_u32 v4, {L_MASK}, {V_L16}') + [('i', f'ds_read_b128 {vr(MK + 4 * i)}, v4 offset:{i * 1024}') for i in range(4)]
        fill += [('i', f'ds_read_b128 {vr(TRB)}, {V_L16} offset:{L_TRB}')]
        fill += [('i', f'v_accvgpr_read_b32 v{80 + i}, a{250 + i}') for i in range(4)] + [('i', f'v_mov_b32 v{ONE + r}, {S_ONES}') for r in range(4)] + [('i', f'v_lshlrev_b32 v76, 2, {V_LANE}')]
    if j == 3:
        fill = [('wv', 'mtb')] + mod_part1(96, 200, 216, None, 112, True) + fill
    if 'nB' in args.g1 and j == 3: fill = fill[-20:]
    if 'nw' in args.g1: fill = [f for f in fill if not (f[0] == 'i' and f[1].startswith('ds_write_b128'))]
    if 'nv' in args.g1 and j < 3: fill = [f for f in fill if not (f[0] == 'i' and f[1].startswith(('v_fma', 'v_cvt')))]
    run(pack(main, fill, 0, -2))
    fine(f'e{j}')
    A.wait_vm(('wq2', 'none', 'wq3', 'none')[j])
    A.wait_lg()
    e('s_barrier')
    fine(f'c{j + 1}')
    if j == args.jit1:
        front(lambda: dma_wqkv(3))
    if j == 0:
        pieces(1)
    if j == 1:
        for ks in range(4, 16):
            dma_1k(SRD_WO, V_WOD, ks, L_WO + ks * 4096, 'wo')
        pieces(2)
        if args.ot:
            touch([], f'v{V_OST}', S_OST)
            touch([f's_add_u32 {S_BT}, {S_OST}, 32768'], f'v{V_OST}', S_BT)
        for p in range(2):
            A.bg_add([f'buffer_load_dwordx4 {vr(XRES + 4 * p)}, v{V_XO}, {SRD_X}, {S_XOFF} offen offset:{p * 64}'], 'xr')
    if j == 2:
        pieces(3)
    if j == 3:
        front(lambda: [dma_1k(SRD_WO, V_WOD, ks, L_WO + ks * 4096, 'wo') for ks in range(4)])
        A.bg_add([xcc_ld], 'mx')
        A.bg_add([f'buffer_load_dword {V_DUM}, v76, {SRD_WS}, {S_STST} offen sc1'], 'stt')
        if args.otlb:
            A.bg_add([f'buffer_load_dword {V_DUM}, off, {SRD_OUT}, {S_XOFF}'], 'stt')
        pieces(4)
        gu_queue()
with nobg():
    lm = A.newlabel('L_nomod')
    save = (list(A.vm), list(A.lg), A.t, A.t_vm, list(A.done), list(A.log))
    e(COND_B + f'\n s_cbranch_scc0 {lm}')
    mod_part2(96, lm, 3)
    A.label(lm)
    A.vm, A.lg, A.t, A.t_vm, A.done, A.log = save[0] + [(None, True)], *save[1:]
stamp('qkv')
A.drop = ()

QP, KP, VP = 140, 148, 158
VPOS = {2: 0, 0: 1, 4: 2, 1: 3, 3: 4}
SS, MX, PP, OO, LL, OP = 188, 220, 16, 32, 228, 48
PREV = {0: 4, 1: 4, 2: 0, 3: 1}
PMASK = {0: MK + 8, 1: MK + 12, 2: MK + 4, 3: MK + 4}
VPAIR = {2: 0, 0: 1, 1: 2, 3: 3}
t = ''
for T in range(5):
    for d in range(2):
        if T < 4:
            t += f'v_cvt_pk_bf16_f32 v{QP + 2 * T + d}, v{accQ(T) + 2 * d}, v{accQ(T) + 2 * d + 1}\n'
        t += f'v_cvt_pk_bf16_f32 v{KP + 2 * T + d}, v{accK(T) + 2 * d}, v{accK(T) + 2 * d + 1}\n'
vc = [f'v_cvt_pk_bf16_f32 v{VP + 2 * VPOS[T] + d}, v{accV(T) + 2 * d}, v{accV(T) + 2 * d + 1}\n' for T in range(5) for d in range(2)]
t += vc.pop(0) + vc.pop(0)
for T in (2, 3, 0, 1):
    t += f'v_mfma_f32_16x16x16_bf16 {vr(SS + 8 * T)}, {vr(KP + 2 * T, 2)}, {vr(QP + 2 * T, 2)}, {vr(MK)}\n' + vc.pop(0)
    t += f'v_mfma_f32_16x16x16_bf16 {vr(SS + 8 * T + 4)}, {vr(KP + 2 * PREV[T], 2)}, {vr(QP + 2 * T, 2)}, {vr(PMASK[T])}\n' + vc.pop(0)
t += 's_mov_b32 s12, 0x3eb8aa3b\n s_mov_b32 s13, 0xbeb8aa3b\n'
for T in (2, 3, 0, 1):
    s = SS + 8 * T
    t += f'''v_max3_f32 v{MX + T}, v{s}, v{s + 1}, v{s + 2}
          v_max3_f32 v{MX + 4 + T}, v{s + 3}, v{s + 4}, v{s + 5}
          v_max3_f32 v{MX + T}, v{MX + T}, v{s + 6}, v{s + 7}
          v_max_f32 v{MX + T}, v{MX + T}, v{MX + 4 + T}
          v_mov_b32 v{MX + 4 + T}, v{MX + T}
          '''
for k, sw in enumerate(('v_permlane32_swap_b32', 'v_permlane16_swap_b32')):
    for T in (2, 3, 0, 1):
        t += f'{sw} v{MX + T}, v{MX + 4 + T}\n'
    for T in (2, 3, 0, 1):
        t += f'v_max_f32 v{MX + T}, v{MX + T}, v{MX + 4 + T}\n'
    if k == 0:
        for T in (2, 3, 0, 1):
            t += f'v_mov_b32 v{MX + 4 + T}, v{MX + T}\n'
for T in range(4):
    t += f'v_mul_f32 v{MX + 4 + T}, -s12, v{MX + T}\n'.replace('-s12', 's13')
if args.apk:
    for T in range(4):
        for i in range(0, 8, 2):
            pr = vr(MX + 4 + (T & 2), 2)
            t += f'v_pk_fma_f32 {vr(SS + 8 * T + i, 2)}, {vr(SS + 8 * T + i, 2)}, s[12:13], {pr} op_sel:[0,0,{T & 1}] op_sel_hi:[1,0,{T & 1}]\n'


def fin(T):
    x = f'v_rcp_f32 v{LL + 4 * T}, v{LL + 4 * T}\n'
    p = vr(LL + 4 * T, 2)
    y = ''
    for i in (0, 2):
        y += f'v_pk_mul_f32 {vr(OO + 4 * T + i, 2)}, {vr(OO + 4 * T + i, 2)}, {p} op_sel_hi:[1,0]\n'
    for d in range(2):
        y += f'v_cvt_pk_bf16_f32 v{OP + 2 * T + d}, v{OO + 4 * T + 2 * d}, v{OO + 4 * T + 2 * d + 1}\n'
    return x, y


for T in range(4):
    s = SS + 8 * T
    for i in range(0 if args.apk else 8):
        t += f'v_fma_f32 v{s + i}, v{s + i}, s12, v{MX + 4 + T}\n'
    for i in range(8):
        t += f'v_exp_f32 v{s + i}, v{s + i}\n'
    if T > 0:
        t += fin(T - 1)[0]
    curfirst = T in (0, 2)
    for d in range(2):
        t += f'v_cvt_pk_bf16_f32 v{PP + 4 * T + (0 if curfirst else 2) + d}, v{s + 2 * d}, v{s + 2 * d + 1}\n'
        t += f'v_cvt_pk_bf16_f32 v{PP + 4 * T + (2 if curfirst else 0) + d}, v{s + 4 + 2 * d}, v{s + 4 + 2 * d + 1}\n'
    if T > 0:
        t += fin(T - 1)[1]
    t += f'v_mfma_f32_16x16x32_bf16 {vr(LL + 4 * T)}, {vr(ONE)}, {vr(PP + 4 * T)}, 0\n'
    t += f'v_mfma_f32_16x16x32_bf16 {vr(OO + 4 * T)}, {vr(VP + 2 * VPAIR[T])}, {vr(PP + 4 * T)}, 0\n'


def wo_reg(ks, ct, hf=None):
    if 4 <= ks < 14:
        b, f = 96 + (ks - 4) * 16 + ct * 4, ar
    else:
        b, f = 160 + (ks if ks < 4 else ks - 10) * 16 + ct * 4, vr
    return f(b) if hf is None else f(b + 2 * hf, 2)


def tr_wo(ks):
    return [('i', f'ds_read_b64_tr_b16 {wo_reg(ks, ct, hf)}, v{TRB + ct} offset:{ks * 4096 + hf * 512}', f'trw{ks}')
            for ct in range(4) for hf in range(2)]


tl = lines(t)
A.bg_gap = args.gapa
run(tl[:args.acut])
A.bg_flush(upto=['wo', 'xr', 'tch', 'mx'])
A.bg_on = False
run(tl[args.acut:])
for d in range(2):
    e(f'v_permlane16_swap_b32 v{OP + d}, v{OP + 2 + d}')
e(f's_add_u32 s16, {S_OST}, 32768')
stores([f'buffer_store_dwordx4 {vr(OP)}, v{V_OST}, {SRD_WS}, {S_OST} offen'], 'ost', plain=args.ot)
e(fin(3)[0] + fin(3)[1])
for d in range(2):
    e(f'v_permlane16_swap_b32 v{OP + 4 + d}, v{OP + 6 + d}')
stores([f'buffer_store_dwordx4 {vr(OP + 4)}, v{V_OST}, {SRD_WS}, s16 offen'], 'ost', plain=args.ot)
fine('ost')
if args.stop1:
    stamp('end')
    e(f'''s_waitcnt vmcnt(0)
          s_lshl_b32 s12, s2, 2
          s_add_u32 s12, s12, {S_W}
          s_lshl_b32 s12, s12, 8
          s_add_u32 s12, s12, {WS_STAMP}
          v_lshlrev_b32 v4, 2, {V_LANE}
          buffer_store_dword {V_STAMP}, v4, {SRD_WS}, s12 offen
          s_endpgm''')
    args.stamps = False
    keep_names = list(stamp_names)
A.bg_flush(args.b1)
checked('mx', [xcc_ld], lambda: e(f'''v_xor_b32 v6, {S_TAG}, v77
                                      v_lshrrev_b32 v6, 4, v6
                                      v_cmp_ne_u32 vcc, 0, v6
                                      s_and_b64 vcc, vcc, 0xffff'''))
with nobg():
    e(f'''v_and_b32 v5, 15, v77
          v_cmp_ne_u32 vcc, {S_XCC}, v5
          s_nop 1
          s_and_b64 vcc, vcc, 0xffff
          s_cmp_eq_u64 vcc, 0
          s_cselect_b32 {S_FAST}, {0 if args.slow else 1}, 0
          s_mul_i32 s12, {S_FAST}, {(WS_X1 - WS_O) * args.h2o}
          s_sub_u32 {S_X1ST}, {S_X1ST}, s12
          s_sub_u32 {S_X1LD}, {S_X1LD}, s12''')
A.wait_vm('xr')
for p in range(2):
    for d in range(2):
        e(f'v_permlane16_swap_b32 v{XRES + 4 * p + d}, v{XRES + 4 * p + 2 + d}')
e(f'''s_add_u32 s17, {S_OLD}, 4096
      s_add_u32 s18, {S_OLD}, 8192
      s_add_u32 s19, {S_OLD}, 12288
      v_lshrrev_b32 v16, 2, {V_LANE}            ; row = 4g + r4
      v_mul_u32_u24 v16, 192, v16
      v_and_b32 v4, 3, {V_LANE}
      v_lshl_add_u32 v16, v4, 3, v16
      v_add_u32 v16, {L_S}, v16
      v_and_b32 v18, 1, {V_G}
      v_xor_b32 v17, {S_W}, v18
      s_lshr_b32 s13, {S_W}, 1
      s_add_u32 s13, s13, 4
      v_xor_b32 v18, s13, v18
      v_lshl_add_u32 v20, v17, 5, v16
      v_lshl_add_u32 v21, v18, 5, v16
      v_add_u32 v22, {3 * BLK}, v20
      v_add_u32 v23, {3 * BLK}, v21
      s_and_b32 s12, {S_W}, 1
      s_lshl_b32 s12, s12, 12
      s_xor_b32 s13, s12, 4096
      s_add_u32 s12, s12, {L_H2}
      s_add_u32 s13, s13, {L_H2}
      v_add_u32 v13, s12, {V_L16}
      v_add_u32 v14, s13, {V_L16}               ; tiles 4..7''')
OA, GA, X1A, X1P = 96, 32, 64, 24
publish_flag(64, 'ost')
A.bg_flush(args.b1d)
e(poll_ld(64), tag='poll')
for l in mod_loads('v80', 64):
    e(l, tag='m3')
stamp('opub')
for ks in range(4, 12):
    run(tr_wo(ks))
poll_check(64)
stamp('owait')


KORD = list(range(4, 16)) + [0, 1, 2, 3]
rest = list(A.bg)
gu_pre(gu_done())
A.bg = [([f'buffer_load_dwordx4 {vr(OA + 4 * n)}, {V_L16}, {SRD_WS}, {(S_OLD, "s17", "s18", "s19")[ks // 4]} offen offset:{(ks % 4) * 1024} sc1'], f'o{n}') for n, ks in enumerate(KORD)]
run(interleave([x for ks in (12, 13, 14, 15, 0, 1, 2, 3) for x in tr_wo(ks)], [('f', lambda: A.bg_flush(1))] * 12, pred=lambda t: True))
mod_check('v80', 64, 'm3', 'v82', 'v83')
for ct in range(4):
    e(f'ds_read_b128 {vr(GA + 4 * ct)}, v{V_GB} offset:{ct * 64}', tag='ga')
e('s_barrier')
gu_post(False)
mv = movers(6)
pieces(5)
A.bg += rest[:args.b1c]
rest = rest[args.b1c:]
for n, ks in enumerate(KORD):
    A.wait_vm(f'o{n}')
    A.wait_lg(f'trw{ks}')
    for ct in range(4):
        e(f'v_mfma_f32_16x16x32_bf16 {vr(X1A + 4 * ct)}, {wo_reg(ks, ct)}, {vr(OA + 4 * n)}, {"0" if n == 0 else vr(X1A + 4 * ct)}')
        if ct == 0 and A.bg and (A.bg[0][1].startswith(('o', 'm')) or A.room()):
            A.bg_flush(1)
        if n >= 4 and mv:
            run([mv.pop(0)])
    if n == 12:
        XF = OA + 16
        for i in range(8):
            e(f'''v_lshlrev_b32 v{XF + 2 * i}, 16, v{XRES + i}
                  v_and_b32 v{XF + 2 * i + 1}, {S_HI}, v{XRES + i}''')
run(mv)
A.bg += rest
gu_pre(gu_done())
A.wait_lg()
e('s_barrier')
gu_post()
fine('omm')
for b in range(0, 16, 2):
    e(f'v_pk_fma_f32 {vr(X1A + b, 2)}, {vr(X1A + b, 2)}, {vr(GA + b, 2)}, {vr(XF + b, 2)}')
for i in range(8):
    e(f'v_cvt_pk_bf16_f32 v{X1P + i}, v{X1A + 2 * i}, v{X1A + 2 * i + 1}')
for i in range(8):
    e(f'v_dot2_f32_bf16 v48, v{X1P + i}, {S_ONES}, {"0" if i == 0 else "v48"}')
    e(f'v_dot2_f32_bf16 v49, v{X1P + i}, v{X1P + i}, {"0" if i == 0 else "v49"}')


def rowsum2(a, b):
    e(f'''v_permlane32_swap_b32 v{a}, v{b}
          v_add_f32 v{a}, v{a}, v{b}
          v_mov_b32 v{b}, v{a}
          v_permlane16_swap_b32 v{a}, v{b}
          v_add_f32 v{a}, v{a}, v{b}
          v_mov_b32 v{b}, v{a}
          v_permlane32_swap_b32 v{a}, v{b}''')


e(f'v_mov_b32 v50, {S_TAG}\n v_mov_b32 v51, {S_TAG}')
rowsum2(48, 49)
e('s_mov_b64 exec, 0xffff')
stores([f'buffer_store_dwordx4 v[48:51], {V_L16}, {SRD_WS}, {S_STST} offen'], 'sst', plain=True)
e('s_mov_b64 exec, -1')
fine('sst')
A.bg_flush(args.b2a)
SPT = 144
for i in range(8):
    e(f'''v_lshlrev_b32 v{X1A + 2 * i}, 16, v{X1P + i}
          v_and_b32 v{X1A + 2 * i + 1}, {S_HI}, v{X1P + i}''')
SB, CB, GB = 112, 128, 32
for ct in range(4):
    e(f'ds_read_b128 {vr(SB + 4 * ct)}, v{V_GB} offset:{256 + ct * 64}', tag='ga')
    e(f'ds_read_b128 {vr(CB + 4 * ct)}, v{V_GB} offset:{512 + ct * 64}', tag='ga')
    e(f'ds_read_b128 {vr(GB + 4 * ct)}, v{V_GB} offset:{768 + ct * 64}', tag='ga')
run(movers())
for l in st_loads(SPT):
    e(l, tag='st')
A.bg_flush(args.b2)
checked('st', st_loads(SPT), lambda: e(f'''v_cmp_ne_u32 vcc, {S_TAG}, v{SPT + 2}
                                          v_cmp_ne_u32 s[12:13], {S_TAG}, v{SPT + 6}
                                          s_or_b64 vcc, vcc, s[12:13]'''))
fine('stw')
e(f'v_pk_add_f32 {vr(SPT, 2)}, {vr(SPT, 2)}, {vr(SPT + 4, 2)}')
rowsum2(SPT, SPT + 1)
e(f'''s_mov_b32 s12, 0x3b000000
      v_pk_mul_f32 {vr(SPT, 2)}, {vr(SPT, 2)}, s[12:13] op_sel_hi:[1,0]
      v_fma_f32 v{SPT + 1}, -v{SPT}, v{SPT}, v{SPT + 1}
      v_max_f32 v{SPT + 1}, 0, v{SPT + 1}
      v_add_f32 v{SPT + 1}, 0x3727c5ac, v{SPT + 1}
      v_rsq_f32 v{SPT + 2}, v{SPT + 1}
      v_mul_f32 v{SPT + 3}, -v{SPT}, v{SPT + 2}''')
A.wait_lg()
p = vr(SPT + 2, 2)
H2P = 96
for half in range(2):
    for b in range(8 * half, 8 * half + 8, 2):
        e(f'v_pk_fma_f32 {vr(X1A + b, 2)}, {vr(X1A + b, 2)}, {p}, {p} op_sel:[0,0,1] op_sel_hi:[1,0,1]')
    for b in range(8 * half, 8 * half + 8, 2):
        e(f'v_pk_fma_f32 {vr(X1A + b, 2)}, {vr(X1A + b, 2)}, {vr(CB + b, 2)}, {vr(SB + b, 2)}')
    for i in range(4 * half, 4 * half + 4):
        e(f'v_cvt_pk_bf16_f32 v{H2P + i}, v{X1A + 2 * i}, v{X1A + 2 * i + 1}')
    stores([f'buffer_store_dwordx4 {vr(H2P + 4 * half)}, {V_L16}, {SRD_WS}, {S_X1ST} offen offset:{half * 1024}'], 'xst', plain=args.h2o)
A.bg_flush(args.b2b)
publish_flag(128, 'xst')
GU.pend = gu_done()
gu_post(True)
e(poll_ld(128), tag='poll')
A.bg_flush(args.b2c)
run(movers())
stamp('x1pub')

le, lep, lok = A.newlabel('L_ep'), A.newlabel('L_epp'), A.newlabel('L_eok')
save = (list(A.vm), list(A.done), A.t, A.t_vm, list(A.log))
e(f'''s_xor_b32 s12, {S_W}, 3
      s_or_b32 s12, s2, s12
      s_cmp_lg_u32 s12, 0
      s_cbranch_scc1 {le}
      v_lshrrev_b32 v4, 2, {V_LANE}
      v_lshlrev_b32 v4, 20, v4
      v_and_b32 v5, 3, {V_LANE}
      v_lshl_add_u32 v4, v5, 4, v4
      s_mov_b32 s12, {WS_GRP}''')
A.label(lep)
e(f'buffer_load_dwordx4 v[200:203], v4, {SRD_WS}, s12 offen sc1')
A.wait_vm()
for i in range(4):
    e(f'v_xor_b32 v{200 + i}, {S_TAG}, v{200 + i}')
e(f'''v_or3_b32 v5, v200, v201, v202
      v_or_b32 v5, v5, v203
      v_lshrrev_b32 v5, 4, v5
      v_cmp_ne_u32 vcc, 0, v5
      s_cbranch_vccz {lok}''')
spin_fail(lep)
A.label(lok)
e(f'''v_mov_b32 v5, {S_TAG}
      s_mov_b64 exec, 1''')
e(f's_mov_b32 s12, {WS_EPOCH}')
e(f'buffer_store_dword v5, off, {SRD_WS}, s12 sc1')
e('s_mov_b64 exec, -1')
A.label(le)
A.vm, A.done, A.t, A.t_vm, A.log = save
A.vm += [(None, True)]
e('v_mov_b32 v12, v81')
C3[0] = 'v12'
poll_check(128)
stamp('x1wait')


def dma_h2(q):
    for tt in range(4):
        A.bg_add([f's_add_u32 m0, {S_H2M}, {(q % 4) * 16384 + tt * 1024}', f's_add_u32 {S_BT}, {S_X1LD}, {tt * 16384 + q * 2048}',
                  f'buffer_load_dwordx4 {V_L16}, {SRD_WS}, {S_BT} offen sc1 lds'], f'y{q}')


front(lambda: [dma_h2(q) for q in range(args.y0)])
A.bg_flush(4 * args.y0)
rest = list(A.bg)
A.bg = []
for q in range(args.y0, 4):
    A.bg += rest[:args.b2d]
    rest = rest[args.b2d:]
    dma_h2(q)
A.bg += rest
A.bg_gap = args.gap4
A.bg_on = True
ACC4, FB = 64, 160


WD_ADDR = {}


class WD:
    queued = 0
    landed = 0
    moved = 0
    freed = 0


def wd_space(addr, n):
    for k in range(n):
        if WD.queued < 43:
            WD_ADDR[WD.queued] = addr + k * 4096
            dma_1k(SRD_WD, V_WOD, WD.queued, addr + k * 4096, f'wd{WD.queued}')
            WD.queued += 1


def wd_est():
    n = WD.landed
    while n < WD.queued and f'wd{n}' not in {t for l, t in A.bg} and A.tagdone[f'wd{n}'] <= A.t + args.slack:
        n += 1
    return n


def wd_done():
    live = {t for t, o in A.vm} | {t for l, t in A.bg}
    n = 0
    while n < WD.queued and f'wd{n}' not in live:
        n += 1
    return n


def wd_pre(upto):
    upto = max(upto, WD.landed)
    if upto > WD.landed:
        A.wait_vm(f'wd{upto - 1}')
    WD.pend = upto


def wd_post():
    WD.landed = WD.pend
    while WD.freed < WD.moved:
        wd_space(WD_ADDR[WD.freed], 1)
        WD.freed += 1


def wd_addr(ks, ct, hf):
    off = WD_ADDR[ks] + hf * 512
    return f'v{(16, 48, 52)[off >> 16] + ct} offset:{off & 0xffff}'


NWB = 23


def wd_reg(ks, ct, hf=None):
    k = ks % NWB
    f, b = (ar, 16 * k) if k < 16 else (vr, 144 + 16 * (k - 16))
    return f(b + 4 * ct) if hf is None else f(b + 4 * ct + 2 * hf, 2)


def tr_wd(ks):
    return [('i', f'ds_read_b64_tr_b16 {wd_reg(ks, ct, hf)}, {wd_addr(ks, ct, hf)}', f't{ks}')
            for ct in range(4) for hf in range(2)]


def wd_moves(limit):
    it = []
    while WD.moved < min(WD.landed, limit):
        it += tr_wd(WD.moved)
        WD.moved += 1
    return it


for ct in range(4):
    e(f'v_add_u32 v{16 + ct}, {-L_WO & 0xffffffff}, v{TRB + ct}')
for ct in range(4):
    e(f'v_add_u32 v{48 + ct}, 0x10000, v{16 + ct}')
    e(f'v_add_u32 v{52 + ct}, 0x20000, v{16 + ct}')
def hh_touch(k):
    so = (S_HST, S_HST, S_HST2, S_HST2, 's18', 's18')[k]
    touch([f's_add_u32 {S_BT}, {so}, {(k % 2) * 86 * 1024}'], V_L16, S_BT, 0, 'v[252:255]')


e(f'''s_lshr_b32 s14, {S_W}, 1
      s_add_u32 s14, s14, 4
      s_sub_u32 s14, s14, {S_W}
      s_lshl_b32 s14, s14, 10
      s_sub_u32 s13, {S_NU}, 2
      s_mul_i32 s14, s14, s13
      s_add_u32 s18, {S_HST}, s14''')
def gu_est():
    n = GU.landed
    while n < GU.queued and f'p4w{n}' not in {t for l, t in A.bg} and A.tagdone[f'p4w{n}'] <= A.t + args.slack:
        n += 1
    return n


A.wait_vm('y0')
gu_pre(max(gu_done(), gu_est(), 2))
A.wait_lg()
e('s_barrier')
gu_post()
fine('d0')
A.drop = tuple(x for x in args.x.split(',') if x)
front(lambda: pieces(6))
wdn = 0
def glu(k, pk):
    b = ACC4 + 16 * k
    t = ''
    if pk:
        for r in range(0, 8, 2):
            t += f'v_pk_mul_f32 {vr(b + r, 2)}, {vr(b + r, 2)}, s[14:15] op_sel_hi:[1,0]\n'
    else:
        for r in range(8):
            t += f'v_mul_f32 v{b + r}, s14, v{b + r}\n'
    for r in range(8):
        t += f'v_exp_f32 v{b + r}, v{b + r}\n'
    if pk:
        for r in range(0, 8, 2):
            t += f'v_pk_add_f32 {vr(b + r, 2)}, {vr(b + r, 2)}, 1.0 op_sel_hi:[1,0]\n'
    else:
        for r in range(8):
            t += f'v_add_f32 v{b + r}, 1.0, v{b + r}\n'
    for r in range(8):
        t += f'v_rcp_f32 v{b + r}, v{b + r}\n'
    if pk:
        for r in range(0, 8, 2):
            t += f'v_pk_mul_f32 {vr(b + r, 2)}, {vr(b + r, 2)}, {vr(b + 8 + r, 2)}\n'
    else:
        for r in range(8):
            t += f'v_mul_f32 v{b + r}, v{b + r}, v{b + 8 + r}\n'
    for d in range(4):
        t += f'v_cvt_pk_bf16_f32 v{b + d}, v{b + 2 * d}, v{b + 2 * d + 1}\n'
    for d in range(2):
        t += f'v_permlane16_swap_b32 v{b + d}, v{b + 2 + d}\n'

    def st():
        st_ = f'buffer_store_dwordx4 {vr(b)}, {V_L16}, {SRD_WS}, {(S_HST, "s16", S_HST2, "s17", "s18", "s19")[k]} offen'
        if k >= 4:
            with nobg():
                ls = A.newlabel('L_sk')
                e(f's_cmp_lt_u32 {S_NU}, 3\n s_cbranch_scc1 {ls}')
                stores([st_], 'hst', optional=True, plain=args.ht)
                A.label(ls)
        else:
            stores([st_], 'hst', plain=args.ht)
    return lines(t) + [('f', st)]


NREG = 16
e(f'''s_mov_b32 s14, 0xbfb8aa3b
      s_add_u32 s16, {S_HST}, {86 * 1024}
      s_add_u32 s17, {S_HST2}, {86 * 1024}
      s_add_u32 s19, s18, {86 * 1024}''')
QL = 8 - args.tailq
NB, PF = 16, args.pf4
SEG = [[q] for q in range(QL)] + [list(range(QL, 8))]
TORD = [0, 1, 2, 3, 4, 5, 6, 7]
frs = [(si, t, ks) for si, sg in enumerate(SEG) for t in TORD for q in sg for ks in (2 * q, 2 * q + 1)]
FIDX = {f: n for n, f in enumerate(frs)}


def rdf(n):
    si, t, ks = frs[n]
    return ('i', f'ds_read_b128 {vr(FB + 4 * (n % NB))}, v{13 + t // 4} offset:{(ks // 2 % 4) * 16384 + (ks % 2) * 8192 + (t % 4) * 1024}', f'r{n}')


def acc4(t, i, mat):
    k = t // 2 if i == 0 else 4 + t // 2
    return ACC4 + 16 * k + 8 * mat + 4 * (t % 2)


issued = [0]


def tile_items(si, t, limit):
    it = []
    for q in SEG[si]:
        n0 = FIDX[(si, t, 2 * q)]
        it.append(('wl', [f'r{n0 + 1}', f'mv{2 * q + 1}']))
        for i in range(2 if t < 4 else 1):
            for mat in range(2):
                for ks in (2 * q, 2 * q + 1):
                    a = vr(acc4(t, i, mat))
                    it.append(('i', f'v_mfma_f32_16x16x32_bf16 {a}, {ar(16 * ks + 8 * i + 4 * mat)}, {vr(FB + 4 * (FIDX[(si, t, ks)] % NB))}, {"0" if ks == 0 else a}'))
                    if issued[0] < min(n0 + 2 + PF, limit):
                        it.append(rdf(issued[0]))
                        issued[0] += 1
    return it


def after_bar4(q):
    global wdn
    if q < 4:
        dma_h2(q + 4)
    if q < 3:
        c3(SRD_WD, q)
    if GU.freed >= 12 and wdn == 0:
        wd_space(L_S + 13 * 4096, 7)
        wd_space(LDS_TOTAL - 4096, 1)
        wdn = 7
    if GU.freed == 16 and wdn == 7:
        wd_space(L_S, 13)
        wdn = 20


def edf():
    def key(it):
        t = it[1]
        if t.startswith('y'):
            return min(int(t[1:]), QL) + 0.01 * int(t[1:])
        if t.startswith('p4w'):
            return min(int(t[3:]) // 2, QL) - args.lead / 10 + 0.001 * int(t[3:])
        if t.startswith('wd'):
            return 20 + int(t[2:])
        return args.gck
    if args.edf:
        A.bg.sort(key=key)


edf()
run(movers(2) + [rdf(n) for n in range(PF)])
issued[0] = PF
carry = []
for q in range(QL):
    end = FIDX[(q + 1, 0, 2 * SEG[q + 1][0])]
    main = carry
    cutt = 8 - args.late4
    for t in TORD[:cutt]:
        main = main + tile_items(q, t, end)
    main += [rdf(n) for n in range(issued[0], end)]
    issued[0] = end
    run(pack(main, movers() + wd_moves(min(2 * q - 2, WD.moved + args.wmq, args.wmax)), 0, -args.stop4))
    last = q == QL - 1
    A.wait_vm('y7' if last else f'y{q + 1}')
    gu_pre(16 if last else max(gu_done(), gu_est(), 2 * q + 4))
    wd_pre(max(wd_done(), wd_est()))
    A.wait_lg()
    e('s_barrier')
    gu_post()
    if q % 2:
        fine(f'd{(q + 1) // 2}')
    after_bar4(q)
    if q >= 4:
        wd_space(L_H2 + (q - 4) * 16384, 4)
    wd_post()
    edf()
    carry = []
    for t in TORD[cutt:]:
        carry += tile_items(q, t, len(frs))
    carry = interleave(carry, movers(16 if last else 2 * q + 4), 0)
run(carry)
pend = []
for p in range(4):
    main = tile_items(QL, 2 * p, len(frs)) + tile_items(QL, 2 * p + 1, len(frs))
    nm = sum(1 for it in main if it[0] == 'i' and it[1].startswith('v_mfma'))
    if p < 2:
        main = interleave(main, wd_moves(min(2 * QL, WD.moved + (args.wm0, args.wm1)[p], args.wmax)), 0)
    take = min(len(pend), (nm - 4) * args.gper // 2)
    run(pack(main, pend[:take], 4) if take else main)
    pend = pend[take:]
    if p == 3 or str(p) in args.tb:
        wd_pre(max(wd_done(), wd_est()))
        A.wait_lg()
        e('s_barrier')
        GU.pend = 16
        gu_post()
        after_bar4(7)
        if p == 3:
            q0 = max(QL, 4)
            wd_space(L_H2 + (q0 - 4) * 16384, 16 - 4 * (q0 - 4))
        wd_post()
    if p == args.gcut:
        A.bg_on = False
    if p < 3:
        for k in ([4 + p, p] if p < 2 else [p]):
            pend += glu(k, args.gper == 0)
assert wdn == 20
stamp('gemm4')
run(pend)
run(glu(3, True))
fine('hst')
A.bg_flush(args.b4)
assert not any(t == 'gp' and 'v11' in l[-1] for l, t in A.bg)
e(f"""v_lshrrev_b32 v11, 1, {V_G}
      v_lshlrev_b32 v11, 10, v11
      v_and_b32 v5, 1, {V_G}
      v_lshl_add_u32 v11, v5, 9, v11
      v_lshl_add_u32 v11, {V_C}, 4, v11""")
run(wd_moves(min(16, max(6, WD.moved + args.wmd))))
A.wait_lg()
publish_flag(192, 'hst')
WD.pend = wd_done()
wd_post()
e(poll_ld(192), tag='poll')
stamp('hpub')

A.bg_flush(args.b5)
run(wd_moves(min(NWB, WD.moved + args.wmp)))
poll_check(192)
stamp('hwait')
print('wd: queued', WD.queued, 'landed', WD.landed, 'moved', WD.moved, file=sys.stderr)
assert WD.queued == 43
HA, ACC5, NH = 80, 64, 16
hl = []
for ks in range(43):
    pre = [f's_add_u32 s28, {S_HLD}, {ks * 2048}'] if ks % 2 == 0 else []
    hl.append((pre + [f'buffer_load_dwordx4 {vr(HA + 4 * (ks % NH))}, v11, {SRD_WS}, s28 offen offset:{(ks % 2) * 2048} sc1'], f'h{ks}'))
A.bg_flush()
A.bg = hl[:NH]
run(interleave(wd_moves(NWB) or [('i', 's_nop 0')], [('f', lambda: A.bg_flush(1))] * 12, 0, 72, pred=lambda t: True))
A.bg_on = False
for ks in range(43):
    if WD.landed < 43 and (ks == args.kbar or WD.moved == WD.landed):
        A.wait_vm('wd42')
        e('s_barrier')
        WD.landed = 43
        fine('wdall')
    if WD.moved <= ks:
        run(wd_moves(ks + 2))
    n0 = len(A.ins)
    A.wait_vm(f'h{ks}')
    A.wait_lg(f't{ks}')
    if len(A.ins) == n0 + 2 and all(i.op == 's_waitcnt' for i in A.ins[n0:]):
        b_, a_ = A.ins.pop(), A.ins.pop()
        A._emit(a_.text + ' ' + b_.text.split(None, 1)[1], None, False)
    nxt = wd_moves(min(WD.moved + 1, ks + NWB + 1)) if (43 - WD.moved) * args.trsp >= (43 - ks - 6) * 10 or WD.moved - ks < 4 else []
    for ct in range(4):
        e(f'v_mfma_f32_16x16x32_bf16 {vr(ACC5 + 4 * ct)}, {wd_reg(ks, ct)}, {vr(HA + 4 * (ks % NH))}, {"0" if ks == 0 else vr(ACC5 + 4 * ct)}')
        if ct == 0:
            A.bg_flush(1)
        run(nxt[2 * ct:2 * ct + 2])
    if ks + NH < 43:
        A.bg.append(hl[ks + NH])
    if ks == 40:
        XF5 = 80
        for i in range(8):
            e(f'''v_lshlrev_b32 v{XF5 + 2 * i}, 16, v{X1P + i}
                  v_and_b32 v{XF5 + 2 * i + 1}, {S_HI}, v{X1P + i}''')
assert WD.moved == 43
A.bg_on = False
stamp('gemm5')
for b in range(0, 16, 2):
    e(f'v_pk_fma_f32 {vr(ACC5 + b, 2)}, {vr(ACC5 + b, 2)}, {vr(GB + b, 2)}, {vr(XF5 + b, 2)}')
for i in range(8):
    e(f'v_cvt_pk_bf16_f32 v{X1P + i}, v{ACC5 + 2 * i}, v{ACC5 + 2 * i + 1}')
for p in range(2):
    for d in range(2):
        e(f'v_permlane16_swap_b32 v{X1P + 4 * p + d}, v{X1P + 4 * p + 2 + d}')
for p in range(2):
    e(f'buffer_store_dwordx4 {vr(X1P + 4 * p)}, v{V_XO}, {SRD_OUT}, {S_XOFF} offen offset:{p * 64} {args.outm}')
if args.stamps:
    stamp('end')
    e(f'''s_lshl_b32 s12, s2, 2
          s_add_u32 s12, s12, {S_W}
          s_lshl_b32 s12, s12, 8
          s_add_u32 s12, s12, {WS_STAMP}
          v_lshlrev_b32 v4, 2, {V_LANE}
          buffer_store_dword {V_STAMP}, v4, {SRD_WS}, s12 offen''')
    if args.dbg >= 0:
        e(f'''s_lshl_b32 s12, s2, 2
              s_add_u32 s12, s12, {S_W}
              s_cmp_lg_u32 s12, {args.dbg * 4}
              s_cbranch_scc1 L_giveup
              s_load_dwordx2 s[14:15], s[0:1], 80
              v_readlane_b32 s12, {V_STAMP}, 0
              s_waitcnt lgkmcnt(0)
              v_subrev_u32 v5, s12, {V_STAMP}
              global_store_dword v4, v5, s[14:15]''')
if args.padph:
    i_, j_ = [stamp_names.index(n) for n in args.padph.split(',')]
    e(f'''v_readlane_b32 s12, {V_STAMP}, {j_}
          v_readlane_b32 s13, {V_STAMP}, {i_}
          v_readlane_b32 s16, {V_STAMP}, {stamp_names.index('end')}
          s_sub_u32 s12, s12, s13
          s_add_u32 s12, s12, s16''')
    if args.padx >= 0:
        e(f's_cmp_lg_u32 {S_XCC}, {args.padx}\n s_cbranch_scc1 L_giveup')
    A.label('L_pad2')
    e('''s_memrealtime s[14:15]
         s_waitcnt lgkmcnt(0)
         s_sub_u32 s13, s14, s12
         s_cmp_lt_i32 s13, 0
         s_cbranch_scc1 L_pad2''')
if args.padto:
    e(f'''v_readlane_b32 s12, {V_STAMP}, 0
          s_add_u32 s12, s12, {args.padto}''')
    A.label('L_pad')
    e('''s_memrealtime s[14:15]
         s_waitcnt lgkmcnt(0)
         s_sub_u32 s13, s14, s12
         s_cmp_lt_i32 s13, 0
         s_cbranch_scc1 L_pad''')
A.label('L_giveup')
e('s_endpgm')
assert not A.bg and not PIECES

nn = A.pad_hazards()
hdr = open(f'cdna_kernels/{NAME}.s.ref').read().split('; Override launch')[0]
wrap = lambda body: hdr + f'''; @launch grid=(256,1,1) block=(256,1,1) lds={LDS_TOTAL}
.amdgcn_target "amdgcn-amd-amdhsa--gfx950"
.text
.globl {NAME}_kernel
.p2align 8
.type {NAME}_kernel,@function
{NAME}_kernel:
''' + body + f'''.rept 256
    s_endpgm
.endr
L_codeend:
.section .rodata,"a"
.p2align 6
.amdhsa_kernel {NAME}_kernel
  .amdhsa_next_free_vgpr 512
  .amdhsa_next_free_sgpr 102
  .amdhsa_accum_offset 256
  .amdhsa_group_segment_fixed_size 0
  .amdhsa_kernarg_size 96
  .amdhsa_user_sgpr_count 2
  .amdhsa_user_sgpr_kernarg_segment_ptr 1
  .amdhsa_system_sgpr_workgroup_id_x 1
.end_amdhsa_kernel
'''
if args.align:
    print('align', align_pass(A, wrap, args.align), file=sys.stderr)
out = wrap(A.text())
if args.stamps or args.stop1:
    out += '; stamps: ' + ','.join(stamp_names) + '\n'
open(args.o, 'w').write(out)
if args.vlog:
    ev = sorted([(t, 'S', n) for n, t in model] + [(t, 'V', f'{tag}->{c}') for t, c, tag in A.log])
    print(' '.join((f'\n=={n}@{int(t)}==' if k == 'S' else f'{int(t)}:{n}') for t, k, n in ev), file=sys.stderr)
print('nvm', len(A.log), file=sys.stderr)
print('model: ' + ' '.join(f'{n}:{int(t)}' for n, t in model), file=sys.stderr)
print(f'wrote {args.o}: {len(A.ins)} instructions, {nn} hazard nops', file=sys.stderr)
```

```python
import sys, argparse
from contextlib import contextmanager
from asmlib import Asm, align_pass

NAME = "adaLN_cond__sliding_local_dilated__glu_gated_glu__prompt"
ap = argparse.ArgumentParser()
ap.add_argument('-o', default=f'cdna_kernels/{NAME}.s')
ap.add_argument('--stamps', action='store_true')
ap.add_argument('--cyc', action='store_true')
ap.add_argument('--fine', action='store_true')
ap.add_argument('--slow', action='store_true')
ap.add_argument('--x', default='')
ap.add_argument('--vlog', action='store_true')
ap.add_argument('--align', type=int, default=999)
ap.add_argument('--stop1', action='store_true')
ap.add_argument('--outm', default='nt')
ap.add_argument('--plan', default='3220000')
ap.add_argument('--tb', default='0')
ap.add_argument('--padph', default='')
ap.add_argument('--g1', default='')
ap.add_argument('--plan3', default='0000000')
ap.add_argument('--touch', action='store_true')
ap.add_argument('--s1', action='store_true')
for k, d in dict(gapa=64, gapaware=1, c3=1, olds=1, xrj=0, fat=6, w64=0, padx=-1, wmq=2, wmax=6, wmd=5, wmp=5, stop4=7, edf=1, lead=5, gck=5, pf4=8, late4=3, wm0=4, wm1=2, apk=1, padto=0, dbg=-1, otlb=0, jit1=0, trsp=99, w0=0, w1=0, pg=2, zero=1, pfx=0, pfy=0, pfz=0, x0=2, bpos=8, h2o=1, ot=0, ht=0, gpl=1800, acut=70, gap0=64, gap1=64, gap4=84, gap5=64, s0=4, pfe2=3, pf0=4, b1=9, b1d=0, b2a=4, b2c=8, b2d=3, y0=2, slack=0, b1c=10, b2=4, b2b=4, b3=12, b4=8, win=11, gcut=3, tailq=2, gper=3, b5=6, hfirst=0, kbar=8, lat0=2900).items():
    ap.add_argument('--' + k, type=int, default=d)
args = ap.parse_args()
args.wt = not args.touch

A = Asm()
e = A.e
A.win = args.win
A.lat = {'xpf': (args.lat0, 2.5), 'x': (650, 1), 'gp': (args.gpl, .4), 'mx': (1100, .3), 'gc': (1250, .5), 'gq': (1800, 1.5), 'mtb': (1500, .8), 'mt': (1800, .8), 'ost': (400 if args.ot else 800, .1), 'xst': (400 if args.h2o else 800, .1),
         'hst': (400 if args.ht else 800, .1), 'poll': (650, .1), 'xr': (800, 1), '': (400, .1), 'p4w': (1100, 1.35), 'stt': (1400, .25), 'st': (650, 1), 'sst': (400, .1), 'mg': (1100, .25),
         'm': (1100, 1), 'o': (650 if args.ot else 1100, 1), 'y': (650 if args.h2o else 1100, 1), 'h': (650 if args.ht else 1100, 1), 'tch': (1600, 1)}
model = []

WS_O = 0x30000
WS_X1 = 0x50000
WS_STATS = 0x70000
WS_HH = 0x80000
HH_PITCH = 0x2C000
WS_GRP = 0xF0000
WS_MODP = 0xE0000
WS_EPOCH = 0xEF000
WS_STAMP = 0x1000000
WS_SIZE = 0x1100000 if args.stamps else 0x1000000

L_STATS, L_RED, L_MODV, L_GAGB = 0x0, 0xA00, 0x1000, 0x2000
L_HRING = 0x3000
L_B = [0x3000, 0xF000, 0x1B000, 0xF000]
L_WO = 0x17000
L_H2 = 0x17000
BLK, MAT1 = 12416, 6176
L_S = 0x3000
L_XR = 0xD000
L_WD = 0x3000
LDS_TOTAL = 163840

S_W, S_RB, S_M, S_J, S_TAG, S_FAST, S_XCC = 's4', 's5', 's6', 's7', 's8', 's9', 's11'
SRD_X, SRD_WQKV, SRD_WO, SRD_WG, SRD_WU, SRD_WD, SRD_WMOD, SRD_OUT, SRD_WS, SRD_C = [
    f's[{b}:{b + 3}]' for b in range(40, 80, 4)]
S_GRP, S_ONES, S_HI, S_SPIN = 's84', 's85', 's86', 's87'
S_XOFF, S_NU, S_U0, S_COL = 's88', 's89', 's90', 's91'
SRD_GU = 's[92:95]'
S_MM4, S_GUM, S_H2M = 's80', 's81', 's39'
S_OST, S_X1ST, S_HST, S_STST = 's96', 's97', 's98', 's99'
S_HST2 = 's83'
S_W3K, S_M128, S_BT, S_W1K = 's20', 's21', 's22', 's23'
S_OLD, S_X1LD, S_STLD, S_HLD = 's35', 's36', 's37', 's38'
V_LANE, V_L16, V_G, V_C = 'v0', 'v1', 'v2', 'v3'
V_DUM, V_STAMP = 'v10', 'v15'
V_WOD, V_P4D, V_OST, V_XO, V_WDD, V_GB = 56, 57, 60, 61, 62, 63
PD = 'v[116:119]'


def vr(b, n=4):
    return f'v[{b}:{b + n - 1}]'


def ar(b, n=4):
    return f'a[{b}:{b + n - 1}]'


@contextmanager
def nobg():
    old = A.bg_on
    A.bg_on = False
    yield
    A.bg_on = old


nstamp = [0]
stamp_names = []


def stamp(name=''):
    model.append((name, A.t))
    if not args.stamps:
        return
    with nobg():
        e('s_memtime s[100:101]' if args.cyc else 's_memrealtime s[100:101]')
        stamp_names.append(name)
        A.wait_lg()
        e(f'v_writelane_b32 {V_STAMP}, s100, {nstamp[0]}')
    nstamp[0] += 1


def fine(name):
    if args.fine:
        stamp(name)


def lines(t):
    return [('i', l.split(';')[0].strip()) for l in t.split('\n') if l.split(';')[0].strip()]


def run(items):
    for it in items:
        if it[0] == 'i':
            e(it[1], tag=it[2] if len(it) > 2 else None)
        elif it[0] == 'wl':
            A.wait_lg(it[1])
        elif it[0] == 'wv':
            A.wait_vm(it[1])
        elif it[0] == 'f':
            it[1]()
        else:
            raise ValueError(it)


def is_mem(it):
    return it[0] == 'f' or (it[0] == 'i' and it[1].startswith(('ds_', 'buffer_')))


def is_valu(it):
    return it[0] == 'i' and it[1].startswith('v_') and not it[1].startswith('v_mfma')


def interleave(main, fill, start=0, end=None, pred=lambda t: t.startswith('v_mfma')):
    slots = [i for i, it in enumerate(main) if it[0] == 'i' and pred(it[1])]
    slots = slots[start:end]
    sset = {i: k for k, i in enumerate(slots)}
    out = []
    n = len(slots)
    done = 0
    i = 0
    while i < len(main):
        out.append(main[i])
        if i in sset:
            k = sset[i] + 1
            while i + 1 < len(main) and is_mem(main[i + 1]) and (i + 1) not in sset:
                i += 1
                out.append(main[i])
            upto = (len(fill) * k + n - 1) // n
            valu = False
            while done < upto:
                it = fill[done]
                if is_mem(it) and valu and k < n and args.gapaware:
                    break
                valu = valu or is_valu(it)
                out.append(it)
                done += 1
        i += 1
    out.extend(fill[done:])
    return out


def cost(it):
    if it[0] != 'i':
        return 1
    if it[1].startswith('ds_write_b128'):
        return 3
    if it[1].startswith('ds_write_b64'):
        return 2
    if it[1].startswith(('v_exp', 'v_rcp', 'v_rsq')):
        return 2
    return 1


def pack(main, fill, start=0, end=None):
    gaps = []
    idx = [i for i, it in enumerate(main) if it[0] == 'i' and it[1].startswith('v_mfma')]
    for a, i in enumerate(idx):
        nxt = idx[a + 1] if a + 1 < len(idx) else len(main)
        j = i
        while j + 1 < nxt and is_mem(main[j + 1]):
            j += 1
        gaps.append((j, sum(cost(x) for x in main[i + 1:nxt])))
    gaps = gaps[start:end]
    total = sum(cost(x) for x in fill) + sum(c for _, c in gaps)
    at = {}
    done = 0
    acc = 0.0
    per = total / len(gaps)
    for k, (j, c) in enumerate(gaps):
        acc += per - c
        lst = []
        valu = False
        while done < len(fill) and (acc >= cost(fill[done]) - 0.5 or k == len(gaps) - 1):
            it = fill[done]
            if is_mem(it) and valu and k < len(gaps) - 1:
                break
            valu = valu or is_valu(it)
            lst.append(it)
            acc -= cost(it)
            done += 1
        at[j] = lst
    out = []
    for i, it in enumerate(main):
        out.append(it)
        out.extend(at.get(i, []))
    return out


def spin_fail(lbl_loop):
    e(f'''s_sub_u32 {S_SPIN}, {S_SPIN}, 1
          s_cmp_eq_u32 {S_SPIN}, 0
          s_cbranch_scc1 L_giveup
          s_branch {lbl_loop}''')


def checked(tag, loads, check):
    A.wait_vm(tag)
    with nobg():
        lc, lp, ld = A.newlabel('L_c'), A.newlabel('L_p'), A.newlabel('L_d')
        save = (list(A.vm), list(A.done), A.t, A.t_vm, list(A.log))
        e(f's_branch {lc}')
        A.label(lp)
        for l in loads:
            e(l)
        A.wait_vm()
        A.vm, A.done, A.t, A.t_vm, A.log = save
        A.label(lc)
        check()
        e(f's_cbranch_vccz {ld}')
        spin_fail(lp)
        A.label(ld)


def stores(lst, tag, optional=False, plain=False):
    with nobg():
        if not plain:
            for t in lst:
                e(t + ' sc1', tag=tag, optional=optional)
            return
        l1, l2 = A.newlabel('L_st'), A.newlabel('L_st')
        e(f"""s_cmp_lg_u32 {S_FAST}, 0
              s_cbranch_scc1 {l1}""")
        save = (list(A.vm), list(A.done), A.t, A.t_vm, list(A.log))
        for t in lst:
            e(t + ' sc1')
        e(f's_branch {l2}')
        A.vm, A.done, A.t, A.t_vm, A.log = save
        A.label(l1)
        for t in lst:
            e(t, tag=tag, optional=optional)
        A.label(l2)


def touch(pre, va, so, off=0, dst=None):
    dst = dst or PD
    if True:
        A.bg_add(pre + [f'buffer_load_dwordx4 {dst}, {va}, {SRD_WS}, {so} offen offset:{off} sc1'], 'tch')


def publish_flag(off, tag):
    with nobg():
        e(f'''s_add_u32 s12, {S_MM4}, {S_GRP}
              v_mov_b32 v5, {S_TAG}''')
        if off == 64:
            e(f'''s_and_b32 s13, {S_MM4}, 32
                  v_and_b32 v9, 7, {V_LANE}
                  v_lshl_add_u32 v9, v9, 2, s13''')
        else:
            e(f'v_lshlrev_b32 v9, 2, {V_C}')
        A.wait_vm(tag)
        e('s_barrier')
        l1, l2 = A.newlabel('L_pf'), A.newlabel('L_pf')
        e(f'''s_cmp_lg_u32 {S_W}, 0
              s_cbranch_scc1 {l2}
              s_mov_b64 exec, 1
              s_cmp_lg_u32 {S_FAST}, 0
              s_cbranch_scc1 {l1}''')
        e(f'buffer_store_dword v5, off, {SRD_WS}, s12 offset:{off} sc1', optional=True)
        e(f'''s_mov_b64 exec, -1
              s_branch {l2}''')
        A.label(l1)
        e(f'buffer_store_dword v5, off, {SRD_WS}, s12 offset:{off}', optional=True)
        e('s_mov_b64 exec, -1')
        A.label(l2)


def poll_ld(off):
    return f'buffer_load_dword v8, v9, {SRD_WS}, {S_GRP} offen offset:{off} sc1'


def poll_check(off):
    with nobg():
        checked('poll', [poll_ld(off)], lambda: e(f'v_cmp_ne_u32 vcc, {S_TAG}, v8'))


def st_loads(t0):
    return [f'buffer_load_dwordx4 {vr(t0 + 4 * p)}, {V_L16}, {SRD_WS}, {S_STLD} offen offset:{p * 1024} sc1' for p in range(2)]


def mod_loads(va, t0):
    return [f'buffer_load_dwordx4 {vr(t0 + 4 * p)}, {va}, {SRD_WS}, s{24 + p} offen sc1' for p in range(4)]


def mod_check(va, t0, tag, lds_v, addone_v):
    def chk():
        e(f's_and_b32 s13, {S_TAG}, 0xff')
        for i in range(16):
            e(f'v_xor_b32 v{t0 + i}, s13, v{t0 + i}')
        e(f'v_or3_b32 v5, v{t0}, v{t0 + 1}, v{t0 + 2}')
        e(f'v_or3_b32 v6, v{t0 + 3}, v{t0 + 4}, v{t0 + 5}')
        for i in range(6, 14, 4):
            e(f'v_or3_b32 v5, v5, v{t0 + i}, v{t0 + i + 1}')
            e(f'v_or3_b32 v6, v6, v{t0 + i + 2}, v{t0 + i + 3}')
        e(f'v_or3_b32 v5, v5, v{t0 + 14}, v{t0 + 15}')
        e(f'''v_or_b32 v5, v5, v6
              v_and_b32 v5, 0xff, v5
              v_cmp_ne_u32 vcc, 0, v5''')
    checked(tag, mod_loads(va, t0), chk)
    for i in range(0, 4, 2):
        e(f'v_pk_add_f32 {vr(t0 + i, 2)}, {vr(t0 + i, 2)}, {vr(t0 + 4 + i, 2)}')
        e(f'v_pk_add_f32 {vr(t0 + 8 + i, 2)}, {vr(t0 + 8 + i, 2)}, {vr(t0 + 12 + i, 2)}')
    for i in range(0, 4, 2):
        e(f'v_pk_add_f32 {vr(t0 + i, 2)}, {vr(t0 + i, 2)}, {vr(t0 + 8 + i, 2)}')
    for rnd in range(2):
        e(f'v_cvt_pk_bf16_f32 v5, v{t0}, v{t0 + 1}')
        e(f'v_cvt_pk_bf16_f32 v6, v{t0 + 2}, v{t0 + 3}')
        e(f'v_lshlrev_b32 v{t0}, 16, v5')
        e(f'v_and_b32 v{t0 + 1}, {S_HI}, v5')
        e(f'v_lshlrev_b32 v{t0 + 2}, 16, v6')
        e(f'v_and_b32 v{t0 + 3}, {S_HI}, v6')
        if rnd == 0:
            if addone_v is None:
                break
            for i in range(4):
                e(f'v_add_f32 v{t0 + i}, v{t0 + i}, {addone_v}')
    e(f'ds_write_b128 {lds_v}, {vr(t0)}', tag='modw')


def mod_task_loads(base, cond, tag, rr=vr, va='v74', vc='v75'):
    l = A.newlabel('L_ml')
    with nobg():
        e(cond + f'\n s_cbranch_scc0 {l}')
        e(f'buffer_load_dwordx2 {rr(base + 16, 2)}, {vc}, {SRD_C}, s33 offen', tag=tag, optional=True)
        for i in range(4):
            e(f'buffer_load_dwordx4 {rr(base + 4 * i)}, {va}, {SRD_WMOD}, s{29 + i} offen', tag=tag, optional=True)
        A.label(l)


def mod_part1(base, t, ad, from_a=None, c0=None, fma=False):
    x = ''
    c0 = c0 or base + 16
    if from_a is not None:
        for i in range(18):
            x += f'v_accvgpr_read_b32 v{base + i if i < 16 else c0 + i - 16}, a{from_a + i}\n'
    x += f"""v_lshlrev_b32 v{t + 8}, 16, v{c0}
          v_and_b32 v{t + 9}, {S_HI}, v{c0}
          v_lshlrev_b32 v{t + 10}, 16, v{c0 + 1}
          v_and_b32 v{t + 11}, {S_HI}, v{c0 + 1}
          """
    for op in ('v_mul_f32 v{a}, 0xbfb8aa3b, v{b}', 'v_exp_f32 v{a}, v{a}', 'v_add_f32 v{a}, 1.0, v{a}', 'v_rcp_f32 v{a}, v{a}', 'v_mul_f32 v{b}, v{b}, v{a}'):
        for i in range(4):
            x += op.format(a=t + 12 + i, b=t + 8 + i) + '\n'
    MA = t + 8
    if fma:
        for i in range(4):
            x += f'v_cvt_pk_bf16_f32 v{t + i}, 0, v{t + 8 + i}\n'
        for i in range(4):
            for d in range(4):
                x += f'v_lshlrev_b32 v{t + 4}, 16, v{base + 4 * i + d}\n v_and_b32 v{t + 5}, {S_HI}, v{base + 4 * i + d}\n'
                for h in range(2):
                    if i == 0:
                        x += f'v_mul_f32 v{MA + 2 * d + h}, v{t + 4 + h}, v{t + i}\n'
                    else:
                        x += f'v_fma_f32 v{MA + 2 * d + h}, v{t + 4 + h}, v{t + i}, v{MA + 2 * d + h}\n'
    else:
        for i in range(4):
            x += f'v_cvt_pk_bf16_f32 v{t + i}, v{t + 8 + i}, 0\n'
            x += f'v_cvt_pk_bf16_f32 v{t + 4 + i}, 0, v{t + 8 + i}\n'
        for i in range(4):
            for d in range(4):
                for h in range(2):
                    src2 = '0' if i == 0 else f'v{MA + 2 * d + h}'
                    x += f'v_dot2_f32_bf16 v{MA + 2 * d + h}, v{base + 4 * i + d}, v{t + 4 * h + i}, {src2}\n'
    x += f"""v_and_b32 v{ad}, 7, {V_LANE}
          v_lshlrev_b32 v{ad}, 5, v{ad}
          v_and_b32 v{ad + 1}, 1, {V_G}
          v_lshl_add_u32 v{ad}, v{ad + 1}, 3, v{ad}
          """
    for p in range(4):
        x += f'v_permlane32_swap_b32 v{MA + 2 * p}, v{MA + 2 * p + 1}\n'
    for p in range(4):
        x += f'v_add_f32 v{MA + 2 * p}, v{MA + 2 * p}, v{MA + 2 * p + 1}\n'
    x += f"""v_lshrrev_b32 v{ad + 1}, 1, {V_G}
          v_lshl_add_u32 v{ad}, v{ad + 1}, 2, v{ad}
          """
    for p in range(2):
        x += f'v_permlane16_swap_b32 v{MA + 4 * p}, v{MA + 4 * p + 2}\n'
    for p in range(2):
        x += f'v_add_f32 v{MA + 4 * p}, v{MA + 4 * p}, v{MA + 4 * p + 2}\n'
    x += f"""s_lshl_b32 s28, {S_W}, 8
          v_add_u32 v{ad}, s28, v{ad}
          """
    for p in range(2):
        x += f'v_add_f32_dpp v{MA + 4 * p + 1}, v{MA + 4 * p}, v{MA + 4 * p} row_ror:8 row_mask:0xf bank_mask:0xf\n'
    x += f'ds_write_b32 v{ad}, v{MA + 1} offset:{L_RED}\n'
    x += f'ds_write_b32 v{ad}, v{MA + 5} offset:{L_RED + 16}\n'
    return lines(x)


def mod_part2(base, lm, wave):
    e(f"""s_cmp_lg_u32 {S_W}, {wave}
          s_cbranch_scc1 {lm}
          v_lshlrev_b32 v4, 4, {V_C}""")
    for w in range(4):
        e(f'ds_read_b128 {vr(base + 4 * w)}, v4 offset:{L_RED + w * 256}')
    e(f"""s_and_b32 s13, {S_TAG}, 0xff
          s_mov_b32 s14, 0xffffff00
          v_mov_b32 v5, s13
          s_and_b32 s12, s3, 3
          s_mul_i32 s12, s12, 12288
          s_lshr_b32 s13, s3, 2
          s_lshl_b32 s13, s13, 8
          s_add_u32 s12, s12, s13
          s_add_u32 s12, s12, {WS_MODP}""")
    e('s_waitcnt lgkmcnt(0)')
    for i in range(0, 4, 2):
        e(f'v_pk_add_f32 {vr(base + i, 2)}, {vr(base + i, 2)}, {vr(base + 4 + i, 2)}')
        e(f'v_pk_add_f32 {vr(base + 8 + i, 2)}, {vr(base + 8 + i, 2)}, {vr(base + 12 + i, 2)}')
    for i in range(0, 4, 2):
        e(f'v_pk_add_f32 {vr(base + i, 2)}, {vr(base + i, 2)}, {vr(base + 8 + i, 2)}')
    for i in range(4):
        e(f'v_and_or_b32 v{base + i}, v{base + i}, s14, v5')
    e('s_mov_b64 exec, 0xffff')
    e(f'buffer_store_dwordx4 {vr(base)}, v4, {SRD_WS}, s12 offen sc1', optional=True)
    e('s_mov_b64 exec, -1')
    e('s_nop 0')


def dma_wqkv(j):
    for pos in range(4):
        ks = 4 * pos + j
        for mat in range(3):
            pre = [f's_add_u32 m0, {S_W3K}, {L_B[j] + pos * 12288}', f's_add_u32 {S_BT}, {S_M128}, {ks * 32 * 3072}'] if mat == 0 else []
            A.bg_add(pre + [f'buffer_load_dwordx4 v8, {SRD_WQKV}, {S_BT} offen offset:{mat * 1024} lds'], f'wq{j}')


def tr_wqkv(j):
    it = [('i', f'v_add_u32 v9, {(L_B[j] - L_B[j - 1]) & 0xffffffff}, v9')] if j else []
    return it + [('i', f'ds_read_b64_tr_b16 {ar(((j * 4 + pos) * 3 + mat) * 4 + hf * 2, 2)}, v9 offset:{pos * 12288 + mat * 1024 + hf * 512}', f'trq{j}_{pos}')
                 for pos in range(4) for mat in range(3) for hf in range(2)]


def dma_1k(srd, vreg, ks, ldsaddr, tag):
    A.bg_add([f's_add_u32 m0, {S_W1K}, {ldsaddr}', f's_add_u32 {S_BT}, {S_M128}, {ks * 32768}',
              f'buffer_load_dwordx4 v{vreg}, {srd}, {S_BT} offen lds'], tag)


def dma_p4(n):
    for i in range(3):
        A.bg_add([f's_add_u32 m0, {S_GUM}, {(n % 6) * BLK + i * 1024}', f's_add_u32 {S_BT}, {S_COL}, {n * 32 * 2752}',
                  f'buffer_load_dwordx4 v{V_P4D + i}, {SRD_GU}, {S_BT} offen lds'], f'p4w{n}')


class GU:
    queued = 0
    landed = 0
    moved = 0
    freed = 0


def gu_queue():
    while GU.queued < 16 and GU.queued < GU.freed + 6:
        dma_p4(GU.queued)
        GU.queued += 1


def gu_pre(upto):
    upto = max(upto, GU.landed)
    assert upto <= GU.queued
    if upto > GU.landed:
        A.wait_vm(f'p4w{upto - 1}')
    GU.pend = upto


def gu_post(lg_waited=True):
    GU.landed = GU.pend
    if lg_waited:
        GU.freed = GU.moved
    gu_queue()


def gu_done():
    live = {t for t, o in A.vm} | {t for l, t in A.bg}
    n = 0
    while n < GU.queued and f'p4w{n}' not in live:
        n += 1
    return n


def mover(n):
    return [('i', f'ds_read_b64_tr_b16 {ar(16 * n + 8 * i + 4 * mat + 2 * hf, 2)}, v{20 + i + 2 * ((n % 6) // 3)} offset:{(n % 3) * BLK + mat * MAT1 + hf * 16 * 192}', f'mv{n}')
            for i in range(2) for mat in range(2) for hf in range(2)]


def movers(limit=16):
    it = []
    while GU.moved < min(GU.landed, limit):
        it += mover(GU.moved)
        GU.moved += 1
    return it


def front(f):
    rest = list(A.bg)
    A.bg = []
    f()
    A.bg += rest


def c3(srd, piece):
    if args.c3:
        lo = srd[2:srd.index(':')]
        A.bg_add([f's_sub_u32 {S_BT}, 0x180, s{lo}', f's_and_b32 {S_BT}, {S_BT}, 0x380', f's_add_u32 {S_BT}, {S_BT}, {piece * 524288}',
                  f'buffer_load_dword {V_DUM}, {C3[0]}, {srd}, {S_BT} offen'], 'gc')


C3 = ['v55']


def gpf(srd, base):
    A.bg_add([f's_mov_b32 {S_BT}, {base}', f'buffer_load_dword {V_DUM}, v11, {srd}, {S_BT} offen'], 'gp')


Q = 128 * 2752
PIECES = [[(SRD_WO, 0), (SRD_WO, 393216)]] + [[(SRD_WG, q * Q), (SRD_WU, q * Q)] for q in range(4)] + \
         [[(SRD_WD, 0), (SRD_WD, 393216)], [(SRD_WD, 2 * 393216), (SRD_WD, 3 * 393216)]]


if args.fat:
    NL = args.fat
    PIECES = [[(srd, k * NL * 131072)] for srd, n in ((SRD_WO, 4), (SRD_WG, 11), (SRD_WU, 11), (SRD_WD, 11)) for k in range(-(-n // NL))]
    if NL < 11:
        g = [p for p in PIECES if p[0][0] == SRD_WG]; u = [p for p in PIECES if p[0][0] == SRD_WU]
        PIECES = PIECES[:1] + [x for ab in zip(g, u) for x in ab] + [p for p in PIECES if p[0][0] == SRD_WD]
    A.lat['gp'] = (args.gpl, NL / 8)
PLAN = [int(c) for c in args.plan]


def pieces(point):
    for k in range(PLAN[point]):
        for p in PIECES.pop(0):
            gpf(*p)
    for k in range(int(args.plan3[point])):
        c3(SRD_WG, C3N[0])
        c3(SRD_WU, C3N[0])
        C3N[0] += 1


C3N = [0]


def bg_mix(every, first=0):
    old = A.bg
    A.bg = []
    k = first
    for it in old:
        if len(it[0]) > 1 and k >= every and PIECES:
            for p in PIECES.pop(0):
                gpf(*p)
            k = 0
        A.bg.append(it)
        k += 1


XRES, GAL, TRB = 88, 136, 84
MK, ONE = 168, 184


L_MASK, L_TRB = 0x27000, 0x2800


def tr_bases_t(dst, rowt, ft, ldsbase):
    t = f'''v_bfe_u32 v40, {V_LANE}, 2, 2
          v_and_b32 v41, 3, {V_LANE}
          {rowt}
          {ft}
          v_lshlrev_b32 v42, 7, v42
          v_and_b32 v40, 1, v41
          v_lshl_add_u32 v42, v40, 3, v42
          v_add_u32 v42, {ldsbase}, v42
          v_lshrrev_b32 v41, 1, v41
          '''
    for ct in range(4):
        t += f'''v_add_u32 v40, {2 * ct}, v41
              v_xor_b32 v40, v40, v43
              v_lshl_add_u32 v{dst + ct}, v40, 4, v42
              '''
    return t


def late_items():
    t = f"""v_lshlrev_b32 v80, 4, {V_C}
          v_lshl_add_u32 v80, {V_G}, 11, v80
          s_lshl_b32 s12, {S_M}, 8
          s_add_u32 s12, s12, {1024 * 4}
          v_add_u32 v80, s12, v80
          v_mov_b32 v81, v55
          s_add_u32 s12, {S_W1K}, {L_MODV}
          v_add_u32 v82, s12, {V_L16}
          v_cmp_eq_u32 vcc, 2, {V_G}
          v_mov_b32 v83, 0
          s_nop 0
          v_cndmask_b32 v83, v83, 1.0, vcc
          """
    t += tr_bases_t(TRB, f'v_lshl_add_u32 v42, {V_G}, 3, v40',
                    f'v_and_b32 v43, 2, v40\n v_and_b32 v44, 1, {V_G}\n v_lshl_add_u32 v43, v44, 2, v43', L_WO)
    return lines(t)


def mask_items():
    t = f'''s_sub_u32 s13, {S_RB}, 1
            s_lshr_b32 s13, s13, 31
            s_lshl_b32 s13, s13, 6
            s_mov_b32 s12, 0xf149f2ca
            v_lshlrev_b32 v40, 2, {V_G}
            v_mov_b32 v42, s12
         '''
    for r in range(4):
        t += f'''v_add_u32 v41, {r}, v40
          v_sub_u32 v43, {V_C}, v41
          v_cmp_gt_u32 vcc, 8, v43
          v_cmp_ge_i32 s[14:15], -9, v43
          v_add_u32 v43, s13, v43
          v_cndmask_b32 v{MK + r}, v42, 0, vcc
          v_cndmask_b32 v{MK + 4 + r}, v42, 0, s[14:15]
          v_cmp_ge_i32 vcc, -9, v43
          v_cmp_gt_i32 s[14:15], 0, v43
          v_cmp_lt_u32 s[18:19], 7, v41
          v_cndmask_b32 v{MK + 12 + r}, v42, 0, vcc
          v_cndmask_b32 v{MK + 8 + r}, v42, 0, s[14:15]
          v_cndmask_b32 v{MK + 8 + r}, v{MK + 8 + r}, v42, s[18:19]
          '''
    return lines(t)


srds = [(40, 0, 2048 * 1024), (64, 64, 512 * 6144), (76, 56, 1024), (44, 8, 512 * 3072), (72, 88, WS_SIZE), (48, 16, 512 * 1024),
        (52, 32, 512 * 2752), (56, 40, 512 * 2752), (60, 48, 1376 * 1024), (68, 72, 2048 * 1024)]
MW, XN, XRAW = 16, 80, 160
e(f"""s_cmp_ge_u32 s2, 256
      s_cbranch_scc1 L_giveup
      {'s_memtime s[100:101]' if args.cyc else 's_memrealtime s[100:101]' if args.stamps else ''}""")
for (d, off, sz) in srds[:5]:
    e(f's_load_dwordx2 s[{d}:{d + 1}], s[0:1], {off}')
e(f"""v_lshrrev_b32 v2, 6, v0
      v_and_b32 v0, 63, v0
      v_readfirstlane_b32 {S_W}, v2
      s_lshr_b32 {S_J}, s2, 3
      s_and_b32 s3, s2, 7
      s_lshr_b32 s10, {S_J}, 3
      s_lshl_b32 {S_RB}, s3, 2
      s_add_u32 {S_RB}, {S_RB}, s10
      s_and_b32 {S_M}, {S_J}, 7
      s_lshl_b32 s12, {S_M}, 2
      s_add_u32 s12, s12, {S_W}
      s_mul_i32 s12, s12, 20
      s_lshl_b32 s13, {S_RB}, 9
      s_add_u32 s12, s12, s13
      s_addk_i32 s12, -128
      v_add_lshl_u32 v7, s12, {V_LANE}, 7
      v_cmp_gt_u32 vcc, 20, {V_LANE}
      v_bfrev_b32 v6, -2
      s_mov_b32 s34, 0x20000
      s_mov_b32 s42, {2048 * 1024}
      v_cndmask_b32 v14, v6, v7, vcc
      s_mov_b32 s43, s34
      s_getpc_b64 s[14:15]
      v_lshlrev_b32 {V_L16}, 4, {V_LANE}
      s_lshl_b32 s12, {S_J}, 2
      s_add_u32 s12, s12, {S_W}
      s_and_b32 s12, s12, 63
      s_min_u32 s12, s12, (L_codeend-{NAME}_kernel)/1024-1
      s_lshl_b32 s12, s12, 10
      s_and_b32 s14, s14, 0xffffff00
      v_add_u32 v4, s12, {V_L16}""")
e(f'global_load_dwordx4 a[244:247], v4, s[14:15]')
A.wait_lg()
A.t = 1100
e(f'buffer_load_dword {V_DUM}, v14, {SRD_X}, 0 offen', tag='xpf')
if args.stamps:
    e(f'v_mov_b32 {V_STAMP}, 0')
    e(f'v_writelane_b32 {V_STAMP}, s100, 0')
    stamp_names.append('entry'); nstamp[0] += 1
e(f's_load_dword s8, s[72:73], {WS_EPOCH}')
for (d, off, sz) in srds[5:]:
    e(f's_load_dwordx2 s[{d}:{d + 1}], s[0:1], {off}')
for (d, off, sz) in srds[1:4]:
    e(f"""s_mov_b32 s{d + 2}, {sz}
          s_mov_b32 s{d + 3}, s34""")
e(f"""s_and_b32 s10, {S_J}, 3
      s_lshr_b32 s12, {S_J}, 2
      s_lshl_b32 s13, s12, 1
      s_add_u32 s13, s13, s10
      s_add_u32 s13, s13, 7
      s_cmp_eq_u32 s10, 0
      s_cselect_b32 s12, s12, s13
      s_lshl_b32 s12, s12, 3
      s_add_u32 s3, s3, s12
      s_lshl_b32 s12, {S_W}, 3
      v_lshrrev_b32 v76, 3, {V_LANE}
      v_add_u32 v76, s12, v76
      v_and_b32 v77, 7, {V_LANE}
      v_lshlrev_b32 v75, 3, v76
      v_mul_u32_u24 v74, {4 * 6144}, v76
      v_lshl_add_u32 v74, v77, 4, v74
      s_and_b32 s13, s3, 3
      s_lshr_b32 s14, s3, 2
      s_mul_i32 s29, s13, {128 * 6144}
      s_lshl_b32 s30, s14, 7
      s_add_u32 s29, s29, s30
      s_lshl_b32 s33, s13, 8
      s_add_u32 s30, s29, 6144
      s_add_u32 s31, s29, {2 * 6144}
      s_add_u32 s32, s29, {3 * 6144}""")
COND_A = 's_cmp_eq_u32 s10, 0'
COND_B = 's_sub_u32 s12, s10, 1\n s_cmp_lt_u32 s12, 2'
mod_task_loads(MW, COND_A, 'mt')
e(f"""s_lshl_b32 s15, s2, 2
      s_add_u32 s15, s15, {S_W}
      s_mul_i32 s12, s15, 12
      v_add_lshl_u32 v7, s12, {V_LANE}, 7
      v_cmp_gt_u32 vcc, 12, {V_LANE}
      v_lshrrev_b32 v12, 2, {V_LANE}        ; c4   (x lane map: c4 = l/4, g4 = l%4)
      v_and_b32 v13, 3, {V_LANE}            ; g4
      v_cndmask_b32 v54, v6, v7, vcc
      s_lshl_b32 s12, {S_J}, 2
      s_add_u32 s12, s12, {S_W}
      s_lshl_b32 s12, s12, 2
      v_add_lshl_u32 v7, s12, {V_LANE}, 10
      v_cmp_gt_u32 vcc, 4, {V_LANE}
      s_nop 1
      v_cndmask_b32 v55, v6, v7, vcc
      v_lshlrev_b32 v4, 11, v12
      v_lshl_add_u32 v4, v13, 4, v4
      s_lshl_b32 s16, {S_RB}, 16
      s_lshl_b32 s17, {S_W}, 8
      s_add_u32 s16, s16, s17
      s_add_u32 s18, s16, 32768""")


def xload(T, j, bg=False):
    q = 5 * j + T
    if T < 4:
        l = f'buffer_load_dwordx4 {vr(XN + 8 * q + 4)}, v4, {SRD_X}, {"s16" if T < 2 else "s18"} offen offset:{(T % 2) * 1024 + j * 64}'
    else:
        l = f'buffer_load_dwordx4 {vr(XN + 8 * q + 4)}, v5, {SRD_X}, s17 offen offset:{j * 64}'
    if bg:
        A.bg_add([l], f'x{T}')
    else:
        e(l, tag=f'x{T}')


def issue_gq(pos):
    if pos == args.pg:
        e(f'buffer_load_dword {V_DUM}, v54, {SRD_WQKV}, 0 offen', tag='gq')
        for k in range(3):
            c3(SRD_WQKV, k)
        A.bg_flush()


issue_gq(0)
e(f"""      v_bfe_u32 v5, {V_LANE}, 4, 1
      s_and_b32 s12, {S_W}, 1
      s_lshl_b32 s12, s12, 1
      v_add_u32 v5, s12, v5
      v_lshlrev_b32 v5, 1, v5
      v_xor_b32 v5, v77, v5
      v_lshlrev_b32 v5, 4, v5
      v_mul_u32_u24 v8, 3072, v76
      v_add_u32 v8, v8, v5
      v_lshl_add_u32 v{V_WOD}, v76, 10, v5
      s_mul_i32 {S_W3K}, {S_W}, 3072
      s_lshl_b32 {S_M128}, {S_M}, 7
""")
dma_wqkv(0)
A.bg_flush(args.w0)
extra = [A.bg.pop(0) for _ in range(args.w1)]
W0REST = list(A.bg)
A.bg = []
if extra:
    ln = A.newlabel('L_e')
    sv = (list(A.vm), A.t, A.t_vm, list(A.done), list(A.log))
    e(COND_A + f'\n s_cbranch_scc1 {ln}')
    for l_, t_ in extra:
        for l in l_:
            e(l, tag=t_)
    A.label(ln)
    A.vm, A.t, A.t_vm, A.done, A.log = sv
for j in range(args.x0):
    xload(0, j)
fine('start')

for (d, off, sz) in srds[4:]:
    e(f"""s_mov_b32 s{d + 2}, {sz}
          s_mov_b32 s{d + 3}, s34""")
e(f"""s_mul_i32 s12, s15, {args.fat or 3}
      v_add_lshl_u32 v7, s12, {V_LANE}, 7
      v_cmp_gt_u32 vcc, {args.fat or 3}, {V_LANE}
      v_lshrrev_b32 {V_G}, 4, {V_LANE}
      v_and_b32 {V_C}, 15, {V_LANE}
      v_cndmask_b32 v11, v6, v7, vcc
      v_lshlrev_b32 v5, 1, v12
      v_cmp_lt_u32 vcc, 7, v12
      v_mov_b32 v6, -16
      v_mov_b32 v7, -31
      s_lshl_b32 s15, {S_RB}, 6
      v_cndmask_b32 v6, v6, v7, vcc
      v_add3_u32 v5, v5, v6, s15
      v_max_i32 v5, 0, v5
      v_lshlrev_b32 v5, 10, v5
      v_lshl_add_u32 v5, v13, 4, v5
      s_lshl_b32 {S_W1K}, {S_W}, 10
      s_getreg_b32 {S_XCC}, hwreg(HW_REG_XCC_ID)
      s_and_b32 {S_XCC}, {S_XCC}, 15
      s_mov_b32 {S_ONES}, 0x3f803f80
      s_mov_b32 {S_HI}, 0xffff0000
      s_mov_b32 {S_SPIN}, 0x40000
      s_lshr_b32 {S_GRP}, {S_RB}, 1
      s_lshl_b32 s82, {S_GRP}, 20
      s_add_u32 {S_GRP}, s82, {WS_GRP}
      v_bfe_u32 v78, {V_LANE}, 2, 2          ; r4
      v_mul_u32_u24 v9, 3072, {V_G}
      v_lshl_add_u32 v9, v78, 7, v9
      v_and_b32 v78, 2, v78
      v_and_b32 v6, 1, {V_G}
      v_lshl_add_u32 v78, v6, 2, v78         ; 2f
      v_lshrrev_b32 v6, 1, v13               ; cc/2
      s_lshl_b32 s12, {S_W}, 1
      v_add_u32 v6, s12, v6
      v_xor_b32 v6, v6, v78
      v_lshl_add_u32 v9, v6, 4, v9
      v_and_b32 v79, 1, v13
      v_lshl_add_u32 v9, v79, 3, v9
      v_add_u32 v9, {L_B[0]}, v9""")
for p in range(4):
    e(f's_mov_b32 s{24 + p}, {WS_MODP + p * 12288}')
issue_gq(1)
e(f's_mov_b32 s12, {(1 << 32) // 12 + 1}')
for i in range(3):
    e(f"""v_add_u32 v6, {64 * i}, {V_LANE}
          v_mul_hi_u32 v7, v6, s12
          v_mul_u32_u24 v78, 12, v7
          v_sub_u32 v6, v6, v78
          v_lshrrev_b32 v78, 1, v7
          v_and_b32 v78, 2, v78
          v_xor_b32 v6, v6, v78
          v_mul_u32_u24 v7, 2752, v7
          v_lshl_add_u32 v{V_P4D + i}, v6, 4, v7
          v_lshlrev_b32 v{44 + i}, 27, v6""")
e(f"""s_and_b32 s12, {S_RB}, 1
      s_lshl_b32 s12, s12, 3
      s_add_u32 s12, s12, {S_M}
      s_lshl_b32 {S_MM4}, s12, 2
      s_mul_i32 s12, s12, 43
      s_add_u32 s13, s12, 43
      s_lshr_b32 s12, s12, 4
      s_lshr_b32 s13, s13, 4
      s_sub_u32 {S_NU}, s13, s12
      s_lshl_b32 {S_U0}, s12, 1
      s_sub_u32 s13, 3, {S_NU}
      s_mul_i32 s13, s13, {0x40000000 * args.zero}
      v_and_or_b32 v{V_P4D}, v44, s13, v{V_P4D}
      v_and_or_b32 v{V_P4D + 1}, v45, s13, v{V_P4D + 1}
      v_and_or_b32 v{V_P4D + 2}, v46, s13, v{V_P4D + 2}
      s_lshr_b32 s13, {S_W}, 1
      s_mul_i32 s14, s13, {16 * 2752}
      s_lshl_b32 {S_COL}, s12, 6
      s_add_u32 {S_COL}, {S_COL}, s14
      s_mul_i32 s13, s13, 3072
      s_and_b32 s14, {S_W}, 1
      s_mul_i32 s14, s14, {MAT1}
      s_add_u32 s13, s13, s14
      s_add_u32 {S_GUM}, s13, {L_S}
      s_lshl_b32 s13, {S_W}, 12
      s_add_u32 {S_H2M}, s13, {L_H2}
      v_and_b32 v78, 1, {V_G}
      v_lshrrev_b32 v79, 1, {V_G}
      v_lshlrev_b32 v6, 14, v78
      v_lshl_add_u32 v6, v79, 8, v6
      v_lshl_add_u32 v{V_OST}, {V_C}, 4, v6
      v_lshrrev_b32 v6, 3, {V_LANE}
      v_lshlrev_b32 v6, 11, v6
      v_and_b32 v7, 7, {V_LANE}
      v_lshl_add_u32 v{V_XO}, v7, 4, v6
      s_lshl_b32 s12, {S_W}, 11
      s_add_u32 s12, s12, {L_XR}
      v_lshlrev_b32 v6, 7, {V_C}
      v_lshl_add_u32 v6, {V_G}, 3, v6
      v_add_u32 v{V_WDD}, s12, v6
      s_lshr_b32 s12, {S_W}, 1
      s_lshl_b32 s12, s12, 15
      s_and_b32 s13, {S_W}, 1
      s_lshl_b32 s13, s13, 10
      s_add_u32 s12, s12, s13
      s_lshl_b32 s13, {S_RB}, 16
      s_add_u32 s12, s12, s13
      s_add_u32 {S_XOFF}, s12, {S_M128}
      s_and_b32 s15, {S_RB}, 1
      s_lshl_b32 s14, s15, 16
      s_add_u32 s14, s14, s82
      s_lshl_b32 s12, {S_M}, 11
      s_lshl_b32 s13, {S_W}, 9
      s_add_u32 s12, s12, s13
      s_add_u32 s12, s12, s14
      s_add_u32 {S_OST}, s12, {WS_O}
      s_lshl_b32 s12, {S_W}, 14
      s_add_u32 s12, s12, s14
      s_add_u32 {S_OLD}, s12, {WS_O}
      s_lshl_b32 s13, {S_M}, 11
      s_add_u32 s12, s12, s13
      s_add_u32 {S_X1ST}, s12, {WS_X1}
      s_lshr_b32 s13, {S_W}, 1
      s_lshl_b32 s13, s13, 10
      s_add_u32 s12, s82, s13
      s_and_b32 s13, {S_W}, 1
      s_lshl_b32 s13, s13, 16
      s_add_u32 s12, s12, s13
      s_add_u32 {S_X1LD}, s12, {WS_X1}
      s_lshl_b32 s12, s15, 13
      s_lshl_b32 s13, {S_W}, 11
      s_add_u32 s12, s12, s13
      s_add_u32 s12, s12, s82
      s_add_u32 {S_STLD}, s12, {WS_STATS}
      s_lshl_b32 s13, {S_M}, 8
      s_add_u32 {S_STST}, {S_STLD}, s13
      s_and_b32 s12, {S_W}, 1
      s_xor_b32 s13, s12, 1
      s_mul_i32 s12, s12, {HH_PITCH}
      s_mul_i32 s13, s13, {HH_PITCH}
      s_add_u32 s14, {S_U0}, {S_W}
      s_lshl_b32 s14, s14, 10
      s_add_u32 s14, s14, s82
      s_add_u32 s14, s14, {WS_HH}
      s_add_u32 {S_HST}, s12, s14
      s_add_u32 {S_HST2}, s13, s14
      s_mul_i32 s12, s15, {HH_PITCH}
      s_add_u32 s12, s12, s82
      s_add_u32 s12, s12, {WS_HH}
      s_lshr_b32 s13, {S_W}, 1
      s_mul_i32 s13, s13, {86 * 1024}
      s_add_u32 s12, s12, s13
      s_and_b32 s13, {S_W}, 1
      s_lshl_b32 s13, s13, 8
      s_add_u32 {S_HLD}, s12, s13
      s_add_u32 s12, {S_W1K}, {L_MODV}
      v_lshl_add_u32 v{V_GB}, {V_G}, 4, s12
      v_lshlrev_b32 v77, 2, {V_LANE}
      v_and_b32 v78, 31, {V_LANE}
      v_lshlrev_b32 v78, 4, v78
      v_lshrrev_b32 v79, 5, {V_LANE}
      v_lshl_add_u32 v78, v79, 11, v78
      s_lshl_b32 s12, {S_W}, 9
      v_add_u32 v78, s12, v78
      v_cvt_f32_u32 v79, v79
      s_add_u32 s12, {S_W1K}, {L_MODV}
      v_add_u32 v76, s12, {V_L16}
      v_lshlrev_b32 v6, 1, v13
      v_xor_b32 v6, v6, v12
      v_lshl_add_u32 v6, v13, 4, v6
      v_lshlrev_b32 v6, 4, v6
      s_mul_i32 s13, {S_W}, 5120
      s_add_u32 s13, s13, {L_HRING}
      v_lshlrev_b32 v12, 5, v13
      v_add_u32 v12, s12, v12
      v_add_u32 v13, s13, v6
      v_lshlrev_b32 v6, 1, {V_G}
      v_xor_b32 v6, v6, {V_C}
      v_lshl_add_u32 v6, {V_G}, 4, v6
      v_lshlrev_b32 v6, 4, v6
      v_add_u32 v14, {L_HRING}, v6""")
issue_gq(2)
MKT = MK
MK = 240
run(mask_items())
run([(k, t.replace('v80', 'v64').replace('v81', 'v65').replace('v82', 'v66').replace('v83', 'v67').replace('v84', 'v68').replace('v85', 'v69').replace('v86', 'v70').replace('v87', 'v71')) for k, t in late_items()])
e(f'v_add_u32 v40, {L_MASK}, {V_L16}')
for i in range(4):
    e(f'ds_write_b128 v40, {vr(MK + 4 * i)} offset:{i * 1024}')
e(f'ds_write_b128 {V_L16}, v[68:71] offset:{L_TRB}')
for i in range(4):
    e(f'v_accvgpr_write_b32 a{250 + i}, v{64 + i}')
e('s_add_u32 s18, s16, 32768')
MK = MKT
A.wait_lg()
e(f"""s_bitcmp1_b32 {S_W}, 0
      s_cselect_b32 s92, s56, s52
      s_cselect_b32 s93, s57, s53
      s_mov_b32 s94, {512 * 2752}
      s_mov_b32 s95, s34
      s_mul_i32 {S_TAG}, {S_TAG}, 1664525
      s_add_u32 {S_TAG}, {S_TAG}, 1013904223""")
lx = A.newlabel('L_x')
e(f'''s_cmp_lg_u32 {S_W}, 1
      s_cbranch_scc1 {lx}
      s_and_b32 s12, {S_TAG}, 0xfffffff0
      s_or_b32 s12, s12, {S_XCC}
      s_add_u32 s13, {S_MM4}, {S_GRP}
      s_mov_b64 exec, 1
      v_mov_b32 v6, s12''')
e(f'buffer_store_dword v6, off, {SRD_WS}, s13 sc1', optional=True)
e('s_mov_b64 exec, -1')
A.label(lx)
issue_gq(3)
fine('setup')
lm, lm2, lj = A.newlabel('L_nomod'), A.newlabel('L_nomod'), A.newlabel('L_mj')
e(COND_A + f'\n s_cbranch_scc1 {lm}')
save = (list(A.vm), list(A.done), A.t, A.t_vm, list(A.log))
XL = [(0, j) for j in range(args.x0, 4)] + [(T, j) for T in (1, 2) for j in range(4)]
for T, j in XL:
    xload(T, j)
e(f's_branch {lj}')
A.vm, A.done, A.t, A.t_vm, A.log = save
A.label(lm)
save = list(A.vm)
A.wait_vm('mt')
A.vm = save
run(interleave(mod_part1(MW, 36, 6), [('f', lambda T=T, j=j: xload(T, j)) for T, j in XL], 0, 96, pred=lambda t: True))
for l_, t_ in extra:
    for l in l_:
        e(l, tag=t_, optional=True)
A.wait_lg()
e('s_barrier')
e('v_mov_b32 v52, v4\n v_mov_b32 v53, v5')
mod_part2(MW, lm2, 0)
A.label(lm2)
e('v_mov_b32 v4, v52\n v_mov_b32 v5, v53')
A.label(lj)
A.lg = []
stamp('modpub')
e(COND_B + '\n s_cselect_b32 s12, 0, 0x40000000\n v_or_b32 v74, s12, v74\n v_or_b32 v75, s12, v75')
e('v_accvgpr_write_b32 a254, v74\n v_accvgpr_write_b32 a255, v75')
MTB = [([f'buffer_load_dwordx2 v[112:113], v87, {SRD_C}, s33 offen'], 'mtb')] + [([f'buffer_load_dwordx4 {vr(96 + 4 * i)}, v86, {SRD_WMOD}, s{29 + i} offen'], 'mtb') for i in range(4)]
for T in range(3, 5):
    for j in range(4):
        xload(T, j, bg=True)
for k in range(args.pfx):
    for p in PIECES.pop(0):
        gpf(*p)
A.bg += W0REST
for k in range(args.pfy):
    for p in PIECES.pop(0):
        gpf(*p)
dma_wqkv(1)
for k in range(args.pfz):
    for p in PIECES.pop(0):
        gpf(*p)
dma_wqkv(2)
pieces(0)
A.bg_gap = args.gap0
A.bg_on = True

RS = 64


def unpack(q):
    for d in range(4):
        src = XN + 8 * q + 4 + d
        lo = XN + 8 * q + 2 * d
        e(f'''v_lshlrev_b32 v{lo}, 16, v{src}
              v_and_b32 v{lo + 1}, {S_HI}, v{src}''')


def scale(q):
    p = vr(RS + 2 * (q % 5), 2)
    for d in range(4):
        lo = XN + 8 * q + 2 * d
        e(f'v_pk_fma_f32 {vr(lo, 2)}, {vr(lo, 2)}, {p}, {p} op_sel:[0,0,1] op_sel_hi:[1,0,1]')


ST = 16
for T in range(5):
    A.wait_vm(f'x{T}')
    if args.s1: stamp(f'x{T}')
    for j in range(4):
        for d in range(4):
            r = XN + 8 * (5 * j + T) + 4 + d
            first = (j == 0 and d == 0)
            e(f'v_dot2_f32_bf16 v{ST + 2 * T}, v{r}, {S_ONES}, {"0" if first else f"v{ST + 2 * T}"}')
            e(f'v_dot2_f32_bf16 v{ST + 2 * T + 1}, v{r}, v{r}, {"0" if first else f"v{ST + 2 * T + 1}"}')
    if T < 4:
        for j in range(4):
            unpack(5 * j + T)
e(f'''s_lshl_b32 s12, {S_W}, 3
      v_lshrrev_b32 v5, 2, {V_LANE}
      v_lshlrev_b32 v5, 5, v5
      v_add_u32 v4, s12, v5''')
for qp in ('[1,0,3,2]', '[2,3,0,1]'):
    for i in range(10):
        e(f'v_add_f32_dpp v{ST + i}, v{ST + i}, v{ST + i} quad_perm:{qp} row_mask:0xf bank_mask:0xf')
with nobg():
    e('''s_mov_b32 s12, 0x11111111
         s_mov_b32 exec_lo, s12
         s_mov_b32 exec_hi, s12''')
    for T in range(5):
        e(f'ds_write_b64 v4, {vr(ST + 2 * T, 2)} offset:{L_STATS + T * 512}')
    e('s_mov_b64 exec, -1')
for j in range(2):
    unpack(5 * j + 4)
A.wait_lg()
e('s_barrier')
fine('b1')
xcc_ld = f'buffer_load_dword v77, v76, {SRD_WS}, {S_GRP} offen sc1'
k0 = max([i + 1 for i, it in enumerate(A.bg) if it[1] == 'wq0'] + [0])
A.bg[k0:k0] = [([l], 'm1') for l in mod_loads('v78', 240)]
for T in range(5):
    for h in range(2):
        e(f'ds_read_b128 {vr(16 + 8 * T + 4 * h)}, v5 offset:{L_STATS + T * 512 + h * 16}', tag='st')
for j in range(2, 4):
    unpack(5 * j + 4)
A.wait_lg('st')
e('s_mov_b32 s12, 0x3b000000')
for T in range(5):
    b = 16 + 8 * T
    e(f'''v_pk_add_f32 {vr(b, 2)}, {vr(b, 2)}, {vr(b + 2, 2)}
          v_pk_add_f32 {vr(b + 4, 2)}, {vr(b + 4, 2)}, {vr(b + 6, 2)}
          v_pk_add_f32 {vr(b, 2)}, {vr(b, 2)}, {vr(b + 4, 2)}
          v_pk_mul_f32 {vr(b, 2)}, {vr(b, 2)}, s[12:13] op_sel_hi:[1,0]
          v_fma_f32 v{b + 1}, -v{b}, v{b}, v{b + 1}
          v_max_f32 v{b + 1}, 0, v{b + 1}
          v_add_f32 v{b + 1}, 0x3727c5ac, v{b + 1}
          v_rsq_f32 v{RS + 2 * T}, v{b + 1}''')
for T in range(5):
    e(f'v_mul_f32 v{RS + 2 * T + 1}, -v{16 + 8 * T}, v{RS + 2 * T}')
for q in range(10):
    scale(q)
A.wait_vm('wq0')
e('s_barrier')
fine('b2')
tq = tr_wqkv(0)
for q in range(10, 14):
    run(tq[6 * (q - 10):6 * (q - 9)])
    scale(q)
stamp('prenorm')
mod_check('v78', 240, 'm1', 'v76', 'v79')
for h in range(2):
    e(f'ds_read_b128 {vr(16 + 4 * h)}, v12 offset:{h * 16}', tag='cs')
    e(f'ds_read_b128 {vr(24 + 4 * h)}, v12 offset:{512 + h * 16}', tag='cs')
for q in range(14, 20):
    scale(q)
stamp('mod')

CS = 64


def cs1_reads(j):
    it = []
    for h in range(2):
        it.append(('i', f'ds_read_b128 {vr(CS + 4 * h)}, v12 offset:{j * 128 + h * 16}', 'cs'))
        it.append(('i', f'ds_read_b128 {vr(CS + 8 + 4 * h)}, v12 offset:{512 + j * 128 + h * 16}', 'cs'))
    return it


def norm1_items(j, pk=False):
    it = [('wl', 'cs')]
    for T in range(5):
        b = XN + 8 * (5 * j + T)
        if pk:
            for i in range(0, 8, 2):
                it.append(('i', f'v_pk_fma_f32 {vr(b + i, 2)}, {vr(b + i, 2)}, {vr(24 + i, 2)}, {vr(16 + i, 2)}'))
        else:
            for i in range(8):
                it.append(('i', f'v_fma_f32 v{b + i}, v{b + i}, v{CS + 8 + i}, v{CS + i}'))
        if args.w64 and not pk:
            it = it[:-8]
            for h in range(2):
                for i in range(4 * h, 4 * h + 4):
                    it.append(('i', f'v_fma_f32 v{b + i}, v{b + i}, v{CS + 8 + i}, v{CS + i}'))
                for d in range(2):
                    it.append(('i', f'v_cvt_pk_bf16_f32 v{b + 4 * h + d}, v{b + 4 * h + 2 * d}, v{b + 4 * h + 2 * d + 1}'))
                it.append(('i', f'ds_write_b64 v13, {vr(b + 4 * h, 2)} offset:{(j % 2) * 20480 + T * 1024 + 8 * h}', 'hw'))
            continue
        for d in range(4):
            it.append(('i', f'v_cvt_pk_bf16_f32 v{b + d}, v{b + 2 * d}, v{b + 2 * d + 1}'))
        it.append(('i', f'ds_write_b128 v13, {vr(b)} offset:{(j % 2) * 20480 + T * 1024}', 'hw'))
    if j < 3:
        it += cs1_reads(j + 1)
    return it


def accQ(T): return 16 + 4 * T
def accK(T): return 32 + 4 * T
def accV(T): return 240 + 4 * T if T < 4 else 52


FR = 192


def rd1(j, pos):
    return [('i', f'ds_read_b128 {ar(FR + (pos % 2) * 20 + 4 * T)}, v14 offset:{(j % 2) * 20480 + (pos * 5 + T) * 1024}', f'f{pos}') for T in range(5)]


def mm1(j, pos):
    it = []
    wb = (j * 4 + pos) * 12
    first = (j == 0 and pos == 0)
    for T in range(5):
        f = ar(FR + (pos % 2) * 20 + 4 * T)
        if T < 4:
            it.append(('i', f'v_mfma_f32_16x16x32_bf16 {vr(accQ(T))}, {ar(wb)}, {f}, {"0" if first else vr(accQ(T))}'))
        it.append(('i', f'v_mfma_f32_16x16x32_bf16 {vr(accK(T))}, {ar(wb + 4)}, {f}, {"0" if first else vr(accK(T))}'))
        it.append(('i', f'v_mfma_f32_16x16x32_bf16 {vr(accV(T))}, {f}, {ar(wb + 8)}, {"0" if first else vr(accV(T))}'))
    return it


A.wait_lg()
e('s_barrier')
run(norm1_items(0, pk=True))
if not args.jit1:
    A.wait_vm('wq1')
A.wait_lg('hw')
e('s_barrier')
stamp('c0')
if 'nm' in args.g1: A.drop = ('w', 'g', 'm', 'x')
e('v_accvgpr_read_b32 v81, a251')
e('v_accvgpr_read_b32 v86, a254\n v_accvgpr_read_b32 v87, a255')
C3[0] = 'v81'
k0 = max([i + 1 for i, it in enumerate(A.bg) if it[1] == 'wq2'] + [0])
A.bg[k0:k0] = MTB
c3(SRD_WO, 0)
A.bg_gap = args.gap1
run(rd1(0, 0))
for j in range(5):
    main = []
    if j > 0:
        main += interleave(mm1(j - 1, 3), rd1(j, 0) if j < 4 else [], 0, 5)
    if j == 4:
        run(main)
        break
    todo = {0: [] if args.jit1 else [1], 1: [1, 2] if args.jit1 else [2], 2: [], 3: [3]}[j]
    for pos in range(3):
        main += [('wl', [f'f{pos}', f'trq{j}_{pos}'])] + interleave(mm1(j, pos), rd1(j, pos + 1), 0, 5)
    for c in todo:
        tq = tr_wqkv(c)
        if c == j:
            run(tq[:1])
            main = interleave(main, tq[1:7], 0, 6)
            main = interleave(main, tq[7:], 6, 24)
        elif len(todo) > 1:
            main = interleave(main, tq, 26, 52)
        else:
            run(tq[:1])
            main = pack(main, tq[1:], 0, -1)
    if j < 3:
        fill = norm1_items(j + 1)
    else:
        fill = lines(f'v_add_u32 v4, {L_MASK}, {V_L16}') + [('i', f'ds_read_b128 {vr(MK + 4 * i)}, v4 offset:{i * 1024}') for i in range(4)]
        fill += [('i', f'ds_read_b128 {vr(TRB)}, {V_L16} offset:{L_TRB}')]
        fill += [('i', f'v_accvgpr_read_b32 v{80 + i}, a{250 + i}') for i in range(4)] + [('i', f'v_mov_b32 v{ONE + r}, {S_ONES}') for r in range(4)] + [('i', f'v_lshlrev_b32 v76, 2, {V_LANE}')]
    if j == 3:
        fill = [('wv', 'mtb')] + mod_part1(96, 200, 216, None, 112, True) + fill
        fill += [('wv', 'xr')] + [('i', f'ds_read_b64 {vr(XRES + 2 * ct, 2)}, v{V_WDD} offset:{ct * 32}') for ct in range(4)]
    if 'nB' in args.g1 and j == 3: fill = fill[-20:]
    if 'nw' in args.g1: fill = [f for f in fill if not (f[0] == 'i' and f[1].startswith('ds_write_b128'))]
    if 'nv' in args.g1 and j < 3: fill = [f for f in fill if not (f[0] == 'i' and f[1].startswith(('v_fma', 'v_cvt')))]
    run(pack(main, fill, 0, -2))
    fine(f'e{j}')
    A.wait_vm(('wq2', 'none', 'wq3', 'none')[j])
    A.wait_lg()
    e('s_barrier')
    fine(f'c{j + 1}')
    if j == args.jit1:
        front(lambda: dma_wqkv(3))
    if j == 0:
        pieces(1)
    if j == args.xrj:
        for p in range(2):
            A.bg_add([f's_lshl_b32 {S_BT}, {S_W1K}, 1', f's_add_u32 m0, {S_BT}, {L_XR + p * 1024}', f's_add_u32 {S_BT}, {S_XOFF}, {p * 16384}',
                      f'buffer_load_dwordx4 v{V_XO}, {SRD_X}, {S_BT} offen lds'], 'xr')
    if j == 1:
        for ks in range(4, 16):
            dma_1k(SRD_WO, V_WOD, ks, L_WO + ks * 4096, 'wo')
        pieces(2)
        if args.ot:
            touch([], f'v{V_OST}', S_OST)
            touch([f's_add_u32 {S_BT}, {S_OST}, 32768'], f'v{V_OST}', S_BT)
        for p in range(2):
            pass
    if j == 2:
        pieces(3)
    if j == 3:
        front(lambda: [dma_1k(SRD_WO, V_WOD, ks, L_WO + ks * 4096, 'wo') for ks in range(4)])
        A.bg_add([xcc_ld], 'mx')
        A.bg_add([f'buffer_load_dword {V_DUM}, v76, {SRD_WS}, {S_STST} offen sc1'], 'stt')
        if args.otlb:
            A.bg_add([f'buffer_load_dword {V_DUM}, off, {SRD_OUT}, {S_XOFF}'], 'stt')
        pieces(4)
        gu_queue()
with nobg():
    lm = A.newlabel('L_nomod')
    save = (list(A.vm), list(A.lg), A.t, A.t_vm, list(A.done), list(A.log))
    e(COND_B + f'\n s_cbranch_scc0 {lm}')
    mod_part2(96, lm, 3)
    A.label(lm)
    A.vm, A.lg, A.t, A.t_vm, A.done, A.log = save[0] + [(None, True)], *save[1:]
stamp('qkv')
A.drop = ()

QP, KP, VP = 140, 148, 158
VPOS = {2: 0, 0: 1, 4: 2, 1: 3, 3: 4}
SS, MX, PP, OO, LL, OP = 188, 220, 16, 32, 228, 48
PREV = {0: 4, 1: 4, 2: 0, 3: 1}
PMASK = {0: MK + 8, 1: MK + 12, 2: MK + 4, 3: MK + 4}
VPAIR = {2: 0, 0: 1, 1: 2, 3: 3}
t = ''
for T in range(5):
    for d in range(2):
        if T < 4:
            t += f'v_cvt_pk_bf16_f32 v{QP + 2 * T + d}, v{accQ(T) + 2 * d}, v{accQ(T) + 2 * d + 1}\n'
        t += f'v_cvt_pk_bf16_f32 v{KP + 2 * T + d}, v{accK(T) + 2 * d}, v{accK(T) + 2 * d + 1}\n'
vc = [f'v_cvt_pk_bf16_f32 v{VP + 2 * VPOS[T] + d}, v{accV(T) + 2 * d}, v{accV(T) + 2 * d + 1}\n' for T in range(5) for d in range(2)]
t += vc.pop(0) + vc.pop(0)
for T in (2, 3, 0, 1):
    t += f'v_mfma_f32_16x16x16_bf16 {vr(SS + 8 * T)}, {vr(KP + 2 * T, 2)}, {vr(QP + 2 * T, 2)}, {vr(MK)}\n' + vc.pop(0)
    t += f'v_mfma_f32_16x16x16_bf16 {vr(SS + 8 * T + 4)}, {vr(KP + 2 * PREV[T], 2)}, {vr(QP + 2 * T, 2)}, {vr(PMASK[T])}\n' + vc.pop(0)
t += 's_mov_b32 s12, 0x3eb8aa3b\n s_mov_b32 s13, 0xbeb8aa3b\n'
for T in (2, 3, 0, 1):
    s = SS + 8 * T
    t += f'''v_max3_f32 v{MX + T}, v{s}, v{s + 1}, v{s + 2}
          v_max3_f32 v{MX + 4 + T}, v{s + 3}, v{s + 4}, v{s + 5}
          v_max3_f32 v{MX + T}, v{MX + T}, v{s + 6}, v{s + 7}
          v_max_f32 v{MX + T}, v{MX + T}, v{MX + 4 + T}
          v_mov_b32 v{MX + 4 + T}, v{MX + T}
          '''
for k, sw in enumerate(('v_permlane32_swap_b32', 'v_permlane16_swap_b32')):
    for T in (2, 3, 0, 1):
        t += f'{sw} v{MX + T}, v{MX + 4 + T}\n'
    for T in (2, 3, 0, 1):
        t += f'v_max_f32 v{MX + T}, v{MX + T}, v{MX + 4 + T}\n'
    if k == 0:
        for T in (2, 3, 0, 1):
            t += f'v_mov_b32 v{MX + 4 + T}, v{MX + T}\n'
for T in range(4):
    t += f'v_mul_f32 v{MX + 4 + T}, -s12, v{MX + T}\n'.replace('-s12', 's13')
if args.apk:
    for T in range(4):
        for i in range(0, 8, 2):
            pr = vr(MX + 4 + (T & 2), 2)
            t += f'v_pk_fma_f32 {vr(SS + 8 * T + i, 2)}, {vr(SS + 8 * T + i, 2)}, s[12:13], {pr} op_sel:[0,0,{T & 1}] op_sel_hi:[1,0,{T & 1}]\n'


def fin(T):
    x = f'v_rcp_f32 v{LL + 4 * T}, v{LL + 4 * T}\n'
    p = vr(LL + 4 * T, 2)
    y = ''
    for i in (0, 2):
        y += f'v_pk_mul_f32 {vr(OO + 4 * T + i, 2)}, {vr(OO + 4 * T + i, 2)}, {p} op_sel_hi:[1,0]\n'
    for d in range(2):
        y += f'v_cvt_pk_bf16_f32 v{OP + 2 * T + d}, v{OO + 4 * T + 2 * d}, v{OO + 4 * T + 2 * d + 1}\n'
    return x, y


for T in range(4):
    s = SS + 8 * T
    for i in range(0 if args.apk else 8):
        t += f'v_fma_f32 v{s + i}, v{s + i}, s12, v{MX + 4 + T}\n'
    for i in range(8):
        t += f'v_exp_f32 v{s + i}, v{s + i}\n'
    if T > 0:
        t += fin(T - 1)[0]
    curfirst = T in (0, 2)
    for d in range(2):
        t += f'v_cvt_pk_bf16_f32 v{PP + 4 * T + (0 if curfirst else 2) + d}, v{s + 2 * d}, v{s + 2 * d + 1}\n'
        t += f'v_cvt_pk_bf16_f32 v{PP + 4 * T + (2 if curfirst else 0) + d}, v{s + 4 + 2 * d}, v{s + 4 + 2 * d + 1}\n'
    if T > 0:
        t += fin(T - 1)[1]
    t += f'v_mfma_f32_16x16x32_bf16 {vr(LL + 4 * T)}, {vr(ONE)}, {vr(PP + 4 * T)}, 0\n'
    t += f'v_mfma_f32_16x16x32_bf16 {vr(OO + 4 * T)}, {vr(VP + 2 * VPAIR[T])}, {vr(PP + 4 * T)}, 0\n'


def wo_reg(ks, ct, hf=None):
    if 4 <= ks < 14:
        b, f = 96 + (ks - 4) * 16 + ct * 4, ar
    else:
        b, f = 160 + (ks if ks < 4 else ks - 10) * 16 + ct * 4, vr
    return f(b) if hf is None else f(b + 2 * hf, 2)


def tr_wo(ks):
    return [('i', f'ds_read_b64_tr_b16 {wo_reg(ks, ct, hf)}, v{TRB + ct} offset:{ks * 4096 + hf * 512}', f'trw{ks}')
            for ct in range(4) for hf in range(2)]


tl = lines(t)
A.bg_gap = args.gapa
run(tl[:args.acut])
A.bg_flush(upto=['wo', 'xr', 'tch', 'mx'])
A.bg_on = False
run(tl[args.acut:])
for d in range(2):
    e(f'v_permlane16_swap_b32 v{OP + d}, v{OP + 2 + d}')
e(f's_add_u32 s16, {S_OST}, 32768')
stores([f'buffer_store_dwordx4 {vr(OP)}, v{V_OST}, {SRD_WS}, {S_OST} offen'], 'ost', plain=args.ot)
e(fin(3)[0] + fin(3)[1])
for d in range(2):
    e(f'v_permlane16_swap_b32 v{OP + 4 + d}, v{OP + 6 + d}')
stores([f'buffer_store_dwordx4 {vr(OP + 4)}, v{V_OST}, {SRD_WS}, s16 offen'], 'ost', plain=args.ot)
fine('ost')
if args.stop1:
    stamp('end')
    e(f'''s_waitcnt vmcnt(0)
          s_lshl_b32 s12, s2, 2
          s_add_u32 s12, s12, {S_W}
          s_lshl_b32 s12, s12, 8
          s_add_u32 s12, s12, {WS_STAMP}
          v_lshlrev_b32 v4, 2, {V_LANE}
          buffer_store_dword {V_STAMP}, v4, {SRD_WS}, s12 offen
          s_endpgm''')
    args.stamps = False
    keep_names = list(stamp_names)
A.bg_flush(args.b1)
checked('mx', [xcc_ld], lambda: e(f'''v_xor_b32 v6, {S_TAG}, v77
                                      v_lshrrev_b32 v6, 4, v6
                                      v_cmp_ne_u32 vcc, 0, v6
                                      s_and_b64 vcc, vcc, 0xffff'''))
with nobg():
    e(f'''v_and_b32 v5, 15, v77
          v_cmp_ne_u32 vcc, {S_XCC}, v5
          s_nop 1
          s_and_b64 vcc, vcc, 0xffff
          s_cmp_eq_u64 vcc, 0
          s_cselect_b32 {S_FAST}, {0 if args.slow else 1}, 0
          s_mul_i32 s12, {S_FAST}, {(WS_X1 - WS_O) * args.h2o}
          s_sub_u32 {S_X1ST}, {S_X1ST}, s12
          s_sub_u32 {S_X1LD}, {S_X1LD}, s12''')
e(f'''s_add_u32 s17, {S_OLD}, 4096
      s_add_u32 s18, {S_OLD}, 8192
      s_add_u32 s19, {S_OLD}, 12288
      v_lshrrev_b32 v16, 2, {V_LANE}            ; row = 4g + r4
      v_mul_u32_u24 v16, 192, v16
      v_and_b32 v4, 3, {V_LANE}
      v_lshl_add_u32 v16, v4, 3, v16
      v_add_u32 v16, {L_S}, v16
      v_and_b32 v18, 1, {V_G}
      v_xor_b32 v17, {S_W}, v18
      s_lshr_b32 s13, {S_W}, 1
      s_add_u32 s13, s13, 4
      v_xor_b32 v18, s13, v18
      v_lshl_add_u32 v20, v17, 5, v16
      v_lshl_add_u32 v21, v18, 5, v16
      v_add_u32 v22, {3 * BLK}, v20
      v_add_u32 v23, {3 * BLK}, v21
      s_and_b32 s12, {S_W}, 1
      s_lshl_b32 s12, s12, 12
      s_xor_b32 s13, s12, 4096
      s_add_u32 s12, s12, {L_H2}
      s_add_u32 s13, s13, {L_H2}
      v_add_u32 v13, s12, {V_L16}
      v_add_u32 v14, s13, {V_L16}               ; tiles 4..7''')
OA, GA, X1A, X1P = 96, 32, 64, 24
publish_flag(64, 'ost')
A.bg_flush(args.b1d)
e(poll_ld(64), tag='poll')
for l in mod_loads('v80', 64):
    e(l, tag='m3')
stamp('opub')
for ks in range(4, 12):
    run(tr_wo(ks))
poll_check(64)
stamp('owait')


KORD = list(range(4, 16)) + [0, 1, 2, 3]
rest = list(A.bg)
gu_pre(gu_done())
A.bg = [([f'buffer_load_dwordx4 {vr(OA + 4 * n)}, {V_L16}, {SRD_WS}, {(S_OLD, "s17", "s18", "s19")[ks // 4]} offen offset:{(ks % 4) * 1024} sc1'], f'o{n}') for n, ks in enumerate(KORD)]
run(interleave([x for ks in (12, 13, 14, 15, 0, 1, 2, 3) for x in tr_wo(ks)], [('f', lambda: A.bg_flush(1))] * 12, pred=lambda t: True))
mod_check('v80', 64, 'm3', 'v82', 'v83')
for ct in range(4):
    e(f'ds_read_b128 {vr(GA + 4 * ct)}, v{V_GB} offset:{ct * 64}', tag='ga')
e('s_barrier')
gu_post(False)
mv = movers(6)
pieces(5)
A.bg += rest[:args.b1c]
rest = rest[args.b1c:]
for n, ks in enumerate(KORD):
    A.wait_vm(f'o{n}')
    A.wait_lg(f'trw{ks}')
    for ct in range(4):
        e(f'v_mfma_f32_16x16x32_bf16 {vr(X1A + 4 * ct)}, {wo_reg(ks, ct)}, {vr(OA + 4 * n)}, {"0" if n == 0 else vr(X1A + 4 * ct)}')
        if ct == 0 and A.bg and (A.bg[0][1].startswith(('o', 'm')) or A.room()):
            A.bg_flush(1)
        if n >= 4 and mv:
            run([mv.pop(0)])
    if n == 12:
        XF = OA + 16
        for i in range(8):
            e(f'''v_lshlrev_b32 v{XF + 2 * i}, 16, v{XRES + i}
                  v_and_b32 v{XF + 2 * i + 1}, {S_HI}, v{XRES + i}''')
run(mv)
A.bg += rest
gu_pre(gu_done())
A.wait_lg()
e('s_barrier')
gu_post()
fine('omm')
for b in range(0, 16, 2):
    e(f'v_pk_fma_f32 {vr(X1A + b, 2)}, {vr(X1A + b, 2)}, {vr(GA + b, 2)}, {vr(XF + b, 2)}')
for i in range(8):
    e(f'v_cvt_pk_bf16_f32 v{X1P + i}, v{X1A + 2 * i}, v{X1A + 2 * i + 1}')
for i in range(8):
    e(f'v_dot2_f32_bf16 v48, v{X1P + i}, {S_ONES}, {"0" if i == 0 else "v48"}')
    e(f'v_dot2_f32_bf16 v49, v{X1P + i}, v{X1P + i}, {"0" if i == 0 else "v49"}')


def rowsum2(a, b):
    e(f'''v_permlane32_swap_b32 v{a}, v{b}
          v_add_f32 v{a}, v{a}, v{b}
          v_mov_b32 v{b}, v{a}
          v_permlane16_swap_b32 v{a}, v{b}
          v_add_f32 v{a}, v{a}, v{b}
          v_mov_b32 v{b}, v{a}
          v_permlane32_swap_b32 v{a}, v{b}''')


e(f'v_mov_b32 v50, {S_TAG}\n v_mov_b32 v51, {S_TAG}')
rowsum2(48, 49)
e('s_mov_b64 exec, 0xffff')
stores([f'buffer_store_dwordx4 v[48:51], {V_L16}, {SRD_WS}, {S_STST} offen'], 'sst', plain=True)
e('s_mov_b64 exec, -1')
fine('sst')
A.bg_flush(args.b2a)
SPT = 144
for i in range(8):
    e(f'''v_lshlrev_b32 v{X1A + 2 * i}, 16, v{X1P + i}
          v_and_b32 v{X1A + 2 * i + 1}, {S_HI}, v{X1P + i}''')
SB, CB, GB = 112, 128, 32
for ct in range(4):
    e(f'ds_read_b128 {vr(SB + 4 * ct)}, v{V_GB} offset:{256 + ct * 64}', tag='ga')
    e(f'ds_read_b128 {vr(CB + 4 * ct)}, v{V_GB} offset:{512 + ct * 64}', tag='ga')
    e(f'ds_read_b128 {vr(GB + 4 * ct)}, v{V_GB} offset:{768 + ct * 64}', tag='ga')
run(movers())
for l in st_loads(SPT):
    e(l, tag='st')
A.bg_flush(args.b2)
checked('st', st_loads(SPT), lambda: e(f'''v_cmp_ne_u32 vcc, {S_TAG}, v{SPT + 2}
                                          v_cmp_ne_u32 s[12:13], {S_TAG}, v{SPT + 6}
                                          s_or_b64 vcc, vcc, s[12:13]'''))
fine('stw')
e(f'v_pk_add_f32 {vr(SPT, 2)}, {vr(SPT, 2)}, {vr(SPT + 4, 2)}')
rowsum2(SPT, SPT + 1)
e(f'''s_mov_b32 s12, 0x3b000000
      v_pk_mul_f32 {vr(SPT, 2)}, {vr(SPT, 2)}, s[12:13] op_sel_hi:[1,0]
      v_fma_f32 v{SPT + 1}, -v{SPT}, v{SPT}, v{SPT + 1}
      v_max_f32 v{SPT + 1}, 0, v{SPT + 1}
      v_add_f32 v{SPT + 1}, 0x3727c5ac, v{SPT + 1}
      v_rsq_f32 v{SPT + 2}, v{SPT + 1}
      v_mul_f32 v{SPT + 3}, -v{SPT}, v{SPT + 2}''')
A.wait_lg()
p = vr(SPT + 2, 2)
H2P = 96
for half in range(2):
    for b in range(8 * half, 8 * half + 8, 2):
        e(f'v_pk_fma_f32 {vr(X1A + b, 2)}, {vr(X1A + b, 2)}, {p}, {p} op_sel:[0,0,1] op_sel_hi:[1,0,1]')
    for b in range(8 * half, 8 * half + 8, 2):
        e(f'v_pk_fma_f32 {vr(X1A + b, 2)}, {vr(X1A + b, 2)}, {vr(CB + b, 2)}, {vr(SB + b, 2)}')
    for i in range(4 * half, 4 * half + 4):
        e(f'v_cvt_pk_bf16_f32 v{H2P + i}, v{X1A + 2 * i}, v{X1A + 2 * i + 1}')
    stores([f'buffer_store_dwordx4 {vr(H2P + 4 * half)}, {V_L16}, {SRD_WS}, {S_X1ST} offen offset:{half * 1024}'], 'xst', plain=args.h2o)
A.bg_flush(args.b2b)
publish_flag(128, 'xst')
GU.pend = gu_done()
gu_post(True)
e(poll_ld(128), tag='poll')
A.bg_flush(args.b2c)
run(movers())
stamp('x1pub')

le, lep, lok = A.newlabel('L_ep'), A.newlabel('L_epp'), A.newlabel('L_eok')
save = (list(A.vm), list(A.done), A.t, A.t_vm, list(A.log))
e(f'''s_xor_b32 s12, {S_W}, 3
      s_or_b32 s12, s2, s12
      s_cmp_lg_u32 s12, 0
      s_cbranch_scc1 {le}
      v_lshrrev_b32 v4, 2, {V_LANE}
      v_lshlrev_b32 v4, 20, v4
      v_and_b32 v5, 3, {V_LANE}
      v_lshl_add_u32 v4, v5, 4, v4
      s_mov_b32 s12, {WS_GRP}''')
A.label(lep)
e(f'buffer_load_dwordx4 v[200:203], v4, {SRD_WS}, s12 offen sc1')
A.wait_vm()
for i in range(4):
    e(f'v_xor_b32 v{200 + i}, {S_TAG}, v{200 + i}')
e(f'''v_or3_b32 v5, v200, v201, v202
      v_or_b32 v5, v5, v203
      v_lshrrev_b32 v5, 4, v5
      v_cmp_ne_u32 vcc, 0, v5
      s_cbranch_vccz {lok}''')
spin_fail(lep)
A.label(lok)
e(f'''v_mov_b32 v5, {S_TAG}
      s_mov_b64 exec, 1''')
e(f's_mov_b32 s12, {WS_EPOCH}')
e(f'buffer_store_dword v5, off, {SRD_WS}, s12 sc1')
e('s_mov_b64 exec, -1')
A.label(le)
A.vm, A.done, A.t, A.t_vm, A.log = save
A.vm += [(None, True)]
e('v_mov_b32 v12, v81')
C3[0] = 'v12'
poll_check(128)
stamp('x1wait')


def dma_h2(q):
    for tt in range(4):
        A.bg_add([f's_add_u32 m0, {S_H2M}, {(q % 4) * 16384 + tt * 1024}', f's_add_u32 {S_BT}, {S_X1LD}, {tt * 16384 + q * 2048}',
                  f'buffer_load_dwordx4 {V_L16}, {SRD_WS}, {S_BT} offen sc1 lds'], f'y{q}')


front(lambda: [dma_h2(q) for q in range(args.y0)])
A.bg_flush(4 * args.y0)
rest = list(A.bg)
A.bg = []
for q in range(args.y0, 4):
    A.bg += rest[:args.b2d]
    rest = rest[args.b2d:]
    dma_h2(q)
A.bg += rest
A.bg_gap = args.gap4
A.bg_on = True
ACC4, FB = 64, 160


WD_ADDR = {}


class WD:
    queued = 0
    landed = 0
    moved = 0
    freed = 0


def wd_space(addr, n):
    for k in range(n):
        if WD.queued < 43:
            WD_ADDR[WD.queued] = addr + k * 4096
            dma_1k(SRD_WD, V_WOD, WD.queued, addr + k * 4096, f'wd{WD.queued}')
            WD.queued += 1


def wd_est():
    n = WD.landed
    while n < WD.queued and f'wd{n}' not in {t for l, t in A.bg} and A.tagdone[f'wd{n}'] <= A.t + args.slack:
        n += 1
    return n


def wd_done():
    live = {t for t, o in A.vm} | {t for l, t in A.bg}
    n = 0
    while n < WD.queued and f'wd{n}' not in live:
        n += 1
    return n


def wd_pre(upto):
    upto = max(upto, WD.landed)
    if upto > WD.landed:
        A.wait_vm(f'wd{upto - 1}')
    WD.pend = upto


def wd_post():
    WD.landed = WD.pend
    while WD.freed < WD.moved:
        wd_space(WD_ADDR[WD.freed], 1)
        WD.freed += 1


def wd_addr(ks, ct, hf):
    off = WD_ADDR[ks] + hf * 512
    return f'v{(16, 48, 52)[off >> 16] + ct} offset:{off & 0xffff}'


NWB = 23


def wd_reg(ks, ct, hf=None):
    k = ks % NWB
    f, b = (ar, 16 * k) if k < 16 else (vr, 144 + 16 * (k - 16))
    return f(b + 4 * ct) if hf is None else f(b + 4 * ct + 2 * hf, 2)


def tr_wd(ks):
    return [('i', f'ds_read_b64_tr_b16 {wd_reg(ks, ct, hf)}, {wd_addr(ks, ct, hf)}', f't{ks}')
            for ct in range(4) for hf in range(2)]


def wd_moves(limit):
    it = []
    while WD.moved < min(WD.landed, limit):
        it += tr_wd(WD.moved)
        WD.moved += 1
    return it


for ct in range(4):
    e(f'v_add_u32 v{16 + ct}, {-L_WO & 0xffffffff}, v{TRB + ct}')
for ct in range(4):
    e(f'v_add_u32 v{48 + ct}, 0x10000, v{16 + ct}')
    e(f'v_add_u32 v{52 + ct}, 0x20000, v{16 + ct}')
def hh_touch(k):
    so = (S_HST, S_HST, S_HST2, S_HST2, 's18', 's18')[k]
    touch([f's_add_u32 {S_BT}, {so}, {(k % 2) * 86 * 1024}'], V_L16, S_BT, 0, 'v[252:255]')


e(f'''s_lshr_b32 s14, {S_W}, 1
      s_add_u32 s14, s14, 4
      s_sub_u32 s14, s14, {S_W}
      s_lshl_b32 s14, s14, 10
      s_sub_u32 s13, {S_NU}, 2
      s_mul_i32 s14, s14, s13
      s_add_u32 s18, {S_HST}, s14''')
def gu_est():
    n = GU.landed
    while n < GU.queued and f'p4w{n}' not in {t for l, t in A.bg} and A.tagdone[f'p4w{n}'] <= A.t + args.slack:
        n += 1
    return n


A.wait_vm('y0')
gu_pre(max(gu_done(), gu_est(), 2))
A.wait_lg()
e('s_barrier')
gu_post()
fine('d0')
A.drop = tuple(x for x in args.x.split(',') if x)
front(lambda: pieces(6))
wdn = 0
def glu(k, pk):
    b = ACC4 + 16 * k
    t = ''
    if pk:
        for r in range(0, 8, 2):
            t += f'v_pk_mul_f32 {vr(b + r, 2)}, {vr(b + r, 2)}, s[14:15] op_sel_hi:[1,0]\n'
    else:
        for r in range(8):
            t += f'v_mul_f32 v{b + r}, s14, v{b + r}\n'
    for r in range(8):
        t += f'v_exp_f32 v{b + r}, v{b + r}\n'
    if pk:
        for r in range(0, 8, 2):
            t += f'v_pk_add_f32 {vr(b + r, 2)}, {vr(b + r, 2)}, 1.0 op_sel_hi:[1,0]\n'
    else:
        for r in range(8):
            t += f'v_add_f32 v{b + r}, 1.0, v{b + r}\n'
    for r in range(8):
        t += f'v_rcp_f32 v{b + r}, v{b + r}\n'
    if pk:
        for r in range(0, 8, 2):
            t += f'v_pk_mul_f32 {vr(b + r, 2)}, {vr(b + r, 2)}, {vr(b + 8 + r, 2)}\n'
    else:
        for r in range(8):
            t += f'v_mul_f32 v{b + r}, v{b + r}, v{b + 8 + r}\n'
    for d in range(4):
        t += f'v_cvt_pk_bf16_f32 v{b + d}, v{b + 2 * d}, v{b + 2 * d + 1}\n'
    for d in range(2):
        t += f'v_permlane16_swap_b32 v{b + d}, v{b + 2 + d}\n'

    def st():
        st_ = f'buffer_store_dwordx4 {vr(b)}, {V_L16}, {SRD_WS}, {(S_HST, "s16", S_HST2, "s17", "s18", "s19")[k]} offen'
        if k >= 4:
            with nobg():
                ls = A.newlabel('L_sk')
                e(f's_cmp_lt_u32 {S_NU}, 3\n s_cbranch_scc1 {ls}')
                stores([st_], 'hst', optional=True, plain=args.ht)
                A.label(ls)
        else:
            stores([st_], 'hst', plain=args.ht)
    return lines(t) + [('f', st)]


NREG = 16
e(f'''s_mov_b32 s14, 0xbfb8aa3b
      s_add_u32 s16, {S_HST}, {86 * 1024}
      s_add_u32 s17, {S_HST2}, {86 * 1024}
      s_add_u32 s19, s18, {86 * 1024}''')
QL = 8 - args.tailq
NB, PF = 16, args.pf4
SEG = [[q] for q in range(QL)] + [list(range(QL, 8))]
TORD = [0, 1, 2, 3, 4, 5, 6, 7]
frs = [(si, t, ks) for si, sg in enumerate(SEG) for t in TORD for q in sg for ks in (2 * q, 2 * q + 1)]
FIDX = {f: n for n, f in enumerate(frs)}


def rdf(n):
    si, t, ks = frs[n]
    return ('i', f'ds_read_b128 {vr(FB + 4 * (n % NB))}, v{13 + t // 4} offset:{(ks // 2 % 4) * 16384 + (ks % 2) * 8192 + (t % 4) * 1024}', f'r{n}')


def acc4(t, i, mat):
    k = t // 2 if i == 0 else 4 + t // 2
    return ACC4 + 16 * k + 8 * mat + 4 * (t % 2)


issued = [0]


def tile_items(si, t, limit):
    it = []
    for q in SEG[si]:
        n0 = FIDX[(si, t, 2 * q)]
        it.append(('wl', [f'r{n0 + 1}', f'mv{2 * q + 1}']))
        for i in range(2 if t < 4 else 1):
            for mat in range(2):
                for ks in (2 * q, 2 * q + 1):
                    a = vr(acc4(t, i, mat))
                    it.append(('i', f'v_mfma_f32_16x16x32_bf16 {a}, {ar(16 * ks + 8 * i + 4 * mat)}, {vr(FB + 4 * (FIDX[(si, t, ks)] % NB))}, {"0" if ks == 0 else a}'))
                    if issued[0] < min(n0 + 2 + PF, limit):
                        it.append(rdf(issued[0]))
                        issued[0] += 1
    return it


def after_bar4(q):
    global wdn
    if q < 4:
        dma_h2(q + 4)
    if q < 3:
        c3(SRD_WD, q)
    if GU.freed >= 12 and wdn == 0:
        wd_space(L_S + 13 * 4096, 7)
        wd_space(LDS_TOTAL - 4096, 1)
        wdn = 7
    if GU.freed == 16 and wdn == 7:
        wd_space(L_S, 13)
        wdn = 20


def edf():
    def key(it):
        t = it[1]
        if t.startswith('y'):
            return min(int(t[1:]), QL) + 0.01 * int(t[1:])
        if t.startswith('p4w'):
            return min(int(t[3:]) // 2, QL) - args.lead / 10 + 0.001 * int(t[3:])
        if t.startswith('wd'):
            return 20 + int(t[2:])
        return args.gck
    if args.edf:
        A.bg.sort(key=key)


edf()
run(movers(2) + [rdf(n) for n in range(PF)])
issued[0] = PF
carry = []
for q in range(QL):
    end = FIDX[(q + 1, 0, 2 * SEG[q + 1][0])]
    main = carry
    cutt = 8 - args.late4
    for t in TORD[:cutt]:
        main = main + tile_items(q, t, end)
    main += [rdf(n) for n in range(issued[0], end)]
    issued[0] = end
    run(pack(main, movers() + wd_moves(min(2 * q - 2, WD.moved + args.wmq, args.wmax)), 0, -args.stop4))
    last = q == QL - 1
    A.wait_vm('y7' if last else f'y{q + 1}')
    gu_pre(16 if last else max(gu_done(), gu_est(), 2 * q + 4))
    wd_pre(max(wd_done(), wd_est()))
    A.wait_lg()
    e('s_barrier')
    gu_post()
    if q % 2:
        fine(f'd{(q + 1) // 2}')
    after_bar4(q)
    if q >= 4:
        wd_space(L_H2 + (q - 4) * 16384, 4)
    wd_post()
    edf()
    carry = []
    for t in TORD[cutt:]:
        carry += tile_items(q, t, len(frs))
    carry = interleave(carry, movers(16 if last else 2 * q + 4), 0)
run(carry)
pend = []
for p in range(4):
    main = tile_items(QL, 2 * p, len(frs)) + tile_items(QL, 2 * p + 1, len(frs))
    nm = sum(1 for it in main if it[0] == 'i' and it[1].startswith('v_mfma'))
    if p < 2:
        main = interleave(main, wd_moves(min(2 * QL, WD.moved + (args.wm0, args.wm1)[p], args.wmax)), 0)
    take = min(len(pend), (nm - 4) * args.gper // 2)
    run(pack(main, pend[:take], 4) if take else main)
    pend = pend[take:]
    if p == 3 or str(p) in args.tb:
        wd_pre(max(wd_done(), wd_est()))
        A.wait_lg()
        e('s_barrier')
        GU.pend = 16
        gu_post()
        after_bar4(7)
        if p == 3:
            q0 = max(QL, 4)
            wd_space(L_H2 + (q0 - 4) * 16384, 16 - 4 * (q0 - 4))
        wd_post()
    if p == args.gcut:
        A.bg_on = False
    if p < 3:
        for k in ([4 + p, p] if p < 2 else [p]):
            pend += glu(k, args.gper == 0)
assert wdn == 20
stamp('gemm4')
run(pend)
run(glu(3, True))
fine('hst')
A.bg_flush(args.b4)
assert not any(t == 'gp' and 'v11' in l[-1] for l, t in A.bg)
e(f"""v_lshrrev_b32 v11, 1, {V_G}
      v_lshlrev_b32 v11, 10, v11
      v_and_b32 v5, 1, {V_G}
      v_lshl_add_u32 v11, v5, 9, v11
      v_lshl_add_u32 v11, {V_C}, 4, v11""")
run(wd_moves(min(16, max(6, WD.moved + args.wmd))))
A.wait_lg()
publish_flag(192, 'hst')
WD.pend = wd_done()
wd_post()
e(poll_ld(192), tag='poll')
stamp('hpub')

A.bg_flush(args.b5)
run(wd_moves(min(NWB, WD.moved + args.wmp)))
poll_check(192)
stamp('hwait')
print('wd: queued', WD.queued, 'landed', WD.landed, 'moved', WD.moved, file=sys.stderr)
assert WD.queued == 43
HA, ACC5, NH = 80, 64, 16
hl = []
for ks in range(43):
    pre = [f's_add_u32 s28, {S_HLD}, {ks * 2048}'] if ks % 2 == 0 else []
    hl.append((pre + [f'buffer_load_dwordx4 {vr(HA + 4 * (ks % NH))}, v11, {SRD_WS}, s28 offen offset:{(ks % 2) * 2048} sc1'], f'h{ks}'))
A.bg_flush()
A.bg = hl[:NH]
run(interleave(wd_moves(NWB) or [('i', 's_nop 0')], [('f', lambda: A.bg_flush(1))] * 12, 0, 72, pred=lambda t: True))
A.bg_on = False
for ks in range(43):
    if WD.landed < 43 and (ks == args.kbar or WD.moved == WD.landed):
        A.wait_vm('wd42')
        e('s_barrier')
        WD.landed = 43
        fine('wdall')
    if WD.moved <= ks:
        run(wd_moves(ks + 2))
    n0 = len(A.ins)
    A.wait_vm(f'h{ks}')
    A.wait_lg(f't{ks}')
    if len(A.ins) == n0 + 2 and all(i.op == 's_waitcnt' for i in A.ins[n0:]):
        b_, a_ = A.ins.pop(), A.ins.pop()
        A._emit(a_.text + ' ' + b_.text.split(None, 1)[1], None, False)
    nxt = wd_moves(min(WD.moved + 1, ks + NWB + 1)) if (43 - WD.moved) * args.trsp >= (43 - ks - 6) * 10 or WD.moved - ks < 4 else []
    for ct in range(4):
        e(f'v_mfma_f32_16x16x32_bf16 {vr(ACC5 + 4 * ct)}, {wd_reg(ks, ct)}, {vr(HA + 4 * (ks % NH))}, {"0" if ks == 0 else vr(ACC5 + 4 * ct)}')
        if ct == 0:
            A.bg_flush(1)
        run(nxt[2 * ct:2 * ct + 2])
    if ks + NH < 43:
        A.bg.append(hl[ks + NH])
    if ks == 40:
        e(f'''v_add_u32 v4, {-L_XR & 0xffffffff}, v{V_WDD}
              s_lshl_b32 s12, {S_W1K}, 1
              v_add_u32 v5, s12, {V_L16}
              s_add_u32 s12, {S_XOFF}, 16384''')
        XF5 = 80
        for i in range(8):
            e(f'''v_lshlrev_b32 v{XF5 + 2 * i}, 16, v{X1P + i}
                  v_and_b32 v{XF5 + 2 * i + 1}, {S_HI}, v{X1P + i}''')
assert WD.moved == 43
A.bg_on = False
stamp('gemm5')
for b in range(0, 16, 2):
    e(f'v_pk_fma_f32 {vr(ACC5 + b, 2)}, {vr(ACC5 + b, 2)}, {vr(GB + b, 2)}, {vr(XF5 + b, 2)}')
for i in range(8):
    e(f'v_cvt_pk_bf16_f32 v{X1P + i}, v{ACC5 + 2 * i}, v{ACC5 + 2 * i + 1}')
if args.olds:
    for ct in range(4):
        e(f'ds_write_b64 v4, {vr(X1P + 2 * ct, 2)} offset:{ct * 32}')
    for p in range(2):
        e(f'ds_read_b128 {vr(96 + 4 * p)}, v5 offset:{p * 1024}', tag=f'ot{p}')
    for p in range(2):
        A.wait_lg(f'ot{p}')
        e(f'buffer_store_dwordx4 {vr(96 + 4 * p)}, v{V_XO}, {SRD_OUT}, {(S_XOFF, "s12")[p]} offen {args.outm}')
else:
    e(f'''v_lshlrev_b32 v6, 11, {V_C}
          v_and_b32 v7, 1, {V_G}
          v_lshl_add_u32 v6, v7, 5, v6
          v_lshrrev_b32 v7, 1, {V_G}
          v_lshl_add_u32 v6, v7, 4, v6''')
    for p in range(2):
        for d in range(2):
            e(f'v_permlane16_swap_b32 v{X1P + 4 * p + d}, v{X1P + 4 * p + 2 + d}')
    for p in range(2):
        e(f'buffer_store_dwordx4 {vr(X1P + 4 * p)}, v6, {SRD_OUT}, {S_XOFF} offen offset:{p * 64} {args.outm}')
if args.stamps:
    stamp('end')
    e(f'''s_lshl_b32 s12, s2, 2
          s_add_u32 s12, s12, {S_W}
          s_lshl_b32 s12, s12, 8
          s_add_u32 s12, s12, {WS_STAMP}
          v_lshlrev_b32 v4, 2, {V_LANE}
          buffer_store_dword {V_STAMP}, v4, {SRD_WS}, s12 offen''')
    if args.dbg >= 0:
        e(f'''s_lshl_b32 s12, s2, 2
              s_add_u32 s12, s12, {S_W}
              s_cmp_lg_u32 s12, {args.dbg * 4}
              s_cbranch_scc1 L_giveup
              s_load_dwordx2 s[14:15], s[0:1], 80
              v_readlane_b32 s12, {V_STAMP}, 0
              s_waitcnt lgkmcnt(0)
              v_subrev_u32 v5, s12, {V_STAMP}
              global_store_dword v4, v5, s[14:15]''')
if args.padph:
    i_, j_ = [stamp_names.index(n) for n in args.padph.split(',')]
    e(f'''v_readlane_b32 s12, {V_STAMP}, {j_}
          v_readlane_b32 s13, {V_STAMP}, {i_}
          v_readlane_b32 s16, {V_STAMP}, {stamp_names.index('end')}
          s_sub_u32 s12, s12, s13
          s_add_u32 s12, s12, s16''')
    if args.padx >= 0:
        e(f's_cmp_lg_u32 {S_XCC}, {args.padx}\n s_cbranch_scc1 L_giveup')
    A.label('L_pad2')
    e('''s_memrealtime s[14:15]
         s_waitcnt lgkmcnt(0)
         s_sub_u32 s13, s14, s12
         s_cmp_lt_i32 s13, 0
         s_cbranch_scc1 L_pad2''')
if args.padto:
    e(f'''v_readlane_b32 s12, {V_STAMP}, 0
          s_add_u32 s12, s12, {args.padto}''')
    A.label('L_pad')
    e('''s_memrealtime s[14:15]
         s_waitcnt lgkmcnt(0)
         s_sub_u32 s13, s14, s12
         s_cmp_lt_i32 s13, 0
         s_cbranch_scc1 L_pad''')
A.label('L_giveup')
e('s_endpgm')
assert not A.bg and not PIECES

nn = A.pad_hazards()
hdr = open(f'cdna_kernels/{NAME}.s.ref').read().split('; Override launch')[0]
wrap = lambda body: hdr + f'''; @launch grid=(256,1,1) block=(256,1,1) lds={LDS_TOTAL}
.amdgcn_target "amdgcn-amd-amdhsa--gfx950"
.text
.globl {NAME}_kernel
.p2align 8
.type {NAME}_kernel,@function
{NAME}_kernel:
''' + body + f'''.rept 256
    s_endpgm
.endr
L_codeend:
.section .rodata,"a"
.p2align 6
.amdhsa_kernel {NAME}_kernel
  .amdhsa_next_free_vgpr 512
  .amdhsa_next_free_sgpr 102
  .amdhsa_accum_offset 256
  .amdhsa_group_segment_fixed_size 0
  .amdhsa_kernarg_size 96
  .amdhsa_user_sgpr_count 2
  .amdhsa_user_sgpr_kernarg_segment_ptr 1
  .amdhsa_system_sgpr_workgroup_id_x 1
.end_amdhsa_kernel
'''
if args.align:
    print('align', align_pass(A, wrap, args.align), file=sys.stderr)
out = wrap(A.text())
if args.stamps or args.stop1:
    out += '; stamps: ' + ','.join(stamp_names) + '\n'
open(args.o, 'w').write(out)
if args.vlog:
    ev = sorted([(t, 'S', n) for n, t in model] + [(t, 'V', f'{tag}->{c}') for t, c, tag in A.log])
    print(' '.join((f'\n=={n}@{int(t)}==' if k == 'S' else f'{int(t)}:{n}') for t, k, n in ev), file=sys.stderr)
print('nvm', len(A.log), file=sys.stderr)
print('model: ' + ' '.join(f'{n}:{int(t)}' for n, t in model), file=sys.stderr)
print(f'wrote {args.o}: {len(A.ins)} instructions, {nn} hazard nops', file=sys.stderr)
```

```python
import sys, argparse
from contextlib import contextmanager
from asmlib import Asm, align_pass

NAME = "adaLN_cond__sliding_local_dilated__glu_gated_glu__prompt"
ap = argparse.ArgumentParser()
ap.add_argument('-o', default=f'cdna_kernels/{NAME}.s')
ap.add_argument('--stamps', action='store_true')
ap.add_argument('--cyc', action='store_true')
ap.add_argument('--fine', action='store_true')
ap.add_argument('--slow', action='store_true')
ap.add_argument('--x', default='')
ap.add_argument('--vlog', action='store_true')
ap.add_argument('--align', type=int, default=5)
ap.add_argument('--stop1', action='store_true')
ap.add_argument('--outm', default='nt')
ap.add_argument('--touch', action='store_true')
ap.add_argument('--s1', action='store_true')
for k, d in dict(gapa=64, gapaware=1, c3=1, pfx=0, pfy=0, pfz=0, x0=2, bpos=8, h2o=1, ot=0, ht=0, gpl=1800, acut=70, gap0=64, gap1=64, gap4=64, gap5=64, s0=4, pfe2=3, pf0=4, b1=7, b1d=0, b2a=0, b2c=3, b2d=3, y0=4, slack=0, b1c=8, b2=5, b2b=2, b3=12, b4=6, win=11, gcut=2, tailq=2, gper=6, b5=6, hfirst=0, kbar=8, lat0=2900).items():
    ap.add_argument('--' + k, type=int, default=d)
args = ap.parse_args()
args.wt = not args.touch

A = Asm()
e = A.e
A.win = args.win
A.lat = {'xpf': (args.lat0, 2.5), 'x': (650, 1), 'gp': (args.gpl, .4), 'gq': (1800, 1.5), 'mtb': (1500, .8), 'mt': (1800, .8), 'ost': (400 if args.ot else 800, .1), 'xst': (400 if args.h2o else 800, .1),
         'hst': (400 if args.ht else 800, .1), 'poll': (650, .1), 'xr': (800, 2), '': (400, .1), 'p4w': (1100, 1.35), 'stt': (1400, .25), 'st': (650, 1), 'sst': (400, .1), 'mg': (1100, .25),
         'm': (1100, 1), 'o': (650 if args.ot else 1100, 1), 'y': (650 if args.h2o else 1100, 1), 'h': (650 if args.ht else 1100, 1), 'tch': (1600, 1)}
model = []

WS_O = 0x30000
WS_X1 = 0x50000
WS_STATS = 0x70000
WS_HH = 0x80000
HH_PITCH = 0x2C000
WS_GRP = 0xF0000
WS_MODP = 0xE0000
WS_EPOCH = 0xEF000
WS_STAMP = 0x1000000
WS_SIZE = 0x1100000 if args.stamps else 0x1000000

L_STATS, L_RED, L_MODV, L_GAGB = 0x0, 0xA00, 0x1000, 0x2000
L_HRING = 0x3000
L_B = [0x3000, 0xF000, 0x1B000, 0xF000]
L_WO = 0x17000
L_H2 = 0x17000
BLK, MAT1 = 12416, 6176
L_S = 0x3000
L_WD = 0x3000
LDS_TOTAL = 163840

S_W, S_RB, S_M, S_J, S_TAG, S_FAST, S_XCC = 's4', 's5', 's6', 's7', 's8', 's9', 's11'
SRD_X, SRD_WQKV, SRD_WO, SRD_WG, SRD_WU, SRD_WD, SRD_WMOD, SRD_OUT, SRD_WS, SRD_C = [
    f's[{b}:{b + 3}]' for b in range(40, 80, 4)]
S_GRP, S_ONES, S_HI, S_SPIN = 's84', 's85', 's86', 's87'
S_XOFF, S_NU, S_U0, S_COL = 's88', 's89', 's90', 's91'
SRD_GU = 's[92:95]'
S_MM4, S_GUM, S_H2M = 's80', 's81', 's39'
S_OST, S_X1ST, S_HST, S_STST = 's96', 's97', 's98', 's99'
S_HST2 = 's83'
S_W3K, S_M128, S_BT, S_W1K = 's20', 's21', 's22', 's23'
S_OLD, S_X1LD, S_STLD, S_HLD = 's35', 's36', 's37', 's38'
V_LANE, V_L16, V_G, V_C = 'v0', 'v1', 'v2', 'v3'
V_DUM, V_STAMP = 'v10', 'v15'
V_WOD, V_P4D, V_OST, V_XO, V_WDD, V_GB = 56, 57, 60, 61, 62, 63
PD = 'v[116:119]'


def vr(b, n=4):
    return f'v[{b}:{b + n - 1}]'


def ar(b, n=4):
    return f'a[{b}:{b + n - 1}]'


@contextmanager
def nobg():
    old = A.bg_on
    A.bg_on = False
    yield
    A.bg_on = old


nstamp = [0]
stamp_names = []


def stamp(name=''):
    model.append((name, A.t))
    if not args.stamps:
        return
    with nobg():
        e('s_memtime s[100:101]' if args.cyc else 's_memrealtime s[100:101]')
        stamp_names.append(name)
        A.wait_lg()
        e(f'v_writelane_b32 {V_STAMP}, s100, {nstamp[0]}')
    nstamp[0] += 1


def fine(name):
    if args.fine:
        stamp(name)


def lines(t):
    return [('i', l.split(';')[0].strip()) for l in t.split('\n') if l.split(';')[0].strip()]


def run(items):
    for it in items:
        if it[0] == 'i':
            e(it[1], tag=it[2] if len(it) > 2 else None)
        elif it[0] == 'wl':
            A.wait_lg(it[1])
        elif it[0] == 'wv':
            A.wait_vm(it[1])
        elif it[0] == 'f':
            it[1]()
        else:
            raise ValueError(it)


def is_mem(it):
    return it[0] == 'f' or (it[0] == 'i' and it[1].startswith(('ds_', 'buffer_')))


def is_valu(it):
    return it[0] == 'i' and it[1].startswith('v_') and not it[1].startswith('v_mfma')


def interleave(main, fill, start=0, end=None, pred=lambda t: t.startswith('v_mfma')):
    slots = [i for i, it in enumerate(main) if it[0] == 'i' and pred(it[1])]
    slots = slots[start:end]
    sset = {i: k for k, i in enumerate(slots)}
    out = []
    n = len(slots)
    done = 0
    i = 0
    while i < len(main):
        out.append(main[i])
        if i in sset:
            k = sset[i] + 1
            while i + 1 < len(main) and is_mem(main[i + 1]) and (i + 1) not in sset:
                i += 1
                out.append(main[i])
            upto = (len(fill) * k + n - 1) // n
            valu = False
            while done < upto:
                it = fill[done]
                if is_mem(it) and valu and k < n and args.gapaware:
                    break
                valu = valu or is_valu(it)
                out.append(it)
                done += 1
        i += 1
    out.extend(fill[done:])
    return out


def cost(it):
    if it[0] != 'i':
        return 1
    if it[1].startswith('ds_write_b128'):
        return 3
    if it[1].startswith(('v_exp', 'v_rcp', 'v_rsq')):
        return 2
    return 1


def pack(main, fill, start=0, end=None):
    gaps = []
    idx = [i for i, it in enumerate(main) if it[0] == 'i' and it[1].startswith('v_mfma')]
    for a, i in enumerate(idx):
        nxt = idx[a + 1] if a + 1 < len(idx) else len(main)
        j = i
        while j + 1 < nxt and is_mem(main[j + 1]):
            j += 1
        gaps.append((j, sum(cost(x) for x in main[i + 1:nxt])))
    gaps = gaps[start:end]
    total = sum(cost(x) for x in fill) + sum(c for _, c in gaps)
    at = {}
    done = 0
    acc = 0.0
    per = total / len(gaps)
    for k, (j, c) in enumerate(gaps):
        acc += per - c
        lst = []
        valu = False
        while done < len(fill) and (acc >= cost(fill[done]) - 0.5 or k == len(gaps) - 1):
            it = fill[done]
            if is_mem(it) and valu and k < len(gaps) - 1:
                break
            valu = valu or is_valu(it)
            lst.append(it)
            acc -= cost(it)
            done += 1
        at[j] = lst
    out = []
    for i, it in enumerate(main):
        out.append(it)
        out.extend(at.get(i, []))
    return out


def spin_fail(lbl_loop):
    e(f'''s_sub_u32 {S_SPIN}, {S_SPIN}, 1
          s_cmp_eq_u32 {S_SPIN}, 0
          s_cbranch_scc1 L_giveup
          s_branch {lbl_loop}''')


def checked(tag, loads, check):
    A.wait_vm(tag)
    with nobg():
        lc, lp, ld = A.newlabel('L_c'), A.newlabel('L_p'), A.newlabel('L_d')
        save = (list(A.vm), list(A.done), A.t, A.t_vm, list(A.log))
        e(f's_branch {lc}')
        A.label(lp)
        for l in loads:
            e(l)
        A.wait_vm()
        A.vm, A.done, A.t, A.t_vm, A.log = save
        A.label(lc)
        check()
        e(f's_cbranch_vccz {ld}')
        spin_fail(lp)
        A.label(ld)


def stores(lst, tag, optional=False, plain=False):
    with nobg():
        if not plain:
            for t in lst:
                e(t + ' sc1', tag=tag, optional=optional)
            return
        l1, l2 = A.newlabel('L_st'), A.newlabel('L_st')
        e(f"""s_cmp_lg_u32 {S_FAST}, 0
              s_cbranch_scc1 {l1}""")
        save = (list(A.vm), list(A.done), A.t, A.t_vm, list(A.log))
        for t in lst:
            e(t + ' sc1')
        e(f's_branch {l2}')
        A.vm, A.done, A.t, A.t_vm, A.log = save
        A.label(l1)
        for t in lst:
            e(t, tag=tag, optional=optional)
        A.label(l2)


def touch(pre, va, so, off=0, dst=None):
    dst = dst or PD
    if True:
        A.bg_add(pre + [f'buffer_load_dwordx4 {dst}, {va}, {SRD_WS}, {so} offen offset:{off} sc1'], 'tch')


def publish_flag(off, tag):
    with nobg():
        e(f'''s_add_u32 s12, {S_MM4}, {S_GRP}
              v_mov_b32 v5, {S_TAG}''')
        if off == 64:
            e(f'''s_and_b32 s13, {S_MM4}, 32
                  v_and_b32 v9, 7, {V_LANE}
                  v_lshl_add_u32 v9, v9, 2, s13''')
        else:
            e(f'v_lshlrev_b32 v9, 2, {V_C}')
        A.wait_vm(tag)
        e('s_barrier')
        l1, l2 = A.newlabel('L_pf'), A.newlabel('L_pf')
        e(f'''s_cmp_lg_u32 {S_W}, 0
              s_cbranch_scc1 {l2}
              s_mov_b64 exec, 1
              s_cmp_lg_u32 {S_FAST}, 0
              s_cbranch_scc1 {l1}''')
        e(f'buffer_store_dword v5, off, {SRD_WS}, s12 offset:{off} sc1', optional=True)
        e(f'''s_mov_b64 exec, -1
              s_branch {l2}''')
        A.label(l1)
        e(f'buffer_store_dword v5, off, {SRD_WS}, s12 offset:{off}', optional=True)
        e('s_mov_b64 exec, -1')
        A.label(l2)


def poll_ld(off):
    return f'buffer_load_dword v8, v9, {SRD_WS}, {S_GRP} offen offset:{off} sc1'


def poll_check(off):
    with nobg():
        checked('poll', [poll_ld(off)], lambda: e(f'v_cmp_ne_u32 vcc, {S_TAG}, v8'))


def st_loads(t0):
    return [f'buffer_load_dwordx4 {vr(t0 + 4 * p)}, {V_L16}, {SRD_WS}, {S_STLD} offen offset:{p * 1024} sc1' for p in range(2)]


def mod_loads(va, t0):
    return [f'buffer_load_dwordx4 {vr(t0 + 4 * p)}, {va}, {SRD_WS}, s{24 + p} offen sc1' for p in range(4)]


def mod_check(va, t0, tag, lds_v, addone_v):
    def chk():
        e(f's_and_b32 s13, {S_TAG}, 0xff')
        for i in range(16):
            e(f'v_xor_b32 v{t0 + i}, s13, v{t0 + i}')
        e(f'v_or3_b32 v5, v{t0}, v{t0 + 1}, v{t0 + 2}')
        e(f'v_or3_b32 v6, v{t0 + 3}, v{t0 + 4}, v{t0 + 5}')
        for i in range(6, 14, 4):
            e(f'v_or3_b32 v5, v5, v{t0 + i}, v{t0 + i + 1}')
            e(f'v_or3_b32 v6, v6, v{t0 + i + 2}, v{t0 + i + 3}')
        e(f'v_or3_b32 v5, v5, v{t0 + 14}, v{t0 + 15}')
        e(f'''v_or_b32 v5, v5, v6
              v_and_b32 v5, 0xff, v5
              v_cmp_ne_u32 vcc, 0, v5''')
    checked(tag, mod_loads(va, t0), chk)
    for i in range(0, 4, 2):
        e(f'v_pk_add_f32 {vr(t0 + i, 2)}, {vr(t0 + i, 2)}, {vr(t0 + 4 + i, 2)}')
        e(f'v_pk_add_f32 {vr(t0 + 8 + i, 2)}, {vr(t0 + 8 + i, 2)}, {vr(t0 + 12 + i, 2)}')
    for i in range(0, 4, 2):
        e(f'v_pk_add_f32 {vr(t0 + i, 2)}, {vr(t0 + i, 2)}, {vr(t0 + 8 + i, 2)}')
    for rnd in range(2):
        e(f'v_cvt_pk_bf16_f32 v5, v{t0}, v{t0 + 1}')
        e(f'v_cvt_pk_bf16_f32 v6, v{t0 + 2}, v{t0 + 3}')
        e(f'v_lshlrev_b32 v{t0}, 16, v5')
        e(f'v_and_b32 v{t0 + 1}, {S_HI}, v5')
        e(f'v_lshlrev_b32 v{t0 + 2}, 16, v6')
        e(f'v_and_b32 v{t0 + 3}, {S_HI}, v6')
        if rnd == 0:
            if addone_v is None:
                break
            for i in range(4):
                e(f'v_add_f32 v{t0 + i}, v{t0 + i}, {addone_v}')
    e(f'ds_write_b128 {lds_v}, {vr(t0)}', tag='modw')


def mod_task_loads(base, cond, tag, rr=vr, va='v74', vc='v75'):
    l = A.newlabel('L_ml')
    with nobg():
        e(cond + f'\n s_cbranch_scc0 {l}')
        e(f'buffer_load_dwordx2 {rr(base + 16, 2)}, {vc}, {SRD_C}, s33 offen', tag=tag, optional=True)
        for i in range(4):
            e(f'buffer_load_dwordx4 {rr(base + 4 * i)}, {va}, {SRD_WMOD}, s{29 + i} offen', tag=tag, optional=True)
        A.label(l)


def mod_part1(base, t, ad, from_a=None, c0=None, fma=False):
    x = ''
    c0 = c0 or base + 16
    if from_a is not None:
        for i in range(18):
            x += f'v_accvgpr_read_b32 v{base + i if i < 16 else c0 + i - 16}, a{from_a + i}\n'
    x += f"""v_lshlrev_b32 v{t + 8}, 16, v{c0}
          v_and_b32 v{t + 9}, {S_HI}, v{c0}
          v_lshlrev_b32 v{t + 10}, 16, v{c0 + 1}
          v_and_b32 v{t + 11}, {S_HI}, v{c0 + 1}
          """
    for op in ('v_mul_f32 v{a}, 0xbfb8aa3b, v{b}', 'v_exp_f32 v{a}, v{a}', 'v_add_f32 v{a}, 1.0, v{a}', 'v_rcp_f32 v{a}, v{a}', 'v_mul_f32 v{b}, v{b}, v{a}'):
        for i in range(4):
            x += op.format(a=t + 12 + i, b=t + 8 + i) + '\n'
    MA = t + 8
    if fma:
        for i in range(4):
            x += f'v_cvt_pk_bf16_f32 v{t + i}, 0, v{t + 8 + i}\n'
        for i in range(4):
            for d in range(4):
                x += f'v_lshlrev_b32 v{t + 4}, 16, v{base + 4 * i + d}\n v_and_b32 v{t + 5}, {S_HI}, v{base + 4 * i + d}\n'
                for h in range(2):
                    if i == 0:
                        x += f'v_mul_f32 v{MA + 2 * d + h}, v{t + 4 + h}, v{t + i}\n'
                    else:
                        x += f'v_fma_f32 v{MA + 2 * d + h}, v{t + 4 + h}, v{t + i}, v{MA + 2 * d + h}\n'
    else:
        for i in range(4):
            x += f'v_cvt_pk_bf16_f32 v{t + i}, v{t + 8 + i}, 0\n'
            x += f'v_cvt_pk_bf16_f32 v{t + 4 + i}, 0, v{t + 8 + i}\n'
        for i in range(4):
            for d in range(4):
                for h in range(2):
                    src2 = '0' if i == 0 else f'v{MA + 2 * d + h}'
                    x += f'v_dot2_f32_bf16 v{MA + 2 * d + h}, v{base + 4 * i + d}, v{t + 4 * h + i}, {src2}\n'
    x += f"""v_and_b32 v{ad}, 7, {V_LANE}
          v_lshlrev_b32 v{ad}, 5, v{ad}
          v_and_b32 v{ad + 1}, 1, {V_G}
          v_lshl_add_u32 v{ad}, v{ad + 1}, 3, v{ad}
          """
    for p in range(4):
        x += f'v_permlane32_swap_b32 v{MA + 2 * p}, v{MA + 2 * p + 1}\n'
    for p in range(4):
        x += f'v_add_f32 v{MA + 2 * p}, v{MA + 2 * p}, v{MA + 2 * p + 1}\n'
    x += f"""v_lshrrev_b32 v{ad + 1}, 1, {V_G}
          v_lshl_add_u32 v{ad}, v{ad + 1}, 2, v{ad}
          """
    for p in range(2):
        x += f'v_permlane16_swap_b32 v{MA + 4 * p}, v{MA + 4 * p + 2}\n'
    for p in range(2):
        x += f'v_add_f32 v{MA + 4 * p}, v{MA + 4 * p}, v{MA + 4 * p + 2}\n'
    x += f"""s_lshl_b32 s28, {S_W}, 8
          v_add_u32 v{ad}, s28, v{ad}
          """
    for p in range(2):
        x += f'v_add_f32_dpp v{MA + 4 * p + 1}, v{MA + 4 * p}, v{MA + 4 * p} row_ror:8 row_mask:0xf bank_mask:0xf\n'
    x += f'ds_write_b32 v{ad}, v{MA + 1} offset:{L_RED}\n'
    x += f'ds_write_b32 v{ad}, v{MA + 5} offset:{L_RED + 16}\n'
    return lines(x)


def mod_part2(base, lm, wave):
    e(f"""s_cmp_lg_u32 {S_W}, {wave}
          s_cbranch_scc1 {lm}
          v_lshlrev_b32 v4, 4, {V_C}""")
    for w in range(4):
        e(f'ds_read_b128 {vr(base + 4 * w)}, v4 offset:{L_RED + w * 256}')
    e(f"""s_and_b32 s13, {S_TAG}, 0xff
          s_mov_b32 s14, 0xffffff00
          v_mov_b32 v5, s13
          s_and_b32 s12, s3, 3
          s_mul_i32 s12, s12, 12288
          s_lshr_b32 s13, s3, 2
          s_lshl_b32 s13, s13, 8
          s_add_u32 s12, s12, s13
          s_add_u32 s12, s12, {WS_MODP}""")
    e('s_waitcnt lgkmcnt(0)')
    for i in range(0, 4, 2):
        e(f'v_pk_add_f32 {vr(base + i, 2)}, {vr(base + i, 2)}, {vr(base + 4 + i, 2)}')
        e(f'v_pk_add_f32 {vr(base + 8 + i, 2)}, {vr(base + 8 + i, 2)}, {vr(base + 12 + i, 2)}')
    for i in range(0, 4, 2):
        e(f'v_pk_add_f32 {vr(base + i, 2)}, {vr(base + i, 2)}, {vr(base + 8 + i, 2)}')
    for i in range(4):
        e(f'v_and_or_b32 v{base + i}, v{base + i}, s14, v5')
    e('s_mov_b64 exec, 0xffff')
    e(f'buffer_store_dwordx4 {vr(base)}, v4, {SRD_WS}, s12 offen sc1', optional=True)
    e('s_mov_b64 exec, -1')
    e('s_nop 0')


def dma_wqkv(j):
    for pos in range(4):
        ks = 4 * pos + j
        for mat in range(3):
            pre = [f's_add_u32 m0, {S_W3K}, {L_B[j] + pos * 12288}', f's_add_u32 {S_BT}, {S_M128}, {ks * 32 * 3072}'] if mat == 0 else []
            A.bg_add(pre + [f'buffer_load_dwordx4 v8, {SRD_WQKV}, {S_BT} offen offset:{mat * 1024} lds'], f'wq{j}')


def tr_wqkv(j):
    it = [('i', f'v_add_u32 v9, {(L_B[j] - L_B[j - 1]) & 0xffffffff}, v9')] if j else []
    return it + [('i', f'ds_read_b64_tr_b16 {ar(((j * 4 + pos) * 3 + mat) * 4 + hf * 2, 2)}, v9 offset:{pos * 12288 + mat * 1024 + hf * 512}', f'trq{pos}')
                 for pos in range(4) for mat in range(3) for hf in range(2)]


def dma_1k(srd, vreg, ks, ldsaddr, tag):
    A.bg_add([f's_add_u32 m0, {S_W1K}, {ldsaddr}', f's_add_u32 {S_BT}, {S_M128}, {ks * 32768}',
              f'buffer_load_dwordx4 v{vreg}, {srd}, {S_BT} offen lds'], tag)


def dma_p4(n):
    for i in range(3):
        A.bg_add([f's_add_u32 m0, {S_GUM}, {(n % 6) * BLK + i * 1024}', f's_add_u32 {S_BT}, {S_COL}, {n * 32 * 2752}',
                  f'buffer_load_dwordx4 v{V_P4D + i}, {SRD_GU}, {S_BT} offen lds'], f'p4w{n}')


class GU:
    queued = 0
    landed = 0
    moved = 0
    freed = 0


def gu_queue():
    while GU.queued < 16 and GU.queued < GU.freed + 6:
        dma_p4(GU.queued)
        GU.queued += 1


def gu_pre(upto):
    upto = max(upto, GU.landed)
    assert upto <= GU.queued
    if upto > GU.landed:
        A.wait_vm(f'p4w{upto - 1}')
    GU.pend = upto


def gu_post(lg_waited=True):
    GU.landed = GU.pend
    if lg_waited:
        GU.freed = GU.moved
    gu_queue()


def gu_done():
    live = {t for t, o in A.vm} | {t for l, t in A.bg}
    n = 0
    while n < GU.queued and f'p4w{n}' not in live:
        n += 1
    return n


def mover(n):
    return [('i', f'ds_read_b64_tr_b16 {ar(16 * n + 8 * par + 4 * i + 2 * hf, 2)}, v{20 + i + 2 * ((n % 6) // 3)} offset:{(n % 3) * BLK + (16 * hf + 8 * par) * 192}', f'mv{n}')
            for par in range(2) for i in range(2) for hf in range(2)]


def movers(limit=16):
    it = []
    while GU.moved < min(GU.landed, limit):
        it += mover(GU.moved)
        GU.moved += 1
    return it


def front(f):
    rest = list(A.bg)
    A.bg = []
    f()
    A.bg += rest


def c3(srd, piece):
    if args.c3:
        lo = srd[2:srd.index(':')]
        A.bg_add([f's_sub_u32 {S_BT}, 0x180, s{lo}', f's_and_b32 {S_BT}, {S_BT}, 0x380', f's_add_u32 {S_BT}, {S_BT}, {piece * 524288}',
                  f'buffer_load_dword {V_DUM}, {C3[0]}, {srd}, {S_BT} offen'], 'gp')


C3 = ['v55']


def gpf(srd, base):
    A.bg_add([f's_mov_b32 {S_BT}, {base}', f'buffer_load_dword {V_DUM}, v11, {srd}, {S_BT} offen'], 'gp')


Q = 128 * 2752
PIECES = [[(SRD_WO, 0), (SRD_WO, 393216)]] + [[(SRD_WG, q * Q), (SRD_WU, q * Q)] for q in range(4)] + \
         [[(SRD_WD, 0), (SRD_WD, 393216)], [(SRD_WD, 2 * 393216), (SRD_WD, 3 * 393216)]]


def bg_mix(every, first=0):
    old = A.bg
    A.bg = []
    k = first
    for it in old:
        if len(it[0]) > 1 and k >= every and PIECES:
            for p in PIECES.pop(0):
                gpf(*p)
            k = 0
        A.bg.append(it)
        k += 1


XRES, GAL, TRB = 88, 136, 84
MK, ONE = 168, 184


L_MASK, L_TRB = 0x27000, 0x2800


def tr_bases_t(dst, rowt, ft, ldsbase):
    t = f'''v_bfe_u32 v40, {V_LANE}, 2, 2
          v_and_b32 v41, 3, {V_LANE}
          {rowt}
          {ft}
          v_lshlrev_b32 v42, 7, v42
          v_and_b32 v40, 1, v41
          v_lshl_add_u32 v42, v40, 3, v42
          v_add_u32 v42, {ldsbase}, v42
          v_lshrrev_b32 v41, 1, v41
          '''
    for ct in range(4):
        t += f'''v_add_u32 v40, {2 * ct}, v41
              v_xor_b32 v40, v40, v43
              v_lshl_add_u32 v{dst + ct}, v40, 4, v42
              '''
    return t


def late_items():
    t = f"""v_lshlrev_b32 v80, 4, {V_C}
          v_lshl_add_u32 v80, {V_G}, 11, v80
          s_lshl_b32 s12, {S_M}, 8
          s_add_u32 s12, s12, {1024 * 4}
          v_add_u32 v80, s12, v80
          v_mov_b32 v81, v55
          s_add_u32 s12, {S_W1K}, {L_MODV}
          v_add_u32 v82, s12, {V_L16}
          v_cmp_eq_u32 vcc, 2, {V_G}
          v_mov_b32 v83, 0
          s_nop 0
          v_cndmask_b32 v83, v83, 1.0, vcc
          """
    t += tr_bases_t(TRB, f'v_lshl_add_u32 v42, {V_G}, 3, v40',
                    f'v_and_b32 v43, 2, v40\n v_and_b32 v44, 1, {V_G}\n v_lshl_add_u32 v43, v44, 2, v43', L_WO)
    return lines(t)


def mask_items():
    t = f'''s_sub_u32 s13, {S_RB}, 1
            s_lshr_b32 s13, s13, 31
            s_lshl_b32 s13, s13, 6
            s_mov_b32 s12, 0xf149f2ca
            v_lshlrev_b32 v40, 2, {V_G}
            v_mov_b32 v42, s12
         '''
    for r in range(4):
        t += f'''v_add_u32 v41, {r}, v40
          v_sub_u32 v43, {V_C}, v41
          v_cmp_gt_u32 vcc, 8, v43
          v_cmp_ge_i32 s[14:15], -9, v43
          v_add_u32 v43, s13, v43
          v_cndmask_b32 v{MK + r}, v42, 0, vcc
          v_cndmask_b32 v{MK + 4 + r}, v42, 0, s[14:15]
          v_cmp_ge_i32 vcc, -9, v43
          v_cmp_gt_i32 s[14:15], 0, v43
          v_cmp_lt_u32 s[18:19], 7, v41
          v_cndmask_b32 v{MK + 12 + r}, v42, 0, vcc
          v_cndmask_b32 v{MK + 8 + r}, v42, 0, s[14:15]
          v_cndmask_b32 v{MK + 8 + r}, v{MK + 8 + r}, v42, s[18:19]
          '''
    return lines(t)


srds = [(40, 0, 2048 * 1024), (64, 64, 512 * 6144), (76, 56, 1024), (44, 8, 512 * 3072), (72, 88, WS_SIZE), (48, 16, 512 * 1024),
        (52, 32, 512 * 2752), (56, 40, 512 * 2752), (60, 48, 1376 * 1024), (68, 72, 2048 * 1024)]
MW, XN, XRAW = 16, 80, 160
e(f"""s_cmp_ge_u32 s2, 256
      s_cbranch_scc1 L_giveup
      {'s_memtime s[100:101]' if args.cyc else 's_memrealtime s[100:101]' if args.stamps else ''}""")
for (d, off, sz) in srds[:5]:
    e(f's_load_dwordx2 s[{d}:{d + 1}], s[0:1], {off}')
e(f"""v_lshrrev_b32 v2, 6, v0
      v_and_b32 v0, 63, v0
      v_readfirstlane_b32 {S_W}, v2
      s_lshr_b32 {S_J}, s2, 3
      s_and_b32 s3, s2, 7
      s_lshr_b32 s10, {S_J}, 3
      s_lshl_b32 {S_RB}, s3, 2
      s_add_u32 {S_RB}, {S_RB}, s10
      s_and_b32 {S_M}, {S_J}, 7
      s_lshl_b32 s12, {S_M}, 2
      s_add_u32 s12, s12, {S_W}
      s_mul_i32 s12, s12, 20
      s_lshl_b32 s13, {S_RB}, 9
      s_add_u32 s12, s12, s13
      s_addk_i32 s12, -128
      v_add_lshl_u32 v7, s12, {V_LANE}, 7
      v_cmp_gt_u32 vcc, 20, {V_LANE}
      v_bfrev_b32 v6, -2
      s_mov_b32 s34, 0x20000
      s_mov_b32 s42, {2048 * 1024}
      v_cndmask_b32 v14, v6, v7, vcc
      s_mov_b32 s43, s34
      s_getpc_b64 s[14:15]
      v_lshlrev_b32 {V_L16}, 4, {V_LANE}
      s_lshl_b32 s12, {S_J}, 2
      s_add_u32 s12, s12, {S_W}
      s_and_b32 s12, s12, 63
      s_min_u32 s12, s12, (L_codeend-{NAME}_kernel)/1024-1
      s_lshl_b32 s12, s12, 10
      s_and_b32 s14, s14, 0xffffff00
      v_add_u32 v4, s12, {V_L16}""")
e(f'global_load_dwordx4 a[244:247], v4, s[14:15]')
A.wait_lg()
A.t = 1100
e(f'buffer_load_dword {V_DUM}, v14, {SRD_X}, 0 offen', tag='xpf')
if args.stamps:
    e(f'v_mov_b32 {V_STAMP}, 0')
    e(f'v_writelane_b32 {V_STAMP}, s100, 0')
    stamp_names.append('entry'); nstamp[0] += 1
e(f's_load_dword s8, s[72:73], {WS_EPOCH}')
for (d, off, sz) in srds[5:]:
    e(f's_load_dwordx2 s[{d}:{d + 1}], s[0:1], {off}')
for (d, off, sz) in srds[1:4]:
    e(f"""s_mov_b32 s{d + 2}, {sz}
          s_mov_b32 s{d + 3}, s34""")
e(f"""s_and_b32 s10, {S_J}, 3
      s_lshr_b32 s12, {S_J}, 2
      s_lshl_b32 s13, s12, 1
      s_add_u32 s13, s13, s10
      s_add_u32 s13, s13, 7
      s_cmp_eq_u32 s10, 0
      s_cselect_b32 s12, s12, s13
      s_lshl_b32 s12, s12, 3
      s_add_u32 s3, s3, s12
      s_lshl_b32 s12, {S_W}, 3
      v_lshrrev_b32 v76, 3, {V_LANE}
      v_add_u32 v76, s12, v76
      v_and_b32 v77, 7, {V_LANE}
      v_lshlrev_b32 v75, 3, v76
      v_mul_u32_u24 v74, {4 * 6144}, v76
      v_lshl_add_u32 v74, v77, 4, v74
      s_and_b32 s13, s3, 3
      s_lshr_b32 s14, s3, 2
      s_mul_i32 s29, s13, {128 * 6144}
      s_lshl_b32 s30, s14, 7
      s_add_u32 s29, s29, s30
      s_lshl_b32 s33, s13, 8
      s_add_u32 s30, s29, 6144
      s_add_u32 s31, s29, {2 * 6144}
      s_add_u32 s32, s29, {3 * 6144}""")
COND_A = 's_cmp_eq_u32 s10, 0'
COND_B = 's_sub_u32 s12, s10, 1\n s_cmp_lt_u32 s12, 2'
mod_task_loads(MW, COND_A, 'mt')
e(f"""s_lshl_b32 s15, s2, 2
      s_add_u32 s15, s15, {S_W}
      s_mul_i32 s12, s15, 12
      v_add_lshl_u32 v7, s12, {V_LANE}, 7
      v_cmp_gt_u32 vcc, 12, {V_LANE}
      v_lshrrev_b32 v12, 2, {V_LANE}        ; c4   (x lane map: c4 = l/4, g4 = l%4)
      v_and_b32 v13, 3, {V_LANE}            ; g4
      v_cndmask_b32 v54, v6, v7, vcc
      s_lshl_b32 s12, {S_J}, 2
      s_add_u32 s12, s12, {S_W}
      s_lshl_b32 s12, s12, 2
      v_add_lshl_u32 v7, s12, {V_LANE}, 10
      v_cmp_gt_u32 vcc, 4, {V_LANE}
      s_nop 1
      v_cndmask_b32 v55, v6, v7, vcc
      v_lshlrev_b32 v4, 11, v12
      v_lshl_add_u32 v4, v13, 4, v4
      s_lshl_b32 s16, {S_RB}, 16
      s_lshl_b32 s17, {S_W}, 8
      s_add_u32 s16, s16, s17
      s_add_u32 s18, s16, 32768""")


def xload(T, j, bg=False):
    q = 5 * j + T
    if T < 4:
        l = f'buffer_load_dwordx4 {vr(XRAW + 4 * q)}, v4, {SRD_X}, {"s16" if T < 2 else "s18"} offen offset:{(T % 2) * 1024 + j * 64}'
    else:
        l = f'buffer_load_dwordx4 {vr(XRAW + 4 * q)}, v5, {SRD_X}, s17 offen offset:{j * 64}'
    if bg:
        A.bg_add([l], f'x{T}')
    else:
        e(l, tag=f'x{T}')


e(f'buffer_load_dword {V_DUM}, v54, {SRD_WQKV}, 0 offen', tag='gq')
for k in range(3):
    c3(SRD_WQKV, k)
A.bg_flush()
for j in range(args.x0):
    xload(0, j)
fine('start')

for (d, off, sz) in srds[4:]:
    e(f"""s_mov_b32 s{d + 2}, {sz}
          s_mov_b32 s{d + 3}, s34""")
e(f"""s_mul_i32 s12, s15, 3
      v_add_lshl_u32 v7, s12, {V_LANE}, 7
      v_cmp_gt_u32 vcc, 3, {V_LANE}
      v_lshrrev_b32 {V_G}, 4, {V_LANE}
      v_and_b32 {V_C}, 15, {V_LANE}
      v_cndmask_b32 v11, v6, v7, vcc
      v_lshlrev_b32 v5, 1, v12
      v_cmp_lt_u32 vcc, 7, v12
      v_mov_b32 v6, -16
      v_mov_b32 v7, -31
      s_lshl_b32 s15, {S_RB}, 6
      v_cndmask_b32 v6, v6, v7, vcc
      v_add3_u32 v5, v5, v6, s15
      v_max_i32 v5, 0, v5
      v_lshlrev_b32 v5, 10, v5
      v_lshl_add_u32 v5, v13, 4, v5
      v_bfe_u32 v6, {V_LANE}, 4, 1
      s_and_b32 s12, {S_W}, 1
      s_lshl_b32 s12, s12, 1
      v_add_u32 v6, s12, v6
      v_lshlrev_b32 v6, 1, v6
      v_xor_b32 v6, v77, v6
      v_lshlrev_b32 v6, 4, v6
      v_mul_u32_u24 v8, 3072, v76
      v_add_u32 v8, v8, v6
      v_lshl_add_u32 v{V_WOD}, v76, 10, v6
      v_lshlrev_b32 v6, 1, {V_G}
      v_xor_b32 v6, v77, v6
      v_lshlrev_b32 v6, 4, v6
      v_lshl_add_u32 v{V_WDD}, v76, 10, v6
      s_mul_i32 {S_W3K}, {S_W}, 3072
      s_lshl_b32 {S_M128}, {S_M}, 7
      s_lshl_b32 {S_W1K}, {S_W}, 10
      s_getreg_b32 {S_XCC}, hwreg(HW_REG_XCC_ID)
      s_and_b32 {S_XCC}, {S_XCC}, 15
      s_mov_b32 {S_ONES}, 0x3f803f80
      s_mov_b32 {S_HI}, 0xffff0000
      s_mov_b32 {S_SPIN}, 0x40000
      s_lshr_b32 {S_GRP}, {S_RB}, 1
      s_lshl_b32 s82, {S_GRP}, 20
      s_add_u32 {S_GRP}, s82, {WS_GRP}
      v_bfe_u32 v78, {V_LANE}, 2, 2          ; r4
      v_mul_u32_u24 v9, 3072, {V_G}
      v_lshl_add_u32 v9, v78, 7, v9
      v_and_b32 v78, 2, v78
      v_and_b32 v6, 1, {V_G}
      v_lshl_add_u32 v78, v6, 2, v78         ; 2f
      v_lshrrev_b32 v6, 1, v13               ; cc/2
      s_lshl_b32 s12, {S_W}, 1
      v_add_u32 v6, s12, v6
      v_xor_b32 v6, v6, v78
      v_lshl_add_u32 v9, v6, 4, v9
      v_and_b32 v79, 1, v13
      v_lshl_add_u32 v9, v79, 3, v9
      v_add_u32 v9, {L_B[0]}, v9""")
for p in range(4):
    e(f's_mov_b32 s{24 + p}, {WS_MODP + p * 12288}')
e(f's_mov_b32 s12, {(1 << 32) // 12 + 1}')
for i in range(3):
    e(f"""v_add_u32 v6, {64 * i}, {V_LANE}
          v_mul_hi_u32 v7, v6, s12
          v_mul_u32_u24 v78, 12, v7
          v_sub_u32 v6, v6, v78
          v_mul_u32_u24 v7, 2752, v7
          v_lshl_add_u32 v{V_P4D + i}, v6, 4, v7""")
e(f"""s_and_b32 s12, {S_RB}, 1
      s_lshl_b32 s12, s12, 3
      s_add_u32 s12, s12, {S_M}
      s_lshl_b32 {S_MM4}, s12, 2
      s_mul_i32 s12, s12, 43
      s_add_u32 s13, s12, 43
      s_lshr_b32 s12, s12, 4
      s_lshr_b32 s13, s13, 4
      s_sub_u32 {S_NU}, s13, s12
      s_lshl_b32 {S_U0}, s12, 1
      s_lshr_b32 s13, {S_W}, 1
      s_mul_i32 s14, s13, {16 * 2752}
      s_lshl_b32 {S_COL}, s12, 6
      s_add_u32 {S_COL}, {S_COL}, s14
      s_mul_i32 s13, s13, 3072
      s_and_b32 s14, {S_W}, 1
      s_mul_i32 s14, s14, {MAT1}
      s_add_u32 s13, s13, s14
      s_add_u32 {S_GUM}, s13, {L_S}
      s_lshl_b32 s13, {S_W}, 12
      s_add_u32 {S_H2M}, s13, {L_H2}
      v_and_b32 v78, 1, {V_G}
      v_lshrrev_b32 v79, 1, {V_G}
      v_lshlrev_b32 v6, 14, v78
      v_lshl_add_u32 v6, v79, 8, v6
      v_lshl_add_u32 v{V_OST}, {V_C}, 4, v6
      v_lshlrev_b32 v6, 11, {V_C}
      v_lshl_add_u32 v6, v78, 5, v6
      v_lshl_add_u32 v{V_XO}, v79, 4, v6
      s_lshr_b32 s12, {S_W}, 1
      s_lshl_b32 s12, s12, 15
      s_and_b32 s13, {S_W}, 1
      s_lshl_b32 s13, s13, 10
      s_add_u32 s12, s12, s13
      s_lshl_b32 s13, {S_RB}, 16
      s_add_u32 s12, s12, s13
      s_add_u32 {S_XOFF}, s12, {S_M128}
      s_and_b32 s15, {S_RB}, 1
      s_lshl_b32 s14, s15, 16
      s_add_u32 s14, s14, s82
      s_lshl_b32 s12, {S_M}, 11
      s_lshl_b32 s13, {S_W}, 9
      s_add_u32 s12, s12, s13
      s_add_u32 s12, s12, s14
      s_add_u32 {S_OST}, s12, {WS_O}
      s_lshl_b32 s12, {S_W}, 14
      s_add_u32 s12, s12, s14
      s_add_u32 {S_OLD}, s12, {WS_O}
      s_lshl_b32 s13, {S_M}, 11
      s_add_u32 s12, s12, s13
      s_add_u32 {S_X1ST}, s12, {WS_X1}
      s_lshr_b32 s13, {S_W}, 1
      s_lshl_b32 s13, s13, 10
      s_add_u32 s12, s82, s13
      s_and_b32 s13, {S_W}, 1
      s_lshl_b32 s13, s13, 16
      s_add_u32 s12, s12, s13
      s_add_u32 {S_X1LD}, s12, {WS_X1}
      s_lshl_b32 s12, s15, 13
      s_lshl_b32 s13, {S_W}, 11
      s_add_u32 s12, s12, s13
      s_add_u32 s12, s12, s82
      s_add_u32 {S_STLD}, s12, {WS_STATS}
      s_lshl_b32 s13, {S_M}, 8
      s_add_u32 {S_STST}, {S_STLD}, s13
      s_and_b32 s12, {S_W}, 1
      s_xor_b32 s13, s12, 1
      s_mul_i32 s12, s12, {HH_PITCH}
      s_mul_i32 s13, s13, {HH_PITCH}
      s_add_u32 s14, {S_U0}, {S_W}
      s_lshl_b32 s14, s14, 10
      s_add_u32 s14, s14, s82
      s_add_u32 s14, s14, {WS_HH}
      s_add_u32 {S_HST}, s12, s14
      s_add_u32 {S_HST2}, s13, s14
      s_mul_i32 s12, s15, {HH_PITCH}
      s_add_u32 s12, s12, s82
      s_add_u32 s12, s12, {WS_HH}
      s_lshr_b32 s13, {S_W}, 1
      s_mul_i32 s13, s13, {86 * 1024}
      s_add_u32 s12, s12, s13
      s_and_b32 s13, {S_W}, 1
      s_lshl_b32 s13, s13, 8
      s_add_u32 {S_HLD}, s12, s13
      s_add_u32 s12, {S_W1K}, {L_MODV}
      v_lshl_add_u32 v{V_GB}, {V_G}, 4, s12
      v_lshlrev_b32 v77, 2, {V_LANE}
      v_and_b32 v78, 31, {V_LANE}
      v_lshlrev_b32 v78, 4, v78
      v_lshrrev_b32 v79, 5, {V_LANE}
      v_lshl_add_u32 v78, v79, 11, v78
      s_lshl_b32 s12, {S_W}, 9
      v_add_u32 v78, s12, v78
      v_cvt_f32_u32 v79, v79
      s_add_u32 s12, {S_W1K}, {L_MODV}
      v_add_u32 v76, s12, {V_L16}
      v_lshlrev_b32 v6, 1, v13
      v_xor_b32 v6, v6, v12
      v_lshl_add_u32 v6, v13, 4, v6
      v_lshlrev_b32 v6, 4, v6
      s_mul_i32 s13, {S_W}, 5120
      s_add_u32 s13, s13, {L_HRING}
      v_lshlrev_b32 v12, 5, v13
      v_add_u32 v12, s12, v12
      v_add_u32 v13, s13, v6
      v_lshlrev_b32 v6, 1, {V_G}
      v_xor_b32 v6, v6, {V_C}
      v_lshl_add_u32 v6, {V_G}, 4, v6
      v_lshlrev_b32 v6, 4, v6
      v_add_u32 v14, {L_HRING}, v6""")
MKT = MK
MK = 96
run(mask_items())
run(late_items())
e(f'v_add_u32 v40, {L_MASK}, {V_L16}')
for i in range(4):
    e(f'ds_write_b128 v40, {vr(MK + 4 * i)} offset:{i * 1024}')
e(f'ds_write_b128 {V_L16}, {vr(TRB)} offset:{L_TRB}')
for i in range(4):
    e(f'v_accvgpr_write_b32 a{250 + i}, v{80 + i}')
e('s_add_u32 s18, s16, 32768')
MK = MKT
A.wait_lg()
e(f"""s_bitcmp1_b32 {S_W}, 0
      s_cselect_b32 s92, s56, s52
      s_cselect_b32 s93, s57, s53
      s_mov_b32 s94, {512 * 2752}
      s_mov_b32 s95, s34
      s_mul_i32 {S_TAG}, {S_TAG}, 1664525
      s_add_u32 {S_TAG}, {S_TAG}, 1013904223""")
lx = A.newlabel('L_x')
e(f'''s_cmp_lg_u32 {S_W}, 1
      s_cbranch_scc1 {lx}
      s_and_b32 s12, {S_TAG}, 0xfffffff0
      s_or_b32 s12, s12, {S_XCC}
      s_add_u32 s13, {S_MM4}, {S_GRP}
      s_mov_b64 exec, 1
      v_mov_b32 v6, s12''')
e(f'buffer_store_dword v6, off, {SRD_WS}, s13 sc1', optional=True)
e('s_mov_b64 exec, -1')
A.label(lx)
fine('setup')
lm, lm2, lj = A.newlabel('L_nomod'), A.newlabel('L_nomod'), A.newlabel('L_mj')
e(COND_A + f'\n s_cbranch_scc1 {lm}')
save = (list(A.vm), list(A.done), A.t, A.t_vm, list(A.log))
XL = [(0, j) for j in range(args.x0, 4)] + [(T, j) for T in (1, 2) for j in range(4)]
for T, j in XL:
    xload(T, j)
e(f's_branch {lj}')
A.vm, A.done, A.t, A.t_vm, A.log = save
A.label(lm)
save = list(A.vm)
A.wait_vm('mt')
A.vm = save
run(interleave(mod_part1(MW, 36, 6), [('f', lambda T=T, j=j: xload(T, j)) for T, j in XL], 0, 96, pred=lambda t: True))
A.wait_lg()
e('s_barrier')
e('v_mov_b32 v52, v4\n v_mov_b32 v53, v5')
mod_part2(MW, lm2, 0)
A.label(lm2)
e('v_mov_b32 v4, v52\n v_mov_b32 v5, v53')
A.label(lj)
A.lg = []
stamp('modpub')
e(COND_B + '\n s_cselect_b32 s12, 0, 0x40000000\n v_or_b32 v74, s12, v74\n v_or_b32 v75, s12, v75')
e('v_accvgpr_write_b32 a254, v74\n v_accvgpr_write_b32 a255, v75')
MTB = [([f'buffer_load_dwordx2 v[112:113], v87, {SRD_C}, s33 offen'], 'mtb')] + [([f'buffer_load_dwordx4 {vr(96 + 4 * i)}, v86, {SRD_WMOD}, s{29 + i} offen'], 'mtb') for i in range(4)]
for T in range(3, 5):
    for j in range(4):
        xload(T, j, bg=True)
for k in range(args.pfx):
    for p in PIECES.pop(0):
        gpf(*p)
dma_wqkv(0)
for k in range(args.pfy):
    for p in PIECES.pop(0):
        gpf(*p)
dma_wqkv(1)
for k in range(args.pfz):
    for p in PIECES.pop(0):
        gpf(*p)
dma_wqkv(2)
for k in range(min(args.pf0, len(PIECES))):
    for p in PIECES.pop(0):
        gpf(*p)
A.bg_gap = args.gap0
A.bg_on = True

RS = 64


def unpack(q):
    for d in range(4):
        src = XRAW + 4 * q + d
        lo = XN + 8 * q + 2 * d
        e(f'''v_lshlrev_b32 v{lo}, 16, v{src}
              v_and_b32 v{lo + 1}, {S_HI}, v{src}''')


def scale(q):
    p = vr(RS + 2 * (q % 5), 2)
    for d in range(4):
        lo = XN + 8 * q + 2 * d
        e(f'v_pk_fma_f32 {vr(lo, 2)}, {vr(lo, 2)}, {p}, {p} op_sel:[0,0,1] op_sel_hi:[1,0,1]')


ST = 16
for T in range(5):
    A.wait_vm(f'x{T}')
    if args.s1: stamp(f'x{T}')
    for j in range(4):
        for d in range(4):
            r = XRAW + 4 * (5 * j + T) + d
            first = (j == 0 and d == 0)
            e(f'v_dot2_f32_bf16 v{ST + 2 * T}, v{r}, {S_ONES}, {"0" if first else f"v{ST + 2 * T}"}')
            e(f'v_dot2_f32_bf16 v{ST + 2 * T + 1}, v{r}, v{r}, {"0" if first else f"v{ST + 2 * T + 1}"}')
e(f'''s_lshl_b32 s12, {S_W}, 3
      v_lshrrev_b32 v5, 2, {V_LANE}
      v_lshlrev_b32 v5, 5, v5
      v_add_u32 v4, s12, v5''')
for qp in ('[1,0,3,2]', '[2,3,0,1]'):
    for i in range(10):
        e(f'v_add_f32_dpp v{ST + i}, v{ST + i}, v{ST + i} quad_perm:{qp} row_mask:0xf bank_mask:0xf')
with nobg():
    e('''s_mov_b32 s12, 0x11111111
         s_mov_b32 exec_lo, s12
         s_mov_b32 exec_hi, s12''')
    for T in range(5):
        e(f'ds_write_b64 v4, {vr(ST + 2 * T, 2)} offset:{L_STATS + T * 512}')
    e('s_mov_b64 exec, -1')
for q in range(4):
    unpack(q)
A.wait_lg()
e('s_barrier')
fine('b1')
xcc_ld = f'buffer_load_dword v7, v77, {SRD_WS}, {S_GRP} offen sc1'
front(lambda: [A.bg_add([l], 'm1') for l in mod_loads('v78', 240) + [xcc_ld]])
for T in range(5):
    for h in range(2):
        e(f'ds_read_b128 {vr(16 + 8 * T + 4 * h)}, v5 offset:{L_STATS + T * 512 + h * 16}', tag='st')
for q in range(4, 10):
    unpack(q)
A.wait_lg('st')
e('s_mov_b32 s12, 0x3b000000')
for T in range(5):
    b = 16 + 8 * T
    e(f'''v_pk_add_f32 {vr(b, 2)}, {vr(b, 2)}, {vr(b + 2, 2)}
          v_pk_add_f32 {vr(b + 4, 2)}, {vr(b + 4, 2)}, {vr(b + 6, 2)}
          v_pk_add_f32 {vr(b, 2)}, {vr(b, 2)}, {vr(b + 4, 2)}
          v_pk_mul_f32 {vr(b, 2)}, {vr(b, 2)}, s[12:13] op_sel_hi:[1,0]
          v_fma_f32 v{b + 1}, -v{b}, v{b}, v{b + 1}
          v_max_f32 v{b + 1}, 0, v{b + 1}
          v_add_f32 v{b + 1}, 0x3727c5ac, v{b + 1}
          v_rsq_f32 v{RS + 2 * T}, v{b + 1}''')
for T in range(5):
    e(f'v_mul_f32 v{RS + 2 * T + 1}, -v{16 + 8 * T}, v{RS + 2 * T}')
for q in range(10):
    scale(q)
A.wait_vm('wq0')
e('s_barrier')
fine('b2')
run(tr_wqkv(0))
for q in range(10, 20):
    unpack(q)
    scale(q)
stamp('prenorm')
mod_check('v78', 240, 'm1', 'v76', 'v79')
checked('m1', [xcc_ld], lambda: e(f'''v_xor_b32 v6, {S_TAG}, v7
                                      v_lshrrev_b32 v6, 4, v6
                                      v_cmp_ne_u32 vcc, 0, v6
                                      s_and_b64 vcc, vcc, 0xffff'''))
with nobg():
    e(f'''v_and_b32 v5, 15, v7
          v_cmp_ne_u32 vcc, {S_XCC}, v5
          s_nop 1
          s_and_b64 vcc, vcc, 0xffff
          s_cmp_eq_u64 vcc, 0
          s_cselect_b32 {S_FAST}, {0 if args.slow else 1}, 0
          s_mul_i32 s12, {S_FAST}, {(WS_X1 - WS_O) * args.h2o}
          s_sub_u32 {S_X1ST}, {S_X1ST}, s12
          s_sub_u32 {S_X1LD}, {S_X1LD}, s12''')
stamp('mod')

CS = 64


def cs1_reads(j):
    it = []
    for h in range(2):
        it.append(('i', f'ds_read_b128 {vr(CS + 4 * h)}, v12 offset:{j * 128 + h * 16}', 'cs'))
        it.append(('i', f'ds_read_b128 {vr(CS + 8 + 4 * h)}, v12 offset:{512 + j * 128 + h * 16}', 'cs'))
    return it


def norm1_items(j, pk=False):
    it = [('wl', 'cs')]
    for T in range(5):
        b = XN + 8 * (5 * j + T)
        if pk:
            for i in range(0, 8, 2):
                it.append(('i', f'v_pk_fma_f32 {vr(b + i, 2)}, {vr(b + i, 2)}, {vr(CS + 8 + i, 2)}, {vr(CS + i, 2)}'))
        else:
            for i in range(8):
                it.append(('i', f'v_fma_f32 v{b + i}, v{b + i}, v{CS + 8 + i}, v{CS + i}'))
        for d in range(4):
            it.append(('i', f'v_cvt_pk_bf16_f32 v{b + d}, v{b + 2 * d}, v{b + 2 * d + 1}'))
        it.append(('i', f'ds_write_b128 v13, {vr(b)} offset:{(j % 2) * 20480 + T * 1024}', 'hw'))
    if j < 3:
        it += cs1_reads(j + 1)
    return it


def accQ(T): return 16 + 4 * T
def accK(T): return 32 + 4 * T
def accV(T): return 240 + 4 * T if T < 4 else 52


FR = 192


def rd1(j, pos):
    return [('i', f'ds_read_b128 {ar(FR + (pos % 2) * 20 + 4 * T)}, v14 offset:{(j % 2) * 20480 + (pos * 5 + T) * 1024}', f'f{pos}') for T in range(5)]


def mm1(j, pos):
    it = []
    wb = (j * 4 + pos) * 12
    first = (j == 0 and pos == 0)
    for T in range(5):
        f = ar(FR + (pos % 2) * 20 + 4 * T)
        if T < 4:
            it.append(('i', f'v_mfma_f32_16x16x32_bf16 {vr(accQ(T))}, {ar(wb)}, {f}, {"0" if first else vr(accQ(T))}'))
        it.append(('i', f'v_mfma_f32_16x16x32_bf16 {vr(accK(T))}, {ar(wb + 4)}, {f}, {"0" if first else vr(accK(T))}'))
        it.append(('i', f'v_mfma_f32_16x16x32_bf16 {vr(accV(T))}, {f}, {ar(wb + 8)}, {"0" if first else vr(accV(T))}'))
    return it


A.wait_lg()
run(cs1_reads(0))
e('s_barrier')
run(norm1_items(0, pk=True))
A.wait_vm('wq1')
A.wait_lg('hw')
e('s_barrier')
fine('c0')
e('v_accvgpr_read_b32 v81, a251')
e('v_accvgpr_read_b32 v86, a254\n v_accvgpr_read_b32 v87, a255')
C3[0] = 'v81'
c3(SRD_WO, 0)
A.bg_gap = args.gap1
run(rd1(0, 0))
for j in range(5):
    main = []
    if j > 0:
        main += interleave(mm1(j - 1, 3), rd1(j, 0) if j < 4 else [], 0, 5)
    if j == 4:
        run(main)
        break
    for pos in range(3):
        main += [('wl', [f'f{pos}'] + ([f'trq{pos}'] if j == 3 else []))] + interleave(mm1(j, pos), rd1(j, pos + 1), 0, 5)
    if j != 2:
        tq = tr_wqkv(j + 1 if j < 2 else 3)
        run(tq[:1])
        if j == 3:
            main = interleave(main, tq[1:7], 0, 6)
            main = interleave(main, tq[7:], 6, 24)
        else:
            main = pack(main, tq[1:], 0, -1)
    if j < 3:
        fill = norm1_items(j + 1)
    else:
        fill = lines(f'v_add_u32 v4, {L_MASK}, {V_L16}') + [('i', f'ds_read_b128 {vr(MK + 4 * i)}, v4 offset:{i * 1024}') for i in range(4)]
        fill += [('i', f'ds_read_b128 {vr(TRB)}, {V_L16} offset:{L_TRB}')]
        fill += [('i', f'v_accvgpr_read_b32 v{80 + i}, a{250 + i}') for i in range(4)] + [('i', f'v_mov_b32 v{ONE + r}, {S_ONES}') for r in range(4)] + [('i', f'v_lshlrev_b32 v76, 2, {V_LANE}')]
    if j == 3:
        fill = [('wv', 'mtb')] + mod_part1(96, 200, 216, None, 112, True) + fill
    run(pack(main, fill, 0, -2))
    fine(f'e{j}')
    A.wait_vm(('wq2', 'none', 'wq3', 'none')[j])
    A.wait_lg()
    e('s_barrier')
    fine(f'c{j + 1}')
    if j == 0:
        front(lambda: dma_wqkv(3))
        A.bg[12:12] = MTB
    if j == 1:
        for ks in range(4, 16):
            dma_1k(SRD_WO, V_WOD, ks, L_WO + ks * 4096, 'wo')
        bg_mix(args.pfe2, 3)
        if args.ot:
            touch([], f'v{V_OST}', S_OST)
            touch([f's_add_u32 {S_BT}, {S_OST}, 32768'], f'v{V_OST}', S_BT)
        for p in range(2):
            A.bg_add([f'buffer_load_dwordx4 {vr(XRES + 4 * p)}, v{V_XO}, {SRD_X}, {S_XOFF} offen offset:{p * 64}'], 'xr')
    if j == 3:
        front(lambda: [dma_1k(SRD_WO, V_WOD, ks, L_WO + ks * 4096, 'wo') for ks in range(4)])
        A.bg_add([f'buffer_load_dword {V_DUM}, v76, {SRD_WS}, {S_STST} offen sc1'], 'stt')
        gu_queue()
        bg_mix(3, 3)
with nobg():
    lm = A.newlabel('L_nomod')
    save = (list(A.vm), list(A.lg), A.t, A.t_vm, list(A.done), list(A.log))
    e(COND_B + f'\n s_cbranch_scc0 {lm}')
    mod_part2(96, lm, 3)
    A.label(lm)
    A.vm, A.lg, A.t, A.t_vm, A.done, A.log = save[0] + [(None, True)], *save[1:]
stamp('qkv')

QP, KP, VP = 140, 148, 158
VPOS = {2: 0, 0: 1, 4: 2, 1: 3, 3: 4}
SS, MX, PP, OO, LL, OP = 188, 220, 16, 32, 228, 48
PREV = {0: 4, 1: 4, 2: 0, 3: 1}
PMASK = {0: MK + 8, 1: MK + 12, 2: MK + 4, 3: MK + 4}
VPAIR = {2: 0, 0: 1, 1: 2, 3: 3}
t = ''
for T in range(5):
    for d in range(2):
        if T < 4:
            t += f'v_cvt_pk_bf16_f32 v{QP + 2 * T + d}, v{accQ(T) + 2 * d}, v{accQ(T) + 2 * d + 1}\n'
        t += f'v_cvt_pk_bf16_f32 v{KP + 2 * T + d}, v{accK(T) + 2 * d}, v{accK(T) + 2 * d + 1}\n'
vc = [f'v_cvt_pk_bf16_f32 v{VP + 2 * VPOS[T] + d}, v{accV(T) + 2 * d}, v{accV(T) + 2 * d + 1}\n' for T in range(5) for d in range(2)]
t += vc.pop(0) + vc.pop(0)
for T in (2, 3, 0, 1):
    t += f'v_mfma_f32_16x16x16_bf16 {vr(SS + 8 * T)}, {vr(KP + 2 * T, 2)}, {vr(QP + 2 * T, 2)}, {vr(MK)}\n' + vc.pop(0)
    t += f'v_mfma_f32_16x16x16_bf16 {vr(SS + 8 * T + 4)}, {vr(KP + 2 * PREV[T], 2)}, {vr(QP + 2 * T, 2)}, {vr(PMASK[T])}\n' + vc.pop(0)
t += 's_mov_b32 s12, 0x3eb8aa3b\n'
for T in (2, 3, 0, 1):
    s = SS + 8 * T
    t += f'''v_max3_f32 v{MX + T}, v{s}, v{s + 1}, v{s + 2}
          v_max3_f32 v{MX + 4 + T}, v{s + 3}, v{s + 4}, v{s + 5}
          v_max3_f32 v{MX + T}, v{MX + T}, v{s + 6}, v{s + 7}
          v_max_f32 v{MX + T}, v{MX + T}, v{MX + 4 + T}
          v_mov_b32 v{MX + 4 + T}, v{MX + T}
          '''
for k, sw in enumerate(('v_permlane32_swap_b32', 'v_permlane16_swap_b32')):
    for T in (2, 3, 0, 1):
        t += f'{sw} v{MX + T}, v{MX + 4 + T}\n'
    for T in (2, 3, 0, 1):
        t += f'v_max_f32 v{MX + T}, v{MX + T}, v{MX + 4 + T}\n'
    if k == 0:
        for T in (2, 3, 0, 1):
            t += f'v_mov_b32 v{MX + 4 + T}, v{MX + T}\n'
for T in range(4):
    t += f'v_mul_f32 v{MX + T}, s12, v{MX + T}\n'


def fin(T):
    x = f'v_rcp_f32 v{LL + 4 * T}, v{LL + 4 * T}\n'
    p = vr(LL + 4 * T, 2)
    y = ''
    for i in (0, 2):
        y += f'v_pk_mul_f32 {vr(OO + 4 * T + i, 2)}, {vr(OO + 4 * T + i, 2)}, {p} op_sel_hi:[1,0]\n'
    for d in range(2):
        y += f'v_cvt_pk_bf16_f32 v{OP + 2 * T + d}, v{OO + 4 * T + 2 * d}, v{OO + 4 * T + 2 * d + 1}\n'
    return x, y


for T in range(4):
    s = SS + 8 * T
    for i in range(8):
        t += f'v_fma_f32 v{s + i}, v{s + i}, s12, -v{MX + T}\n'
    for i in range(8):
        t += f'v_exp_f32 v{s + i}, v{s + i}\n'
    if T > 0:
        t += fin(T - 1)[0]
    curfirst = T in (0, 2)
    for d in range(2):
        t += f'v_cvt_pk_bf16_f32 v{PP + 4 * T + (0 if curfirst else 2) + d}, v{s + 2 * d}, v{s + 2 * d + 1}\n'
        t += f'v_cvt_pk_bf16_f32 v{PP + 4 * T + (2 if curfirst else 0) + d}, v{s + 4 + 2 * d}, v{s + 4 + 2 * d + 1}\n'
    if T > 0:
        t += fin(T - 1)[1]
    t += f'v_mfma_f32_16x16x32_bf16 {vr(LL + 4 * T)}, {vr(ONE)}, {vr(PP + 4 * T)}, 0\n'
    t += f'v_mfma_f32_16x16x32_bf16 {vr(OO + 4 * T)}, {vr(VP + 2 * VPAIR[T])}, {vr(PP + 4 * T)}, 0\n'


def wo_reg(ks, ct, hf=None):
    if 4 <= ks < 14:
        b, f = 96 + (ks - 4) * 16 + ct * 4, ar
    else:
        b, f = 160 + (ks if ks < 4 else ks - 10) * 16 + ct * 4, vr
    return f(b) if hf is None else f(b + 2 * hf, 2)


def tr_wo(ks):
    return [('i', f'ds_read_b64_tr_b16 {wo_reg(ks, ct, hf)}, v{TRB + ct} offset:{ks * 4096 + hf * 512}', f'trw{ks}')
            for ct in range(4) for hf in range(2)]


tl = lines(t)
A.bg_gap = args.gapa
run(tl[:args.acut])
A.bg_flush(upto=['wo', 'xr', 'tch'])
A.bg_on = False
run(tl[args.acut:])
for d in range(2):
    e(f'v_permlane16_swap_b32 v{OP + d}, v{OP + 2 + d}')
e(f's_add_u32 s16, {S_OST}, 32768')
stores([f'buffer_store_dwordx4 {vr(OP)}, v{V_OST}, {SRD_WS}, {S_OST} offen'], 'ost', plain=args.ot)
e(fin(3)[0] + fin(3)[1])
for d in range(2):
    e(f'v_permlane16_swap_b32 v{OP + 4 + d}, v{OP + 6 + d}')
stores([f'buffer_store_dwordx4 {vr(OP + 4)}, v{V_OST}, {SRD_WS}, s16 offen'], 'ost', plain=args.ot)
fine('ost')
if args.stop1:
    stamp('end')
    e(f'''s_waitcnt vmcnt(0)
          s_lshl_b32 s12, s2, 2
          s_add_u32 s12, s12, {S_W}
          s_lshl_b32 s12, s12, 8
          s_add_u32 s12, s12, {WS_STAMP}
          v_lshlrev_b32 v4, 2, {V_LANE}
          buffer_store_dword {V_STAMP}, v4, {SRD_WS}, s12 offen
          s_endpgm''')
    args.stamps = False
    keep_names = list(stamp_names)
A.bg_flush(args.b1)
A.wait_vm('xr')
for p in range(2):
    for d in range(2):
        e(f'v_permlane16_swap_b32 v{XRES + 4 * p + d}, v{XRES + 4 * p + 2 + d}')
e(f'''s_add_u32 s17, {S_OLD}, 4096
      s_add_u32 s18, {S_OLD}, 8192
      s_add_u32 s19, {S_OLD}, 12288
      v_bfe_u32 v16, {V_LANE}, 2, 2
      v_lshrrev_b32 v17, 5, {V_LANE}
      v_lshl_add_u32 v16, v17, 2, v16
      v_mul_u32_u24 v16, 192, v16
      v_and_b32 v18, 1, {V_G}
      v_mul_u32_u24 v19, {MAT1}, v18
      v_and_b32 v4, 3, {V_LANE}
      v_lshlrev_b32 v4, 3, v4
      v_add3_u32 v16, v16, v19, v4
      s_lshl_b32 s12, {S_W}, 5
      s_add_u32 s12, s12, {L_S}
      s_lshr_b32 s13, {S_W}, 1
      s_lshl_b32 s13, s13, 5
      s_add_u32 s13, s13, {L_S + 128}
      v_add_u32 v20, s12, v16
      v_add_u32 v21, s13, v16
      v_add_u32 v22, {3 * BLK}, v20
      v_add_u32 v23, {3 * BLK}, v21
      v_lshlrev_b32 v18, 10, v18
      v_lshl_add_u32 v18, v17, 8, v18
      v_lshl_add_u32 v18, {V_C}, 4, v18
      s_and_b32 s12, {S_W}, 1
      s_lshl_b32 s12, s12, 12
      s_xor_b32 s13, s12, 4096
      s_add_u32 s12, s12, {L_H2}
      s_add_u32 s13, s13, {L_H2}
      v_add_u32 v13, s12, v18
      v_add_u32 v14, s13, v18                   ; slots 2,3''')
OA, GA, X1A, X1P = 96, 32, 64, 24
publish_flag(64, 'ost')
A.bg_flush(args.b1d)
e(poll_ld(64), tag='poll')
for l in mod_loads('v80', 64):
    e(l, tag='m3')
stamp('opub')
for ks in range(4, 12):
    run(tr_wo(ks))
poll_check(64)
stamp('owait')


KORD = list(range(4, 16)) + [0, 1, 2, 3]
rest = list(A.bg)
gu_pre(gu_done())
A.bg = [([f'buffer_load_dwordx4 {vr(OA + 4 * n)}, {V_L16}, {SRD_WS}, {(S_OLD, "s17", "s18", "s19")[ks // 4]} offen offset:{(ks % 4) * 1024} sc1'], f'o{n}') for n, ks in enumerate(KORD)]
run(interleave([x for ks in (12, 13, 14, 15, 0, 1, 2, 3) for x in tr_wo(ks)], [('f', lambda: A.bg_flush(1))] * 12, pred=lambda t: True))
mod_check('v80', 64, 'm3', 'v82', 'v83')
for ct in range(4):
    e(f'ds_read_b128 {vr(GA + 4 * ct)}, v{V_GB} offset:{ct * 64}', tag='ga')
e('s_barrier')
gu_post(False)
mv = movers(6)
A.bg += rest[:args.b1c]
rest = rest[args.b1c:]
for n, ks in enumerate(KORD):
    A.wait_vm(f'o{n}')
    A.wait_lg(f'trw{ks}')
    for ct in range(4):
        e(f'v_mfma_f32_16x16x32_bf16 {vr(X1A + 4 * ct)}, {wo_reg(ks, ct)}, {vr(OA + 4 * n)}, {"0" if n == 0 else vr(X1A + 4 * ct)}')
        if ct == 0 and A.bg and (A.bg[0][1].startswith(('o', 'm')) or A.room()):
            A.bg_flush(1)
        if n >= 4 and mv:
            run([mv.pop(0)])
    if n == 12:
        XF = OA + 16
        for i in range(8):
            e(f'''v_lshlrev_b32 v{XF + 2 * i}, 16, v{XRES + i}
                  v_and_b32 v{XF + 2 * i + 1}, {S_HI}, v{XRES + i}''')
run(mv)
A.bg += rest
gu_pre(gu_done())
A.wait_lg()
e('s_barrier')
gu_post()
fine('omm')
for b in range(0, 16, 2):
    e(f'v_pk_fma_f32 {vr(X1A + b, 2)}, {vr(X1A + b, 2)}, {vr(GA + b, 2)}, {vr(XF + b, 2)}')
for i in range(8):
    e(f'v_cvt_pk_bf16_f32 v{X1P + i}, v{X1A + 2 * i}, v{X1A + 2 * i + 1}')
for i in range(8):
    e(f'v_dot2_f32_bf16 v48, v{X1P + i}, {S_ONES}, {"0" if i == 0 else "v48"}')
    e(f'v_dot2_f32_bf16 v49, v{X1P + i}, v{X1P + i}, {"0" if i == 0 else "v49"}')


def rowsum2(a, b):
    e(f'''v_permlane32_swap_b32 v{a}, v{b}
          v_add_f32 v{a}, v{a}, v{b}
          v_mov_b32 v{b}, v{a}
          v_permlane16_swap_b32 v{a}, v{b}
          v_add_f32 v{a}, v{a}, v{b}
          v_mov_b32 v{b}, v{a}
          v_permlane32_swap_b32 v{a}, v{b}''')


e(f'v_mov_b32 v50, {S_TAG}\n v_mov_b32 v51, {S_TAG}')
rowsum2(48, 49)
e('s_mov_b64 exec, 0xffff')
stores([f'buffer_store_dwordx4 v[48:51], {V_L16}, {SRD_WS}, {S_STST} offen'], 'sst', plain=True)
e('s_mov_b64 exec, -1')
fine('sst')
A.bg_flush(args.b2a)
SPT = 144
for i in range(8):
    e(f'''v_lshlrev_b32 v{X1A + 2 * i}, 16, v{X1P + i}
          v_and_b32 v{X1A + 2 * i + 1}, {S_HI}, v{X1P + i}''')
SB, CB, GB = 112, 128, 32
for ct in range(4):
    e(f'ds_read_b128 {vr(SB + 4 * ct)}, v{V_GB} offset:{256 + ct * 64}', tag='ga')
    e(f'ds_read_b128 {vr(CB + 4 * ct)}, v{V_GB} offset:{512 + ct * 64}', tag='ga')
    e(f'ds_read_b128 {vr(GB + 4 * ct)}, v{V_GB} offset:{768 + ct * 64}', tag='ga')
run(movers())
for l in st_loads(SPT):
    e(l, tag='st')
A.bg_flush(args.b2)
checked('st', st_loads(SPT), lambda: e(f'''v_cmp_ne_u32 vcc, {S_TAG}, v{SPT + 2}
                                          v_cmp_ne_u32 s[12:13], {S_TAG}, v{SPT + 6}
                                          s_or_b64 vcc, vcc, s[12:13]'''))
fine('stw')
e(f'v_pk_add_f32 {vr(SPT, 2)}, {vr(SPT, 2)}, {vr(SPT + 4, 2)}')
rowsum2(SPT, SPT + 1)
e(f'''s_mov_b32 s12, 0x3b000000
      v_pk_mul_f32 {vr(SPT, 2)}, {vr(SPT, 2)}, s[12:13] op_sel_hi:[1,0]
      v_fma_f32 v{SPT + 1}, -v{SPT}, v{SPT}, v{SPT + 1}
      v_max_f32 v{SPT + 1}, 0, v{SPT + 1}
      v_add_f32 v{SPT + 1}, 0x3727c5ac, v{SPT + 1}
      v_rsq_f32 v{SPT + 2}, v{SPT + 1}
      v_mul_f32 v{SPT + 3}, -v{SPT}, v{SPT + 2}''')
A.wait_lg()
p = vr(SPT + 2, 2)
H2P = 48
for half in range(2):
    for b in range(8 * half, 8 * half + 8, 2):
        e(f'v_pk_fma_f32 {vr(X1A + b, 2)}, {vr(X1A + b, 2)}, {p}, {p} op_sel:[0,0,1] op_sel_hi:[1,0,1]')
    for b in range(8 * half, 8 * half + 8, 2):
        e(f'v_pk_fma_f32 {vr(X1A + b, 2)}, {vr(X1A + b, 2)}, {vr(CB + b, 2)}, {vr(SB + b, 2)}')
    for i in range(4 * half, 4 * half + 4):
        e(f'v_cvt_pk_bf16_f32 v{H2P + i}, v{X1A + 2 * i}, v{X1A + 2 * i + 1}')
    stores([f'buffer_store_dwordx4 {vr(H2P + 4 * half)}, {V_L16}, {SRD_WS}, {S_X1ST} offen offset:{half * 1024}'], 'xst', plain=args.h2o)
A.bg_flush(args.b2b)
publish_flag(128, 'xst')
GU.pend = gu_done()
gu_post(True)
e(poll_ld(128), tag='poll')
A.bg_flush(args.b2c)
run(movers())
stamp('x1pub')

le, lep, lok = A.newlabel('L_ep'), A.newlabel('L_epp'), A.newlabel('L_eok')
save = (list(A.vm), list(A.done), A.t, A.t_vm, list(A.log))
e(f'''s_xor_b32 s12, {S_W}, 3
      s_or_b32 s12, s2, s12
      s_cmp_lg_u32 s12, 0
      s_cbranch_scc1 {le}
      v_lshrrev_b32 v4, 2, {V_LANE}
      v_lshlrev_b32 v4, 20, v4
      v_and_b32 v5, 3, {V_LANE}
      v_lshl_add_u32 v4, v5, 4, v4
      s_mov_b32 s12, {WS_GRP}''')
A.label(lep)
e(f'buffer_load_dwordx4 v[200:203], v4, {SRD_WS}, s12 offen sc1')
A.wait_vm()
for i in range(4):
    e(f'v_xor_b32 v{200 + i}, {S_TAG}, v{200 + i}')
e(f'''v_or3_b32 v5, v200, v201, v202
      v_or_b32 v5, v5, v203
      v_lshrrev_b32 v5, 4, v5
      v_cmp_ne_u32 vcc, 0, v5
      s_cbranch_vccz {lok}''')
spin_fail(lep)
A.label(lok)
e(f'''v_mov_b32 v5, {S_TAG}
      s_mov_b64 exec, 1''')
e(f's_mov_b32 s12, {WS_EPOCH}')
e(f'buffer_store_dword v5, off, {SRD_WS}, s12 sc1')
e('s_mov_b64 exec, -1')
A.label(le)
A.vm, A.done, A.t, A.t_vm, A.log = save
A.vm += [(None, True)]
e('v_mov_b32 v12, v81')
C3[0] = 'v12'
poll_check(128)
stamp('x1wait')


def dma_h2(q):
    for tt in range(4):
        A.bg_add([f's_add_u32 m0, {S_H2M}, {(q % 4) * 16384 + tt * 1024}', f's_add_u32 {S_BT}, {S_X1LD}, {tt * 16384 + q * 2048}',
                  f'buffer_load_dwordx4 {V_L16}, {SRD_WS}, {S_BT} offen sc1 lds'], f'y{q}')


front(lambda: [dma_h2(q) for q in range(args.y0)])
A.bg_flush(4 * args.y0)
rest = list(A.bg)
A.bg = []
for q in range(args.y0, 4):
    A.bg += rest[:args.b2d]
    rest = rest[args.b2d:]
    dma_h2(q)
A.bg += rest
A.bg_gap = args.gap4
A.bg_on = True
ACC4, FB = 64, 160


def rd4(q, st):
    pos, par = st // 2, st % 2
    return [('i', f'ds_read_b128 {vr(FB + 16 * (st % 2) + 4 * i)}, v{13 + i // 2} offset:{(q % 4) * 16384 + pos * 8192 + (i % 2) * 2048 + par * 512}', f'g{st}') for i in range(4)]


def mm4(q, st):
    first = (q == 0 and st == 0)
    wb = 16 * (2 * q + st // 2) + 8 * (st % 2)
    mm = []
    for k in range(6):
        acc = vr(ACC4 + 16 * k, 16)
        mm.append(('i', f'v_mfma_f32_32x32x16_bf16 {acc}, {ar(wb + 4 * (k // 4))}, {vr(FB + 16 * (st % 2) + 4 * (k % 4))}, {"0" if first else acc}'))
    return mm


WD_ADDR = {}


def wd_blocks(ks0, n, addr):
    for k in range(n):
        WD_ADDR[ks0 + k] = addr + k * 4096
        dma_1k(SRD_WD, V_WDD, ks0 + k, addr + k * 4096, f'wd{ks0 + k}')


def hh_touch(k):
    so = (S_HST, S_HST, S_HST2, S_HST2, 's18', 's18')[k]
    touch([f's_add_u32 {S_BT}, {so}, {(k % 2) * 86 * 1024}'], V_L16, S_BT, 0, 'v[252:255]')


e(f'''s_lshr_b32 s14, {S_W}, 1
      s_add_u32 s14, s14, 4
      s_sub_u32 s14, s14, {S_W}
      s_lshl_b32 s14, s14, 10
      s_sub_u32 s13, {S_NU}, 2
      s_mul_i32 s14, s14, s13
      s_add_u32 s18, {S_HST}, s14''')
def gu_est():
    n = GU.landed
    while n < GU.queued and f'p4w{n}' not in {t for l, t in A.bg} and A.tagdone[f'p4w{n}'] <= A.t + args.slack:
        n += 1
    return n


A.wait_vm('y0')
gu_pre(max(gu_done(), gu_est(), 2))
A.wait_lg()
e('s_barrier')
gu_post()
fine('d0')
run(rd4(0, 0) + movers(1))
wdn = 0
def glu(k, pk):
    b = ACC4 + 16 * k
    t = ''
    if pk:
        for r in range(0, 8, 2):
            t += f'v_pk_mul_f32 {vr(b + r, 2)}, {vr(b + r, 2)}, s[14:15] op_sel_hi:[1,0]\n'
    else:
        for r in range(8):
            t += f'v_mul_f32 v{b + r}, s14, v{b + r}\n'
    for r in range(8):
        t += f'v_exp_f32 v{b + r}, v{b + r}\n'
    if pk:
        for r in range(0, 8, 2):
            t += f'v_pk_add_f32 {vr(b + r, 2)}, {vr(b + r, 2)}, 1.0 op_sel_hi:[1,0]\n'
    else:
        for r in range(8):
            t += f'v_add_f32 v{b + r}, 1.0, v{b + r}\n'
    for r in range(8):
        t += f'v_rcp_f32 v{b + r}, v{b + r}\n'
    if pk:
        for r in range(0, 8, 2):
            t += f'v_pk_mul_f32 {vr(b + r, 2)}, {vr(b + r, 2)}, {vr(b + 8 + r, 2)}\n'
    else:
        for r in range(8):
            t += f'v_mul_f32 v{b + r}, v{b + r}, v{b + 8 + r}\n'
    for d in range(4):
        t += f'v_cvt_pk_bf16_f32 v{b + d}, v{b + 2 * d}, v{b + 2 * d + 1}\n'

    def st():
        st_ = f'buffer_store_dwordx4 {vr(b)}, {V_L16}, {SRD_WS}, {(S_HST, "s16", S_HST2, "s17", "s18", "s19")[k]} offen'
        if k >= 4:
            with nobg():
                ls = A.newlabel('L_sk')
                e(f's_cmp_lt_u32 {S_NU}, 3\n s_cbranch_scc1 {ls}')
                stores([st_], 'hst', optional=True, plain=args.ht)
                A.label(ls)
        else:
            stores([st_], 'hst', plain=args.ht)
    return lines(t) + [('f', st)]


NREG = 16
e(f'''s_mov_b32 s14, 0xbfb8aa3b
      s_add_u32 s16, {S_HST}, {86 * 1024}
      s_add_u32 s17, {S_HST2}, {86 * 1024}
      s_add_u32 s19, s18, {86 * 1024}''')
QL = 8 - args.tailq
NT = 4 * args.tailq


def rdt(i, u):
    q, st = QL + u // 4, u % 4
    n = (i * NT + u) % 8
    return ('i', f'ds_read_b128 {vr(FB + 32 + 4 * n)}, v{13 + i // 2} offset:{(q % 4) * 16384 + (st // 2) * 8192 + (i % 2) * 2048 + (st % 2) * 512}', f'r{i}_{u}')


def after_bar4(q):
    global wdn
    if q < 4:
        dma_h2(q + 4)
    if q < 3:
        c3(SRD_WD, q)
    if GU.freed >= 12 and wdn == 0:
        wd_blocks(0, 7, L_S + 13 * 4096)
        wdn = 7
    if GU.freed == 16 and wdn == 7:
        wd_blocks(7, 13, L_S)
        wdn = 20


for q in range(QL):
    main = []
    for st in range(3):
        main += [('wl', [f'g{st}', f'mv{2 * q + st // 2}'])] + interleave(mm4(q, st), rd4(q, st + 1), 0, 4)
    if q < 6 and args.ht:
        hh_touch(q)
        if True:
            A.bg.insert(min(len(A.bg) - 1, 4), A.bg.pop())
    run(interleave(main, movers(), 0, 10))
    last = q == QL - 1
    A.wait_vm('y7' if last else f'y{q + 1}')
    gu_pre(16 if last else max(gu_done(), gu_est(), 2 * q + 4))
    A.wait_lg()
    e('s_barrier')
    gu_post()
    if q % 2:
        fine(f'd{(q + 1) // 2}')
    after_bar4(q)
    if q >= 4:
        wd_blocks(20 + 4 * (q - 4), 4, L_H2 + (q - 4) * 16384)
    run(interleave(mm4(q, 3), (movers() + [rdt(0, u) for u in range(4)]) if last else (rd4(q + 1, 0) + movers(2 * q + 3)), 0, 5))
seq = [(i, u) for i in range(4) for u in range(NT)]
pend = []
for i in range(4):
    main = []
    for u in range(NT):
        n = i * NT + u
        ks, par = 2 * QL + u // 2, u % 2
        main.append(('wl', [f'r{i}_{u}', f'mv{ks}']))
        for k in ([4 + i, i] if i < 2 else [i]):
            acc = vr(ACC4 + 16 * k, 16)
            main.append(('i', f'v_mfma_f32_32x32x16_bf16 {acc}, {ar(16 * ks + 8 * par + 4 * (k // 4))}, {vr(FB + 32 + 4 * (n % 8))}, {acc}'))
        if n + 4 < len(seq):
            main.append(rdt(*seq[n + 4]))
    nm = sum(1 for it in main if it[0] == 'i' and it[1].startswith('v_mfma'))
    take = min(len(pend), (nm - 2) * args.gper)
    run(interleave(main, pend[:take], 2))
    pend = pend[take:]
    if i == 0 or i == 3:
        A.wait_lg()
        e('s_barrier')
        GU.pend = 16
        gu_post()
        after_bar4(7)
        if i == 3:
            q0 = max(QL, 4)
            wd_blocks(20 + 4 * (q0 - 4), 17 - 4 * (q0 - 4), L_H2 + (q0 - 4) * 16384)
    if i == args.gcut:
        A.bg.sort(key=lambda it: int(it[1][2:]))
        A.bg_flush(upto=f'wd{NREG - 1}')
        A.bg_on = False
    if i < 3:
        for k in ([4 + i, i] if i < 2 else [i]):
            pend += glu(k, args.gper == 0)
assert wdn == 20
stamp('gemm4')
A.bg.sort(key=lambda it: int(it[1][2:]))
run(pend)
run(glu(3, True))
fine('hst')
A.bg_flush(args.b4)
run(lines(tr_bases_t(16, f'''v_lshrrev_b32 v42, 1, {V_G}
          v_lshlrev_b32 v42, 4, v42
          v_and_b32 v43, 1, {V_G}
          v_lshl_add_u32 v42, v43, 2, v42
          v_add_u32 v42, v42, v40''', 'v_and_b32 v43, 6, v42', 0).replace('v40', 'v4').replace('v41', 'v5').replace('v42', 'v6').replace('v43', 'v7')))
for ct in range(4):
    e(f'v_add_u32 v{48 + ct}, 0x10000, v{16 + ct}')
    e(f'v_add_u32 v{52 + ct}, 0x20000, v{16 + ct}')
e(f'''v_lshrrev_b32 v11, 1, {V_G}
      v_lshlrev_b32 v11, 10, v11
      v_and_b32 v5, 1, {V_G}
      v_lshl_add_u32 v11, v5, 9, v11
      v_lshl_add_u32 v11, {V_C}, 4, v11''')
publish_flag(192, ['hst', f'wd{NREG - 1}'])
e(poll_ld(192), tag='poll')
stamp('hpub')


def wd_addr(ks, ct, hf):
    off = WD_ADDR[ks] + hf * 1024
    return f'v{(16, 48, 52)[off >> 16] + ct} offset:{off & 0xffff}'


def tr_wd(ks):
    return [('i', f'ds_read_b64_tr_b16 {ar((ks % 16) * 16 + ct * 4 + hf * 2, 2)}, {wd_addr(ks, ct, hf)}', f't{ks}')
            for ct in range(4) for hf in range(2)]


A.bg_flush(args.b5)
for ks in range(8):
    run(tr_wd(ks))
poll_check(192)
stamp('hwait')
HA, ACC5 = 80, 64
hl = [([f's_add_u32 {S_BT}, {S_HLD}, {ks * 2048}', f'buffer_load_dwordx4 {vr(HA + 4 * ks)}, v11, {SRD_WS}, {S_BT} offen sc1'], f'h{ks}') for ks in range(43)]
rest = list(A.bg)
A.bg = hl[:args.hfirst]
A.bg_flush()
A.wait_lg()
e('s_barrier')
A.bg = rest
wd_blocks(37, 6, L_S + 13 * 4096)
A.bg += hl[args.hfirst:]
A.bg_gap = args.gap5
A.bg_on = True
for ks in range(8, NREG):
    run(tr_wd(ks))
issued = NREG
for ks in range(43):
    if ks == args.kbar:
        A.wait_vm('wd42')
        e('s_barrier')
        fine('wdall')
    A.wait_vm(f'h{ks}')
    A.wait_lg(f't{ks}')
    go = ks >= args.kbar and issued < 43 and issued - 16 <= ks
    for ct in range(4):
        e(f'v_mfma_f32_16x16x32_bf16 {vr(ACC5 + 4 * ct)}, {ar((ks % 16) * 16 + ct * 4)}, {vr(HA + 4 * ks)}, {"0" if ks == 0 else vr(ACC5 + 4 * ct)}')
        if go:
            run(tr_wd(issued)[2 * ct:2 * ct + 2])
    if go:
        issued += 1
    if ks == 30:
        XF5 = 80
        for i in range(8):
            e(f'''v_lshlrev_b32 v{XF5 + 2 * i}, 16, v{X1P + i}
                  v_and_b32 v{XF5 + 2 * i + 1}, {S_HI}, v{X1P + i}''')
assert issued == 43
A.bg_on = False
stamp('gemm5')
for b in range(0, 16, 2):
    e(f'v_pk_fma_f32 {vr(ACC5 + b, 2)}, {vr(ACC5 + b, 2)}, {vr(GB + b, 2)}, {vr(XF5 + b, 2)}')
for i in range(8):
    e(f'v_cvt_pk_bf16_f32 v{X1P + i}, v{ACC5 + 2 * i}, v{ACC5 + 2 * i + 1}')
for p in range(2):
    for d in range(2):
        e(f'v_permlane16_swap_b32 v{X1P + 4 * p + d}, v{X1P + 4 * p + 2 + d}')
for p in range(2):
    e(f'buffer_store_dwordx4 {vr(X1P + 4 * p)}, v{V_XO}, {SRD_OUT}, {S_XOFF} offen offset:{p * 64} {args.outm}')
if args.stamps:
    stamp('end')
    e(f'''s_lshl_b32 s12, s2, 2
          s_add_u32 s12, s12, {S_W}
          s_lshl_b32 s12, s12, 8
          s_add_u32 s12, s12, {WS_STAMP}
          v_lshlrev_b32 v4, 2, {V_LANE}
          buffer_store_dword {V_STAMP}, v4, {SRD_WS}, s12 offen''')
A.label('L_giveup')
e('s_endpgm')
assert not A.bg and not PIECES

nn = A.pad_hazards()
hdr = open(f'cdna_kernels/{NAME}.s.ref').read().split('; Override launch')[0]
wrap = lambda body: hdr + f'''; @launch grid=(256,1,1) block=(256,1,1) lds={LDS_TOTAL}
.amdgcn_target "amdgcn-amd-amdhsa--gfx950"
.text
.globl {NAME}_kernel
.p2align 8
.type {NAME}_kernel,@function
{NAME}_kernel:
''' + body + f'''.rept 256
    s_endpgm
.endr
L_codeend:
.section .rodata,"a"
.p2align 6
.amdhsa_kernel {NAME}_kernel
  .amdhsa_next_free_vgpr 512
  .amdhsa_next_free_sgpr 102
  .amdhsa_accum_offset 256
  .amdhsa_group_segment_fixed_size 0
  .amdhsa_kernarg_size 96
  .amdhsa_user_sgpr_count 2
  .amdhsa_user_sgpr_kernarg_segment_ptr 1
  .amdhsa_system_sgpr_workgroup_id_x 1
.end_amdhsa_kernel
'''
if args.align:
    print('align', align_pass(A, wrap, args.align), file=sys.stderr)
out = wrap(A.text())
if args.stamps or args.stop1:
    out += '; stamps: ' + ','.join(stamp_names) + '\n'
open(args.o, 'w').write(out)
if args.vlog:
    ev = sorted([(t, 'S', n) for n, t in model] + [(t, 'V', f'{tag}->{c}') for t, c, tag in A.log])
    print(' '.join((f'\n=={n}@{int(t)}==' if k == 'S' else f'{int(t)}:{n}') for t, k, n in ev), file=sys.stderr)
print('nvm', len(A.log), file=sys.stderr)
print('model: ' + ' '.join(f'{n}:{int(t)}' for n, t in model), file=sys.stderr)
print(f'wrote {args.o}: {len(A.ins)} instructions, {nn} hazard nops', file=sys.stderr)
```
